```python
import torch

def _softmax(x, axis=-1):
    return torch.softmax(x, dim=axis)

def _gelu(x):
    return torch.nn.functional.gelu(x, approximate='tanh')

def _silu(x):
    return torch.nn.functional.silu(x)

def _sigmoid(x):
    return torch.sigmoid(x)

def _layernorm(x, axis=-1, eps=1e-05):
    m = x.mean(dim=axis, keepdim=True)
    v = x.var(dim=axis, keepdim=True, unbiased=False)
    return (x - m) / torch.sqrt(v + eps)

def _scatter_add(tgt, idx, src, axis=0):
    return tgt.clone().index_add_(axis, idx, src)

def _segment_sum(src, seg, n):
    out = torch.zeros((n,) + src.shape[1:], dtype=src.dtype)
    return out.index_add_(0, seg, src)

def _pad(x, pw):
    flat = tuple((v for pair in reversed(pw) for v in pair))
    return torch.nn.functional.pad(x, flat)
kernel_name = 'recurrent_scan__softmax_full_mha__mixer_gmlp__prompt'

def setup_inputs():

    _w = lambda a: (lambda t: t.to(torch.bfloat16) if t.is_floating_point() else t)(torch.as_tensor(a))

    def _A_setup():
        B, S, D = (1, 2048, 512)
        return {'x': _w((lambda *s: torch.randn(*s, dtype=torch.bfloat16) * 0.05)(B, S, D)), 'wqkv': _w((lambda *s: torch.randn(*s, dtype=torch.bfloat16) * 0.05)(D, 3 * D)), 'wo': _w((lambda *s: torch.randn(*s, dtype=torch.bfloat16) * 0.05)(D, D))}
    _A_in = _A_setup()

    def _B_setup():
        B, S, D, F = (1, 2048, 512, 1792)
        Fh = F // 2
        return {'x': _w((lambda *s: torch.randn(*s, dtype=torch.bfloat16) * 0.05)(B, S, D)), 'w_in': _w((lambda *s: torch.randn(*s, dtype=torch.bfloat16) * 0.8)(D, 2 * Fh)), 'w_sp': _w(0.01 * (lambda *s: torch.randn(*s, dtype=torch.bfloat16) * 0.8)(S, S)), 'b_sp': _w(1.0 + 0.01 * (lambda *s: torch.randn(*s, dtype=torch.bfloat16) * 0.05)(S)), 'w_out': _w((lambda *s: torch.randn(*s, dtype=torch.bfloat16) * 0.05)(Fh, D))}
    _B_in = _B_setup()
    return {'A_x': _A_in['x'], 'A_wqkv': _A_in['wqkv'], 'A_wo': _A_in['wo'], 'B_x': _B_in['x'], 'B_w_in': _B_in['w_in'], 'B_w_sp': _B_in['w_sp'], 'B_b_sp': _B_in['b_sp'], 'B_w_out': _B_in['w_out']}

def reference(A_x, A_wqkv, A_wo, B_x, B_w_in, B_w_sp, B_b_sp, B_w_out):

    def _A_ref(x, wqkv, wo):
        B, S, D = x.shape
        H = 32
        Dh = D // H
        qkv = (lambda x, *d: x.permute(*d))((x @ wqkv).reshape(B, S, 3, H, Dh), 2, 0, 3, 1, 4)
        q, k, v = (qkv[0], qkv[1], qkv[2])
        scale = Dh ** (-0.5)
        scores = torch.einsum('bhqd,bhkd->bhqk', q, k) * scale
        p = _softmax(scores, axis=-1)
        o = torch.einsum('bhqk,bhkd->bhqd', p, v)
        return (lambda x, *d: x.permute(*d))(o, 0, 2, 1, 3).reshape(B, S, D) @ wo

    def _B_ref(x, w_in, w_sp, b_sp, w_out):
        B, S, D = x.shape
        F = w_in.shape[-1]
        Fh = F // 2
        z = _gelu(torch.einsum('bsd,df->bsf', x, w_in))
        z1 = z[..., :Fh].clone()
        z2 = _layernorm(z[..., Fh:], axis=-1)
        g = torch.einsum('ts,bsf->btf', w_sp, z2) + b_sp[None, :, None]
        return torch.einsum('bsf,fd->bsd', z1 * g, w_out)
    x = A_x
    xn = _layernorm(x, axis=-1)
    s = _A_ref(xn, A_wqkv, A_wo)
    g = _silu(_B_ref(xn, B_w_in, B_w_sp, B_b_sp, B_w_out))
    return x + s * g
```

```python
import re

TRANS = ("v_exp_", "v_log_", "v_rcp_", "v_rsq_", "v_sqrt_", "v_sin_", "v_cos_")
REG_RE = re.compile(r"^(-|abs\()?([vsa])(\d+|\[(\d+):(\d+)\])\)?$")


def parse_reg(tok):
    tok = tok.strip()
    if tok.startswith("-"):
        tok = tok[1:]
    if tok.startswith("abs(") and tok.endswith(")"):
        tok = tok[4:-1]
    if tok.startswith("|") and tok.endswith("|"):
        tok = tok[1:-1]
    m = re.match(r"^([vsa])(\d+)$", tok)
    if m:
        return [(m.group(1), int(m.group(2)))]
    m = re.match(r"^([vsa])\[(\d+):(\d+)\]$", tok)
    if m:
        return [(m.group(1), i) for i in range(int(m.group(2)), int(m.group(3)) + 1)]
    if tok == "vcc":
        return [("s", 106), ("s", 107)]
    if tok == "vcc_lo":
        return [("s", 106)]
    if tok == "vcc_hi":
        return [("s", 107)]
    if tok == "exec":
        return [("x", 0), ("x", 1)]
    if tok == "exec_lo":
        return [("x", 0)]
    if tok == "exec_hi":
        return [("x", 1)]
    if tok == "m0":
        return [("m", 0)]
    return []


class Ins:
    __slots__ = ("text", "mn", "ops", "mods", "kind", "rd", "wr", "passes", "srcA", "srcB", "srcC", "target",
                 "tag", "want", "dpp", "is_trans", "is_dot", "nopv", "store_data", "lds_dma", "comment", "pre")

    def __init__(self, text, tag=None):
        self.text = text
        self.tag = tag
        self.want = None
        self.pre = []
        t = text.split(";")[0].strip()
        parts = t.split(None, 1)
        self.mn = parts[0]
        rest = parts[1] if len(parts) > 1 else ""
        ops, cur, depth = [], "", 0
        for ch in rest:
            if ch in "[(":
                depth += 1
            if ch in "])":
                depth -= 1
            if ch == "," and depth == 0:
                ops.append(cur.strip())
                cur = ""
            else:
                cur += ch
        if cur.strip():
            ops.append(cur.strip())
        self.mods = ""
        if ops:
            last = ops[-1]
            depth = 0
            for i, ch in enumerate(last):
                if ch in "[(":
                    depth += 1
                if ch in "])":
                    depth -= 1
                if ch == " " and depth == 0:
                    self.mods = last[i + 1:]
                    ops[-1] = last[:i]
                    break
        self.ops = ops
        self.classify()

    def classify(self):
        mn, ops = self.mn, self.ops
        R = [parse_reg(o) for o in ops]
        self.rd, self.wr = set(), set()
        self.passes = 0
        self.srcA = self.srcB = self.srcC = set()
        self.target = None
        self.dpp = "_dpp" in mn or "row_" in self.mods or "quad_perm" in self.mods
        self.is_trans = mn.startswith(TRANS)
        self.is_dot = mn.startswith("v_dot")
        self.nopv = 1
        self.store_data = set()
        self.lds_dma = False
        allr = lambda idxs: set(x for i in idxs if i < len(R) for x in R[i])
        n = len(ops)
        if mn.startswith("v_mfma"):
            self.kind = "mfma"
            self.passes = 8 if "32x32" in mn else 4
            self.wr = allr([0])
            self.srcA, self.srcB, self.srcC = allr([1]), allr([2]), allr([3])
            self.rd = self.srcA | self.srcB | self.srcC
        elif mn.startswith("v_"):
            self.kind = "valu"
            if mn.startswith("v_cmp"):
                self.wr = allr([0])
                self.rd = allr(range(1, n))
            elif mn.startswith(("v_permlane16_swap", "v_permlane32_swap", "v_swap")):
                self.wr = allr([0, 1])
                self.rd = allr([0, 1])
            elif mn.startswith(("v_add_co", "v_sub_co", "v_addc_co", "v_subb_co", "v_mad_u64", "v_div_scale")):
                self.wr = allr([0, 1])
                self.rd = allr(range(2, n))
            else:
                self.wr = allr([0])
                self.rd = allr(range(1, n))
                if mn.startswith(("v_fmac", "v_dot2c", "v_pk_fmac", "v_writelane", "v_mac")) or self.dpp:
                    self.rd |= allr([0])
                if mn.startswith("v_cndmask") and n == 3:
                    self.rd |= {("s", 106), ("s", 107)}
            if mn == "v_nop":
                self.wr, self.rd = set(), set()
        elif mn.startswith(("buffer_", "global_")):
            self.kind = "vmem"
            mods = self.mods.split()
            if mn in ("buffer_inv", "buffer_wbl2"):
                pass
            elif "lds" in mods or "_lds_" in mn:
                self.lds_dma = True
                self.rd = allr(range(0, n)) | {("m", 0)}
            elif "_load" in mn:
                self.wr = allr([0])
                self.rd = allr(range(1, n))
            elif "_store" in mn:
                self.rd = allr(range(0, n))
                di = 0 if mn.startswith("buffer_") else 1
                if "x3" in mn or "x4" in mn:
                    self.store_data = allr([di])
            elif "_atomic" in mn:
                self.rd = allr(range(0, n))
                if "sc0" in mods:
                    self.wr = allr([0])
            else:
                raise ValueError("unknown vmem " + self.text)
        elif mn.startswith("ds_"):
            self.kind = "ds"
            if mn.startswith(("ds_read", "ds_bpermute", "ds_permute", "ds_swizzle")) or "_rtn" in mn:
                self.wr = allr([0])
                self.rd = allr(range(1, n))
            else:
                self.rd = allr(range(0, n))
        elif mn.startswith(("s_load", "s_buffer_load", "s_memtime", "s_memrealtime")):
            self.kind = "smem"
            self.wr = allr([0])
            self.rd = allr(range(1, n))
        elif mn.startswith(("s_branch", "s_cbranch")):
            self.kind = "branch"
            self.target = ops[0]
            if "vcc" in mn:
                self.rd = {("s", 106), ("s", 107)}
        elif mn == "s_endpgm":
            self.kind = "end"
        elif mn == "s_nop":
            self.kind = "nop"
            self.nopv = int(ops[0], 0) + 1
        elif mn == "s_waitcnt":
            self.kind = "wait"
        elif mn in ("s_barrier", "s_setprio", "s_sleep"):
            self.kind = "misc"
        elif mn.startswith("s_"):
            self.kind = "salu"
            if mn.startswith(("s_cmp", "s_bitcmp")):
                self.rd = allr(range(0, n))
            else:
                self.wr = allr([0])
                self.rd = allr(range(1, n))
                if "saveexec" in mn:
                    self.wr |= {("x", 0), ("x", 1)}
                if mn.startswith(("s_addk", "s_mulk", "s_cmov")):
                    self.rd |= allr([0])
        else:
            raise ValueError("unknown instr " + self.text)


class Label:
    def __init__(self, name):
        self.name = name


class Raw:
    def __init__(self, text):
        self.text = text


def hazard(p, c):
    need = 0
    pv = {r for r in p.wr if r[0] in "va"}
    ps = {r for r in p.wr if r[0] == "s"}
    if p.kind == "valu":
        if c.kind == "mfma" and pv & c.rd:
            need = max(need, 2)
        if c.kind == "valu":
            if p.is_trans and not c.is_trans and pv & c.rd:
                need = max(need, 1)
            if c.mn.startswith(("v_readlane", "v_readfirstlane")) and pv & c.rd:
                need = max(need, 1)
            if (c.dpp or c.mn.startswith("v_permlane")) and pv & c.rd:
                need = max(need, 2)
            if ps & c.rd:
                need = max(need, 4 if c.mn.startswith(("v_readlane", "v_writelane")) else 2)
            if p.is_dot and (pv & (c.rd | c.wr)):
                if not (c.mn == p.mn and not (pv & (set(parse_reg(c.ops[1])) | set(parse_reg(c.ops[2]))))):
                    need = max(need, 3)
            if ("op_sel" in p.mods and not p.mn.startswith("v_pk")) or "sdwa" in p.mn:
                if pv & (c.rd | c.wr):
                    need = max(need, 1)
        if p.is_dot and c.kind in ("mfma", "vmem", "ds") and pv & (c.rd | c.wr):
            need = max(need, 3)
        if c.kind == "vmem" and ps & c.rd:
            need = max(need, 5)
        if c.kind == "branch" and ps & c.rd:
            need = max(need, 5)
        if c.kind in ("salu", "smem") and ps & c.rd:
            need = max(need, 1)
    if p.kind == "mfma":
        big = 12 if p.passes == 8 else 8
        if c.kind == "mfma":
            if pv & (c.srcA | c.srcB):
                need = max(need, big)
            if pv & c.srcC:
                if not (c.srcC == pv and c.mn == p.mn):
                    need = max(need, p.passes + 2)
            elif pv & c.wr:
                need = max(need, p.passes + 2)
        elif c.kind in ("valu", "vmem", "ds"):
            if pv & (c.rd | c.wr):
                need = max(need, big)
        if c.kind == "valu" and p.srcC & c.wr:
            need = max(need, 7 if p.passes == 8 else 3)
        if c.kind in ("ds", "vmem") and p.srcC & c.wr:
            need = max(need, 7 if p.passes == 8 else 3)
    if p.kind == "salu":
        if ("m", 0) in p.wr and (c.lds_dma or "addtid" in c.mn):
            need = max(need, 1)
    if p.kind == "vmem" and p.store_data:
        if p.store_data & c.wr:
            need = max(need, 2 if c.kind == "valu" else 1)
    return need


class Kernel:
    def __init__(self, name):
        self.name = name
        self.items = []
        self.uid = 0

    def __call__(self, text, tag=None):
        for line in text.strip().split("\n"):
            line = line.strip()
            if not line or line.startswith(";"):
                continue
            if line.endswith(":") and " " not in line:
                self.items.append(Label(line[:-1]))
            elif line.startswith("."):
                self.items.append(Raw(line))
            else:
                self.items.append(Ins(line, tag))

    def label(self, name):
        self.items.append(Label(name))

    def newlabel(self, base="L"):
        self.uid += 1
        return f"{self.name}_{base}{self.uid}"

    def wait_tag(self, tag, extra=""):
        i = Ins("s_waitcnt vmcnt(0)")
        i.want = ("vmtag", tag)
        self.items.append(i)

    def build_cfg(self):
        ins = [it for it in self.items if isinstance(it, Ins)]
        idx = {}
        lab = {}
        k = 0
        for it in self.items:
            if isinstance(it, Label):
                lab[it.name] = k
            elif isinstance(it, Ins):
                k += 1
        n = len(ins)
        succ = [[] for _ in range(n)]
        pred = [[] for _ in range(n)]
        for i, x in enumerate(ins):
            if x.kind == "end":
                continue
            if x.kind == "branch":
                t = lab[x.target]
                succ[i].append(t)
                if x.mn != "s_branch" and i + 1 < n:
                    succ[i].append(i + 1)
            elif i + 1 < n:
                succ[i].append(i + 1)
        for i in range(n):
            for s in succ[i]:
                if s < n:
                    pred[s].append(i)
        return ins, succ, pred

    def insert_waits(self):
        ins, succ, pred = self.build_cfg()
        n = len(ins)
        CAP = 64
        IN = [None] * n
        IN[0] = ({}, {}, frozenset())
        work = [0]
        need = [None] * n

        def merge(a, b):
            if a is None:
                return b, True
            ch = False
            out = []
            for da, db in zip(a[:2], b[:2]):
                d = dict(da)
                for k, v in db.items():
                    if k not in d or v < d[k]:
                        d[k] = v
                        ch = True
                out.append(d)
            sm = a[2] | b[2]
            if sm != a[2]:
                ch = True
            return (out[0], out[1], sm), ch

        def parse_wait(x):
            vm = lg = None
            m = re.search(r"vmcnt\((\d+)\)", x.text)
            if m:
                vm = int(m.group(1))
            m = re.search(r"lgkmcnt\((\d+)\)", x.text)
            if m:
                lg = int(m.group(1))
            return vm, lg

        iters = 0
        while work:
            iters += 1
            if iters > 2000000:
                raise RuntimeError("waitcnt dataflow does not converge")
            i = work.pop()
            x = ins[i]
            vm, lg, sm = IN[i]
            vm, lg = dict(vm), dict(lg)
            touched = x.rd | x.wr
            nv = nl = None
            if x.want and x.want[0] == "vmtag":
                for k, v in vm.items():
                    if ins[k].tag == x.want[1]:
                        nv = v if nv is None else min(nv, v)
                if nv is None:
                    nv = 63
            elif x.kind == "wait":
                nv, nl = parse_wait(x)
            else:
                for k, v in vm.items():
                    if ins[k].wr & touched:
                        nv = v if nv is None else min(nv, v)
                for k, v in lg.items():
                    if ins[k].wr & touched:
                        nl = v if nl is None else min(nl, v)
                for k in sm:
                    if ins[k].wr & touched:
                        nl = 0
                if nl is not None and sm:
                    nl = 0
            if x.kind != "wait" or x.want:
                if need[i] is not None:
                    ov, ol = need[i]
                    if ov is not None:
                        nv = ov if nv is None else min(nv, ov)
                    if ol is not None:
                        nl = ol if nl is None else min(nl, ol)
                if nv is not None:
                    nv = min(nv, 63)
                if nl is not None:
                    nl = min(nl, 15)
                need[i] = (nv, nl)
            if nv is not None:
                vm = {k: v for k, v in vm.items() if v < nv}
            if nl is not None:
                if nl == 0:
                    lg, sm = {}, frozenset()
                elif not sm:
                    lg = {k: v for k, v in lg.items() if v < nl}
            if x.kind == "vmem" and x.mn not in ("buffer_inv", "buffer_wbl2"):
                vm = {k: min(v + 1, CAP) for k, v in vm.items()}
                vm[i] = 0
            elif x.kind == "ds":
                lg = {k: min(v + 1, CAP) for k, v in lg.items()}
                lg[i] = 0
            elif x.kind == "smem":
                sm = sm | {i}
            out = (vm, lg, sm)
            for s in succ[i]:
                if s >= n:
                    continue
                new, ch = merge(IN[s], out)
                if ch:
                    IN[s] = new
                    work.append(s)
        for i, x in enumerate(ins):
            if need[i] is None:
                continue
            nv, nl = need[i]
            if x.want:
                x.text = f"s_waitcnt vmcnt({nv})"
                continue
            if nv is None and nl is None:
                continue
            parts = []
            if nv is not None:
                parts.append(f"vmcnt({nv})")
            if nl is not None:
                parts.append(f"lgkmcnt({nl})")
            x.pre.append(Ins("s_waitcnt " + " ".join(parts)))
        self.flatten()

    def flatten(self):
        out = []
        for it in self.items:
            if isinstance(it, Ins) and it.pre:
                out.extend(it.pre)
                it.pre = []
            out.append(it)
        self.items = out

    def insert_nops(self):
        ins, succ, pred = self.build_cfg()
        n = len(ins)
        extra = [0] * n
        MAXD = 13
        for i in range(n):
            c = ins[i]
            if c.kind in ("nop", "wait", "misc", "end"):
                continue
            worst = 0
            stack = [(p, 0) for p in pred[i]]
            seen = {}
            while stack:
                j, d = stack.pop()
                if d >= MAXD:
                    continue
                if j in seen and seen[j] <= d:
                    continue
                seen[j] = d
                p = ins[j]
                h = hazard(p, c)
                if h > d:
                    worst = max(worst, h - d)
                nd = d + p.nopv + extra[j]
                for q in pred[j]:
                    stack.append((q, nd))
            if worst:
                extra[i] = worst
                w = worst
                while w > 0:
                    k = min(w, 16)
                    c.pre.append(Ins(f"s_nop {k-1}"))
                    w -= k
        self.flatten()

    def finish(self):
        self.insert_waits()
        self.insert_nops()

    def maxregs(self):
        mv = ms = ma = -1
        for it in self.items:
            if isinstance(it, Ins):
                for k, r in it.rd | it.wr:
                    if k == "v":
                        mv = max(mv, r)
                    elif k == "s" and r < 106:
                        ms = max(ms, r)
                    elif k == "a":
                        ma = max(ma, r)
        return mv + 1, ms + 1, ma + 1

    def text(self):
        out = [f".globl {self.name}", ".p2align 8", f".type {self.name},@function", f"{self.name}:"]
        for it in self.items:
            if isinstance(it, Label):
                out.append(f"{it.name}:")
            elif isinstance(it, Raw):
                out.append(it.text)
            else:
                out.append("    " + it.text)
        return "\n".join(out) + "\n"

    def descriptor(self, min_vgpr=0):
        nv, ns, na = self.maxregs()
        nv = max(nv, min_vgpr, 4)
        acc = (nv + 3) // 4 * 4
        tot = acc + na if na else nv
        return f""".p2align 6
.amdhsa_kernel {self.name}
  .amdhsa_next_free_vgpr {tot}
  .amdhsa_next_free_sgpr {max(ns, 16)}
  .amdhsa_accum_offset {acc}
  .amdhsa_group_segment_fixed_size 0
  .amdhsa_kernarg_size 88
  .amdhsa_user_sgpr_count 2
  .amdhsa_user_sgpr_kernarg_segment_ptr 1
  .amdhsa_system_sgpr_workgroup_id_x 1
.end_amdhsa_kernel
"""


def vr(lo, n=1):
    return f"v{lo}" if n == 1 else f"v[{lo}:{lo+n-1}]"


def sr(lo, n=1):
    return f"s{lo}" if n == 1 else f"s[{lo}:{lo+n-1}]"


def interleave(*streams):
    streams = [s for s in streams if s]
    idx = [0] * len(streams)
    out = []
    tot = sum(len(s) for s in streams)
    for _ in range(tot):
        best = min((i for i in range(len(streams)) if idx[i] < len(streams[i])),
                   key=lambda i: (idx[i] + 0.5) / len(streams[i]))
        out.append(streams[best][idx[best]])
        idx[best] += 1
    return out


def build_file(header_comment, launches, kernels):
    out = [header_comment.rstrip()]
    for (k, g, b, lds) in launches:
        out.append(f"; @launch kernel={k} grid=({g},1,1) block=({b},1,1) lds={lds}")
    out.append('.amdgcn_target "amdgcn-amd-amdhsa--gfx950"')
    out.append(".text")
    for k in kernels:
        out.append(k.text())
    out.append('.section .rodata,"a"')
    for k in kernels:
        out.append(k.descriptor(getattr(k, "min_vgpr", 0)))
    return "\n".join(out)
```

```python
import os
import struct
from asmlib import *
from layout import *

X = set(os.environ.get('K1X', '').split(','))
STAGE = 43008
O_W = 16384
O_P6 = 40960
L_R, L_M, L_CS = 3 * STAGE, 3 * STAGE + 512, 3 * STAGE + 1024
LDS_K1 = 131072

vLane = 1
vDX, vDW, vDP = 2, 4, 7
vAA, vAB, vAP = 8, 10, 12
vLQ, vLK, vLV = 13, 14, 15
vT = 16
ACC = 24
FA = 80
FB = 96
vE = 152
vOnes = vE
vCSD = vE + 4
vRow = vE + 32
vRS = vE + 32
vPoll = vE + 36
vTag = vE + 37
vGA = vE + 38
vGC = vE + 40
vGR = vE + 56
L_TAG = 3 * 43008 + 1920
L_S2 = 0

sWS, sXS, sWW, sWI, sDBG = 4, 8, 12, 16, 20
sW, sRG, sRB, sCG, sOdd = 24, 25, 26, 27, 28
sKX, sKW, sKI, sPit = 29, 30, 31, 32
sMX, sMW, sMP = 33, 34, 35
sZ1, sZ2, sT32, sRSo = 36, 37, 38, 39
sQm = 40
sT = 44
sSpin = 61

C0 = -2.0 * 1.4426950408889634 * 0.7978845608028654
C1 = C0 * 0.044715
QS = 0.25 * 1.4426950408889634


def f32(x):
    return "0x%08x" % struct.unpack("<I", struct.pack("<f", x))[0]


STAMP = False


def stamp(k, i):
    if STAMP:
        k(f"s_memtime {sr(64+2*i,2)}\ns_waitcnt lgkmcnt(0)")


def stamp_store(k, n):
    if not STAMP:
        return
    k(f"s_lshl_b32 s62, s2, 3\ns_add_u32 s62, s62, s{sW}\ns_lshl_b32 s62, s62, 5\ns_add_u32 s62, s62, {WS_STAMP}")
    for i in range(n):
        k(f"s_sub_u32 s63, s{64+2*i}, s64\nv_mov_b32 v{vT}, s63\nv_mov_b32 v{vT+1}, 0\nbuffer_store_dword v{vT}, v{vT+1}, {sr(sWS,4)}, s62 offen offset:{4*i}")


def mfma16(d, a, b, c):
    cs = "0" if c is None else vr(c, 4)
    return f"v_mfma_f32_16x16x32_bf16 {vr(d,4)}, {vr(a,4)}, {vr(b,4)}, {cs}"


def tiles(role):
    if role == "A":
        return [(0, 0, "q", 1), (0, 1, "q", 1), (1, 0, "k", 1), (1, 1, "k", 1), (2, 0, "v", 0), (2, 1, "v", 0), (6, 0, "z1", 1)]
    flex = (5, 1, "z2", 0) if role == "Bodd" else (5, 1, "z1", 1)
    return [(4, 0, "z2", 0), (4, 1, "z2", 0), (5, 0, "z2", 0), flex, (3, 0, "z1", 1), (3, 1, "z1", 1)]


def dma(k, p):
    base = (p % 3) * STAGE
    out = []
    out.append(f"s_add_u32 m0, s{sMX}, {base}\ns_nop 0\nbuffer_load_dwordx4 v{vDX}, {sr(sXS,4)}, s{sKX} offen lds")
    out.append(f"s_add_u32 m0, s{sMX}, {base+1024}\ns_nop 0\nbuffer_load_dwordx4 v{vDX+1}, {sr(sXS,4)}, s{sKX} offen lds\n"
               f"s_add_u32 s{sKX}, s{sKX}, 128\ns_and_b32 s{sKX}, s{sKX}, 1023")
    for j in range(3):
        out.append(f"s_add_u32 m0, s{sMW}, {base+1024*j}\ns_nop 0\nbuffer_load_dwordx4 v{vDW+j}, {sr(sWW,4)}, s{sKW} offen lds")
    out.append(f"s_add_u32 m0, s{sMP}, {base}\ns_mov_b64 exec, {sr(sQm,2)}\nbuffer_load_dwordx4 v{vDP}, {sr(sWI,4)}, s{sKI} offen lds\n"
               f"s_mov_b64 exec, -1\n"
               f"s_add_u32 s{sKW}, s{sKW}, s{sPit}\ns_add_u32 s{sKI}, s{sKI}, {64*3584}\n"
               f"s_cmp_eq_u32 s{sKX}, 0\ns_cselect_b32 s{sKW}, 0, s{sKW}\ns_cselect_b32 s{sKI}, 0, s{sKI}")
    return out


def reads(role, ks, buf):
    out = []
    for rt in range(2):
        out.append(f"ds_read_b128 {vr(FA+8*buf+4*rt,4)}, v{vAA+ks} offset:{rt*2048}")
    for t, (pn, ct, kind, sw) in enumerate(tiles(role)):
        d = FB + 28 * buf + 4 * t
        for q in range(2):
            if pn == 6:
                out.append(f"ds_read_b64_tr_b16 {vr(d+2*q,2)}, v{vAP} offset:{O_P6+ks*1024+q*256}")
            else:
                out.append(f"ds_read_b64_tr_b16 {vr(d+2*q,2)}, v{vAB+ct} offset:{O_W+pn*4096+ks*2048+q*256}")
    return out


def mms(role, buf, first):
    out = []
    for t, (pn, ct, kind, sw) in enumerate(tiles(role)):
        for rt in range(2):
            a, b = FA + 8 * buf + 4 * rt, FB + 28 * buf + 4 * t
            if sw:
                a, b = b, a
            d = ACC + 8 * t + 4 * rt
            out.append(mfma16(d, a, b, None if first else d))
    return out


def dpp_rowsum(k, regs):
    for sh in (8, 4, 2, 1):
        for r in regs:
            k(f"v_add_f32_dpp v{r}, v{r}, v{r} row_ror:{sh} row_mask:0xf bank_mask:0xf")


def gather_loads():
    e = ""
    for j in range(4):
        e += f"buffer_load_dwordx4 {vr(vGC+4*j,4)}, v{vGA}, {sr(sWS,4)}, 0 offen offset:{16*j} sc0 sc1\n"
    e += f"buffer_load_dwordx4 {vr(vGR,4)}, v{vGA+1}, {sr(sWS,4)}, 0 offen sc0 sc1\n"
    return e


def check_tags(k, regs, Lok, tmp):
    k(f"v_xor_b32 v{tmp}, v{regs[0]}, v{vTag}")
    rest = regs[1:]
    for r in rest:
        k(f"v_xor_b32 v{tmp+1}, v{r}, v{vTag}\nv_or_b32 v{tmp}, v{tmp}, v{tmp+1}")
    k(f"v_cmp_ne_u32 vcc, 0, v{tmp}\ns_cmp_eq_u64 vcc, 0\ns_cbranch_scc1 {Lok}")


def main_loop(k, role):
    nt = len(tiles(role))
    tbase = 0 if role == "A" else 7
    t0, t1 = vT, vT + 1
    for p in range(8):
        k.wait_tag(("st", p))
        k("s_waitcnt lgkmcnt(0)\ns_barrier")
        if p > 0:
            step = STAGE if p % 3 else -2 * STAGE
            for r in (vAA, vAA + 1, vAB, vAB + 1, vAP):
                k(f"v_add_u32 v{r}, {step & 0xffffffff:#x}, v{r}")
        dm = dma(k, p + 2) if p + 2 < 8 else []
        extra = []
        if p == 1:
            k(f"v_mov_b32 v{t0}, {L_TAG}\nds_read_b32 v{vTag}, v{t0}")
            L = k.newlabel("nocsst")
            e = f"""
            v_mov_b32 v{vRS+1}, v{vTag}
            v_mov_b32 v{vRS+3}, v{vTag}
            v_mov_b32 v{t0}, 0
            s_mov_b64 exec, 1
            buffer_store_dwordx4 {vr(vRS,4)}, v{t0}, {sr(sWS,4)}, s{sRSo} offen sc0 sc1
            s_mov_b64 exec, -1
            s_cmp_lg_u32 s{sRG}, 0
            s_cbranch_scc1 {L}
            s_mul_i32 s{sT}, s{sCG}, {208*128}
            s_lshl_b32 s{sT+1}, s{sRB}, 3
            s_add_u32 s{sT}, s{sT}, s{sT+1}
            s_add_u32 s{sT}, s{sT}, {WS_CS + tbase*2048}
            v_lshlrev_b32 v{t0}, 7, v{vLane}
            """
            for t in range(nt):
                e += f"v_mov_b32 v{vCSD+4*t+1}, v{vTag}\n"
            e += f"s_mov_b64 exec, {sr(sQm,2)}\n"
            for t in range(nt):
                if t and t % 2 == 0:
                    e += f"s_add_u32 s{sT}, s{sT}, 4096\n"
                e += f"buffer_store_dwordx2 {vr(vCSD+4*t,2)}, v{t0}, {sr(sWS,4)}, s{sT} offen offset:{(t%2)*2048} sc0 sc1\n"
            e += f"s_mov_b64 exec, -1\n{L}:\n"
            extra.append(e)
        if p == 6:
            extra.append(gather_loads())
        r0 = reads(role, 0, 0)
        m1 = mms(role, 1, False) if p > 0 else []
        seq = interleave(r0, m1, [("dma", a) for a in dm[:3]])
        emit(k, seq, p + 2)
        for a in extra:
            k(a)
        r1 = reads(role, 1, 1)
        m0 = mms(role, 0, p == 0)
        seq = interleave(r1, m0, [("dma", a) for a in dm[3:]])
        emit(k, seq, p + 2)
        if p == 0:
            for t in range(nt):
                k(mfma16(vCSD + 4 * t, vOnes, FB + 4 * t, None))
            if role == "A":
                Ls, Lr, Lok = k.newlabel("notag"), k.newlabel("tagpoll"), k.newlabel("tagok")
                k(f"""
                s_cmp_lg_u32 s{sW}, 0
                s_cbranch_scc1 {Ls}
                v_readfirstlane_b32 s{sT}, v{vPoll}
                s_cmp_lg_u32 s{sT}, 0
                s_cbranch_scc1 {Lok}
                {Lr}:
                s_sleep 2
                buffer_load_dword v{vPoll}, v{vTag}, {sr(sDBG,4)}, 0 offen sc0 sc1
                v_readfirstlane_b32 s{sT}, v{vPoll}
                s_cmp_lg_u32 s{sT}, 0
                s_cbranch_scc1 {Lok}
                s_sub_u32 s{sSpin}, s{sSpin}, 1
                s_cbranch_scc0 {Lr}
                {Lok}:
                v_mov_b32 v{t0}, {L_TAG}
                ds_write_b32 v{t0}, v{vPoll}
                {Ls}:
                """)
    for a in mms(role, 1, False):
        k(a)


def emit(k, seq, stage):
    for a in seq:
        if isinstance(a, tuple):
            k(a[1], tag=("st", stage))
        else:
            k(a)


def gelu(k, regs, tmp):
    n = len(regs)
    for r, t in zip(regs, tmp):
        k(f"v_mul_f32 v{t}, v{r}, v{r}")
    for r, t in zip(regs, tmp):
        k(f"v_fma_f32 v{t}, v{t}, s{sT+10}, v{vT+7}")
    for r, t in zip(regs, tmp):
        k(f"v_mul_f32 v{t}, v{t}, v{r}")
    for r, t in zip(regs, tmp):
        k(f"v_exp_f32 v{t}, v{t}")
    for r, t in zip(regs, tmp):
        k(f"v_add_f32 v{t}, 1.0, v{t}")
    for r, t in zip(regs, tmp):
        k(f"v_rcp_f32 v{t}, v{t}")
    for r, t in zip(regs, tmp):
        k(f"v_mul_f32 v{r}, v{r}, v{t}")


def epilogue(k, role):
    tl = tiles(role)
    tbase = 0 if role == "A" else 7
    t0, t1, t2, t3 = vT, vT + 1, vT + 2, vT + 3
    tagregs = [vGC + 2 * j + 1 for j in range(8)] + [vGR + 1, vGR + 3]
    Lr, Lok = k.newlabel("g1"), k.newlabel("g1ok")
    check_tags(k, tagregs, Lok, t0)
    k(f"{Lr}:\ns_sleep 2")
    k(gather_loads())
    check_tags(k, tagregs, Lok, t0)
    k(f"s_sub_u32 s{sSpin}, s{sSpin}, 1\ns_cbranch_scc0 {Lr}\n{Lok}:")
    k(f"""
    v_add_f32 v{vGC}, v{vGC}, v{vGC+2}
    v_add_f32 v{vGC+4}, v{vGC+4}, v{vGC+6}
    v_add_f32 v{vGC+8}, v{vGC+8}, v{vGC+10}
    v_add_f32 v{vGC+12}, v{vGC+12}, v{vGC+14}
    v_add_f32 v{vGC}, v{vGC}, v{vGC+4}
    v_add_f32 v{vGC+8}, v{vGC+8}, v{vGC+12}
    v_add_f32 v{vGC}, v{vGC}, v{vGC+8}
    v_add_f32_dpp v{vGC}, v{vGC}, v{vGC} quad_perm:[1,0,3,2] row_mask:0xf bank_mask:0xf
    s_mul_i32 s{sT}, s{sW}, 104
    v_min_u32 v{t0}, 51, v{vLane}
    v_lshrrev_b32 v{t0}, 1, v{t0}
    v_lshlrev_b32 v{t0}, 2, v{t0}
    v_add_u32 v{t0}, s{sT}, v{t0}
    v_add_u32 v{t0}, {L_CS}, v{t0}
    ds_write_b32 v{t0}, v{vGC}
    v_and_b32 v{t1}, 15, v{vLane}
    s_lshl_b32 s{sT}, s{sW}, 6
    s_add_u32 s{sT}, s{sT}, {L_R}
    v_lshlrev_b32 v{t1}, 2, v{t1}
    v_add_u32 v{t2}, s{sT}, v{t1}
    ds_write_b32 v{t2}, v{vGR}
    ds_write_b32 v{t2}, v{vGR+2} offset:512
    s_waitcnt lgkmcnt(0)
    s_barrier
    """)
    vRs, vMs = FA, FA + 2
    vRn, vMn = FB, FB + 8
    vCS = FB + 16
    vTmp = FB + 44
    k(f"""
    s_lshl_b32 s{sT}, s{sRG}, 7
    s_add_u32 s{sT}, s{sT}, {L_R}
    v_add_u32 v{t2}, s{sT}, v{t1}                ; + n*4
    ds_read_b32 v{vRs}, v{t2}
    ds_read_b32 v{vRs+1}, v{t2} offset:64
    ds_read_b32 v{vMs}, v{t2} offset:512
    ds_read_b32 v{vMs+1}, v{t2} offset:576
    v_lshrrev_b32 v{t3}, 4, v{vLane}
    v_lshlrev_b32 v{t3}, 4, v{t3}                ; g*16 bytes
    v_add_u32 v{t2}, s{sT}, v{t3}
    ds_read_b128 {vr(vRn,4)}, v{t2}
    ds_read_b128 {vr(vRn+4,4)}, v{t2} offset:64
    ds_read_b128 {vr(vMn,4)}, v{t2} offset:512
    ds_read_b128 {vr(vMn+4,4)}, v{t2} offset:576
    v_add_u32 v{t1}, {L_CS}, v{t1}
    v_add_u32 v{t3}, {L_CS}, v{t3}
    """)
    for t, (pn, ct, kind, sw) in enumerate(tl):
        if sw:
            k(f"ds_read_b128 {vr(vCS+4*t,4)}, v{t3} offset:{(tbase+t)*64}")
        else:
            k(f"ds_read_b32 v{vCS+4*t}, v{t1} offset:{(tbase+t)*64}")
    k(f"s_mov_b32 s{sT+10}, {f32(C1)}\nv_mov_b32 v{vT+7}, {f32(C0)}")

    def fold(t, sw):
        for rt in range(2):
            for i in range(4):
                a = ACC + 8 * t + 4 * rt + i
                if sw:
                    k(f"v_mul_f32 v{a}, v{a}, v{vRs+rt}")
                    k(f"v_fma_f32 v{a}, -v{vMs+rt}, v{vCS+4*t+i}, v{a}")
                else:
                    k(f"v_mul_f32 v{a}, v{a}, v{vRn+4*rt+i}")
                    k(f"v_fma_f32 v{a}, -v{vMn+4*rt+i}, v{vCS+4*t}, v{a}")

    def pack_store(t, lane_reg, soff, rt_off):
        for rt in range(2):
            a = ACC + 8 * t + 4 * rt
            k(f"v_cvt_pk_bf16_f32 v{a}, v{a}, v{a+1}")
            k(f"v_cvt_pk_bf16_f32 v{a+1}, v{a+2}, v{a+3}")
            k(f"buffer_store_dwordx2 {vr(a,2)}, v{lane_reg}, {sr(sWS,4)}, s{soff} offen offset:{rt*rt_off}")

    def z1_tile(t, zoff):
        fold(t, 1)
        gelu(k, [ACC + 8 * t + i for i in range(8)], [vTmp + i for i in range(8)])
        k(f"s_mul_i32 s{sT}, s{sT32}, 56\ns_add_u32 s{sT}, s{sT}, s{sZ1}\ns_add_u32 s{sT}, s{sT}, {zoff}\n"
          f"s_lshl_b32 s{sT}, s{sT}, 10\ns_add_u32 s{sT}, s{sT}, {WS_Z1}")
        pack_store(t, vLQ, sT, 256)

    if role == "A":
        k(f"s_lshl_b32 s{sT+2}, s{sCG}, 17\ns_lshl_b32 s{sT+3}, s{sT32}, 10\ns_add_u32 s{sT+2}, s{sT+2}, s{sT+3}")
        k(f"s_mov_b32 s{sT+11}, {f32(QS)}")
        for t, (pn, ct, kind, sw) in enumerate(tl):
            if kind == "z1":
                z1_tile(t, 0)
                continue
            fold(t, sw)
            if kind == "q":
                for i in range(8):
                    k(f"v_mul_f32 v{ACC+8*t+i}, s{sT+11}, v{ACC+8*t+i}")
            base = {"q": WS_Q, "k": WS_K, "v": WS_V}[kind] + ct * 65536
            k(f"s_add_u32 s{sT}, s{sT+2}, {base}")
            pack_store(t, {"q": vLQ, "k": vLK, "v": vLV}[kind], sT, 512 if kind == "v" else 256)
        return
    k("s_setprio 2")
    z2t = [t for t, x in enumerate(tl) if x[2] == "z2"]
    vS = vE
    for t in z2t:
        fold(t, 0)
        gelu(k, [ACC + 8 * t + i for i in range(8)], [vTmp + i for i in range(8)])
        for j in range(8):
            a = ACC + 8 * t + j
            if t == z2t[0]:
                k(f"v_mov_b32 v{vS+2*j}, v{a}\nv_mul_f32 v{vS+2*j+1}, v{a}, v{a}")
            else:
                k(f"v_add_f32 v{vS+2*j}, v{vS+2*j}, v{a}\nv_fmac_f32 v{vS+2*j+1}, v{a}, v{a}")
    D = "row_mask:0xf"
    for v in range(8):
        k(f"v_add_f32_dpp v{vS+v}, v{vS+v}, v{vS+v} row_ror:8 {D} bank_mask:0x3")
    for v in range(8):
        k(f"v_add_f32_dpp v{vS+v}, v{vS+v+8}, v{vS+v+8} row_ror:8 {D} bank_mask:0xc")
    for v in range(4):
        k(f"v_add_f32_dpp v{vS+v}, v{vS+v}, v{vS+v} row_ror:12 {D} bank_mask:0x5")
    for v in range(4):
        k(f"v_add_f32_dpp v{vS+v}, v{vS+v+4}, v{vS+v+4} row_ror:4 {D} bank_mask:0xa")
    for v in range(4):
        k(f"v_add_f32_dpp v{vS+v}, v{vS+v}, v{vS+v} quad_perm:[2,3,0,1] {D} bank_mask:0xf")
    k(f"v_and_b32 v{t0}, 2, v{vLane}\nv_cmp_ne_u32 vcc, 0, v{t0}")
    k(f"v_cndmask_b32 v{vS}, v{vS}, v{vS+2}, vcc\nv_cndmask_b32 v{vS+1}, v{vS+1}, v{vS+3}, vcc")
    for v in range(2):
        k(f"v_add_f32_dpp v{vS+v}, v{vS+v}, v{vS+v} quad_perm:[1,0,3,2] {D} bank_mask:0xf")
    k(f"v_and_b32 v{t0}, 1, v{vLane}\nv_cmp_ne_u32 vcc, 0, v{t0}")
    k(f"v_cndmask_b32 v{vS}, v{vS}, v{vS+1}, vcc\nv_mov_b32 v{vS+1}, v{vTag}")
    k(f"""
    s_lshl_b32 s{sT}, s{sRB}, 15
    s_lshl_b32 s{sT+1}, s{sRG}, 9
    s_add_u32 s{sT}, s{sT}, s{sT+1}
    s_add_u32 s{sT+4}, s{sT}, {WS_S2}
    s_lshl_b32 s{sT+1}, s{sCG}, 11
    s_add_u32 s{sT}, s{sT+4}, s{sT+1}
    v_and_b32 v{t0}, 7, v{vLane}
    v_lshlrev_b32 v{t0}, 3, v{t0}
    v_lshrrev_b32 v{t1}, 4, v{vLane}
    v_lshl_add_u32 v{t0}, v{t1}, 6, v{t0}
    v_bfe_u32 v{t1}, v{vLane}, 3, 1
    v_lshl_add_u32 v{t0}, v{t1}, 8, v{t0}
    buffer_store_dwordx2 {vr(vS,2)}, v{t0}, {sr(sWS,4)}, s{sT} offen sc0 sc1
    v_and_b32 v{t0}, 31, v{vLane}
    v_lshlrev_b32 v{t0}, 4, v{t0}
    v_lshrrev_b32 v{t1}, 5, v{vLane}
    v_lshl_add_u32 v{vGA}, v{t1}, 11, v{t0}      ; gather voffset: (l/32)*2048 + (l%32)*16
    s_setprio 0
    """)
    zi = 1
    for t, (pn, ct, kind, sw) in enumerate(tl):
        if kind == "z1":
            z1_tile(t, 3 if pn == 5 else 1 + ct)
    vG2 = FB
    Lr, Lok = k.newlabel("g2"), k.newlabel("g2ok")
    k(f"{Lr}:")
    for i in range(8):
        k(f"s_add_u32 s{sT}, s{sT+4}, {4096*i}\nbuffer_load_dwordx4 {vr(vG2+4*i,4)}, v{vGA}, {sr(sWS,4)}, s{sT} offen sc0 sc1")
    check_tags(k, [vG2 + 2 * j + 1 for j in range(16)], Lok, t0)
    k(f"s_sleep 1\ns_sub_u32 s{sSpin}, s{sSpin}, 1\ns_cbranch_scc0 {Lr}\n{Lok}:")
    for i in range(1, 8):
        k(f"v_add_f32 v{vG2}, v{vG2}, v{vG2+4*i}\nv_add_f32 v{vG2+2}, v{vG2+2}, v{vG2+4*i+2}")
    k(f"""
    v_mov_b32 v{t0}, v{vG2}
    v_mov_b32 v{t1}, v{vG2+2}
    v_permlane32_swap_b32 v{vG2}, v{t0}
    v_permlane32_swap_b32 v{vG2+2}, v{t1}
    v_add_f32 v{t0}, v{t0}, v{vG2}
    v_add_f32 v{t1}, v{t1}, v{vG2+2}
    v_mul_f32 v{t0}, {f32(1.0/896)}, v{t0}       ; mean
    v_mul_f32 v{t1}, {f32(1.0/896)}, v{t1}
    v_fma_f32 v{t1}, -v{t0}, v{t0}, v{t1}
    v_max_f32 v{t1}, 0, v{t1}
    v_add_f32 v{t1}, {f32(1e-5)}, v{t1}
    v_rsq_f32 v{t1}, v{t1}
    s_lshl_b32 s{sT}, s{sW}, 8
    v_and_b32 v{t2}, 31, v{vLane}
    v_lshlrev_b32 v{t2}, 2, v{t2}
    v_add_u32 v{t2}, s{sT}, v{t2}
    v_mul_f32 v{t0}, v{t0}, v{t1}                ; mean*rstd
    ds_write_b32 v{t2}, v{t1} offset:{L_S2}
    ds_write_b32 v{t2}, v{t0} offset:{L_S2+128}
    v_lshrrev_b32 v{t2}, 4, v{vLane}
    v_lshlrev_b32 v{t2}, 4, v{t2}
    v_add_u32 v{t2}, s{sT}, v{t2}
    s_waitcnt lgkmcnt(0)
    ds_read_b128 {vr(vG2,4)}, v{t2} offset:{L_S2}
    ds_read_b128 {vr(vG2+4,4)}, v{t2} offset:{L_S2+64}
    ds_read_b128 {vr(vG2+8,4)}, v{t2} offset:{L_S2+128}
    ds_read_b128 {vr(vG2+12,4)}, v{t2} offset:{L_S2+192}
    """)
    for n_, t in enumerate(z2t):
        for j in range(8):
            a = ACC + 8 * t + j
            k(f"v_fma_f32 v{a}, v{a}, v{vG2+j}, -v{vG2+8+j}")
        k(f"""
        s_add_u32 s{sT}, s{sZ2}, {n_}
        s_lshr_b32 s{sT+1}, s{sT}, 1
        s_lshl_b32 s{sT+1}, s{sT+1}, 17
        s_and_b32 s{sT}, s{sT}, 1
        s_lshl_b32 s{sT}, s{sT}, 8
        s_add_u32 s{sT}, s{sT}, s{sT+1}
        s_lshl_b32 s{sT+1}, s{sT32}, 11
        s_add_u32 s{sT}, s{sT}, s{sT+1}
        s_add_u32 s{sT}, s{sT}, {WS_Z2}
        """)
        pack_store(t, vLK, sT, 1024)


def gen_k1():
    k = Kernel("k1_kernel")
    t0, t1, t2, t3, t4 = vT, vT + 1, vT + 2, vT + 3, vT + 4
    stamp(k, 0)
    k(f"""
    s_cmp_ge_u32 s2, 256
    s_cbranch_scc1 k1_end
    s_load_dwordx2 {sr(sXS,2)}, s[0:1], {KA_X}
    s_load_dwordx2 {sr(sWW,2)}, s[0:1], {KA_WQKV}
    s_load_dwordx2 {sr(sWI,2)}, s[0:1], {KA_WIN}
    s_load_dwordx2 {sr(sWS,2)}, s[0:1], {KA_WS}
    s_load_dwordx2 {sr(sDBG,2)}, s[0:1], {KA_DBG}
    s_memrealtime {sr(sT+14,2)}
    v_lshrrev_b32 v{t0}, 6, v0
    v_and_b32 v{vLane}, 63, v0
    v_readfirstlane_b32 s{sW}, v{t0}
    s_lshr_b32 s{sRB}, s2, 4
    s_and_b32 s{sCG}, s2, 15
    s_and_b32 s{sOdd}, s2, 1
    s_and_b32 s{sRG}, s{sW}, 3
    s_lshl_b32 s{sT32}, s{sRB}, 2
    s_add_u32 s{sT32}, s{sT32}, s{sRG}
    s_mov_b32 s{sWS+2}, {WS_SIZE}
    s_mov_b32 s{sWS+3}, 0x00020000
    s_mov_b32 s{sXS+2}, {2048*1024}
    s_mov_b32 s{sXS+3}, 0x00020000
    s_mov_b32 s{sWW+2}, {512*3072}
    s_mov_b32 s{sWW+3}, 0x00020000
    s_mov_b32 s{sWI+2}, {512*3584}
    s_mov_b32 s{sWI+3}, 0x00020000
    s_mov_b32 s{sDBG+2}, 256
    s_mov_b32 s{sDBG+3}, 0x00020000
    s_mov_b32 s{sQm}, 0xffff
    s_mov_b32 s{sQm+1}, 0
    s_mov_b32 s{sSpin}, 200000
    s_lshr_b32 s{sT}, s{sCG}, 1
    s_mul_i32 s{sT}, s{sT}, 7
    s_lshl_b32 s{sT+1}, s{sOdd}, 2
    s_add_u32 s{sZ1}, s{sT}, s{sT+1}
    s_mul_i32 s{sT+1}, s{sOdd}, 3
    s_add_u32 s{sZ2}, s{sT}, s{sT+1}
    ; rotation: start stage = rb/2, rot2 = rb%2
    s_lshr_b32 s{sT+2}, s{sRB}, 1
    s_and_b32 s{sT+3}, s{sRB}, 1                 ; rot2
    s_lshl_b32 s{sKX}, s{sT+2}, 7
    s_cmp_lt_u32 s{sW}, 4
    s_cselect_b32 s{sT+4}, 3072, 0
    s_cselect_b32 s{sT+5}, 0, 3584
    s_add_u32 s{sT+4}, s{sT+4}, s{sT+5}          ; pitch
    s_lshl_b32 s{sPit}, s{sT+4}, 6
    s_mul_i32 s{sKW}, s{sPit}, s{sT+2}
    s_mul_i32 s{sKI}, s{sT+2}, {64*3584}
    s_lshl_b32 s{sMX}, s{sW}, 11
    s_mul_i32 s{sMW}, s{sW}, 3072
    s_add_u32 s{sMW}, s{sMW}, {O_W}
    s_lshl_b32 s{sMP}, s{sW}, 8
    s_add_u32 s{sMP}, s{sMP}, {O_P6}
    s_lshl_b32 s{sT+6}, s2, 3
    s_add_u32 s{sT+6}, s{sT+6}, s{sW}
    s_lshl_b32 s{sT+7}, s{sT+6}, 10
    v_lshlrev_b32 v{t4}, 4, v{vLane}
    ; x DMA voffsets: row = 16w + 8p + l/8 ; chunk = (l%8) ^ ((row>>1)&7) ^ (4*rot2)
    v_lshrrev_b32 v{t0}, 3, v{vLane}
    s_lshl_b32 s{sT+5}, s{sW}, 4
    v_add_u32 v{t0}, s{sT+5}, v{t0}
    v_and_b32 v{t1}, 7, v{vLane}
    s_lshl_b32 s{sT+5}, s{sT+3}, 2
    v_xor_b32 v{t1}, s{sT+5}, v{t1}
    s_lshl_b32 s{sT+5}, s{sRB}, 17
    s_waitcnt lgkmcnt(0)
    s_or_b32 s{sT+15}, s2, s{sW}
    s_cmp_lg_u32 s{sT+15}, 0
    s_cbranch_scc1 k1_nonce_done
    s_or_b32 s{sT+14}, s{sT+14}, 1
    v_mov_b32 v{t2}, s{sT+14}
    v_lshlrev_b32 v{t3}, 2, v{vLane}
    buffer_store_dword v{t2}, v{t3}, {sr(sDBG,4)}, 0 offen sc0 sc1
    k1_nonce_done:
    buffer_load_dwordx4 {vr(vRow,4)}, v{t4}, {sr(sXS,4)}, s{sT+7} offen
    s_cmp_lt_u32 s{sW}, 4
    s_cselect_b32 s{sWW}, s{sWW}, s{sWI}
    s_cselect_b32 s{sWW+1}, s{sWW+1}, s{sWI+1}
    s_cselect_b32 s{sWW+2}, s{sWW+2}, s{sWI+2}
    """)
    for p in range(2):
        k(f"""
        v_add_u32 v{t2}, {8*p}, v{t0}
        v_bfe_u32 v{t3}, v{t2}, 1, 3
        v_xor_b32 v{t3}, v{t3}, v{t1}
        v_lshlrev_b32 v{t3}, 4, v{t3}
        v_lshl_add_u32 v{vDX+p}, v{t2}, 10, v{t3}
        v_add_u32 v{vDX+p}, s{sT+5}, v{vDX+p}
        """)
    k(f"""
    v_and_b32 v{t0}, 3, v{vLane}
    v_lshrrev_b32 v{t1}, 5, v{vLane}
    v_lshlrev_b32 v{t1}, 1, v{t1}
    v_xor_b32 v{t0}, v{t0}, v{t1}                ; sc
    v_cmp_lt_u32 vcc, 1, v{t0}
    v_and_b32 v{t0}, 1, v{t0}
    v_lshlrev_b32 v{t0}, 4, v{t0}                ; 16*(sc%2)
    v_lshrrev_b32 v{t1}, 2, v{vLane}             ; l/4
    s_lshl_b32 s{sT+8}, s{sT+3}, 5               ; 32*rot2
    s_lshl_b32 s{sT+9}, s{sZ1}, 5                ; z1a byte offset
    s_lshl_b32 s{sT+10}, s{sZ2}, 5
    s_add_u32 s{sT+10}, s{sT+10}, 1792           ; z2a byte offset
    s_cmp_eq_u32 s{sOdd}, 1
    s_cselect_b32 s{sT+11}, s{sT+10}, s{sT+9}
    s_add_u32 s{sT+11}, s{sT+11}, 96
    """)
    for j in range(3):
        k(f"""
        s_mul_i32 s{sT}, s{sW}, 3
        s_add_u32 s{sT}, s{sT}, {j}
        s_and_b32 s{sT+1}, s{sT}, 3
        s_lshr_b32 s{sT}, s{sT}, 2                   ; panel
        s_lshl_b32 s{sT+1}, s{sT+1}, 4
        s_xor_b32 s{sT+1}, s{sT+1}, s{sT+8}
        s_lshl_b32 s{sT+12}, s{sT}, 10
        s_lshl_b32 s{sT+13}, s{sCG}, 6
        s_add_u32 s{sT+12}, s{sT+12}, s{sT+13}
        s_add_u32 s{sT+13}, s{sT+9}, 32
        s_cmp_eq_u32 s{sT}, 3
        s_cselect_b32 s{sT+12}, s{sT+13}, s{sT+12}
        s_cmp_eq_u32 s{sT}, 4
        s_cselect_b32 s{sT+12}, s{sT+10}, s{sT+12}
        s_add_u32 s{sT+13}, s{sT+10}, 64
        s_cmp_eq_u32 s{sT}, 5
        s_cselect_b32 s{sT+12}, s{sT+13}, s{sT+12}   ; off0
        s_add_u32 s{sT+13}, s{sT+12}, 32
        s_cmp_eq_u32 s{sT}, 5
        s_cselect_b32 s{sT+13}, s{sT+11}, s{sT+13}   ; off1
        v_mov_b32 v{t2}, s{sT+12}
        v_mov_b32 v{t3}, s{sT+13}
        v_cndmask_b32 v{t2}, v{t2}, v{t3}, vcc
        v_add_u32 v{t2}, v{t2}, v{t0}
        v_add_u32 v{t3}, s{sT+1}, v{t1}
        v_mul_lo_u32 v{t3}, v{t3}, s{sT+4}
        v_add_u32 v{vDW+j}, v{t2}, v{t3}
        """)
    k(f"""
    v_lshrrev_b32 v{t0}, 1, v{vLane}
    s_lshl_b32 s{sT}, s{sW}, 3
    v_add_u32 v{t0}, s{sT}, v{t0}
    v_and_b32 v{t1}, 0x33, v{t0}
    v_and_b32 v{t2}, 4, v{t0}
    v_lshl_or_b32 v{t1}, v{t2}, 1, v{t1}
    v_and_b32 v{t2}, 8, v{t0}
    v_lshrrev_b32 v{t2}, 1, v{t2}
    v_or_b32 v{t1}, v{t1}, v{t2}
    v_xor_b32 v{t1}, s{sT+8}, v{t1}
    s_movk_i32 s{sT}, 3584
    v_mul_lo_u32 v{t1}, v{t1}, s{sT}
    v_and_b32 v{t2}, 1, v{vLane}
    v_lshl_add_u32 v{t1}, v{t2}, 4, v{t1}
    v_add_u32 v{vDP}, s{sT+9}, v{t1}
    """)
    for p in range(2):
        for a in dma(k, p):
            k(a, tag=("st", p))
    k(f"""
    v_and_b32 v{t0}, 15, v{vLane}                ; n
    v_lshrrev_b32 v{t1}, 4, v{vLane}             ; g
    v_lshrrev_b32 v{t2}, 1, v{t0}
    v_xor_b32 v{t2}, v{t2}, v{t1}
    v_lshlrev_b32 v{t2}, 4, v{t2}
    v_lshl_add_u32 v{t2}, v{t0}, 7, v{t2}
    s_lshl_b32 s{sT}, s{sRG}, 12
    v_add_u32 v{vAA}, s{sT}, v{t2}
    v_xor_b32 v{vAA+1}, 64, v{vAA}
    ; B: (8g + r)*64 + ((c/2) ^ (2*(g%2)))*16 + (c%2)*8 ; r = n/4, c = n%4
    v_lshrrev_b32 v{t2}, 2, v{t0}
    v_lshl_add_u32 v{t2}, v{t1}, 3, v{t2}        ; 8g + r
    v_lshlrev_b32 v{t2}, 6, v{t2}
    v_and_b32 v{t3}, 3, v{vLane}
    v_lshl_add_u32 v{t2}, v{t3}, 3, v{t2}        ; + c*8
    v_and_b32 v{t4}, 1, v{t1}
    v_lshlrev_b32 v{t4}, 5, v{t4}
    v_xor_b32 v{vAB}, v{t2}, v{t4}
    v_xor_b32 v{vAB+1}, 32, v{vAB}
    ; P6: pos = r + 4*(g%2) + 16*(g/2) ; addr = pos*32 + c*8
    v_lshrrev_b32 v{t2}, 2, v{t0}
    v_and_b32 v{t4}, 1, v{t1}
    v_lshl_add_u32 v{t2}, v{t4}, 2, v{t2}
    v_lshrrev_b32 v{t4}, 1, v{t1}
    v_lshl_add_u32 v{t2}, v{t4}, 4, v{t2}
    v_lshlrev_b32 v{t2}, 5, v{t2}
    v_lshl_add_u32 v{vAP}, v{t3}, 3, v{t2}
    v_and_b32 v{t2}, 1, v{t1}
    v_lshlrev_b32 v{t2}, 3, v{t2}                ; (g%2)*8
    v_lshrrev_b32 v{t4}, 1, v{t1}                ; g/2
    v_lshl_add_u32 v{vLQ}, v{t0}, 4, v{t2}
    v_lshl_add_u32 v{vLQ}, v{t4}, 9, v{vLQ}
    v_and_b32 v{t3}, 3, v{t0}
    v_and_b32 v{t1}, 4, v{t0}
    v_lshl_or_b32 v{t3}, v{t1}, 1, v{t3}
    v_and_b32 v{t1}, 8, v{t0}
    v_lshrrev_b32 v{t1}, 1, v{t1}
    v_or_b32 v{t3}, v{t3}, v{t1}                 ; pi(n)
    v_lshl_add_u32 v{t3}, v{t3}, 4, v{t2}
    v_lshl_add_u32 v{vLK}, v{t4}, 9, v{t3}
    v_lshl_add_u32 v{vLV}, v{t4}, 8, v{t3}
    s_mul_i32 s{sT}, s{sCG}, 208
    s_mul_i32 s{sT+1}, s{sW}, 26
    s_add_u32 s{sT}, s{sT}, s{sT+1}
    s_lshl_b32 s{sT}, s{sT}, 7
    s_add_u32 s{sT}, s{sT}, {WS_CS}
    v_and_b32 v{t1}, 1, v{vLane}
    v_add_u32 v{t1}, 50, v{t1}
    v_min_u32 v{t1}, v{t1}, v{vLane}
    v_lshlrev_b32 v{t1}, 6, v{t1}
    v_add_u32 v{vGA}, s{sT}, v{t1}
    s_lshl_b32 s{sT}, s{sRB}, 11
    s_lshl_b32 s{sT+1}, s{sW}, 8
    s_add_u32 s{sT}, s{sT}, s{sT+1}
    s_add_u32 s{sT}, s{sT}, {WS_RS}
    v_lshlrev_b32 v{t1}, 4, v{t0}
    v_add_u32 v{vGA+1}, s{sT}, v{t1}
    s_lshl_b32 s{sRSo}, s{sT+6}, 4
    s_add_u32 s{sRSo}, s{sRSo}, {WS_RS}
    s_and_b32 s{sT}, s2, 63
    s_lshl_b32 s{sT}, s{sT}, 2
    v_mov_b32 v{vTag}, s{sT}
    v_mov_b32 v{vOnes}, 0x3f803f80
    v_mov_b32 v{vOnes+1}, 0x3f803f80
    v_mov_b32 v{vOnes+2}, 0x3f803f80
    v_mov_b32 v{vOnes+3}, 0x3f803f80
    """)
    k(f"""
    v_mov_b32 v{t0}, 0
    v_mov_b32 v{t1}, 0
    """)
    for i in range(4):
        k(f"v_dot2c_f32_bf16 v{t0}, v{vRow+i}, v{vOnes}")
        k(f"v_dot2c_f32_bf16 v{t1}, v{vRow+i}, v{vRow+i}")
    dpp_rowsum(k, [t0, t1])
    for sw in ("v_permlane16_swap_b32", "v_permlane32_swap_b32"):
        k(f"""
        v_mov_b32 v{t2}, v{t0}
        v_mov_b32 v{t3}, v{t1}
        {sw} v{t0}, v{t2}
        {sw} v{t1}, v{t3}
        v_add_f32 v{t0}, v{t0}, v{t2}
        v_add_f32 v{t1}, v{t1}, v{t3}
        """)
    k(f"""
    v_mul_f32 v{t0}, {f32(1.0/512)}, v{t0}
    v_mov_b32 v{t3}, {f32(1e-5)}
    v_mul_f32 v{t1}, {f32(1.0/512)}, v{t1}
    v_fma_f32 v{t1}, -v{t0}, v{t0}, v{t1}
    v_max_f32 v{t1}, 0, v{t1}
    v_add_f32 v{t1}, v{t1}, v{t3}
    v_rsq_f32 v{vRS}, v{t1}
    v_mul_f32 v{vRS+2}, v{vRS}, v{t0}
    v_mov_b32 v{vPoll}, 0
    s_cmp_lg_u32 s{sW}, 0
    s_cbranch_scc1 k1_nopoll
    buffer_load_dword v{vPoll}, v{vTag}, {sr(sDBG,4)}, 0 offen sc0 sc1
    k1_nopoll:
    """)
    stamp(k, 1)
    k(f"s_cmp_ge_u32 s{sW}, 4\ns_cbranch_scc1 k1_B")
    main_loop(k, "A")
    stamp(k, 2)
    epilogue(k, "A")
    k("s_branch k1_fin")
    k.label("k1_B")
    k(f"s_cmp_eq_u32 s{sOdd}, 1\ns_cbranch_scc1 k1_Bodd")
    main_loop(k, "Beven")
    stamp(k, 2)
    epilogue(k, "Beven")
    k("s_branch k1_fin")
    k.label("k1_Bodd")
    main_loop(k, "Bodd")
    stamp(k, 2)
    epilogue(k, "Bodd")
    k.label("k1_fin")
    if STAMP:
        k("s_waitcnt vmcnt(0)")
    stamp(k, 3)
    stamp_store(k, 4)
    k("""
    k1_end:
    s_endpgm
    """)
    k.finish()
    return k


if __name__ == "__main__":
    import sys
    STAMP = "stamp" in sys.argv
    k = gen_k1()
    print(build_file("; test", [("k1_kernel", 256, 512, LDS_K1)], [k]))
```

```python
import os
from asmlib import *
from layout import *

X = set(os.environ.get('K2X', '').split(','))
NS = 4
STAGE = 30720
O_Z, O_K, O_V = 16384, 24576, 26624
LDS_K2 = NS * STAGE

vLane = 1
vAL = 2
vT = 4
vQ, vK0, vK1, vV = 12, 16, 20, 24
vS0, vS1, vP, vO = 40, 56, 72, 80
vC = 96
vDA, vDZ, vDK, vDV = 12, 16, 17, 18
vAB = 20
vG = 28
vGA = 60
vGB = 92
vZ1 = 108
vBias = 124
sWS, sWSP, sBSP = 4, 8, 12
sW, sHead, sQT, sTB, sFB, sIdx = 16, 17, 18, 19, 20, 21
sOA, sOZ, sOK, sOV, sCnt = 22, 23, 24, 25, 26
sMA, sMZ, sMK, sMV = 27, 28, 29, 30
sVM, sLo = 32, 34
sT = 36

STAMP = False


def stamp(k, i):
    if STAMP:
        k(f"s_memtime {sr(60+2*i,2)}\ns_waitcnt lgkmcnt(0)")


def stamp_store(k, n):
    if not STAMP:
        return
    k(f"s_mul_i32 s58, s2, 12\ns_add_u32 s58, s58, s{sW}\ns_lshl_b32 s58, s58, 5\ns_add_u32 s58, s58, {WS_STAMP}")
    for i in range(n):
        k(f"s_sub_u32 s59, s{60+2*i}, s60\nv_mov_b32 v{vT}, s59\nv_mov_b32 v{vT+1}, 0\nbuffer_store_dword v{vT}, v{vT+1}, {sr(sWS,4)}, s58 offen offset:{4*i}")


def mfma32(d, a, b, c):
    cs = "0" if c is None else vr(c, 16)
    return f"v_mfma_f32_32x32x16_bf16 {vr(d,16)}, {vr(a,4)}, {vr(b,4)}, {cs}"


def so(slot):
    return slot // 2, (slot % 2) * STAGE


def rd_k(slot, T):
    s, o = so(slot)
    return f"ds_read_b128 {vr(vK0+4*T,4)}, v{vAL+s} offset:{o+O_K+(1-T)*1024}"


def rd_v(slot, T, u):
    s, o = so(slot)
    return f"ds_read_b128 {vr(vV+8*T+4*u,4)}, v{vAL+s} offset:{o+O_V+T*2048+u*1024}"


def phase(k, S, Snext, Knext, Vprev1, Vcur0, extras):
    E = lambda i: f"v_exp_f32 v{S+i}, v{S+i}"
    C = lambda i: f"v_cvt_pk_bf16_f32 v{vP+i}, v{S+2*i}, v{S+2*i+1}"
    PVp = mfma32(vO, Vprev1, vP + 4, vO)
    PVc = mfma32(vO, Vcur0, vP, vO)
    SM = mfma32(Snext, Knext, vQ, None) if Knext is not None else None
    seq = [E(0), E(1), PVp, E(2), E(3), C(0), E(4), E(5), C(1), E(6), SM, E(7), C(2), E(8), C(3), E(9), E(10), E(11), C(4), PVc,
           E(12), E(13), C(5), E(14), E(15), C(6), C(7)]
    for pos, ins in enumerate(seq):
        if ins is not None:
            k(ins)
        for a in extras.get(pos, []):
            k(a)


def attn_loop(k):
    L = k.newlabel("aloop")
    k(f"s_mov_b32 s{sCnt}, 8")
    stamp(k, 1)
    k(".p2align 6")
    k.label(L)
    for slot in range(4):
        k("s_waitcnt lgkmcnt(0)")
        k("s_barrier")
        ex1 = {0: [rd_k(slot, 1)], 4: [rd_v(slot, 0, 0)], 7: [rd_v(slot, 0, 1)]}
        if 'aprio' in X:
            k("s_setprio 3")
            ex1[18] = ["s_setprio 2"]
        if 'aprio4' in X:
            k("s_setprio 3")
            ex1[13] = ["s_setprio 2"]
            ex1[26] = ["s_setprio 1"]
        phase(k, vS1, vS0, vK0, vV + 4, vV + 8, ex1)
        ex2 = {0: [rd_k(slot, 0)], 4: [rd_v(slot, 1, 0)], 7: [rd_v(slot, 1, 1)]}
        if 'aprio' in X:
            ex2[9] = ["s_setprio 1"]
        if 'aprio4' in X:
            ex2[13] = ["s_setprio 0"]
        if slot == 3:
            ex2[14] = [f"s_sub_u32 s{sCnt}, s{sCnt}, 1\ns_cmp_lg_u32 s{sCnt}, 0"]
        phase(k, vS0, vS1, vK1, vV + 12, vV + 0, ex2)
    k(f"s_cbranch_scc1 {L}")
    stamp(k, 2)
    phase(k, vS1, None, None, vV + 4, vV + 8, {})
    k(mfma32(vO, vV + 12, vP + 4, vO))


def dma_group(slot, gemm):
    base = slot * STAGE
    out = []
    out.append(f"s_add_u32 m0, s{sMK}, {base}\ns_mov_b64 exec, {sr(sLo,2)}\nbuffer_load_dwordx4 v{vDK}, {sr(sWS,4)}, s{sOK} offen lds\n"
               f"s_add_u32 m0, s{sMV}, {base}\ns_mov_b64 exec, {sr(sVM,2)}\nbuffer_load_dwordx4 v{vDV}, {sr(sWS,4)}, s{sOK} offen lds\n"
               f"s_mov_b64 exec, -1\ns_add_u32 s{sOK}, s{sOK}, 2048")
    if gemm:
        for p in range(4):
            out.append(f"s_add_u32 m0, s{sMA}, {base+1024*p}\ns_nop 0\nbuffer_load_dwordx4 v{vDA+p}, {sr(sWSP,4)}, s{sOA} offen lds"
                       + (f"\ns_add_u32 s{sOA}, s{sOA}, 128" if p == 3 else ""))
        out.append(f"s_add_u32 m0, s{sMZ}, {base}\ns_nop 0\nbuffer_load_dwordx4 v{vDZ}, {sr(sWS,4)}, s{sOZ} offen lds")
        out.append(f"s_add_u32 m0, s{sMZ}, {base}\ns_nop 0\nbuffer_load_dwordx4 v{vDZ}, {sr(sWS,4)}, s{sOZ} offen offset:1024 lds\ns_add_u32 s{sOZ}, s{sOZ}, 4096")
    return out


def rd_g(slot, ks):
    s, o = so(slot)
    return [f"ds_read_b128 {vr(vGB+4*ks,4)}, v{vAB+4*s+ks} offset:{o}",
            f"ds_read_b128 {vr(vGA+8*ks,4)}, v{vAL+s} offset:{o+O_Z+ks*1024}",
            f"ds_read_b128 {vr(vGA+8*ks+4,4)}, v{vAL+s} offset:{o+O_Z+4096+ks*1024}"]


def mm_g(ks):
    return [mfma32(vG, vGA + 8 * ks, vGB + 4 * ks, vG), mfma32(vG + 16, vGA + 8 * ks + 4, vGB + 4 * ks, vG + 16)]


def gemm_loop(k, gemm):
    nd = 8 if gemm else 2
    L = k.newlabel("gloop")
    k(f"s_mov_b32 s{sCnt}, 8")
    stamp(k, 1)
    k(".p2align 6")
    k.label(L)
    for slot in range(4):
        k(f"s_waitcnt vmcnt({4 if 'nogdma' in X else 2*nd}) lgkmcnt(0)")
        k("s_barrier")
        dm = dma_group((slot + 3) % 4, gemm)
        if gemm:
            r = [rd_g(slot, ks) for ks in range(4)]
            m = [mm_g(ks) for ks in range(4)]
            seq = (r[0] + [m[2][0], dm[0], m[2][1]] + r[1] + [m[3][0], dm[1], m[3][1], dm[2]] + r[2] + [m[0][0], dm[3], m[0][1], dm[4]]
                   + r[3] + [m[1][0], dm[5], m[1][1], dm[6]])
        else:
            seq = dm
        for a in seq:
            if 'nogdma' in X and ' lds' in a and 'exec' not in a:
                continue
            if 'nogmm' in X and 'mfma' in a:
                continue
            if 'nogrd' in X and 'ds_read' in a:
                continue
            k(a)
        if slot == 0:
            k(f"s_cmp_eq_u32 s{sCnt}, 1\ns_cselect_b32 s{sT}, 0x70000000, 0\n"
              f"s_add_u32 s{sOA}, s{sOA}, s{sT}\ns_add_u32 s{sOZ}, s{sOZ}, s{sT}\ns_add_u32 s{sOK}, s{sOK}, s{sT}")
    k(f"s_sub_u32 s{sCnt}, s{sCnt}, 1\ns_cmp_lg_u32 s{sCnt}, 0\ns_cbranch_scc1 {L}")
    stamp(k, 2)
    if gemm:
        for a in mm_g(2) + mm_g(3):
            k(a)


def gen_k2():
    k = Kernel("k2_kernel")
    t0, t1, t2, t3 = vT, vT + 1, vT + 2, vT + 3
    stamp(k, 0)
    k(f"""
    s_cmp_ge_u32 s2, 256
    s_cbranch_scc1 k2_end
    s_load_dwordx2 {sr(sWS,2)}, s[0:1], {KA_WS}
    s_load_dwordx2 {sr(sWSP,2)}, s[0:1], {KA_WSP}
    s_load_dwordx2 {sr(sBSP,2)}, s[0:1], {KA_BSP}
    v_lshrrev_b32 v{t0}, 6, v0
    v_and_b32 v{vLane}, 63, v0
    v_readfirstlane_b32 s{sW}, v{t0}
    s_and_b32 s{sT}, s2, 7
    s_lshr_b32 s{sIdx}, s2, 3
    s_lshr_b32 s{sT+2}, s{sIdx}, 3
    s_lshl_b32 s{sHead}, s{sT}, 2
    s_add_u32 s{sHead}, s{sHead}, s{sT+2}
    s_lshl_b32 s{sT+3}, s{sHead}, 16             ; head*65536
    s_mov_b32 s{sWS+2}, {WS_SIZE}
    s_mov_b32 s{sWS+3}, 0x00020000
    s_mov_b32 s{sWSP+2}, {2048*2048*2}
    s_mov_b32 s{sWSP+3}, 0x00020000
    s_mov_b32 s{sBSP+2}, 4096
    s_mov_b32 s{sBSP+3}, 0x00020000
    s_mov_b32 s{sVM}, 0x0000ffff
    s_mov_b32 s{sVM+1}, 0x0000ffff
    v_lshlrev_b32 v{vAL}, 4, v{vLane}
    v_add_u32 v{vAL+1}, {2*STAGE}, v{vAL}
    s_cmp_ge_u32 s{sW}, 8
    s_cbranch_scc1 k2_gemm
    """)
    k(f"""
    s_and_b32 s{sQT}, s{sIdx}, 7
    s_lshl_b32 s{sQT}, s{sQT}, 3
    s_add_u32 s{sQT}, s{sQT}, s{sW}
    s_lshl_b32 s{sT+5}, s{sQT}, 10
    s_add_u32 s{sT+5}, s{sT+5}, s{sT+3}
    s_add_u32 s{sT+5}, s{sT+5}, {WS_Q}
    s_add_u32 s{sT+6}, s{sT+3}, {WS_K}
    s_waitcnt lgkmcnt(0)
    buffer_load_dwordx4 {vr(vQ,4)}, v{vAL}, {sr(sWS,4)}, s{sT+5} offen
    buffer_load_dwordx4 {vr(vK0,4)}, v{vAL}, {sr(sWS,4)}, s{sT+6} offen
    v_and_b32 v{t0}, 27, v{vLane}
    v_mov_b32 v{t1}, 0x3f803f80
    v_cmp_eq_u32 vcc, 16, v{t0}
    v_cndmask_b32 v{t1}, 0, v{t1}, vcc
    """)
    for i in range(16):
        k(f"v_mov_b32 v{vV+i}, v{t1}")
    k(f"""
    s_lshr_b32 s{sT+5}, s{sW}, 1
    s_mul_i32 s{sT+5}, s{sT+5}, {STAGE}
    s_and_b32 s{sT+6}, s{sW}, 1
    s_lshl_b32 s{sT+6}, s{sT+6}, 11
    s_add_u32 s{sT+5}, s{sT+5}, s{sT+6}
    v_add_u32 v{t0}, s{sT+5}, v{vAL}
    s_not_b64 exec, {sr(sVM,2)}
    ds_write_b128 v{t0}, {vr(vV,4)} offset:{O_V}
    ds_write_b128 v{t0}, {vr(vV,4)} offset:{O_V+1024}
    s_mov_b64 exec, -1
    """)
    for i in range(16):
        k(f"v_mov_b32 v{vS1+i}, 0xff800000")
        k(f"v_mov_b32 v{vO+i}, 0")
    for i in range(8):
        k(f"v_mov_b32 v{vP+i}, 0")
    k("s_waitcnt vmcnt(0)")
    attn_loop(k)
    k(f"v_mul_f32 v{t0}, 0, v{vO}")
    for i in range(1, 8):
        k(f"v_fma_f32 v{t0}, v{vO+i}, 0, v{t0}")
    k(f"""
    v_add_f32 v{t0}, v{t0}, v{vO+8}
    v_mov_b32 v{t1}, 0x17800000                  ; 2^-80
    v_mov_b32 v{t2}, 0x67800000                  ; 2^80
    v_cmp_ge_f32 vcc, v{t0}, v{t1}
    v_cmp_le_f32 {sr(sT+10,2)}, v{t0}, v{t2}
    s_and_b64 vcc, vcc, {sr(sT+10,2)}
    s_cmp_eq_u64 vcc, -1
    s_cbranch_scc1 k2_store_o
    """)
    vM = vT
    k(f"""
    s_add_u32 s{sT+10}, s{sT+3}, {WS_K}
    s_add_u32 s{sT+11}, s{sT+3}, {WS_V}
    v_mov_b32 v{vM}, 0xff800000
    s_mov_b32 s{sCnt}, 64
    s_mov_b32 s{sT+12}, s{sT+10}
    k2_slow1:
    buffer_load_dwordx4 {vr(vK0,4)}, v{vAL}, {sr(sWS,4)}, s{sT+12} offen
    {mfma32(vS0, vK0, vQ, None)}
    """)
    for i in range(8):
        k(f"v_max3_f32 v{vM}, v{vS0+2*i}, v{vS0+2*i+1}, v{vM}")
    k(f"""
    s_add_u32 s{sT+12}, s{sT+12}, 1024
    s_sub_u32 s{sCnt}, s{sCnt}, 1
    s_cmp_lg_u32 s{sCnt}, 0
    s_cbranch_scc1 k2_slow1
    v_mov_b32 v{t1}, v{vM}
    v_permlane32_swap_b32 v{vM}, v{t1}
    v_max_f32 v{vM}, v{vM}, v{t1}
    v_sub_f32 v{vM}, 0, v{vM}
    """)
    for i in range(16):
        k(f"v_mov_b32 v{vC+i}, v{vM}")
        k(f"v_mov_b32 v{vO+i}, 0")
    k(f"""
    v_lshrrev_b32 v{t2}, 5, v{vLane}
    v_and_b32 v{t1}, 15, v{vLane}
    v_lshlrev_b32 v{t1}, 4, v{t1}
    v_lshl_add_u32 v{t1}, v{t2}, 8, v{t1}        ; (l/32)*256 + (l%16)*16
    s_mov_b32 s{sCnt}, 64
    k2_slow2:
    buffer_load_dwordx4 {vr(vK0,4)}, v{vAL}, {sr(sWS,4)}, s{sT+10} offen
    s_mov_b64 exec, {sr(sVM,2)}
    buffer_load_dwordx4 {vr(vV,4)}, v{t1}, {sr(sWS,4)}, s{sT+11} offen
    buffer_load_dwordx4 {vr(vV+4,4)}, v{t1}, {sr(sWS,4)}, s{sT+11} offen offset:512
    s_mov_b64 exec, -1
    {mfma32(vS0, vK0, vQ, vC)}
    """)
    for i in range(16):
        k(f"v_exp_f32 v{vS0+i}, v{vS0+i}")
    for i in range(8):
        k(f"v_cvt_pk_bf16_f32 v{vP+i}, v{vS0+2*i}, v{vS0+2*i+1}")
    k(f"""
    {mfma32(vO, vV, vP, vO)}
    {mfma32(vO, vV+4, vP+4, vO)}
    s_add_u32 s{sT+10}, s{sT+10}, 1024
    s_add_u32 s{sT+11}, s{sT+11}, 1024
    s_sub_u32 s{sCnt}, s{sCnt}, 1
    s_cmp_lg_u32 s{sCnt}, 0
    s_cbranch_scc1 k2_slow2
    """)
    k.label("k2_store_o")
    k(f"v_rcp_f32 v{t0}, v{vO+8}")
    for i in range(8):
        k(f"v_mul_f32 v{vO+i}, v{vO+i}, v{t0}")
    for i in range(4):
        k(f"v_cvt_pk_bf16_f32 v{vP+i}, v{vO+2*i}, v{vO+2*i+1}")
    k(f"""
    s_lshl_b32 s{sT+9}, s{sQT}, 5
    s_add_u32 s{sT+9}, s{sT+9}, s{sHead}
    s_lshl_b32 s{sT+9}, s{sT+9}, 10
    s_add_u32 s{sT+9}, s{sT+9}, {WS_O}
    buffer_store_dwordx4 {vr(vP,4)}, v{vAL}, {sr(sWS,4)}, s{sT+9} offen
    s_branch k2_fin
    """)
    k.label("k2_gemm")
    sG = sT + 4
    k(f"""
    s_setprio {3 if 'gprio3' in X else 0}
    s_sub_u32 s{sG}, s{sW}, 8                    ; g = 0..3
    s_and_b32 s{sTB}, s{sT}, 3
    s_lshl_b32 s{sTB}, s{sTB}, 2
    s_and_b32 s{sT+2}, s{sIdx}, 3
    s_add_u32 s{sTB}, s{sTB}, s{sT+2}
    s_lshr_b32 s{sFB}, s{sT}, 2
    s_mul_i32 s{sFB}, s{sFB}, 7
    s_lshr_b32 s{sT+2}, s{sIdx}, 2
    s_add_u32 s{sFB}, s{sFB}, s{sT+2}
    s_mov_b32 s{sLo}, -1
    s_mov_b32 s{sLo+1}, 0
    s_mov_b32 s{sOA}, 0
    s_mov_b32 s{sOZ}, 0
    s_mov_b32 s{sOK}, 0
    s_lshl_b32 s{sMA}, s{sG}, 12
    s_lshl_b32 s{sMZ}, s{sG}, 11
    s_add_u32 s{sMZ}, s{sMZ}, {O_Z}
    s_lshl_b32 s{sMK}, s{sG}, 9
    s_add_u32 s{sMK}, s{sMK}, {O_K}
    s_lshl_b32 s{sMV}, s{sG}, 10
    s_add_u32 s{sMV}, s{sMV}, {O_V}
    s_lshl_b32 s{sT+5}, s{sG}, 9
    s_add_u32 s{sT+5}, s{sT+5}, s{sT+3}
    s_add_u32 s{sT+6}, s{sT+5}, {WS_K+1024}
    v_add_u32 v{vDK}, s{sT+6}, v{vAL}
    ; V DMA: WS_V + head*65536 + g*512 + (l/32)*256 + (l%16)*16
    v_lshrrev_b32 v{t0}, 5, v{vLane}
    v_and_b32 v{t1}, 15, v{vLane}
    v_lshlrev_b32 v{t1}, 4, v{t1}
    v_lshl_add_u32 v{t1}, v{t0}, 8, v{t1}
    s_add_u32 s{sT+6}, s{sT+5}, {WS_V}
    v_add_u32 v{vDV}, s{sT+6}, v{t1}
    s_waitcnt lgkmcnt(0)
    s_cmp_ge_u32 s{sIdx}, 28
    s_cbranch_scc1 k2_loader
    """)
    k(f"""
    v_lshrrev_b32 v{t0}, 3, v{vLane}
    s_lshl_b32 s{sT+5}, s{sG}, 5
    v_add_u32 v{t0}, s{sT+5}, v{t0}
    v_and_b32 v{t1}, 7, v{vLane}
    s_lshl_b32 s{sT+6}, s{sTB}, 19
    """)
    for p in range(4):
        k(f"""
        v_add_u32 v{t2}, {8*p}, v{t0}
        v_bfe_u32 v{t3}, v{t2}, 1, 3
        v_xor_b32 v{t3}, v{t3}, v{t1}
        v_lshlrev_b32 v{t3}, 4, v{t3}
        v_lshl_add_u32 v{vDA+p}, v{t2}, 12, v{t3}
        v_add_u32 v{vDA+p}, s{sT+6}, v{vDA+p}
        """)
    k(f"""
    s_lshr_b32 s{sT+5}, s{sG}, 1
    s_lshl_b32 s{sT+6}, s{sFB}, 1
    s_add_u32 s{sT+5}, s{sT+5}, s{sT+6}
    s_lshl_b32 s{sT+5}, s{sT+5}, 17
    s_and_b32 s{sT+7}, s{sG}, 1
    s_lshl_b32 s{sT+7}, s{sT+7}, 11
    s_add_u32 s{sT+5}, s{sT+5}, s{sT+7}
    s_add_u32 s{sT+5}, s{sT+5}, {WS_Z2}
    v_add_u32 v{vDZ}, s{sT+5}, v{vAL}
    """)
    for st in range(3):
        for a in dma_group(st, True):
            k(a)
    k(f"""
    v_lshrrev_b32 v{t0}, 5, v{vLane}
    v_and_b32 v{t1}, 31, v{vLane}
    s_lshl_b32 s{sT+7}, s{sG}, 5
    v_add_u32 v{t1}, s{sT+7}, v{t1}
    v_bfe_u32 v{t2}, v{t1}, 1, 3
    v_xor_b32 v{t2}, v{t2}, v{t0}
    v_lshlrev_b32 v{t2}, 4, v{t2}
    v_lshl_add_u32 v{vAB}, v{t1}, 7, v{t2}
    v_xor_b32 v{vAB+1}, 32, v{vAB}
    v_xor_b32 v{vAB+2}, 64, v{vAB}
    v_xor_b32 v{vAB+3}, 96, v{vAB}
    """)
    for i in range(4):
        k(f"v_add_u32 v{vAB+4+i}, {2*STAGE}, v{vAB+i}")
    for i in range(32):
        k(f"v_mov_b32 v{vG+i}, 0")
    for i in range(16):
        k(f"v_mov_b32 v{vGA+16+i}, 0")
    for i in range(8):
        k(f"v_mov_b32 v{vGB+8+i}, 0")
    gemm_loop(k, True)
    k(f"""
    s_lshl_b32 s{sT+7}, s{sTB}, 2
    s_add_u32 s{sT+7}, s{sT+7}, s{sG}
    s_mul_i32 s{sT+8}, s{sT+7}, 56
    s_lshl_b32 s{sT+9}, s{sFB}, 2
    s_add_u32 s{sT+8}, s{sT+8}, s{sT+9}
    s_lshl_b32 s{sT+8}, s{sT+8}, 10
    s_lshl_b32 s{sT+7}, s{sT+7}, 6
    s_add_u32 s{sT+9}, s{sT+8}, {WS_Z1}
    v_and_b32 v{t0}, 31, v{vLane}
    v_lshlrev_b32 v{t0}, 1, v{t0}
    buffer_load_ushort v{vBias}, v{t0}, {sr(sBSP,4)}, s{sT+7} offen
    """)
    for i in range(4):
        k(f"buffer_load_dwordx4 {vr(vZ1+4*i,4)}, v{vAL}, {sr(sWS,4)}, s{sT+9} offen offset:{1024*i}")
    k(f"s_add_u32 s{sT+9}, s{sT+8}, {WS_U}")
    k(f"v_lshlrev_b32 v{vBias}, 16, v{vBias}")
    for i in range(16):
        a, b = vT + 2 * (i % 4), vT + 2 * (i % 4) + 1
        k(f"""
        v_lshlrev_b32 v{a}, 16, v{vZ1+i}
        v_and_b32 v{b}, 0xffff0000, v{vZ1+i}
        v_add_f32 v{vG+2*i}, v{vG+2*i}, v{vBias}
        v_add_f32 v{vG+2*i+1}, v{vG+2*i+1}, v{vBias}
        v_mul_f32 v{a}, v{a}, v{vG+2*i}
        v_mul_f32 v{b}, v{b}, v{vG+2*i+1}
        v_cvt_pk_bf16_f32 v{vZ1+i}, v{a}, v{b}
        """)
        if i % 4 == 3:
            k(f"buffer_store_dwordx4 {vr(vZ1+i-3,4)}, v{vAL}, {sr(sWS,4)}, s{sT+9} offen offset:{1024*(i//4)}")
    k("s_branch k2_fin")
    k.label("k2_loader")
    for st in range(3):
        for a in dma_group(st, False):
            k(a)
    gemm_loop(k, False)
    k.label("k2_fin")
    if STAMP:
        k("s_waitcnt vmcnt(0)")
    stamp(k, 3)
    stamp_store(k, 4)
    k("""
    k2_end:
    s_endpgm
    """)
    k.finish()
    return k


if __name__ == "__main__":
    import sys
    STAMP = "stamp" in sys.argv
    k = gen_k2()
    print(build_file("; test", [("k2_kernel", 256, 768, LDS_K2)], [k]))
```

```python
import os
from asmlib import *
from layout import *

X = set(os.environ.get('K3X', '').split(','))
NS = 5
STAGE = 32768
LDS_K3 = NS * STAGE
NST = 11

vLane = 1
vL16 = 2
vDW = 3
vAT = 5
vAW = 8
vT = 12
vX = 20
vA1, vA2 = 28, 44
vFA = 60
vFB = 92
vOA = 124

sWS, sWA, sWB, sXS, sOUT = 4, 8, 12, 16, 20
sW, sR, sWq, sTB, sNB = 24, 25, 26, 27, 28
sTA, sTBb, sWbA, sWbB, sM = 29, 30, 31, 32, 33
sT = 36

STAMP = False


def stamp(k, i):
    if STAMP:
        k(f"s_memtime {sr(60+2*i,2)}\ns_waitcnt lgkmcnt(0)")


def stamp_store(k, n):
    if not STAMP:
        return
    k(f"s_lshl_b32 s58, s2, 3\ns_add_u32 s58, s58, s{sW}\ns_lshl_b32 s58, s58, 5\ns_add_u32 s58, s58, {WS_STAMP}")
    for i in range(n):
        k(f"s_sub_u32 s59, s{60+2*i}, s60\nv_mov_b32 v{vT}, s59\nv_mov_b32 v{vT+1}, 0\nbuffer_store_dword v{vT}, v{vT+1}, {sr(sWS,4)}, s58 offen offset:{4*i}")


def mfma32(d, a, b, c):
    cs = "0" if c is None else vr(c, 16)
    return f"v_mfma_f32_32x32x16_bf16 {vr(d,16)}, {vr(a,4)}, {vr(b,4)}, {cs}"


def dma(st):
    base = (st % NS) * STAGE
    tb, wb, srd, j = (sTA, sWbA, sWA, st) if st < 8 else (sTBb, sWbB, sWB, st - 8)
    return [
        f"s_add_u32 s{sT}, s{tb}, {j*4096}\ns_add_u32 m0, s{sM}, {base}\ns_add_u32 s{sT+1}, s{wb}, {j*65536}\n"
        f"buffer_load_dwordx4 v{vL16}, {sr(sWS,4)}, s{sT} offen lds",
        f"buffer_load_dwordx4 v{vL16}, {sr(sWS,4)}, s{sT} offen offset:1024 lds",
        f"s_add_u32 m0, s{sM}, {base+8192}\ns_nop 0\nbuffer_load_dwordx4 v{vDW}, {sr(srd,4)}, s{sT+1} offen lds",
        f"s_add_u32 m0, s{sM}, {base+8192+1024}\ns_nop 0\nbuffer_load_dwordx4 v{vDW+1}, {sr(srd,4)}, s{sT+1} offen lds",
    ]


def reads(st, ks):
    slot = st % NS
    s, o = slot // 2, (slot % 2) * STAGE
    b = st % 2
    fa, fb = vFA + 16 * b + 4 * ks, vFB + 16 * b + 4 * ks
    return [f"ds_read_b64_tr_b16 {vr(fa,2)}, v{vAW+s} offset:{o+ks*2048}",
            f"ds_read_b64_tr_b16 {vr(fa+2,2)}, v{vAW+s} offset:{o+ks*2048+512}",
            f"ds_read_b128 {vr(fb,4)}, v{vAT+s} offset:{o+ks*1024}"]


def gen_k3():
    k = Kernel("k3_kernel")
    t0, t1, t2, t3 = vT, vT + 1, vT + 2, vT + 3
    stamp(k, 0)
    k(f"""
    s_cmp_ge_u32 s2, 256
    s_cbranch_scc1 k3_end
    s_load_dwordx2 {sr(sWS,2)}, s[0:1], {KA_WS}
    s_load_dwordx2 {sr(sWA,2)}, s[0:1], {KA_WO}
    s_load_dwordx2 {sr(sWB,2)}, s[0:1], {KA_WOUT}
    s_load_dwordx2 {sr(sXS,2)}, s[0:1], {KA_X}
    s_load_dwordx2 {sr(sOUT,2)}, s[0:1], {KA_OUT}
    v_lshrrev_b32 v{t0}, 6, v0
    v_and_b32 v{vLane}, 63, v0
    v_readfirstlane_b32 s{sW}, v{t0}
    v_lshlrev_b32 v{vL16}, 4, v{vLane}
    s_and_b32 s{sT}, s2, 7
    s_lshr_b32 s{sT+1}, s2, 3
    s_lshl_b32 s{sTB}, s{sT}, 2
    s_lshr_b32 s{sT+2}, s{sT+1}, 3
    s_add_u32 s{sTB}, s{sTB}, s{sT+2}
    s_and_b32 s{sNB}, s{sT+1}, 7
    s_lshr_b32 s{sR}, s{sW}, 2
    s_and_b32 s{sWq}, s{sW}, 3
    s_mov_b32 s{sWS+2}, {WS_SIZE}
    s_mov_b32 s{sWS+3}, 0x00020000
    s_mov_b32 s{sWA+2}, {896*1024}
    s_mov_b32 s{sWA+3}, 0x00020000
    s_mov_b32 s{sWB+2}, {896*1024}
    s_mov_b32 s{sWB+3}, 0x00020000
    s_mov_b32 s{sXS+2}, {2048*1024}
    s_mov_b32 s{sXS+3}, 0x00020000
    s_mov_b32 s{sOUT+2}, {2048*1024}
    s_mov_b32 s{sOUT+3}, 0x00020000
    ; DMA token bases: tt = tb*2 + wq/2, ks0 = 2*(wq%2)
    s_lshl_b32 s{sT}, s{sTB}, 1
    s_lshr_b32 s{sT+1}, s{sWq}, 1
    s_add_u32 s{sT}, s{sT}, s{sT+1}              ; tt
    s_and_b32 s{sT+1}, s{sWq}, 1
    s_lshl_b32 s{sT+1}, s{sT+1}, 11              ; ks0*1024
    s_lshl_b32 s{sT+2}, s{sT}, 15                ; tt*32*1024
    s_add_u32 s{sT+2}, s{sT+2}, s{sT+1}
    s_add_u32 s{sT+2}, s{sT+2}, {WS_O}           ; X baseA
    s_mul_i32 s{sT+3}, s{sT}, {56*1024}
    s_add_u32 s{sT+3}, s{sT+3}, s{sT+1}
    s_add_u32 s{sT+3}, s{sT+3}, {WS_U}           ; X baseB
    s_add_u32 s{sT+4}, s{sT+3}, {12*1024}        ; Y baseA
    s_add_u32 s{sT+5}, s{sT+3}, {44*1024}        ; Y baseB
    s_cmp_eq_u32 s{sR}, 0
    s_cselect_b32 s{sTA}, s{sT+2}, s{sT+4}
    s_cselect_b32 s{sTBb}, s{sT+3}, s{sT+5}
    s_cselect_b32 s{sWbA}, 0, {3*65536}
    s_cselect_b32 s{sWbB}, 0, {11*65536}
    s_lshl_b32 s{sM}, s{sR}, 14
    s_lshl_b32 s{sT}, s{sWq}, 11
    s_add_u32 s{sM}, s{sM}, s{sT}
    ; weight DMA voffsets: row = 16wq + 8p + lane/8, chunk = (lane%8) ^ (4*((row>>1)&1))
    v_lshrrev_b32 v{t0}, 3, v{vLane}
    v_and_b32 v{t1}, 7, v{vLane}
    v_lshlrev_b32 v{t2}, 1, v{t0}
    v_and_b32 v{t2}, 4, v{t2}
    v_xor_b32 v{t1}, v{t1}, v{t2}
    v_lshlrev_b32 v{t1}, 4, v{t1}
    v_lshl_add_u32 v{t1}, v{t0}, 10, v{t1}
    s_lshl_b32 s{sT}, s{sWq}, 14
    s_lshl_b32 s{sT+1}, s{sNB}, 7
    s_add_u32 s{sT}, s{sT}, s{sT+1}
    v_add_u32 v{vDW}, s{sT}, v{t1}
    v_add_u32 v{vDW+1}, 8192, v{vDW}
    s_waitcnt lgkmcnt(0)
    s_cmp_eq_u32 s{sR}, 0
    s_cselect_b32 s{sWA}, s{sWA}, s{sWB}
    s_cselect_b32 s{sWA+1}, s{sWA+1}, s{sWB+1}
    s_cselect_b32 s{sWA+2}, {512*1024}, s{sWB+2}
    """)
    for st in range(NS - 1):
        for a in dma(st):
            k(a)
    k(f"""
    s_lshl_b32 s{sT}, s{sR}, 14
    s_and_b32 s{sT+1}, s{sWq}, 1                 ; tt
    s_lshl_b32 s{sT+2}, s{sT+1}, 12
    s_add_u32 s{sT+2}, s{sT+2}, s{sT}
    v_add_u32 v{vAT}, s{sT+2}, v{vL16}
    s_lshr_b32 s{sT+3}, s{sWq}, 1                ; nt
    v_bfe_u32 v{t0}, v{vLane}, 2, 2              ; r4
    v_lshrrev_b32 v{t1}, 5, v{vLane}             ; h
    v_lshl_add_u32 v{t1}, v{t1}, 3, v{t0}        ; 8h + r4
    v_bfe_u32 v{t2}, v{vLane}, 4, 1              ; mhalf
    v_lshlrev_b32 v{t2}, 1, v{t2}
    v_and_b32 v{t3}, 1, v{vLane}
    v_add_u32 v{t2}, v{t2}, v{t3}                ; mhalf*2 + c%2
    s_lshl_b32 s{sT+4}, s{sT+3}, 2
    v_add_u32 v{t2}, s{sT+4}, v{t2}              ; + nt*4
    v_lshlrev_b32 v{t0}, 1, v{t0}
    v_and_b32 v{t0}, 4, v{t0}
    v_xor_b32 v{t2}, v{t2}, v{t0}
    v_lshlrev_b32 v{t2}, 4, v{t2}
    v_lshl_add_u32 v{t2}, v{t1}, 7, v{t2}
    v_bfe_u32 v{t3}, v{vLane}, 1, 1
    v_lshl_add_u32 v{t2}, v{t3}, 3, v{t2}
    s_add_u32 s{sT+4}, s{sT}, 8192
    v_add_u32 v{vAW}, s{sT+4}, v{t2}
    v_add_u32 v{vAT+1}, {2*STAGE}, v{vAT}
    v_add_u32 v{vAT+2}, {4*STAGE}, v{vAT}
    v_add_u32 v{vAW+1}, {2*STAGE}, v{vAW}
    v_add_u32 v{vAW+2}, {4*STAGE}, v{vAW}
    ; out / x address: row = tb*64 + tt*32 + l%32 ; col bytes = nb*128 + nt*64 + h*16 (+32u)
    v_and_b32 v{t0}, 31, v{vLane}
    v_lshlrev_b32 v{t0}, 10, v{t0}
    v_lshrrev_b32 v{t1}, 5, v{vLane}
    v_lshl_add_u32 v{t0}, v{t1}, 4, v{t0}
    s_lshl_b32 s{sT+4}, s{sTB}, 16
    s_lshl_b32 s{sT+5}, s{sT+1}, 15
    s_add_u32 s{sT+4}, s{sT+4}, s{sT+5}
    s_lshl_b32 s{sT+5}, s{sNB}, 7
    s_add_u32 s{sT+4}, s{sT+4}, s{sT+5}
    s_lshl_b32 s{sT+5}, s{sT+3}, 6
    s_add_u32 s{sT+4}, s{sT+4}, s{sT+5}
    v_add_u32 v{vOA}, s{sT+4}, v{t0}
    """)
    stamp(k, 1)
    for st in range(NST + 1):
        mm = []
        if st > 0:
            p = st - 1
            acc = vA1 if p < 8 else vA2
            b = p % 2
            for ks in range(4):
                first = (p == 0 or p == 8) and ks == 0
                mm.append(mfma32(acc, vFA + 16 * b + 4 * ks, vFB + 16 * b + 4 * ks, None if first else acc))
        if st < NST:
            issued = min(NST, st + NS - 1)
            k(f"s_waitcnt vmcnt({4*(issued-st-1)}) lgkmcnt(0)")
            k("s_barrier")
            dm = dma(st + NS - 1) if st + NS - 1 < NST else []
            if st == NST - 2:
                dm = [f"buffer_load_dwordx4 {vr(vX,4)}, v{vOA}, {sr(sXS,4)}, 0 offen",
                      f"buffer_load_dwordx4 {vr(vX+4,4)}, v{vOA}, {sr(sXS,4)}, 0 offen offset:32"]
            seq = []
            for ks in range(4):
                seq += reads(st, ks)
                if ks < len(mm):
                    seq.append(mm[ks])
                if ks < len(dm):
                    seq.append(dm[ks])
            for a in seq:
                k(a)
        else:
            for a in mm:
                k(a)
    stamp(k, 2)
    k(f"""
    s_lshl_b32 s{sT}, s{sWq}, 12
    s_add_u32 s{sT}, s{sT}, {STAGE}
    v_add_u32 v{t0}, s{sT}, v{vL16}
    s_cmp_eq_u32 s{sR}, 0
    s_cbranch_scc1 k3_x
    """)
    for i in range(16):
        k(f"v_add_f32 v{vA1+i}, v{vA1+i}, v{vA2+i}")
    for i in range(4):
        k(f"ds_write_b128 v{t0}, {vr(vA1+4*i,4)} offset:{1024*i}")
    k("s_waitcnt lgkmcnt(0)\ns_barrier\ns_branch k3_fin")
    k.label("k3_x")
    k("s_barrier")
    for i in range(4):
        k(f"ds_read_b128 {vr(vFA+4*i,4)}, v{t0} offset:{1024*i}")
    k(f"s_mov_b32 s{sT}, 0xbfb8aa3b")
    for i in range(16):
        k(f"v_add_f32 v{vA2+i}, v{vA2+i}, v{vFA+i}")
    for i in range(16):
        k(f"v_mul_f32 v{vFA+i}, s{sT}, v{vA2+i}")
    for i in range(16):
        k(f"v_exp_f32 v{vFA+i}, v{vFA+i}")
    for i in range(16):
        k(f"v_add_f32 v{vFA+i}, 1.0, v{vFA+i}")
    for i in range(16):
        k(f"v_rcp_f32 v{vFA+i}, v{vFA+i}")
    for i in range(16):
        k(f"v_mul_f32 v{vA2+i}, v{vA2+i}, v{vA1+i}")
    for i in range(8):
        k(f"""
        v_lshlrev_b32 v{vFB+2*i}, 16, v{vX+i}
        v_and_b32 v{vFB+2*i+1}, 0xffff0000, v{vX+i}
        """)
    for i in range(16):
        k(f"v_fma_f32 v{vFB+i}, v{vA2+i}, v{vFA+i}, v{vFB+i}")
    for i in range(8):
        k(f"v_cvt_pk_bf16_f32 v{vX+i}, v{vFB+2*i}, v{vFB+2*i+1}")
    k(f"""
    buffer_store_dwordx4 {vr(vX,4)}, v{vOA}, {sr(sOUT,4)}, 0 offen
    buffer_store_dwordx4 {vr(vX+4,4)}, v{vOA}, {sr(sOUT,4)}, 0 offen offset:32
    """)
    k.label("k3_fin")
    if STAMP:
        k("s_waitcnt vmcnt(0)")
    stamp(k, 3)
    stamp_store(k, 4)
    k("""
    k3_end:
    s_endpgm
    """)
    k.finish()
    return k


if __name__ == "__main__":
    import sys
    STAMP = "stamp" in sys.argv
    k = gen_k3()
    print(build_file("; test", [("k3_kernel", 256, 512, LDS_K3)], [k]))
```

```python
MB = 1 << 20
WS_Q = 0 * MB
WS_K = 2 * MB
WS_V = 4 * MB
WS_Z1 = 6 * MB
WS_Z2 = 10 * MB
WS_O = 14 * MB
WS_U = 16 * MB
WS_RS = 20 * MB
WS_CS = 20 * MB + 65536
WS_S2 = 21 * MB
WS_Z2R = 22 * MB
WS_FLAG = 23 * MB
WS_STAMP = 30 * MB
WS_SIZE = 32 * MB

KA_X, KA_WQKV, KA_WO, KA_BX, KA_WIN, KA_WSP, KA_BSP, KA_WOUT, KA_OUT, KA_DBG, KA_WS = [8 * i for i in range(11)]
```

```python
import sys
from asmlib import *
import k1, k2, k3
ref = open("recurrent_scan__softmax_full_mha__mixer_gmlp__prompt.s.ref").read()
hdr = "\n".join(l for l in ref.split("\n") if l.startswith(";") and "@launch" not in l and "Override" not in l and "grid=ceil" not in l)
import os
if os.environ.get('STAMP'):
    k1.STAMP = k2.STAMP = k3.STAMP = True
ks = [k1.gen_k1(), k2.gen_k2(), k3.gen_k3()]
txt = build_file(hdr, [("k1_kernel", 256, 512, k1.LDS_K1), ("k2_kernel", 256, 768, k2.LDS_K2), ("k3_kernel", 256, 512, k3.LDS_K3)], ks)
out = sys.argv[1] if len(sys.argv) > 1 else "recurrent_scan__softmax_full_mha__mixer_gmlp__prompt.s"
open(out, "w").write(txt)
print("wrote", out, len(txt))
```

```python
import os
import struct
from asmlib import *
from layout import *

X = set(os.environ.get('K1X', '').split(','))
STAGE = 49152
O_W = 16384
L_TAG = 3 * STAGE
LDS_K1 = 3 * STAGE + 4096 + 256

vLane = 1
vL16 = 2
vDX, vDW = 3, 5
vAX = 9
vAW = 13
vTag = 15
vT = 16
ACC = 32
FX = 96
FW = 104
vGR = 136
vGC = 140
vGA = 144
vK = 148
vCS = 156
vE = 188
L_CSW = L_TAG + 64 * 4

sWS, sXS, sWW, sWI, sDBG = 4, 8, 12, 16, 20
sW, sRH, sRB, sCG, sUn = 24, 25, 26, 27, 28
sKX, sKW, sPit = 29, 30, 31
sMX, sMW = 32, 33
sKind, sIdx, sT32, sGU = 34, 36, 38, 39
sCSo = 58
sT = 40
sSpin = 61

C0 = -2.0 * 1.4426950408889634 * 0.7978845608028654
C1 = C0 * 0.044715
QS = 0.25 * 1.4426950408889634


def f32(x):
    return "0x%08x" % struct.unpack("<I", struct.pack("<f", x))[0]


STAMP = False
WT = os.environ.get('WT', '')


def stamp(k, i):
    if STAMP:
        if i == 0:
            k("s_memrealtime s[80:81]")
        if i == 3:
            k("s_memrealtime s[82:83]")
        k(f"s_memtime {sr(64+2*i,2)}\ns_waitcnt lgkmcnt(0)")


def stamp_store(k, n):
    if not STAMP:
        return
    k(f"s_lshl_b32 s62, s2, 3\ns_add_u32 s62, s62, s{sW}\ns_lshl_b32 s62, s62, 5\ns_add_u32 s62, s62, {WS_STAMP}")
    for i in range(n):
        k(f"s_sub_u32 s63, s{64+2*i}, s64\nv_mov_b32 v{vT}, s63\nv_mov_b32 v{vT+1}, 0\nbuffer_store_dword v{vT}, v{vT+1}, {sr(sWS,4)}, s62 offen offset:{4*i}")
    for j, r in ((6, 80), (7, 82)):
        k(f"v_mov_b32 v{vT}, s{r}\nv_mov_b32 v{vT+1}, 0\nbuffer_store_dword v{vT}, v{vT+1}, {sr(sWS,4)}, s62 offen offset:{4*j}")


def mfma32(d, a, b, c):
    cs = "0" if c is None else vr(c, 16)
    return f"v_mfma_f32_32x32x16_bf16 {vr(d,16)}, {vr(a,4)}, {vr(b,4)}, {cs}"


def dma_x(p):
    base = (p % 3) * STAGE
    return [f"s_add_u32 m0, s{sMX}, {base}\ns_nop 0\nbuffer_load_dwordx4 v{vDX}, {sr(sXS,4)}, s{sKX} offen lds",
            f"s_add_u32 m0, s{sMX}, {base+1024}\ns_nop 0\nbuffer_load_dwordx4 v{vDX+1}, {sr(sXS,4)}, s{sKX} offen lds\ns_add_u32 s{sKX}, s{sKX}, 128"]


def dma_w(p):
    base = (p % 3) * STAGE
    out = []
    for j in range(4):
        out.append(f"s_add_u32 m0, s{sMW}, {base+1024*j}\ns_nop 0\nbuffer_load_dwordx4 v{vDW+j}, {sr(sWW,4)}, s{sKW} offen lds"
                   + (f"\ns_add_u32 s{sKW}, s{sKW}, s{sPit}" if j == 3 else ""))
    return out


def reads(ks, buf):
    out = [f"ds_read_b128 {vr(FX+4*buf,4)}, v{vAX+ks}"]
    for c in range(4):
        d = FW + 16 * buf + 4 * c
        o = (c // 2) * 8192 + ks * 2048
        out.append(f"ds_read_b64_tr_b16 {vr(d,2)}, v{vAW+c%2} offset:{o}")
        out.append(f"ds_read_b64_tr_b16 {vr(d+2,2)}, v{vAW+c%2} offset:{o+512}")
    return out


def mms(buf, first):
    out = []
    for c in range(4):
        d = ACC + 16 * c
        out.append(mfma32(d, FW + 16 * buf + 4 * c, FX + 4 * buf, None if first else d))
    return out


def emit(k, seq, stage):
    for a in seq:
        if isinstance(a, tuple):
            if 'nodma' in X:
                continue
            k(a[1], tag=("st", stage))
        else:
            if 'nord' in X and a.startswith('ds_read'):
                continue
            if 'nomm' in X and a.startswith('v_mfma'):
                continue
            k(a)


def gather_loads():
    e = f"buffer_load_dwordx4 {vr(vGR,4)}, v{vGA}, {sr(sWS,4)}, 0 offen sc0 sc1\n"
    for un in range(2):
        e += f"buffer_load_dwordx2 {vr(vGC+2*un,2)}, v{vGA+1}, {sr(sWS,4)}, s{sCSo+un} offen sc0 sc1\n"
    return e


def check_tags(k, regs, Lok, tmp):
    k(f"v_xor_b32 v{tmp}, v{regs[0]}, v{vTag}")
    for r in regs[1:]:
        k(f"v_xor_b32 v{tmp+1}, v{r}, v{vTag}\nv_or_b32 v{tmp}, v{tmp}, v{tmp+1}")
    k(f"v_cmp_ne_u32 vcc, 0, v{tmp}\ns_cmp_eq_u64 vcc, 0\ns_cbranch_scc1 {Lok}")


def poll_tag(k, first_issued):
    Lr, Lok = k.newlabel("tagpoll"), k.newlabel("tagok")
    if first_issued:
        k(f"v_readfirstlane_b32 s{sT}, v{vTag}\ns_cmp_lg_u32 s{sT}, 0\ns_cbranch_scc1 {Lok}")
    k(f"""
    {Lr}:
    buffer_load_dword v{vTag}, v{vGA+2}, {sr(sDBG,4)}, 0 offen sc0 sc1
    v_readfirstlane_b32 s{sT}, v{vTag}
    s_cmp_lg_u32 s{sT}, 0
    s_cbranch_scc1 {Lok}
    s_sleep 2
    s_sub_u32 s{sSpin}, s{sSpin}, 1
    s_cbranch_scc0 {Lr}
    {Lok}:
    """)


def main_loop(k):
    t0 = vT
    for p in range(8):
        k.wait_tag(("st", p))
        k("s_waitcnt lgkmcnt(0)\ns_barrier")
        if p > 0:
            step = STAGE if p % 3 else -2 * STAGE
            for r in (vAX, vAX + 1, vAX + 2, vAX + 3, vAW, vAW + 1):
                k(f"v_add_u32 v{r}, {step & 0xffffffff:#x}, v{r}")
        dm = (dma_x(p + 2) + dma_w(p + 2)) if p + 2 < 8 else []
        dm = [("dma", a) for a in dm]
        for ks in range(4):
            g = 4 * p + ks
            r = reads(ks, g % 2)
            m = mms((g - 1) % 2, g - 1 == 0) if g > 0 else []
            d = dm[[0, 2, 3, 5][ks]:[2, 3, 5, 6][ks]]
            emit(k, interleave(r, m, d), p + 2)
            if p == 3 and ks == 0:
                L = k.newlabel("nopoll")
                k(f"s_cmp_lg_u32 s{sW}, 0\ns_cbranch_scc1 {L}\nbuffer_load_dword v{vTag}, v{vGA+2}, {sr(sDBG,4)}, 0 offen sc0 sc1\n{L}:")
            if p == 4 and ks == 3:
                L = k.newlabel("notag")
                k(f"s_cmp_lg_u32 s{sW}, 0\ns_cbranch_scc1 {L}")
                poll_tag(k, True)
                k(f"v_mov_b32 v{t0}, {L_TAG}\nds_write_b32 v{t0}, v{vTag}\n{L}:")
            if p == 5 and ks == 0:
                k(f"v_mov_b32 v{t0}, {L_TAG}\nds_read_b32 v{vTag}, v{t0}")
            if p == 6 and ks == 1:
                k(gather_loads())
    for a in mms(1, False):
        k(a)


BC = "op_sel_hi:[1,0]"


def gelu_pk(k, a, n, tmp):
    P = range(0, n, 2)
    for i in P:
        k(f"v_pk_mul_f32 {vr(tmp+i,2)}, {vr(a+i,2)}, {vr(a+i,2)}")
    for i in P:
        k(f"v_pk_fma_f32 {vr(tmp+i,2)}, {vr(tmp+i,2)}, {vr(vK,2)}, {vr(vK,2)} op_sel:[0,1,0] op_sel_hi:[1,1,0]")
    for i in P:
        k(f"v_pk_mul_f32 {vr(tmp+i,2)}, {vr(tmp+i,2)}, {vr(a+i,2)}")
    for i in range(n):
        k(f"v_exp_f32 v{tmp+i}, v{tmp+i}")
    for i in P:
        k(f"v_pk_add_f32 {vr(tmp+i,2)}, {vr(tmp+i,2)}, {vr(vK+2,2)}")
    for i in range(n):
        k(f"v_rcp_f32 v{tmp+i}, v{tmp+i}")
    for i in P:
        k(f"v_pk_mul_f32 {vr(a+i,2)}, {vr(a+i,2)}, {vr(tmp+i,2)}")


def pack(k, a):
    for c in range(4):
        for i in range(4):
            k(f"v_cvt_pk_bf16_f32 v{a+8*c+i}, v{a+8*c+2*i}, v{a+8*c+2*i+1}")


def store_unit(k, un, Ldone):
    t0, t1, t2, t3 = vT, vT + 1, vT + 2, vT + 3
    A = ACC + 32 * un
    kind, idx = sKind + un, sIdx + un
    Ltr = k.newlabel("tr")
    pack(k, A)
    k(f"s_cmp_eq_u32 s{kind}, 2\ns_cbranch_scc1 {Ltr}\ns_cmp_eq_u32 s{kind}, 4\ns_cbranch_scc1 {Ltr}")
    k(f"""
    s_lshl_b32 s{sT}, s{idx}, 18
    s_lshl_b32 s{sT+1}, s{sT32}, 10
    s_add_u32 s{sT}, s{sT}, s{sT+1}
    s_lshl_b32 s{sT+1}, s{kind}, 21
    s_add_u32 s{sT}, s{sT}, s{sT+1}
    s_add_u32 s{sT}, s{sT}, {WS_Q}
    s_mul_i32 s{sT+1}, s{sT32}, {56*1024}
    s_lshl_b32 s{sT+2}, s{idx}, 12
    s_add_u32 s{sT+1}, s{sT+1}, s{sT+2}
    s_add_u32 s{sT+1}, s{sT+1}, {WS_Z1}
    s_cmp_eq_u32 s{kind}, 3
    s_cselect_b32 s{sT}, s{sT+1}, s{sT}
    s_cselect_b32 s{sT+3}, 10, 16
    s_lshl_b32 s{sT+3}, 1, s{sT+3}
    """)
    for c in range(4):
        k(f"buffer_store_dwordx4 {vr(A+8*c,4)}, v{vL16}, {sr(sWS,4)}, s{sT} offen {WT}")
        if c < 3:
            k(f"s_add_u32 s{sT}, s{sT}, s{sT+3}")
    k(f"s_branch {Ldone}")
    k.label(Ltr)
    for c in range(4):
        k(f"ds_write_b128 v{vT+8+c}, {vr(A+8*c,4)}")
    k(f"""
    s_lshl_b32 s{sT}, s{idx}, 18
    s_lshl_b32 s{sT+1}, s{sT32}, 10
    s_add_u32 s{sT+2}, s{sT}, s{sT+1}
    s_add_u32 s{sT+2}, s{sT+2}, {WS_V}
    s_lshl_b32 s{sT+1}, s{sT+1}, 1
    s_add_u32 s{sT+3}, s{sT}, s{sT+1}
    s_add_u32 s{sT+3}, s{sT+3}, {WS_Z2}
    s_cmp_eq_u32 s{kind}, 2
    s_cselect_b32 s{sT}, s{sT+2}, s{sT+3}
    s_cselect_b32 s{sT+1}, 9, 10
    s_cselect_b64 vcc, -1, 0
    s_lshl_b32 s{sT+1}, 1, s{sT+1}
    v_cndmask_b32 v{t0}, v{vL16}, v{vT+7}, vcc
    s_waitcnt lgkmcnt(0)
    """)
    for ct in range(2):
        for ks in range(2):
            d = A + 8 * ct + 4 * ks
            k(f"ds_read_b64_tr_b16 {vr(d,2)}, v{vT+12+2*ct} offset:{ks*2048}")
            k(f"ds_read_b64_tr_b16 {vr(d+2,2)}, v{vT+13+2*ct} offset:{ks*2048+512}")
    k(f"s_add_u32 s{sT+2}, s{sT}, s{sT+1}\ns_add_u32 s{sT+3}, s{sT}, 131072\ns_add_u32 s{sT+5}, s{sT+2}, 131072")
    for j, so in enumerate((sT, sT + 2, sT + 3, sT + 5)):
        k(f"buffer_store_dwordx4 {vr(A+4*j,4)}, v{t0}, {sr(sWS,4)}, s{so} offen {WT}")


def fold_gelu(k, un, Lnoz):
    A = ACC + 32 * un
    kind = sKind + un
    for c in range(4):
        k(f"ds_read_b128 {vr(vCS+8*c,4)}, v{vT+6} offset:{un*256+c*64}")
        k(f"ds_read_b128 {vr(vCS+8*c+4,4)}, v{vT+6} offset:{un*256+c*64+16}")
    k(f"""
    s_cmp_eq_u32 s{kind}, 0
    s_cselect_b32 s{sT}, {f32(QS)}, 1.0
    v_mul_f32 v{vK+4}, s{sT}, v{vGR}
    v_mul_f32 v{vK+5}, s{sT}, v{vGR+2}
    """)
    for i in range(0, 32, 2):
        k(f"v_pk_mul_f32 {vr(A+i,2)}, {vr(A+i,2)}, {vr(vK+4,2)} {BC}")
    for i in range(0, 32, 2):
        k(f"v_pk_fma_f32 {vr(A+i,2)}, {vr(vCS+i,2)}, {vr(vK+4,2)}, {vr(A+i,2)} op_sel:[0,1,0] op_sel_hi:[1,1,1] neg_lo:[1,0,0] neg_hi:[1,0,0]")
    k(f"s_cmp_lt_u32 s{kind}, 3\ns_cbranch_scc1 {Lnoz}")
    for c in range(2):
        gelu_pk(k, A + 16 * c, 16, FW)


def epilogue(k):
    t0, t1, t2, t3 = vT, vT + 1, vT + 2, vT + 3
    tagregs = [vGR + 1, vGR + 3, vGC + 1, vGC + 3]
    k(f"s_cmp_lg_u32 s{sKind}, 4\ns_cbranch_scc1 k1_noprio\ns_setprio 3\nk1_noprio:")
    Lr, Lok = k.newlabel("g1"), k.newlabel("g1ok")
    check_tags(k, tagregs, Lok, t0)
    k(f"{Lr}:\ns_sleep 2")
    k(gather_loads())
    check_tags(k, tagregs, Lok, t0)
    k(f"s_sub_u32 s{sSpin}, s{sSpin}, 1\ns_cbranch_scc0 {Lr}\n{Lok}:")
    k(f"""
    s_lshl_b32 s{sT}, s{sW}, 9
    s_add_u32 s{sT}, s{sT}, {L_CSW}
    v_lshlrev_b32 v{t0}, 2, v{vLane}
    v_add_u32 v{t0}, s{sT}, v{t0}
    ds_write_b32 v{t0}, v{vGC}
    ds_write_b32 v{t0}, v{vGC+2} offset:256
    v_lshrrev_b32 v{t2}, 5, v{vLane}             ; h
    v_lshlrev_b32 v{vT+6}, 5, v{t2}
    v_add_u32 v{vT+6}, s{sT}, v{vT+6}
    v_mov_b32 v{vK}, {f32(C0)}
    v_mov_b32 v{vK+1}, {f32(C1)}
    v_mov_b32 v{vK+2}, 1.0
    v_mov_b32 v{vK+3}, 1.0
    s_waitcnt lgkmcnt(0)
    """)
    k(f"""
    s_lshl_b32 s{sT}, s{sW}, 12
    s_add_u32 s{sT}, s{sT}, {2*STAGE}
    v_and_b32 v{t0}, 31, v{vLane}
    v_and_b32 v{t1}, 1, v{t0}
    v_bfe_u32 v{t3}, v{t0}, 1, 1
    v_lshl_or_b32 v{t1}, v{t3}, 2, v{t1}
    v_bfe_u32 v{t3}, v{t0}, 2, 1
    v_lshl_or_b32 v{t1}, v{t3}, 1, v{t1}
    v_xor_b32 v{t1}, v{t1}, v{t2}
    v_lshlrev_b32 v{t1}, 4, v{t1}
    v_lshl_add_u32 v{t1}, v{t0}, 7, v{t1}
    v_add_u32 v{vT+8}, s{sT}, v{t1}
    v_xor_b32 v{vT+9}, 32, v{vT+8}
    v_xor_b32 v{vT+10}, 64, v{vT+8}
    v_xor_b32 v{vT+11}, 96, v{vT+8}
    v_bfe_u32 v{t0}, v{vLane}, 2, 2
    v_and_b32 v{t1}, 1, v{t0}
    v_lshrrev_b32 v{t3}, 1, v{t0}
    v_lshl_or_b32 v{t1}, v{t3}, 2, v{t1}
    v_bfe_u32 v{t3}, v{vLane}, 4, 1
    v_lshlrev_b32 v{t3}, 1, v{t3}
    v_and_b32 v{vT+4}, 1, v{vLane}
    v_or_b32 v{t3}, v{t3}, v{vT+4}
    v_xor_b32 v{t1}, v{t1}, v{t3}
    v_lshlrev_b32 v{t1}, 4, v{t1}
    v_lshl_add_u32 v{t0}, v{t2}, 3, v{t0}
    v_lshl_add_u32 v{t1}, v{t0}, 7, v{t1}
    v_bfe_u32 v{t3}, v{vLane}, 1, 1
    v_lshl_add_u32 v{t1}, v{t3}, 3, v{t1}
    v_add_u32 v{vT+12}, s{sT}, v{t1}
    v_xor_b32 v{vT+13}, 32, v{vT+12}
    v_xor_b32 v{vT+14}, 64, v{vT+12}
    v_xor_b32 v{vT+15}, 96, v{vT+12}
    v_and_b32 v{t0}, 15, v{vLane}
    v_lshlrev_b32 v{t0}, 4, v{t0}
    v_lshl_add_u32 v{t0}, v{t2}, 8, v{t0}
    v_bfe_u32 v{t3}, v{vLane}, 4, 1
    v_lshl_add_u32 v{vT+7}, v{t3}, 16, v{t0}
    """)
    fold_gelu(k, 0, "k1_u0st")
    k(f"s_cmp_eq_u32 s{sKind}, 3\ns_cbranch_scc1 k1_u0st")
    S = vE
    A = ACC
    k(f"v_pk_add_f32 {vr(S,2)}, {vr(A,2)}, {vr(A+2,2)}\nv_pk_mul_f32 {vr(S+2,2)}, {vr(A,2)}, {vr(A,2)}\n"
      f"v_pk_fma_f32 {vr(S+2,2)}, {vr(A+2,2)}, {vr(A+2,2)}, {vr(S+2,2)}")
    for i in range(4, 32, 2):
        k(f"v_pk_add_f32 {vr(S,2)}, {vr(S,2)}, {vr(A+i,2)}\nv_pk_fma_f32 {vr(S+2,2)}, {vr(A+i,2)}, {vr(A+i,2)}, {vr(S+2,2)}")
    k(f"""
    v_add_f32 v{S}, v{S}, v{S+1}
    v_add_f32 v{S+2}, v{S+2}, v{S+3}
    v_permlane32_swap_b32 v{S}, v{S+2}
    v_add_f32 v{S}, v{S}, v{S+2}
    v_mov_b32 v{S+1}, v{vTag}
    s_mul_i32 s{sT+4}, s{sT32}, {14*512}
    s_add_u32 s{sT+4}, s{sT+4}, {WS_S2}
    s_lshl_b32 s{sT+1}, s{sIdx}, 9
    s_add_u32 s{sT+1}, s{sT+1}, s{sT+4}
    v_lshlrev_b32 v{vT+5}, 3, v{vLane}
    buffer_store_dwordx2 {vr(S,2)}, v{vT+5}, {sr(sWS,4)}, s{sT+1} offen sc0 sc1
    s_setprio 0
    s_branch k1_u1
    """)
    k.label("k1_u0st")
    store_unit(k, 0, "k1_u1")
    k.label("k1_u1")
    stamp(k, 4)
    fold_gelu(k, 1, "k1_u1st")
    k.label("k1_u1st")
    G = vE + 4

    def g2loads():
        for i in range(7):
            if i % 4 == 0:
                k(f"s_add_u32 s{sT}, s{sT+4}, {1024*i}")
            k(f"buffer_load_dwordx4 {vr(G+4*i,4)}, v{vL16}, {sr(sWS,4)}, s{sT} offen offset:{1024*(i%4)} sc0 sc1")
    k(f"s_cmp_lg_u32 s{sKind}, 4\ns_cbranch_scc1 k1_nog2")
    g2loads()
    k.label("k1_nog2")
    store_unit(k, 1, "k1_u1done")
    k.label("k1_u1done")
    stamp(k, 5)
    k(f"s_cmp_lg_u32 s{sKind}, 4\ns_cbranch_scc1 k1_fin")
    Lr, Lok = k.newlabel("g2"), k.newlabel("g2ok")
    check_tags(k, [G + 2 * j + 1 for j in range(14)], Lok, t0)
    k(f"{Lr}:")
    g2loads()
    check_tags(k, [G + 2 * j + 1 for j in range(14)], Lok, t0)
    k(f"s_sleep 1\ns_sub_u32 s{sSpin}, s{sSpin}, 1\ns_cbranch_scc0 {Lr}\n{Lok}:")
    stamp(k, 1)
    for i in range(1, 7):
        k(f"v_add_f32 v{G}, v{G}, v{G+4*i}\nv_add_f32 v{G+2}, v{G+2}, v{G+4*i+2}")
    k(f"""
    v_mov_b32 v{t0}, v{G}
    v_mov_b32 v{t1}, v{G+2}
    v_permlane32_swap_b32 v{G}, v{t0}
    v_permlane32_swap_b32 v{G+2}, v{t1}
    v_add_f32 v{G}, v{G}, v{t0}
    v_add_f32 v{G+1}, v{G+2}, v{t1}
    s_lshl_b32 s{sT}, s{sW}, 9
    s_add_u32 s{sT}, s{sT}, {L_CSW}
    v_and_b32 v{t2}, 31, v{vLane}
    v_lshlrev_b32 v{t3}, 3, v{t2}
    v_add_u32 v{t3}, s{sT}, v{t3}
    ds_write_b64 v{t3}, {vr(G,2)}
    v_lshlrev_b32 v{t3}, 2, v{t2}
    v_add_u32 v{t3}, s{sT}, v{t3}
    s_waitcnt lgkmcnt(0)
    ds_read_b32 v{t0}, v{t3}
    ds_read_b32 v{t1}, v{t3} offset:128
    v_mul_f32 v{t0}, {f32(1.0/896)}, v{t0}
    v_mul_f32 v{t1}, {f32(1.0/896)}, v{t1}
    v_fma_f32 v{t1}, -v{t0}, v{t0}, v{t1}
    v_max_f32 v{t1}, 0, v{t1}
    v_add_f32 v{t1}, {f32(1e-5)}, v{t1}
    v_rsq_f32 v{vK+4}, v{t1}
    v_mul_f32 v{vK+5}, v{t0}, v{vK+4}
    """)
    for i in range(0, 32, 2):
        k(f"v_pk_fma_f32 {vr(A+i,2)}, {vr(A+i,2)}, {vr(vK+4,2)}, {vr(vK+4,2)} op_sel:[0,0,1] op_sel_hi:[1,0,1] neg_lo:[0,0,1] neg_hi:[0,0,1]")
    store_unit(k, 0, "k1_fin")
    k("s_branch k1_fin")


def unit_decode(k, gu, kind, idx, col, isz):
    k(f"""
    s_lshl_b32 s{col}, s{gu}, 7
    s_cmp_ge_u32 s{gu}, 24
    s_cselect_b32 s{isz}, 1, 0
    s_cselect_b32 s{sT+12}, {24*128}, 0
    s_sub_u32 s{col}, s{col}, s{sT+12}
    """)
    if kind is not None:
        k(f"""
        s_lshr_b32 s{kind}, s{gu}, 3
        s_and_b32 s{idx}, s{gu}, 7
        s_sub_u32 s{sT+12}, s{gu}, 24
        s_cmp_ge_u32 s{gu}, 24
        s_cselect_b32 s{kind}, 3, s{kind}
        s_cselect_b32 s{idx}, s{sT+12}, s{idx}
        s_sub_u32 s{sT+12}, s{gu}, 38
        s_cmp_ge_u32 s{gu}, 38
        s_cselect_b32 s{kind}, 4, s{kind}
        s_cselect_b32 s{idx}, s{sT+12}, s{idx}
        """)


def slot_to_unit(k, slot, gu):
    k(f"""
    s_lshl_b32 s{gu}, s{sCG}, 1
    s_add_u32 s{gu}, s{gu}, s{slot}
    s_sub_u32 s{gu}, s{gu}, 2
    s_min_u32 s{sT+12}, s{gu}, 23
    s_cmp_eq_u32 s{gu}, 23
    s_cselect_b32 s{sT+12}, 37, s{sT+12}
    s_cmp_eq_u32 s{gu}, 24
    s_cselect_b32 s{gu}, 51, s{sT+12}
    s_add_u32 s{sT+12}, s{sCG}, 38
    s_cmp_eq_u32 s{slot}, 0
    s_cselect_b32 s{gu}, s{sT+12}, s{gu}
    s_add_u32 s{sT+12}, s{sCG}, 24
    s_cmp_eq_u32 s{slot}, 1
    s_cselect_b32 s{gu}, s{sT+12}, s{gu}
    """)


def wave_allsum(k, regs, tmps):
    for sh in (8, 4, 2, 1):
        for r in regs:
            k(f"v_add_f32_dpp v{r}, v{r}, v{r} row_ror:{sh} row_mask:0xf bank_mask:0xf")
    for sw in ("v_permlane16_swap_b32", "v_permlane32_swap_b32"):
        for r, t in zip(regs, tmps):
            k(f"v_mov_b32 v{t}, v{r}")
        for r, t in zip(regs, tmps):
            k(f"{sw} v{r}, v{t}")
        for r, t in zip(regs, tmps):
            k(f"v_add_f32 v{r}, v{r}, v{t}")


def helper(k):
    t0, t1, t2, t3 = vT, vT + 1, vT + 2, vT + 3
    sH = sT + 8
    k(f"s_cmp_ge_u32 s{sH}, 26\ns_cbranch_scc1 k1_hrow")
    k(f"""
    s_lshl_b32 s{sGU}, s{sH}, 1
    s_lshr_b32 s{sT}, s{sW}, 2
    s_add_u32 s{sGU}, s{sGU}, s{sT}
    """)
    unit_decode(k, sGU, None, None, sT + 1, sT + 2)
    k(f"""
    s_cmp_eq_u32 s{sT+2}, 0
    s_cselect_b32 s{sWW}, s{sWW}, s{sWI}
    s_cselect_b32 s{sWW+1}, s{sWW+1}, s{sWI+1}
    s_cselect_b32 s{sWW+2}, s{sWW+2}, s{sWI+2}
    s_lshl_b32 s{sT+3}, s{sT+2}, 9
    s_add_u32 s{sT+3}, s{sT+3}, 3072             ; pitch
    s_and_b32 s{sT+4}, s{sW}, 3
    s_lshl_b32 s{sT+4}, s{sT+4}, 7
    v_lshrrev_b32 v{t0}, 3, v{vLane}
    v_add_u32 v{t0}, s{sT+4}, v{t0}
    v_mul_lo_u32 v{t0}, v{t0}, s{sT+3}
    v_and_b32 v{t1}, 7, v{vLane}
    v_lshl_add_u32 v{t0}, v{t1}, 4, v{t0}
    s_lshl_b32 s{sT+3}, s{sT+3}, 3
    """)
    for i in range(16):
        k(f"buffer_load_dwordx4 {vr(ACC+4*i,4)}, v{t0}, {sr(sWW,4)}, s{sT+1} offen")
        k(f"s_add_u32 s{sT+1}, s{sT+1}, s{sT+3}")
    A = FX
    for i in range(16):
        for r in range(4):
            src = ACC + 4 * i + r
            if i == 0:
                k(f"v_lshlrev_b32 v{A+2*r}, 16, v{src}\nv_and_b32 v{A+2*r+1}, 0xffff0000, v{src}")
            else:
                k(f"v_lshlrev_b32 v{t2}, 16, v{src}\nv_and_b32 v{t3}, 0xffff0000, v{src}\n"
                  f"v_add_f32 v{A+2*r}, v{A+2*r}, v{t2}\nv_add_f32 v{A+2*r+1}, v{A+2*r+1}, v{t3}")
    regs = [A + i for i in range(8)]
    tm = [A + 8 + i for i in range(8)]
    for r in regs:
        k(f"v_add_f32_dpp v{r}, v{r}, v{r} row_ror:8 row_mask:0xf bank_mask:0xf")
    for sw in ("v_permlane16_swap_b32", "v_permlane32_swap_b32"):
        for r, t in zip(regs, tm):
            k(f"v_mov_b32 v{t}, v{r}")
        for r, t in zip(regs, tm):
            k(f"{sw} v{r}, v{t}")
        for r, t in zip(regs, tm):
            k(f"v_add_f32 v{r}, v{r}, v{t}")
    k(f"""
    s_lshl_b32 s{sT}, s{sW}, 8
    v_lshlrev_b32 v{t0}, 5, v{t1}
    v_add_u32 v{t0}, s{sT}, v{t0}
    ds_write_b128 v{t0}, {vr(A,4)}
    ds_write_b128 v{t0}, {vr(A+4,4)} offset:16
    """)
    poll_tag(k, False)
    k(f"""
    s_waitcnt lgkmcnt(0)
    s_barrier
    s_and_b32 s{sT}, s{sW}, 3
    s_cmp_lg_u32 s{sT}, 0
    s_cbranch_scc1 k1_hpre
    s_lshl_b32 s{sT}, s{sW}, 8
    v_lshlrev_b32 v{t0}, 2, v{vLane}
    v_add_u32 v{t0}, s{sT}, v{t0}
    ds_read_b32 v{A}, v{t0}
    ds_read_b32 v{A+1}, v{t0} offset:256
    ds_read_b32 v{A+2}, v{t0} offset:512
    ds_read_b32 v{A+3}, v{t0} offset:768
    s_lshl_b32 s{sT}, s{sGU}, 9
    s_add_u32 s{sT}, s{sT}, {WS_CS}
    v_lshlrev_b32 v{t0}, 3, v{vLane}
    v_add_f32 v{A}, v{A}, v{A+1}
    v_add_f32 v{A+2}, v{A+2}, v{A+3}
    v_add_f32 v{A}, v{A}, v{A+2}
    v_mov_b32 v{A+1}, v{vTag}
    buffer_store_dwordx2 {vr(A,2)}, v{t0}, {sr(sWS,4)}, s{sT} offen sc0 sc1
    s_branch k1_hpre
    """)
    k.label("k1_hrow")
    k(f"""
    s_sub_u32 s{sT}, s{sH}, 26
    s_lshl_b32 s{sT}, s{sT}, 3
    s_add_u32 s{sT}, s{sT}, s{sW}
    s_mul_i32 s{sT+1}, s{sT}, 12
    s_lshl_b32 s{sT+2}, s{sT+1}, 10
    v_mov_b32 v{vK}, 0x3f803f80
    """)
    for i in range(12):
        if i % 4 == 0 and i:
            k(f"s_add_u32 s{sT+2}, s{sT+2}, 4096")
        k(f"buffer_load_dwordx4 {vr(ACC+4*i,4)}, v{vL16}, {sr(sXS,4)}, s{sT+2} offen offset:{1024*(i%4)}")
    S = vCS
    for i in range(24):
        k(f"v_mov_b32 v{S+i}, 0")
    for i in range(12):
        for r in range(4):
            k(f"v_dot2c_f32_bf16 v{S+2*i}, v{ACC+4*i+r}, v{vK}")
            k(f"v_dot2c_f32_bf16 v{S+2*i+1}, v{ACC+4*i+r}, v{ACC+4*i+r}")
    wave_allsum(k, [S + i for i in range(24)], [S + 24 + i for i in range(24)])
    k(f"v_mov_b32 v{t0}, v{S}\nv_mov_b32 v{t1}, v{S+1}")
    for i in range(1, 12):
        k(f"v_cmp_eq_u32 vcc, {i}, v{vLane}\nv_cndmask_b32 v{t0}, v{t0}, v{S+2*i}, vcc\nv_cndmask_b32 v{t1}, v{t1}, v{S+2*i+1}, vcc")
    R = FX
    k(f"""
    v_mul_f32 v{t0}, {f32(1.0/512)}, v{t0}
    v_mul_f32 v{t1}, {f32(1.0/512)}, v{t1}
    v_fma_f32 v{t1}, -v{t0}, v{t0}, v{t1}
    v_max_f32 v{t1}, 0, v{t1}
    v_add_f32 v{t1}, {f32(1e-5)}, v{t1}
    v_rsq_f32 v{R}, v{t1}
    v_mul_f32 v{R+2}, v{R}, v{t0}
    """)
    poll_tag(k, False)
    k(f"""
    v_mov_b32 v{R+1}, v{vTag}
    v_mov_b32 v{R+3}, v{vTag}
    s_lshl_b32 s{sT+2}, s{sT+1}, 4
    s_add_u32 s{sT+2}, s{sT+2}, {WS_RS}
    s_mov_b64 exec, 0xfff
    buffer_store_dwordx4 {vr(R,4)}, v{vL16}, {sr(sWS,4)}, s{sT+2} offen sc0 sc1
    s_mov_b64 exec, -1
    """)
    k.label("k1_hpre")
    k("s_branch k1_fin")


def gen_k1():
    k = Kernel("k1_kernel")
    t0, t1, t2, t3 = vT, vT + 1, vT + 2, vT + 3
    stamp(k, 0)
    k(f"""
    s_cmp_ge_u32 s2, 256
    s_cbranch_scc1 k1_end
    s_load_dwordx2 {sr(sXS,2)}, s[0:1], {KA_X}
    s_load_dwordx2 {sr(sWW,2)}, s[0:1], {KA_WQKV}
    s_load_dwordx2 {sr(sWI,2)}, s[0:1], {KA_WIN}
    s_load_dwordx2 {sr(sWS,2)}, s[0:1], {KA_WS}
    s_load_dwordx2 {sr(sDBG,2)}, s[0:1], {KA_DBG}
    s_memrealtime {sr(sT+14,2)}
    v_lshrrev_b32 v{t0}, 6, v0
    v_and_b32 v{vLane}, 63, v0
    v_readfirstlane_b32 s{sW}, v{t0}
    v_lshlrev_b32 v{vL16}, 4, v{vLane}
    s_mov_b32 s{sWS+2}, {WS_SIZE}
    s_mov_b32 s{sWS+3}, 0x00020000
    s_mov_b32 s{sXS+2}, {2048*1024}
    s_mov_b32 s{sXS+3}, 0x00020000
    s_mov_b32 s{sWW+2}, {512*3072}
    s_mov_b32 s{sWW+3}, 0x00020000
    s_mov_b32 s{sWI+2}, {512*3584}
    s_mov_b32 s{sWI+3}, 0x00020000
    s_mov_b32 s{sDBG+2}, 256
    s_mov_b32 s{sDBG+3}, 0x00020000
    s_mov_b32 s{sSpin}, 200000
    s_and_b32 s{sT}, s2, 63
    s_lshl_b32 s{sT}, s{sT}, 2
    v_mov_b32 v{vGA+2}, s{sT}
    s_and_b32 s{sT}, s2, 7
    s_lshr_b32 s{sT+1}, s2, 3
    s_and_b32 s{sT+2}, s2, 1
    s_lshl_b32 s{sT+3}, s{sT+2}, 2
    s_add_u32 s{sT+3}, s{sT+3}, 4                ; nh
    s_cmp_lt_u32 s{sT+1}, s{sT+3}
    s_cbranch_scc1 k1_helper
    s_sub_u32 s{sT+1}, s{sT+1}, s{sT+3}          ; j
    s_sub_u32 s{sT+4}, 7, s{sT+2}
    s_cmp_eq_u32 s{sT+2}, 0
    s_cselect_b32 s{sT+5}, 37, 43
    s_mul_i32 s{sT+5}, s{sT+1}, s{sT+5}
    s_lshr_b32 s{sT+5}, s{sT+5}, 8               ; j / ncg
    s_mul_i32 s{sT+6}, s{sT+5}, s{sT+4}
    s_sub_u32 s{sCG}, s{sT+1}, s{sT+6}
    s_mul_i32 s{sT+6}, s{sT+2}, 7
    s_add_u32 s{sCG}, s{sCG}, s{sT+6}
    s_lshr_b32 s{sRB}, s{sT}, 1
    s_lshl_b32 s{sRB}, s{sRB}, 2
    s_add_u32 s{sRB}, s{sRB}, s{sT+5}
    s_lshr_b32 s{sRH}, s{sW}, 2
    s_and_b32 s{sUn}, s{sW}, 3
    s_mov_b32 s{sKX}, 0
    s_mov_b32 s{sKW}, 0
    s_lshl_b32 s{sMX}, s{sW}, 11
    ; x DMA voffsets: row = 16w + 8p + l/8 ; chunk = (l%8) ^ ((row>>1)&7)
    v_lshrrev_b32 v{t0}, 3, v{vLane}
    v_and_b32 v{t1}, 7, v{vLane}
    v_lshrrev_b32 v{t2}, 1, v{t0}
    v_xor_b32 v{t2}, v{t2}, v{t1}
    v_lshlrev_b32 v{t2}, 4, v{t2}
    v_lshl_add_u32 v{t2}, v{t0}, 10, v{t2}
    s_lshl_b32 s{sT+5}, s{sRB}, 17
    s_lshl_b32 s{sT+6}, s{sW}, 14
    s_add_u32 s{sT+5}, s{sT+5}, s{sT+6}
    v_add_u32 v{vDX}, s{sT+5}, v{t2}
    v_xor_b32 v{t2}, 64, v{t2}
    s_add_u32 s{sT+5}, s{sT+5}, 8192
    v_add_u32 v{vDX+1}, s{sT+5}, v{t2}
    s_waitcnt lgkmcnt(0)
    """)
    for a in dma_x(0):
        k(a, tag=("st", 0))
    slot_to_unit(k, sUn, sGU)
    unit_decode(k, sGU, None, None, sT + 1, sT + 2)
    k(f"""
    s_cmp_eq_u32 s{sT+2}, 0
    s_cselect_b32 s{sWW}, s{sWW}, s{sWI}
    s_cselect_b32 s{sWW+1}, s{sWW+1}, s{sWI+1}
    s_cselect_b32 s{sWW+2}, s{sWW+2}, s{sWI+2}
    s_lshl_b32 s{sT+3}, s{sT+2}, 9
    s_add_u32 s{sT+3}, s{sT+3}, 3072             ; pitch
    s_lshl_b32 s{sPit}, s{sT+3}, 6
    v_lshlrev_b32 v{t2}, 1, v{t0}
    v_and_b32 v{t2}, 4, v{t2}
    v_xor_b32 v{t2}, v{t2}, v{t1}
    v_lshlrev_b32 v{t2}, 4, v{t2}
    s_lshl_b32 s{sT+4}, s{sRH}, 5
    v_add_u32 v{t3}, s{sT+4}, v{t0}
    v_mul_lo_u32 v{t3}, v{t3}, s{sT+3}
    v_add3_u32 v{vDW}, v{t3}, v{t2}, s{sT+1}
    s_lshl_b32 s{sT+3}, s{sT+3}, 3
    v_add_u32 v{vDW+1}, s{sT+3}, v{vDW}
    v_add_u32 v{vDW+2}, s{sT+3}, v{vDW+1}
    v_add_u32 v{vDW+3}, s{sT+3}, v{vDW+2}
    s_lshl_b32 s{sMW}, s{sUn}, 13
    s_lshl_b32 s{sT+4}, s{sRH}, 12
    s_add_u32 s{sMW}, s{sMW}, s{sT+4}
    s_add_u32 s{sMW}, s{sMW}, {O_W}
    """)
    for a in dma_w(0):
        k(a, tag=("st", 0))
    for un in range(2):
        k(f"s_lshl_b32 s{sT}, s{sRH}, 1\ns_add_u32 s{sT}, s{sT}, {un}")
        slot_to_unit(k, sT, sGU)
        unit_decode(k, sGU, sKind + un, sIdx + un, sT + 1, sT + 2)
        k(f"s_lshl_b32 s{sCSo+un}, s{sGU}, 9\ns_add_u32 s{sCSo+un}, s{sCSo+un}, {WS_CS}")
    for a in dma_x(1) + dma_w(1):
        k(a, tag=("st", 1))
    k(f"""
    s_lshl_b32 s{sT32}, s{sRB}, 2
    s_add_u32 s{sT32}, s{sT32}, s{sUn}
    v_and_b32 v{t0}, 31, v{vLane}
    v_and_b32 v{t1}, 0x13, v{t0}
    v_and_b32 v{t2}, 4, v{t0}
    v_lshl_or_b32 v{t1}, v{t2}, 1, v{t1}
    v_and_b32 v{t2}, 8, v{t0}
    v_lshrrev_b32 v{t2}, 1, v{t2}
    v_or_b32 v{t1}, v{t1}, v{t2}
    s_cmp_eq_u32 s{sKind}, 1
    s_cselect_b64 vcc, -1, 0
    v_cndmask_b32 v{t0}, v{t0}, v{t1}, vcc       ; tok
    v_lshrrev_b32 v{t1}, 5, v{vLane}             ; h
    v_bfe_u32 v{t2}, v{t0}, 1, 3
    v_xor_b32 v{t2}, v{t2}, v{t1}
    v_lshlrev_b32 v{t2}, 4, v{t2}
    v_lshl_add_u32 v{t2}, v{t0}, 7, v{t2}
    s_lshl_b32 s{sT}, s{sUn}, 12
    v_add_u32 v{vAX}, s{sT}, v{t2}
    v_xor_b32 v{vAX+1}, 32, v{vAX}
    v_xor_b32 v{vAX+2}, 64, v{vAX}
    v_xor_b32 v{vAX+3}, 96, v{vAX}
    s_lshl_b32 s{sT}, s{sT32}, 9
    s_add_u32 s{sT}, s{sT}, {WS_RS}
    v_lshlrev_b32 v{t0}, 4, v{t0}
    v_add_u32 v{vGA}, s{sT}, v{t0}
    v_lshlrev_b32 v{vGA+1}, 3, v{vLane}
    ; W tr-read address: (8h + r4)*128 + ((mhalf*2 + c%2) ^ (4*(r4>>1)))*16 + (c/2)*8
    v_bfe_u32 v{t0}, v{vLane}, 2, 2
    v_lshl_add_u32 v{t1}, v{t1}, 3, v{t0}
    v_bfe_u32 v{t2}, v{vLane}, 4, 1
    v_lshlrev_b32 v{t2}, 1, v{t2}
    v_and_b32 v{t3}, 1, v{vLane}
    v_or_b32 v{t2}, v{t2}, v{t3}
    v_lshlrev_b32 v{t0}, 1, v{t0}
    v_and_b32 v{t0}, 4, v{t0}
    v_xor_b32 v{t2}, v{t2}, v{t0}
    v_lshlrev_b32 v{t2}, 4, v{t2}
    v_lshl_add_u32 v{t2}, v{t1}, 7, v{t2}
    v_bfe_u32 v{t3}, v{vLane}, 1, 1
    v_lshl_add_u32 v{t2}, v{t3}, 3, v{t2}
    s_lshl_b32 s{sT}, s{sRH}, 14
    s_add_u32 s{sT}, s{sT}, {O_W}
    v_add_u32 v{vAW}, s{sT}, v{t2}
    v_xor_b32 v{vAW+1}, 64, v{vAW}
    v_mov_b32 v{vTag}, 0
    """)
    stamp(k, 1)
    main_loop(k)
    stamp(k, 2)
    epilogue(k)
    k.label("k1_helper")
    k(f"""
    s_sub_u32 s{sT+4}, s{sT+1}, 4
    s_lshl_b32 s{sT+4}, s{sT+4}, 2
    s_lshr_b32 s{sT+5}, s{sT}, 1
    s_add_u32 s{sT+4}, s{sT+4}, s{sT+5}
    s_add_u32 s{sT+4}, s{sT+4}, 32
    s_cmp_lt_u32 s{sT+1}, 4
    s_cselect_b32 s{sT+8}, s2, s{sT+4}
    s_waitcnt lgkmcnt(0)
    s_or_b32 s{sT+4}, s2, s{sW}
    s_cmp_lg_u32 s{sT+4}, 0
    s_cbranch_scc1 k1_nonce_done
    s_or_b32 s{sT+14}, s{sT+14}, 1
    v_mov_b32 v{t2}, s{sT+14}
    v_lshlrev_b32 v{t3}, 2, v{vLane}
    buffer_store_dword v{t2}, v{t3}, {sr(sDBG,4)}, 0 offen sc0 sc1
    k1_nonce_done:
    """)
    stamp(k, 1)
    stamp(k, 2)
    stamp(k, 4)
    stamp(k, 5)
    helper(k)
    k.label("k1_fin")
    if STAMP:
        k("s_waitcnt vmcnt(0)")
    stamp(k, 3)
    stamp_store(k, 6)
    k("""
    k1_end:
    s_endpgm
    """)
    k.finish()
    return k


if __name__ == "__main__":
    import sys
    STAMP = "stamp" in sys.argv
    k = gen_k1()
    print(build_file("; test", [("k1_kernel", 256, 512, LDS_K1)], [k]))
```

```python
import os
from asmlib import *
from layout import *

X = set(os.environ.get('K2X', '').split(','))
NS = 4
STAGE = 30720
O_Z, O_K, O_V = 16384, 24576, 26624
LDS_K2 = NS * STAGE

vLane = 1
vAL = 2
vT = 4
vQ, vK0, vK1, vV = 12, 16, 20, 24
vS0, vS1, vP, vO = 40, 56, 72, 80
vC = 96
vDA, vDZ, vDK, vDV = 12, 16, 17, 18
vAB = 20
vG = 28
vGA = 60
vGB = 92
vZ1 = 108
vBias = 124
sWS, sWSP, sBSP = 4, 8, 12
sW, sHead, sQT, sTB, sFB, sIdx = 16, 17, 18, 19, 20, 21
sOA, sOZ, sOK, sOV, sCnt = 22, 23, 24, 25, 26
sMA, sMZ, sMK, sMV = 27, 28, 29, 30
sVM, sLo = 32, 34
sT = 36
sPA, sPB, sPX, sPo = 68, 72, 76, 90

STAMP = False
WT = os.environ.get('WT', '')


def stamp(k, i):
    if STAMP:
        if i == 0:
            k("s_memrealtime s[80:81]")
        if i == 3:
            k("s_memrealtime s[82:83]")
        k(f"s_memtime {sr(60+2*i,2)}\ns_waitcnt lgkmcnt(0)")


def stamp_store(k, n):
    if not STAMP:
        return
    k(f"s_mul_i32 s58, s2, 12\ns_add_u32 s58, s58, s{sW}\ns_lshl_b32 s58, s58, 5\ns_add_u32 s58, s58, {WS_STAMP + 1*262144}")
    for i in range(n):
        k(f"s_sub_u32 s59, s{60+2*i}, s60\nv_mov_b32 v{vT}, s59\nv_mov_b32 v{vT+1}, 0\nbuffer_store_dword v{vT}, v{vT+1}, {sr(sWS,4)}, s58 offen offset:{4*i}")
    for j, r in ((6, 80), (7, 82)):
        k(f"v_mov_b32 v{vT}, s{r}\nv_mov_b32 v{vT+1}, 0\nbuffer_store_dword v{vT}, v{vT+1}, {sr(sWS,4)}, s58 offen offset:{4*j}")


def mfma32(d, a, b, c):
    cs = "0" if c is None else vr(c, 16)
    return f"v_mfma_f32_32x32x16_bf16 {vr(d,16)}, {vr(a,4)}, {vr(b,4)}, {cs}"


def so(slot):
    return slot // 2, (slot % 2) * STAGE


def rd_k(slot, T):
    s, o = so(slot)
    return f"ds_read_b128 {vr(vK0+4*T,4)}, v{vAL+s} offset:{o+O_K+(1-T)*1024}"


def rd_v(slot, T, u):
    s, o = so(slot)
    return f"ds_read_b128 {vr(vV+8*T+4*u,4)}, v{vAL+s} offset:{o+O_V+T*2048+u*1024}"


def phase(k, S, Snext, Knext, Vprev1, Vcur0, extras):
    E = lambda i: f"v_exp_f32 v{S+i}, v{S+i}"
    C = lambda i: f"v_cvt_pk_bf16_f32 v{vP+i}, v{S+2*i}, v{S+2*i+1}"
    PVp = mfma32(vO, Vprev1, vP + 4, vO) if Vprev1 is not None else None
    PVc = mfma32(vO, Vcur0, vP, vO)
    SM = mfma32(Snext, Knext, vQ, None) if Knext is not None else None
    seq = [E(0), E(1), PVp, E(2), E(3), C(0), E(4), E(5), C(1), E(6), SM, E(7), C(2), E(8), C(3), E(9), E(10), E(11), C(4), PVc,
           E(12), E(13), C(5), E(14), E(15), C(6), C(7)]
    for pos, ins in enumerate(seq):
        if ins is not None:
            if 'noattn' in X:
                ins = None
            elif 'nopv' in X and ins in (PVp, PVc):
                ins = None
            elif 'noexp' in X and 'v_exp' in ins:
                ins = None
            elif 'nocvt' in X and 'v_cvt' in ins:
                ins = None
        if ins is not None:
            k(ins)
        for a in extras.get(pos, []):
            if 'noard' in X and a.startswith('ds_read'):
                continue
            if 'nosp' in X and a.startswith('s_setprio'):
                continue
            k(a)


def attn_iter(k, slot, first, last_slot):
    k("s_waitcnt lgkmcnt(0)")
    k("s_barrier")
    ex1 = {0: [rd_k(slot, 1)], 4: [rd_v(slot, 0, 0)], 7: [rd_v(slot, 0, 1)]}
    if first:
        for a in (rd_k(slot, 1), rd_v(slot, 0, 0), rd_v(slot, 0, 1)):
            k(a)
    else:
        k("s_setprio 3")
        ex1[13] = ["s_setprio 2"]
        ex1[26] = ["s_setprio 1"]
        phase(k, vS1, vS0, vK0, vV + 4, vV + 8, ex1)
    ex2 = {0: [rd_k(slot, 0)], 4: [rd_v(slot, 1, 0)], 7: [rd_v(slot, 1, 1)], 13: ["s_setprio 0"]}
    if last_slot:
        ex2[14] = [f"s_sub_u32 s{sCnt}, s{sCnt}, 1\ns_cmp_lg_u32 s{sCnt}, 0"]
    phase(k, vS0, vS1, vK1, None if first else vV + 12, vV + 0, ex2)


def attn_loop(k):
    L = k.newlabel("aloop")
    k(f"s_mov_b32 s{sCnt}, 7")
    stamp(k, 1)
    k(mfma32(vS0, vK0, vQ, None))
    for slot in range(4):
        attn_iter(k, slot, slot == 0, False)
    k(".p2align 6")
    k.label(L)
    for slot in range(4):
        attn_iter(k, slot, False, slot == 3)
    k(f"s_cbranch_scc1 {L}")
    k("s_waitcnt lgkmcnt(0)\ns_barrier")
    stamp(k, 2)
    phase(k, vS1, None, None, vV + 4, vV + 8, {})
    k(mfma32(vO, vV + 12, vP + 4, vO))


def dma_group(slot, gemm):
    base = slot * STAGE
    out = []
    if gemm:
        out.append(f"s_add_u32 m0, s{sMK}, {base}\ns_mov_b64 exec, {sr(sLo,2)}\nbuffer_load_dwordx4 v{vDK}, {sr(sWS,4)}, s{sOK} offen lds\n"
                   f"s_add_u32 m0, s{sMV}, {base}\ns_mov_b64 exec, {sr(sVM,2)}\nbuffer_load_dwordx4 v{vDV}, {sr(sWS,4)}, s{sOK} offen lds\n"
                   f"s_mov_b64 exec, -1\ns_add_u32 s{sOK}, s{sOK}, 2048")
    else:
        out.append(f"s_add_u32 m0, s{sMK}, {base}\ns_mov_b64 exec, {sr(sLo,2)}\nbuffer_load_dwordx4 v{vDK}, {sr(sWS,4)}, s{sOK} offen lds\n"
                   f"buffer_load_dwordx4 v{vDK}, {sr(sWS,4)}, s{sOK} offen offset:1024 lds\n"
                   f"s_add_u32 m0, s{sMV}, {base}\ns_mov_b64 exec, {sr(sVM,2)}\nbuffer_load_dwordx4 v{vDV}, {sr(sWS,4)}, s{sOK} offen lds\n"
                   f"s_add_u32 m0, s{sMV}, {base+1024}\ns_nop 0\nbuffer_load_dwordx4 v{vDV}, {sr(sWS,4)}, s{sOK} offen offset:1024 lds\n"
                   f"s_mov_b64 exec, -1\ns_add_u32 s{sOK}, s{sOK}, 2048")
    if gemm:
        for p in range(4):
            out.append(f"s_add_u32 m0, s{sMA}, {base+1024*p}\ns_nop 0\nbuffer_load_dwordx4 v{vDA+p}, {sr(sWSP,4)}, s{sOA} offen lds"
                       + (f"\ns_add_u32 s{sOA}, s{sOA}, 128" if p == 3 else ""))
        out.append(f"s_add_u32 m0, s{sMZ}, {base}\ns_nop 0\nbuffer_load_dwordx4 v{vDZ}, {sr(sWS,4)}, s{sOZ} offen lds")
        out.append(f"s_add_u32 m0, s{sMZ}, {base}\ns_nop 0\nbuffer_load_dwordx4 v{vDZ}, {sr(sWS,4)}, s{sOZ} offen offset:1024 lds\ns_add_u32 s{sOZ}, s{sOZ}, 4096")
    return out


def rd_g(slot, ks):
    s, o = so(slot)
    return [f"ds_read_b128 {vr(vGB+4*ks,4)}, v{vAB+4*s+ks} offset:{o}",
            f"ds_read_b128 {vr(vGA+8*ks,4)}, v{vAL+s} offset:{o+O_Z+ks*1024}",
            f"ds_read_b128 {vr(vGA+8*ks+4,4)}, v{vAL+s} offset:{o+O_Z+4096+ks*1024}"]


def mm_g(ks):
    return [mfma32(vG, vGA + 8 * ks, vGB + 4 * ks, vG), mfma32(vG + 16, vGA + 8 * ks + 4, vGB + 4 * ks, vG + 16)]


def gemm_loop(k, gemm):
    nd = 8 if gemm else 4
    k(f"s_mov_b32 s{sCnt}, 8")
    stamp(k, 1)
    for part in (0,):
        L = k.newlabel("gloop")
        k(".p2align 6")
        k.label(L)
        if 'prof' in X:
            k(f"""
            s_memtime s[84:85]
            s_memrealtime s[86:87]
            s_waitcnt lgkmcnt(0)
            v_mov_b32 v{vT}, s84
            v_mov_b32 v{vT+1}, s86
            s_lshl_b32 s88, s2, 8
            s_lshl_b32 s89, s{sCnt}, 3
            s_add_u32 s88, s88, s89
            s_add_u32 s88, s88, {WS_STAMP + 3*262144}
            v_mov_b32 v{vT+2}, 0
            buffer_store_dwordx2 {vr(vT,2)}, v{vT+2}, {sr(sWS,4)}, s88 offen
            """)
        for jj in range(4):
            slot = (jj + 1) % 4
            k(f"s_waitcnt vmcnt({(4 if 'nogdma' in X else 2*nd)}) lgkmcnt(0)")
            k("s_barrier")
            dm = dma_group((slot + 3) % 4, gemm)
            if gemm:
                r = [rd_g(slot, ks) for ks in range(4)]
                m = [mm_g(ks) for ks in range(4)]
                seq = (r[0] + [m[2][0], dm[0], m[2][1]] + r[1] + [m[3][0], dm[1], m[3][1], dm[2]] + r[2] + [m[0][0], dm[3], m[0][1], dm[4]]
                       + r[3] + [m[1][0], dm[5], m[1][1], dm[6]])
            else:
                seq = list(dm)
            if jj == 0:
                k(f"s_cmp_eq_u32 s{sCnt}, 1\ns_cselect_b32 s{sT}, 0x70000000, 0\ns_add_u32 s{sOK}, s{sOK}, s{sT}")
            for a in seq:
                if 'nogdma' in X and ' lds' in a and 'exec' not in a:
                    continue
                if 'nogmm' in X and 'mfma' in a:
                    continue
                if 'nogrd' in X and 'ds_read' in a:
                    continue
                k(a)
            if jj == 0:
                k(f"s_add_u32 s{sOA}, s{sOA}, s{sT}\ns_add_u32 s{sOZ}, s{sOZ}, s{sT}")
        k(f"s_sub_u32 s{sCnt}, s{sCnt}, 1\ns_cmp_lg_u32 s{sCnt}, {part}\ns_cbranch_scc1 {L}")
    stamp(k, 2)
    if gemm:
        for a in mm_g(2) + mm_g(3):
            k(a)


def gen_k2():
    k = Kernel("k2_kernel")
    t0, t1, t2, t3 = vT, vT + 1, vT + 2, vT + 3
    stamp(k, 0)
    k(f"""
    s_cmp_ge_u32 s2, 256
    s_cbranch_scc1 k2_end
    s_load_dwordx2 {sr(sWS,2)}, s[0:1], {KA_WS}
    s_load_dwordx2 {sr(sWSP,2)}, s[0:1], {KA_WSP}
    s_load_dwordx2 {sr(sBSP,2)}, s[0:1], {KA_BSP}
    v_lshrrev_b32 v{t0}, 6, v0
    v_and_b32 v{vLane}, 63, v0
    v_readfirstlane_b32 s{sW}, v{t0}
    s_and_b32 s{sT}, s2, 7
    s_lshr_b32 s{sIdx}, s2, 3
    s_lshr_b32 s{sT+2}, s{sIdx}, 3
    s_lshl_b32 s{sHead}, s{sT}, 2
    s_add_u32 s{sHead}, s{sHead}, s{sT+2}
    s_lshl_b32 s{sT+3}, s{sHead}, 16             ; head*65536
    s_mov_b32 s{sWS+2}, {WS_SIZE}
    s_mov_b32 s{sWS+3}, 0x00020000
    s_mov_b32 s{sWSP+2}, {2048*2048*2}
    s_mov_b32 s{sWSP+3}, 0x00020000
    s_mov_b32 s{sBSP+2}, 4096
    s_mov_b32 s{sBSP+3}, 0x00020000
    s_mov_b32 s{sVM}, 0x0000ffff
    s_mov_b32 s{sVM+1}, 0x0000ffff
    v_lshlrev_b32 v{vAL}, 4, v{vLane}
    v_add_u32 v{vAL+1}, {2*STAGE}, v{vAL}
    s_cmp_ge_u32 s{sW}, 8
    s_cbranch_scc1 k2_gemm
    """)
    k(f"""
    s_and_b32 s{sQT}, s{sIdx}, 7
    s_lshl_b32 s{sQT}, s{sQT}, 3
    s_add_u32 s{sQT}, s{sQT}, s{sW}
    s_lshl_b32 s{sT+5}, s{sQT}, 10
    s_add_u32 s{sT+5}, s{sT+5}, s{sT+3}
    s_add_u32 s{sT+5}, s{sT+5}, {WS_Q}
    s_add_u32 s{sT+6}, s{sT+3}, {WS_K}
    s_waitcnt lgkmcnt(0)
    buffer_load_dwordx4 {vr(vQ,4)}, v{vAL}, {sr(sWS,4)}, s{sT+5} offen
    buffer_load_dwordx4 {vr(vK0,4)}, v{vAL}, {sr(sWS,4)}, s{sT+6} offen
    v_and_b32 v{t0}, 27, v{vLane}
    v_mov_b32 v{t1}, 0x3f803f80
    v_cmp_eq_u32 vcc, 16, v{t0}
    v_cndmask_b32 v{t1}, 0, v{t1}, vcc
    """)
    for i in range(8):
        k(f"v_mov_b32 v{vV+i}, v{t1}")
    k(f"""
    s_lshr_b32 s{sT+5}, s{sW}, 1
    s_mul_i32 s{sT+5}, s{sT+5}, {STAGE}
    s_and_b32 s{sT+6}, s{sW}, 1
    s_lshl_b32 s{sT+6}, s{sT+6}, 11
    s_add_u32 s{sT+5}, s{sT+5}, s{sT+6}
    v_add_u32 v{t0}, s{sT+5}, v{vAL}
    s_not_b64 exec, {sr(sVM,2)}
    ds_write_b128 v{t0}, {vr(vV,4)} offset:{O_V}
    ds_write_b128 v{t0}, {vr(vV,4)} offset:{O_V+1024}
    s_mov_b64 exec, -1
    """)
    for i in range(16):
        k(f"v_mov_b32 v{vO+i}, 0")
    attn_loop(k)
    k(f"v_mul_f32 v{t0}, 0, v{vO}")
    for i in range(1, 8):
        k(f"v_fma_f32 v{t0}, v{vO+i}, 0, v{t0}")
    k(f"""
    v_add_f32 v{t0}, v{t0}, v{vO+8}
    v_mov_b32 v{t1}, 0x17800000                  ; 2^-80
    v_mov_b32 v{t2}, 0x67800000                  ; 2^80
    v_cmp_ge_f32 vcc, v{t0}, v{t1}
    v_cmp_le_f32 {sr(sT+10,2)}, v{t0}, v{t2}
    s_and_b64 vcc, vcc, {sr(sT+10,2)}
    s_cmp_eq_u64 vcc, -1
    s_cbranch_scc1 k2_store_o
    """)
    vM = vT
    k(f"""
    s_add_u32 s{sT+10}, s{sT+3}, {WS_K}
    s_add_u32 s{sT+11}, s{sT+3}, {WS_V}
    v_mov_b32 v{vM}, 0xff800000
    s_mov_b32 s{sCnt}, 64
    s_mov_b32 s{sT+12}, s{sT+10}
    k2_slow1:
    buffer_load_dwordx4 {vr(vK0,4)}, v{vAL}, {sr(sWS,4)}, s{sT+12} offen
    {mfma32(vS0, vK0, vQ, None)}
    """)
    for i in range(8):
        k(f"v_max3_f32 v{vM}, v{vS0+2*i}, v{vS0+2*i+1}, v{vM}")
    k(f"""
    s_add_u32 s{sT+12}, s{sT+12}, 1024
    s_sub_u32 s{sCnt}, s{sCnt}, 1
    s_cmp_lg_u32 s{sCnt}, 0
    s_cbranch_scc1 k2_slow1
    v_mov_b32 v{t1}, v{vM}
    v_permlane32_swap_b32 v{vM}, v{t1}
    v_max_f32 v{vM}, v{vM}, v{t1}
    v_sub_f32 v{vM}, 0, v{vM}
    """)
    for i in range(16):
        k(f"v_mov_b32 v{vC+i}, v{vM}")
        k(f"v_mov_b32 v{vO+i}, 0")
    k(f"""
    v_lshrrev_b32 v{t2}, 5, v{vLane}
    v_and_b32 v{t1}, 15, v{vLane}
    v_lshlrev_b32 v{t1}, 4, v{t1}
    v_lshl_add_u32 v{t1}, v{t2}, 8, v{t1}        ; (l/32)*256 + (l%16)*16
    s_mov_b32 s{sCnt}, 64
    k2_slow2:
    buffer_load_dwordx4 {vr(vK0,4)}, v{vAL}, {sr(sWS,4)}, s{sT+10} offen
    s_mov_b64 exec, {sr(sVM,2)}
    buffer_load_dwordx4 {vr(vV,4)}, v{t1}, {sr(sWS,4)}, s{sT+11} offen
    buffer_load_dwordx4 {vr(vV+4,4)}, v{t1}, {sr(sWS,4)}, s{sT+11} offen offset:512
    s_mov_b64 exec, -1
    {mfma32(vS0, vK0, vQ, vC)}
    """)
    for i in range(16):
        k(f"v_exp_f32 v{vS0+i}, v{vS0+i}")
    for i in range(8):
        k(f"v_cvt_pk_bf16_f32 v{vP+i}, v{vS0+2*i}, v{vS0+2*i+1}")
    k(f"""
    {mfma32(vO, vV, vP, vO)}
    {mfma32(vO, vV+4, vP+4, vO)}
    s_add_u32 s{sT+10}, s{sT+10}, 1024
    s_add_u32 s{sT+11}, s{sT+11}, 1024
    s_sub_u32 s{sCnt}, s{sCnt}, 1
    s_cmp_lg_u32 s{sCnt}, 0
    s_cbranch_scc1 k2_slow2
    """)
    k.label("k2_store_o")
    k(f"v_rcp_f32 v{t0}, v{vO+8}")
    for i in range(8):
        k(f"v_mul_f32 v{vO+i}, v{vO+i}, v{t0}")
    for i in range(4):
        k(f"v_cvt_pk_bf16_f32 v{vP+i}, v{vO+2*i}, v{vO+2*i+1}")
    k(f"""
    s_lshl_b32 s{sT+9}, s{sQT}, 5
    s_add_u32 s{sT+9}, s{sT+9}, s{sHead}
    s_lshl_b32 s{sT+9}, s{sT+9}, 10
    s_add_u32 s{sT+9}, s{sT+9}, {WS_O}
    buffer_store_dwordx4 {vr(vP,4)}, v{vAL}, {sr(sWS,4)}, s{sT+9} offen {WT}
    s_branch k2_fin
    """)
    k.label("k2_gemm")
    sG = sT + 4
    k(f"""
    s_setprio 3
    s_sub_u32 s{sG}, s{sW}, 8                    ; g = 0..3
    s_and_b32 s{sTB}, s{sT}, 3
    s_lshl_b32 s{sTB}, s{sTB}, 2
    s_and_b32 s{sT+2}, s{sIdx}, 3
    s_add_u32 s{sTB}, s{sTB}, s{sT+2}
    s_lshr_b32 s{sFB}, s{sT}, 2
    s_mul_i32 s{sFB}, s{sFB}, 7
    s_lshr_b32 s{sT+2}, s{sIdx}, 2
    s_add_u32 s{sFB}, s{sFB}, s{sT+2}
    s_mov_b32 s{sLo}, -1
    s_mov_b32 s{sLo+1}, 0
    s_mov_b32 s{sOA}, 0
    s_mov_b32 s{sOZ}, 0
    s_mov_b32 s{sOK}, 0
    s_lshl_b32 s{sMA}, s{sG}, 12
    s_lshl_b32 s{sMZ}, s{sG}, 11
    s_add_u32 s{sMZ}, s{sMZ}, {O_Z}
    s_lshl_b32 s{sMK}, s{sG}, 9
    s_add_u32 s{sMK}, s{sMK}, {O_K}
    s_lshl_b32 s{sMV}, s{sG}, 10
    s_add_u32 s{sMV}, s{sMV}, {O_V}
    s_lshl_b32 s{sT+5}, s{sG}, 9
    s_add_u32 s{sT+5}, s{sT+5}, s{sT+3}
    s_add_u32 s{sT+6}, s{sT+5}, {WS_K+1024}
    v_add_u32 v{vDK}, s{sT+6}, v{vAL}
    ; V DMA: WS_V + head*65536 + g*512 + (l/32)*256 + (l%16)*16
    v_lshrrev_b32 v{t0}, 5, v{vLane}
    v_and_b32 v{t1}, 15, v{vLane}
    v_lshlrev_b32 v{t1}, 4, v{t1}
    v_lshl_add_u32 v{t1}, v{t0}, 8, v{t1}
    s_add_u32 s{sT+6}, s{sT+5}, {WS_V}
    v_add_u32 v{vDV}, s{sT+6}, v{t1}
    s_waitcnt lgkmcnt(0)
    s_cmp_ge_u32 s{sIdx}, 28
    s_cbranch_scc1 k2_loader
    """)
    k(dma_group(0, True)[0])
    k(f"""
    v_lshrrev_b32 v{t0}, 3, v{vLane}
    s_lshl_b32 s{sT+5}, s{sG}, 5
    v_add_u32 v{t0}, s{sT+5}, v{t0}
    v_and_b32 v{t1}, 7, v{vLane}
    s_lshl_b32 s{sT+6}, s{sTB}, 19
    """)
    for p in range(4):
        k(f"""
        v_add_u32 v{t2}, {8*p}, v{t0}
        v_bfe_u32 v{t3}, v{t2}, 1, 3
        v_xor_b32 v{t3}, v{t3}, v{t1}
        v_lshlrev_b32 v{t3}, 4, v{t3}
        v_lshl_add_u32 v{vDA+p}, v{t2}, 12, v{t3}
        v_add_u32 v{vDA+p}, s{sT+6}, v{vDA+p}
        """)
    k(f"""
    s_lshr_b32 s{sT+5}, s{sG}, 1
    s_lshl_b32 s{sT+6}, s{sFB}, 1
    s_add_u32 s{sT+5}, s{sT+5}, s{sT+6}
    s_lshl_b32 s{sT+5}, s{sT+5}, 17
    s_and_b32 s{sT+7}, s{sG}, 1
    s_lshl_b32 s{sT+7}, s{sT+7}, 11
    s_add_u32 s{sT+5}, s{sT+5}, s{sT+7}
    s_add_u32 s{sT+5}, s{sT+5}, {WS_Z2}
    v_add_u32 v{vDZ}, s{sT+5}, v{vAL}
    """)
    for a in dma_group(1, True):
        k(a)
    k("s_waitcnt vmcnt(8)\ns_barrier")
    k(f"""
    s_lshl_b32 s{sT+7}, s{sTB}, 2
    s_add_u32 s{sT+7}, s{sT+7}, s{sG}
    s_mul_i32 s{sT+8}, s{sT+7}, 56
    s_lshl_b32 s{sT+9}, s{sFB}, 2
    s_add_u32 s{sT+8}, s{sT+8}, s{sT+9}
    s_lshl_b32 s{sT+8}, s{sT+8}, 10
    s_lshl_b32 s{sT+7}, s{sT+7}, 6
    s_add_u32 s{sT+9}, s{sT+8}, {WS_Z1}
    v_and_b32 v{t0}, 31, v{vLane}
    v_lshlrev_b32 v{t0}, 1, v{t0}
    """)
    for st in range(2, 4):
        for a in dma_group(st, True):
            k(a)
        if st == 3:
            k(f"buffer_load_ushort v{vBias}, v{t0}, {sr(sBSP,4)}, s{sT+7} offen")
            for i in range(4):
                k(f"buffer_load_dwordx4 {vr(vZ1+4*i,4)}, v{vAL}, {sr(sWS,4)}, s{sT+9} offen offset:{1024*i}")
    k(f"""
    v_lshrrev_b32 v{t0}, 5, v{vLane}
    v_and_b32 v{t1}, 31, v{vLane}
    s_lshl_b32 s{sT+7}, s{sG}, 5
    v_add_u32 v{t1}, s{sT+7}, v{t1}
    v_bfe_u32 v{t2}, v{t1}, 1, 3
    v_xor_b32 v{t2}, v{t2}, v{t0}
    v_lshlrev_b32 v{t2}, 4, v{t2}
    v_lshl_add_u32 v{vAB}, v{t1}, 7, v{t2}
    v_xor_b32 v{vAB+1}, 32, v{vAB}
    v_xor_b32 v{vAB+2}, 64, v{vAB}
    v_xor_b32 v{vAB+3}, 96, v{vAB}
    """)
    for i in range(4):
        k(f"v_add_u32 v{vAB+4+i}, {2*STAGE}, v{vAB+i}")
    for i in range(32):
        k(f"v_mov_b32 v{vG+i}, 0")
    for i in range(16):
        k(f"v_mov_b32 v{vGA+16+i}, 0")
    for i in range(8):
        k(f"v_mov_b32 v{vGB+8+i}, 0")
    k("s_setprio 0")
    gemm_loop(k, True)
    k(f"s_add_u32 s{sT+9}, s{sT+8}, {WS_U}")
    k(f"v_lshlrev_b32 v{vBias}, 16, v{vBias}")
    for i in range(16):
        a, b = vT + 2 * (i % 4), vT + 2 * (i % 4) + 1
        k(f"""
        v_lshlrev_b32 v{a}, 16, v{vZ1+i}
        v_and_b32 v{b}, 0xffff0000, v{vZ1+i}
        v_add_f32 v{vG+2*i}, v{vG+2*i}, v{vBias}
        v_add_f32 v{vG+2*i+1}, v{vG+2*i+1}, v{vBias}
        v_mul_f32 v{a}, v{a}, v{vG+2*i}
        v_mul_f32 v{b}, v{b}, v{vG+2*i+1}
        v_cvt_pk_bf16_f32 v{vZ1+i}, v{a}, v{b}
        """)
        if i % 4 == 3:
            k(f"buffer_store_dwordx4 {vr(vZ1+i-3,4)}, v{vAL}, {sr(sWS,4)}, s{sT+9} offen offset:{1024*(i//4)} {WT}")
    k("s_branch k2_fin")
    k.label("k2_loader")
    k(f"""
    s_load_dwordx2 {sr(sPA,2)}, s[0:1], {KA_WO}
    s_load_dwordx2 {sr(sPB,2)}, s[0:1], {KA_WOUT}
    s_load_dwordx2 {sr(sPX,2)}, s[0:1], {KA_X}
    s_mov_b32 s{sPA+2}, {512*1024}
    s_mov_b32 s{sPA+3}, 0x00020000
    s_mov_b32 s{sPB+2}, {896*1024}
    s_mov_b32 s{sPB+3}, 0x00020000
    s_mov_b32 s{sPX+2}, {2048*1024}
    s_mov_b32 s{sPX+3}, 0x00020000
    s_cmp_ge_u32 s{sG}, 2
    s_cbranch_scc1 k2_pref
    """)
    k(dma_group(0, False)[0])
    k("s_waitcnt vmcnt(0)\ns_barrier")
    for st in range(1, 4):
        for a in dma_group(st, False):
            k(a)
    gemm_loop(k, False)
    k("s_branch k2_fin")
    k.label("k2_pref")
    k(f"""
    s_sub_u32 s{sT+5}, s{sIdx}, 28
    s_lshl_b32 s{sT+5}, s{sT+5}, 1
    s_add_u32 s{sT+5}, s{sT+5}, s{sG}
    s_sub_u32 s{sT+5}, s{sT+5}, 2                ; 0..7
    s_lshl_b32 s{sPo}, s{sT+5}, 16
    s_mul_i32 s{sPo+1}, s{sT+5}, {112*1024}
    s_lshl_b32 s{sPo+2}, s{sT+5}, 15
    s_and_b32 s{sT+6}, s2, 7
    s_lshl_b32 s{sT+6}, s{sT+6}, 18
    s_add_u32 s{sPo+2}, s{sPo+2}, s{sT+6}
    v_lshlrev_b32 v{vT}, 7, v{vLane}
    s_waitcnt lgkmcnt(0)
    """)
    stamp(k, 1)
    lo = []
    for srd, so, cnt in ((sPX, sPo + 2, 4), (sPB, sPo + 1, 14), (sPA, sPo, 8)):
        for j in range(cnt):
            lo.append(f"buffer_load_dword v{vG+len(lo)}, v{vT}, {sr(srd,4)}, s{so} offen\ns_add_u32 s{so}, s{so}, 8192")
    PF0 = int(os.environ.get('PF0', '16'))
    for it in range(33):
        k("s_barrier")
        if it >= PF0 and 'nopf' not in X:
            for a in lo[2 * (it - PF0): 2 * (it - PF0) + 2]:
                k(a)
    stamp(k, 2)
    k.label("k2_fin")
    if STAMP:
        k("s_waitcnt vmcnt(0)")
    stamp(k, 3)
    stamp_store(k, 4)
    k("""
    k2_end:
    s_endpgm
    """)
    k.finish()
    return k


if __name__ == "__main__":
    import sys
    STAMP = "stamp" in sys.argv
    k = gen_k2()
    print(build_file("; test", [("k2_kernel", 256, 768, LDS_K2)], [k]))
```

```python
import os
from asmlib import *
from layout import *

X = set(os.environ.get('K3X', '').split(','))
NS = 5
STAGE = 32768
LDS_K3 = NS * STAGE
NST = 11

vLane = 1
vL16 = 2
vDW = 3
vAT = 5
vAW = 8
vT = 12
vX = 20
vA1, vA2 = 28, 44
vFA = 60
vFB = 92
vOA = 124

sWS, sWA, sWB, sXS, sOUT = 4, 8, 12, 16, 20
sW, sR, sWq, sTB, sNB = 24, 25, 26, 27, 28
sTA, sTBb, sWbA, sWbB, sM = 29, 30, 31, 32, 33
sT = 36

STAMP = False


def stamp(k, i):
    if STAMP:
        if i == 0:
            k("s_memrealtime s[80:81]")
        if i == 3:
            k("s_memrealtime s[82:83]")
        k(f"s_memtime {sr(60+2*i,2)}\ns_waitcnt lgkmcnt(0)")


def stamp_store(k, n):
    if not STAMP:
        return
    k(f"s_lshl_b32 s58, s2, 3\ns_add_u32 s58, s58, s{sW}\ns_lshl_b32 s58, s58, 5\ns_add_u32 s58, s58, {WS_STAMP + 2*262144}")
    for i in range(n):
        k(f"s_sub_u32 s59, s{60+2*i}, s60\nv_mov_b32 v{vT}, s59\nv_mov_b32 v{vT+1}, 0\nbuffer_store_dword v{vT}, v{vT+1}, {sr(sWS,4)}, s58 offen offset:{4*i}")
    for j, r in ((6, 80), (7, 82)):
        k(f"v_mov_b32 v{vT}, s{r}\nv_mov_b32 v{vT+1}, 0\nbuffer_store_dword v{vT}, v{vT+1}, {sr(sWS,4)}, s58 offen offset:{4*j}")


def mfma32(d, a, b, c):
    cs = "0" if c is None else vr(c, 16)
    return f"v_mfma_f32_32x32x16_bf16 {vr(d,16)}, {vr(a,4)}, {vr(b,4)}, {cs}"


def dma(st):
    base = (st % NS) * STAGE
    tb, wb, srd, j = (sTA, sWbA, sWA, st) if st < 8 else (sTBb, sWbB, sWB, st - 8)
    return [
        f"s_add_u32 s{sT}, s{tb}, {j*4096}\ns_add_u32 m0, s{sM}, {base}\ns_add_u32 s{sT+1}, s{wb}, {j*65536}\n"
        f"buffer_load_dwordx4 v{vL16}, {sr(sWS,4)}, s{sT} offen lds",
        f"buffer_load_dwordx4 v{vL16}, {sr(sWS,4)}, s{sT} offen offset:1024 lds",
        f"s_add_u32 m0, s{sM}, {base+8192}\ns_nop 0\nbuffer_load_dwordx4 v{vDW}, {sr(srd,4)}, s{sT+1} offen lds",
        f"s_add_u32 m0, s{sM}, {base+8192+1024}\ns_nop 0\nbuffer_load_dwordx4 v{vDW+1}, {sr(srd,4)}, s{sT+1} offen lds",
    ]


def reads(st, ks):
    slot = st % NS
    s, o = slot // 2, (slot % 2) * STAGE
    b = st % 2
    fa, fb = vFA + 16 * b + 4 * ks, vFB + 16 * b + 4 * ks
    return [f"ds_read_b64_tr_b16 {vr(fa,2)}, v{vAW+s} offset:{o+ks*2048}",
            f"ds_read_b64_tr_b16 {vr(fa+2,2)}, v{vAW+s} offset:{o+ks*2048+512}",
            f"ds_read_b128 {vr(fb,4)}, v{vAT+s} offset:{o+ks*1024}"]


def gen_k3():
    k = Kernel("k3_kernel")
    t0, t1, t2, t3 = vT, vT + 1, vT + 2, vT + 3
    stamp(k, 0)
    k(f"""
    s_cmp_ge_u32 s2, 256
    s_cbranch_scc1 k3_end
    s_load_dwordx2 {sr(sWS,2)}, s[0:1], {KA_WS}
    s_load_dwordx2 {sr(sWA,2)}, s[0:1], {KA_WO}
    s_load_dwordx2 {sr(sWB,2)}, s[0:1], {KA_WOUT}
    s_load_dwordx2 {sr(sXS,2)}, s[0:1], {KA_X}
    s_load_dwordx2 {sr(sOUT,2)}, s[0:1], {KA_OUT}
    v_lshrrev_b32 v{t0}, 6, v0
    v_and_b32 v{vLane}, 63, v0
    v_readfirstlane_b32 s{sW}, v{t0}
    v_lshlrev_b32 v{vL16}, 4, v{vLane}
    s_and_b32 s{sT}, s2, 7
    s_lshr_b32 s{sT+1}, s2, 3
    s_lshl_b32 s{sTB}, s{sT}, 2
    s_lshr_b32 s{sT+2}, s{sT+1}, 3
    s_add_u32 s{sTB}, s{sTB}, s{sT+2}
    s_and_b32 s{sNB}, s{sT+1}, 7
    s_lshr_b32 s{sR}, s{sW}, 2
    s_and_b32 s{sWq}, s{sW}, 3
    s_mov_b32 s{sWS+2}, {WS_SIZE}
    s_mov_b32 s{sWS+3}, 0x00020000
    s_mov_b32 s{sWA+2}, {896*1024}
    s_mov_b32 s{sWA+3}, 0x00020000
    s_mov_b32 s{sWB+2}, {896*1024}
    s_mov_b32 s{sWB+3}, 0x00020000
    s_mov_b32 s{sXS+2}, {2048*1024}
    s_mov_b32 s{sXS+3}, 0x00020000
    s_mov_b32 s{sOUT+2}, {2048*1024}
    s_mov_b32 s{sOUT+3}, 0x00020000
    ; DMA token bases: tt = tb*2 + wq/2, ks0 = 2*(wq%2)
    s_lshl_b32 s{sT}, s{sTB}, 1
    s_lshr_b32 s{sT+1}, s{sWq}, 1
    s_add_u32 s{sT}, s{sT}, s{sT+1}              ; tt
    s_and_b32 s{sT+1}, s{sWq}, 1
    s_lshl_b32 s{sT+1}, s{sT+1}, 11              ; ks0*1024
    s_lshl_b32 s{sT+2}, s{sT}, 15                ; tt*32*1024
    s_add_u32 s{sT+2}, s{sT+2}, s{sT+1}
    s_add_u32 s{sT+2}, s{sT+2}, {WS_O}           ; X baseA
    s_mul_i32 s{sT+3}, s{sT}, {56*1024}
    s_add_u32 s{sT+3}, s{sT+3}, s{sT+1}
    s_add_u32 s{sT+3}, s{sT+3}, {WS_U}           ; X baseB
    s_add_u32 s{sT+4}, s{sT+3}, {12*1024}        ; Y baseA
    s_add_u32 s{sT+5}, s{sT+3}, {44*1024}        ; Y baseB
    s_cmp_eq_u32 s{sR}, 0
    s_cselect_b32 s{sTA}, s{sT+2}, s{sT+4}
    s_cselect_b32 s{sTBb}, s{sT+3}, s{sT+5}
    s_cselect_b32 s{sWbA}, 0, {3*65536}
    s_cselect_b32 s{sWbB}, 0, {11*65536}
    s_lshl_b32 s{sM}, s{sR}, 14
    s_lshl_b32 s{sT}, s{sWq}, 11
    s_add_u32 s{sM}, s{sM}, s{sT}
    ; weight DMA voffsets: row = 16wq + 8p + lane/8, chunk = (lane%8) ^ (4*((row>>1)&1))
    v_lshrrev_b32 v{t0}, 3, v{vLane}
    v_and_b32 v{t1}, 7, v{vLane}
    v_lshlrev_b32 v{t2}, 1, v{t0}
    v_and_b32 v{t2}, 4, v{t2}
    v_xor_b32 v{t1}, v{t1}, v{t2}
    v_lshlrev_b32 v{t1}, 4, v{t1}
    v_lshl_add_u32 v{t1}, v{t0}, 10, v{t1}
    s_lshl_b32 s{sT}, s{sWq}, 14
    s_lshl_b32 s{sT+1}, s{sNB}, 7
    s_add_u32 s{sT}, s{sT}, s{sT+1}
    v_add_u32 v{vDW}, s{sT}, v{t1}
    v_add_u32 v{vDW+1}, 8192, v{vDW}
    s_waitcnt lgkmcnt(0)
    s_cmp_eq_u32 s{sR}, 0
    s_cselect_b32 s{sWA}, s{sWA}, s{sWB}
    s_cselect_b32 s{sWA+1}, s{sWA+1}, s{sWB+1}
    s_cselect_b32 s{sWA+2}, {512*1024}, s{sWB+2}
    """)
    for st in range(NS - 1):
        for a in dma(st):
            k(a)
    k(f"""
    s_lshl_b32 s{sT}, s{sR}, 14
    s_and_b32 s{sT+1}, s{sWq}, 1                 ; tt
    s_lshl_b32 s{sT+2}, s{sT+1}, 12
    s_add_u32 s{sT+2}, s{sT+2}, s{sT}
    v_add_u32 v{vAT}, s{sT+2}, v{vL16}
    s_lshr_b32 s{sT+3}, s{sWq}, 1                ; nt
    v_bfe_u32 v{t0}, v{vLane}, 2, 2              ; r4
    v_lshrrev_b32 v{t1}, 5, v{vLane}             ; h
    v_lshl_add_u32 v{t1}, v{t1}, 3, v{t0}        ; 8h + r4
    v_bfe_u32 v{t2}, v{vLane}, 4, 1              ; mhalf
    v_lshlrev_b32 v{t2}, 1, v{t2}
    v_and_b32 v{t3}, 1, v{vLane}
    v_add_u32 v{t2}, v{t2}, v{t3}                ; mhalf*2 + c%2
    s_lshl_b32 s{sT+4}, s{sT+3}, 2
    v_add_u32 v{t2}, s{sT+4}, v{t2}              ; + nt*4
    v_lshlrev_b32 v{t0}, 1, v{t0}
    v_and_b32 v{t0}, 4, v{t0}
    v_xor_b32 v{t2}, v{t2}, v{t0}
    v_lshlrev_b32 v{t2}, 4, v{t2}
    v_lshl_add_u32 v{t2}, v{t1}, 7, v{t2}
    v_bfe_u32 v{t3}, v{vLane}, 1, 1
    v_lshl_add_u32 v{t2}, v{t3}, 3, v{t2}
    s_add_u32 s{sT+4}, s{sT}, 8192
    v_add_u32 v{vAW}, s{sT+4}, v{t2}
    v_add_u32 v{vAT+1}, {2*STAGE}, v{vAT}
    v_add_u32 v{vAT+2}, {4*STAGE}, v{vAT}
    v_add_u32 v{vAW+1}, {2*STAGE}, v{vAW}
    v_add_u32 v{vAW+2}, {4*STAGE}, v{vAW}
    ; out / x address: row = tb*64 + tt*32 + l%32 ; col bytes = nb*128 + nt*64 + h*16 (+32u)
    v_and_b32 v{t0}, 31, v{vLane}
    v_lshlrev_b32 v{t0}, 10, v{t0}
    v_lshrrev_b32 v{t1}, 5, v{vLane}
    v_lshl_add_u32 v{t0}, v{t1}, 4, v{t0}
    s_lshl_b32 s{sT+4}, s{sTB}, 16
    s_lshl_b32 s{sT+5}, s{sT+1}, 15
    s_add_u32 s{sT+4}, s{sT+4}, s{sT+5}
    s_lshl_b32 s{sT+5}, s{sNB}, 7
    s_add_u32 s{sT+4}, s{sT+4}, s{sT+5}
    s_lshl_b32 s{sT+5}, s{sT+3}, 6
    s_add_u32 s{sT+4}, s{sT+4}, s{sT+5}
    v_add_u32 v{vOA}, s{sT+4}, v{t0}
    """)
    stamp(k, 1)
    for st in range(NST + 1):
        mm = []
        if st > 0:
            p = st - 1
            acc = vA1 if p < 8 else vA2
            b = p % 2
            for ks in range(4):
                first = (p == 0 or p == 8) and ks == 0
                mm.append(mfma32(acc, vFA + 16 * b + 4 * ks, vFB + 16 * b + 4 * ks, None if first else acc))
        if st < NST:
            issued = min(NST, st + NS - 1)
            k(f"s_waitcnt vmcnt({4*(issued-st-1)}) lgkmcnt(0)")
            k("s_barrier")
            dm = dma(st + NS - 1) if st + NS - 1 < NST else []
            if st == NST - 2:
                dm = [f"buffer_load_dwordx4 {vr(vX,4)}, v{vOA}, {sr(sXS,4)}, 0 offen",
                      f"buffer_load_dwordx4 {vr(vX+4,4)}, v{vOA}, {sr(sXS,4)}, 0 offen offset:32"]
            seq = []
            for ks in range(4):
                seq += reads(st, ks)
                if ks < len(mm):
                    seq.append(mm[ks])
                if ks < len(dm):
                    seq.append(dm[ks])
            for a in seq:
                k(a)
        else:
            for a in mm:
                k(a)
    stamp(k, 2)
    k(f"""
    s_lshl_b32 s{sT}, s{sWq}, 12
    s_add_u32 s{sT}, s{sT}, {STAGE}
    v_add_u32 v{t0}, s{sT}, v{vL16}
    s_cmp_eq_u32 s{sR}, 0
    s_cbranch_scc1 k3_x
    """)
    for i in range(16):
        k(f"v_add_f32 v{vA1+i}, v{vA1+i}, v{vA2+i}")
    for i in range(4):
        k(f"ds_write_b128 v{t0}, {vr(vA1+4*i,4)} offset:{1024*i}")
    k("s_waitcnt lgkmcnt(0)\ns_barrier\ns_branch k3_fin")
    k.label("k3_x")
    k("s_barrier")
    for i in range(4):
        k(f"ds_read_b128 {vr(vFA+4*i,4)}, v{t0} offset:{1024*i}")
    k(f"s_mov_b32 s{sT}, 0xbfb8aa3b")
    for i in range(16):
        k(f"v_add_f32 v{vA2+i}, v{vA2+i}, v{vFA+i}")
    for i in range(16):
        k(f"v_mul_f32 v{vFA+i}, s{sT}, v{vA2+i}")
    for i in range(16):
        k(f"v_exp_f32 v{vFA+i}, v{vFA+i}")
    for i in range(16):
        k(f"v_add_f32 v{vFA+i}, 1.0, v{vFA+i}")
    for i in range(16):
        k(f"v_rcp_f32 v{vFA+i}, v{vFA+i}")
    for i in range(16):
        k(f"v_mul_f32 v{vA2+i}, v{vA2+i}, v{vA1+i}")
    for i in range(8):
        k(f"""
        v_lshlrev_b32 v{vFB+2*i}, 16, v{vX+i}
        v_and_b32 v{vFB+2*i+1}, 0xffff0000, v{vX+i}
        """)
    for i in range(16):
        k(f"v_fma_f32 v{vFB+i}, v{vA2+i}, v{vFA+i}, v{vFB+i}")
    for i in range(8):
        k(f"v_cvt_pk_bf16_f32 v{vX+i}, v{vFB+2*i}, v{vFB+2*i+1}")
    k(f"""
    buffer_store_dwordx4 {vr(vX,4)}, v{vOA}, {sr(sOUT,4)}, 0 offen
    buffer_store_dwordx4 {vr(vX+4,4)}, v{vOA}, {sr(sOUT,4)}, 0 offen offset:32
    """)
    k.label("k3_fin")
    if STAMP:
        k("s_waitcnt vmcnt(0)")
    stamp(k, 3)
    stamp_store(k, 4)
    k("""
    k3_end:
    s_endpgm
    """)
    k.finish()
    return k


if __name__ == "__main__":
    import sys
    STAMP = "stamp" in sys.argv
    k = gen_k3()
    print(build_file("; test", [("k3_kernel", 256, 512, LDS_K3)], [k]))
```

```python
import re

TRANS = ("v_exp_", "v_log_", "v_rcp_", "v_rsq_", "v_sqrt_", "v_sin_", "v_cos_")
REG_RE = re.compile(r"^(-|abs\()?([vsa])(\d+|\[(\d+):(\d+)\])\)?$")


def parse_reg(tok):
    tok = tok.strip()
    if tok.startswith("-"):
        tok = tok[1:]
    if tok.startswith("abs(") and tok.endswith(")"):
        tok = tok[4:-1]
    if tok.startswith("|") and tok.endswith("|"):
        tok = tok[1:-1]
    m = re.match(r"^([vsa])(\d+)$", tok)
    if m:
        return [(m.group(1), int(m.group(2)))]
    m = re.match(r"^([vsa])\[(\d+):(\d+)\]$", tok)
    if m:
        return [(m.group(1), i) for i in range(int(m.group(2)), int(m.group(3)) + 1)]
    if tok == "vcc":
        return [("s", 106), ("s", 107)]
    if tok == "vcc_lo":
        return [("s", 106)]
    if tok == "vcc_hi":
        return [("s", 107)]
    if tok == "exec":
        return [("x", 0), ("x", 1)]
    if tok == "exec_lo":
        return [("x", 0)]
    if tok == "exec_hi":
        return [("x", 1)]
    if tok == "m0":
        return [("m", 0)]
    return []


class Ins:
    __slots__ = ("text", "mn", "ops", "mods", "kind", "rd", "wr", "passes", "srcA", "srcB", "srcC", "target",
                 "tag", "want", "dpp", "is_trans", "is_dot", "nopv", "store_data", "lds_dma", "comment", "pre")

    def __init__(self, text, tag=None):
        self.text = text
        self.tag = tag
        self.want = None
        self.pre = []
        t = text.split(";")[0].strip()
        parts = t.split(None, 1)
        self.mn = parts[0]
        rest = parts[1] if len(parts) > 1 else ""
        ops, cur, depth = [], "", 0
        for ch in rest:
            if ch in "[(":
                depth += 1
            if ch in "])":
                depth -= 1
            if ch == "," and depth == 0:
                ops.append(cur.strip())
                cur = ""
            else:
                cur += ch
        if cur.strip():
            ops.append(cur.strip())
        self.mods = ""
        if ops:
            last = ops[-1]
            depth = 0
            for i, ch in enumerate(last):
                if ch in "[(":
                    depth += 1
                if ch in "])":
                    depth -= 1
                if ch == " " and depth == 0:
                    self.mods = last[i + 1:]
                    ops[-1] = last[:i]
                    break
        self.ops = ops
        self.classify()

    def classify(self):
        mn, ops = self.mn, self.ops
        R = [parse_reg(o) for o in ops]
        self.rd, self.wr = set(), set()
        self.passes = 0
        self.srcA = self.srcB = self.srcC = set()
        self.target = None
        self.dpp = "_dpp" in mn or "row_" in self.mods or "quad_perm" in self.mods
        self.is_trans = mn.startswith(TRANS)
        self.is_dot = mn.startswith("v_dot")
        self.nopv = 1
        self.store_data = set()
        self.lds_dma = False
        allr = lambda idxs: set(x for i in idxs if i < len(R) for x in R[i])
        n = len(ops)
        if mn.startswith("v_mfma"):
            self.kind = "mfma"
            self.passes = 8 if "32x32" in mn else 4
            self.wr = allr([0])
            self.srcA, self.srcB, self.srcC = allr([1]), allr([2]), allr([3])
            self.rd = self.srcA | self.srcB | self.srcC
        elif mn.startswith("v_"):
            self.kind = "valu"
            if mn.startswith("v_cmp"):
                self.wr = allr([0])
                self.rd = allr(range(1, n))
            elif mn.startswith(("v_permlane16_swap", "v_permlane32_swap", "v_swap")):
                self.wr = allr([0, 1])
                self.rd = allr([0, 1])
            elif mn.startswith(("v_add_co", "v_sub_co", "v_addc_co", "v_subb_co", "v_mad_u64", "v_div_scale")):
                self.wr = allr([0, 1])
                self.rd = allr(range(2, n))
            else:
                self.wr = allr([0])
                self.rd = allr(range(1, n))
                if mn.startswith(("v_fmac", "v_dot2c", "v_pk_fmac", "v_writelane", "v_mac")) or self.dpp:
                    self.rd |= allr([0])
                if mn.startswith("v_cndmask") and n == 3:
                    self.rd |= {("s", 106), ("s", 107)}
            if mn == "v_nop":
                self.wr, self.rd = set(), set()
        elif mn.startswith(("buffer_", "global_")):
            self.kind = "vmem"
            mods = self.mods.split()
            if mn in ("buffer_inv", "buffer_wbl2"):
                pass
            elif "lds" in mods or "_lds_" in mn:
                self.lds_dma = True
                self.rd = allr(range(0, n)) | {("m", 0)}
            elif "_load" in mn:
                self.wr = allr([0])
                self.rd = allr(range(1, n))
            elif "_store" in mn:
                self.rd = allr(range(0, n))
                di = 0 if mn.startswith("buffer_") else 1
                if "x3" in mn or "x4" in mn:
                    self.store_data = allr([di])
            elif "_atomic" in mn:
                self.rd = allr(range(0, n))
                if "sc0" in mods:
                    self.wr = allr([0])
            else:
                raise ValueError("unknown vmem " + self.text)
        elif mn.startswith("ds_"):
            self.kind = "ds"
            if mn.startswith(("ds_read", "ds_bpermute", "ds_permute", "ds_swizzle")) or "_rtn" in mn:
                self.wr = allr([0])
                self.rd = allr(range(1, n))
            else:
                self.rd = allr(range(0, n))
        elif mn.startswith(("s_load", "s_buffer_load", "s_memtime", "s_memrealtime")):
            self.kind = "smem"
            self.wr = allr([0])
            self.rd = allr(range(1, n))
        elif mn.startswith(("s_branch", "s_cbranch")):
            self.kind = "branch"
            self.target = ops[0]
            if "vcc" in mn:
                self.rd = {("s", 106), ("s", 107)}
        elif mn == "s_endpgm":
            self.kind = "end"
        elif mn == "s_nop":
            self.kind = "nop"
            self.nopv = int(ops[0], 0) + 1
        elif mn == "s_waitcnt":
            self.kind = "wait"
        elif mn in ("s_barrier", "s_setprio", "s_sleep"):
            self.kind = "misc"
        elif mn.startswith("s_"):
            self.kind = "salu"
            if mn.startswith(("s_cmp", "s_bitcmp")):
                self.rd = allr(range(0, n))
            else:
                self.wr = allr([0])
                self.rd = allr(range(1, n))
                if "saveexec" in mn:
                    self.wr |= {("x", 0), ("x", 1)}
                if mn.startswith(("s_addk", "s_mulk", "s_cmov")):
                    self.rd |= allr([0])
        else:
            raise ValueError("unknown instr " + self.text)


class Label:
    def __init__(self, name):
        self.name = name


class Raw:
    def __init__(self, text):
        self.text = text


def hazard(p, c):
    need = 0
    pv = {r for r in p.wr if r[0] in "va"}
    ps = {r for r in p.wr if r[0] == "s"}
    if p.kind == "valu":
        if c.kind == "mfma" and pv & c.rd:
            need = max(need, 2)
        if c.kind == "valu":
            if p.is_trans and not c.is_trans and pv & c.rd:
                need = max(need, 1)
            if c.mn.startswith(("v_readlane", "v_readfirstlane")) and pv & c.rd:
                need = max(need, 1)
            if (c.dpp or c.mn.startswith("v_permlane")) and pv & c.rd:
                need = max(need, 2)
            if ps & c.rd:
                need = max(need, 4 if c.mn.startswith(("v_readlane", "v_writelane")) else 2)
            if p.is_dot and (pv & (c.rd | c.wr)):
                if not (c.mn == p.mn and not (pv & (set(parse_reg(c.ops[1])) | set(parse_reg(c.ops[2]))))):
                    need = max(need, 3)
            if ("op_sel" in p.mods and not p.mn.startswith("v_pk")) or "sdwa" in p.mn:
                if pv & (c.rd | c.wr):
                    need = max(need, 1)
        if p.is_dot and c.kind in ("mfma", "vmem", "ds") and pv & (c.rd | c.wr):
            need = max(need, 3)
        if c.kind == "vmem" and ps & c.rd:
            need = max(need, 5)
        if c.kind == "branch" and ps & c.rd:
            need = max(need, 5)
        if c.kind in ("salu", "smem") and ps & c.rd:
            need = max(need, 1)
    if p.kind == "mfma":
        big = 12 if p.passes == 8 else 8
        if c.kind == "mfma":
            if pv & (c.srcA | c.srcB):
                need = max(need, big)
            if pv & c.srcC:
                if not (c.srcC == pv and c.mn == p.mn):
                    need = max(need, p.passes + 2)
            elif pv & c.wr:
                need = max(need, p.passes + 2)
        elif c.kind in ("valu", "vmem", "ds"):
            if pv & (c.rd | c.wr):
                need = max(need, big)
        if c.kind == "valu" and p.srcC & c.wr:
            need = max(need, 7 if p.passes == 8 else 3)
        if c.kind in ("ds", "vmem") and p.srcC & c.wr:
            need = max(need, 7 if p.passes == 8 else 3)
    if p.kind == "salu":
        if ("m", 0) in p.wr and (c.lds_dma or "addtid" in c.mn):
            need = max(need, 1)
    if p.kind == "vmem" and p.store_data:
        if p.store_data & c.wr:
            need = max(need, 2 if c.kind == "valu" else 1)
    return need


class Kernel:
    def __init__(self, name):
        self.name = name
        self.items = []
        self.uid = 0

    def __call__(self, text, tag=None):
        for line in text.strip().split("\n"):
            line = line.strip()
            if not line or line.startswith(";"):
                continue
            if line.endswith(":") and " " not in line:
                self.items.append(Label(line[:-1]))
            elif line.startswith("."):
                self.items.append(Raw(line))
            else:
                self.items.append(Ins(line, tag))

    def label(self, name):
        self.items.append(Label(name))

    def newlabel(self, base="L"):
        self.uid += 1
        return f"{self.name}_{base}{self.uid}"

    def wait_tag(self, tag, extra=""):
        i = Ins("s_waitcnt vmcnt(0)")
        i.want = ("vmtag", tag)
        self.items.append(i)

    def build_cfg(self):
        ins = [it for it in self.items if isinstance(it, Ins)]
        idx = {}
        lab = {}
        k = 0
        for it in self.items:
            if isinstance(it, Label):
                lab[it.name] = k
            elif isinstance(it, Ins):
                k += 1
        n = len(ins)
        succ = [[] for _ in range(n)]
        pred = [[] for _ in range(n)]
        for i, x in enumerate(ins):
            if x.kind == "end":
                continue
            if x.kind == "branch":
                t = lab[x.target]
                succ[i].append(t)
                if x.mn != "s_branch" and i + 1 < n:
                    succ[i].append(i + 1)
            elif i + 1 < n:
                succ[i].append(i + 1)
        for i in range(n):
            for s in succ[i]:
                if s < n:
                    pred[s].append(i)
        return ins, succ, pred

    def insert_waits(self):
        ins, succ, pred = self.build_cfg()
        n = len(ins)
        CAP = 64
        IN = [None] * n
        IN[0] = ({}, {}, frozenset())
        work = [0]
        need = [None] * n

        def merge(a, b):
            if a is None:
                return b, True
            ch = False
            out = []
            for da, db in zip(a[:2], b[:2]):
                d = dict(da)
                for k, v in db.items():
                    if k not in d or v < d[k]:
                        d[k] = v
                        ch = True
                out.append(d)
            sm = a[2] | b[2]
            if sm != a[2]:
                ch = True
            return (out[0], out[1], sm), ch

        def parse_wait(x):
            vm = lg = None
            m = re.search(r"vmcnt\((\d+)\)", x.text)
            if m:
                vm = int(m.group(1))
            m = re.search(r"lgkmcnt\((\d+)\)", x.text)
            if m:
                lg = int(m.group(1))
            return vm, lg

        iters = 0
        while work:
            iters += 1
            if iters > 2000000:
                raise RuntimeError("waitcnt dataflow does not converge")
            i = work.pop()
            x = ins[i]
            vm, lg, sm = IN[i]
            vm, lg = dict(vm), dict(lg)
            touched = x.rd | x.wr
            nv = nl = None
            if x.want and x.want[0] == "vmtag":
                for k, v in vm.items():
                    if ins[k].tag == x.want[1]:
                        nv = v if nv is None else min(nv, v)
                if nv is None:
                    nv = 63
            elif x.kind == "wait":
                nv, nl = parse_wait(x)
            else:
                for k, v in vm.items():
                    if ins[k].wr & touched:
                        nv = v if nv is None else min(nv, v)
                for k, v in lg.items():
                    if ins[k].wr & touched:
                        nl = v if nl is None else min(nl, v)
                for k in sm:
                    if ins[k].wr & touched:
                        nl = 0
                if nl is not None and sm:
                    nl = 0
            if x.kind != "wait" or x.want:
                if need[i] is not None:
                    ov, ol = need[i]
                    if ov is not None:
                        nv = ov if nv is None else min(nv, ov)
                    if ol is not None:
                        nl = ol if nl is None else min(nl, ol)
                if nv is not None:
                    nv = min(nv, 63)
                if nl is not None:
                    nl = min(nl, 15)
                need[i] = (nv, nl)
            if nv is not None:
                vm = {k: v for k, v in vm.items() if v < nv}
            if nl is not None:
                if nl == 0:
                    lg, sm = {}, frozenset()
                elif not sm:
                    lg = {k: v for k, v in lg.items() if v < nl}
            if x.kind == "vmem" and x.mn not in ("buffer_inv", "buffer_wbl2"):
                vm = {k: min(v + 1, CAP) for k, v in vm.items()}
                vm[i] = 0
            elif x.kind == "ds":
                lg = {k: min(v + 1, CAP) for k, v in lg.items()}
                lg[i] = 0
            elif x.kind == "smem":
                sm = sm | {i}
            out = (vm, lg, sm)
            for s in succ[i]:
                if s >= n:
                    continue
                new, ch = merge(IN[s], out)
                if ch:
                    IN[s] = new
                    work.append(s)
        for i, x in enumerate(ins):
            if need[i] is None:
                continue
            nv, nl = need[i]
            if x.want:
                x.text = f"s_waitcnt vmcnt({nv})"
                continue
            if nl is not None and nl >= 15:
                nl = None
            if nv is not None and nv >= 63:
                nv = None
            if nv is None and nl is None:
                continue
            parts = []
            if nv is not None:
                parts.append(f"vmcnt({nv})")
            if nl is not None:
                parts.append(f"lgkmcnt({nl})")
            x.pre.append(Ins("s_waitcnt " + " ".join(parts)))
        self.flatten()

    def flatten(self):
        out = []
        for it in self.items:
            if isinstance(it, Ins) and it.pre:
                out.extend(it.pre)
                it.pre = []
            out.append(it)
        self.items = out

    def insert_nops(self):
        ins, succ, pred = self.build_cfg()
        n = len(ins)
        extra = [0] * n
        MAXD = 13
        for i in range(n):
            c = ins[i]
            if c.kind in ("nop", "wait", "misc", "end"):
                continue
            worst = 0
            stack = [(p, 0) for p in pred[i]]
            seen = {}
            while stack:
                j, d = stack.pop()
                if d >= MAXD:
                    continue
                if j in seen and seen[j] <= d:
                    continue
                seen[j] = d
                p = ins[j]
                h = hazard(p, c)
                if h > d:
                    worst = max(worst, h - d)
                nd = d + p.nopv + extra[j]
                for q in pred[j]:
                    stack.append((q, nd))
            if worst:
                extra[i] = worst
                w = worst
                while w > 0:
                    k = min(w, 16)
                    c.pre.append(Ins(f"s_nop {k-1}"))
                    w -= k
        self.flatten()

    def finish(self):
        self.insert_waits()
        self.insert_nops()

    def maxregs(self):
        mv = ms = ma = -1
        for it in self.items:
            if isinstance(it, Ins):
                for k, r in it.rd | it.wr:
                    if k == "v":
                        mv = max(mv, r)
                    elif k == "s" and r < 106:
                        ms = max(ms, r)
                    elif k == "a":
                        ma = max(ma, r)
        return mv + 1, ms + 1, ma + 1

    def text(self):
        out = [f".globl {self.name}", ".p2align 8", f".type {self.name},@function", f"{self.name}:"]
        for it in self.items:
            if isinstance(it, Label):
                out.append(f"{it.name}:")
            elif isinstance(it, Raw):
                out.append(it.text)
            else:
                out.append("    " + it.text)
        return "\n".join(out) + "\n"

    def descriptor(self, min_vgpr=0):
        nv, ns, na = self.maxregs()
        nv = max(nv, min_vgpr, 4)
        acc = (nv + 3) // 4 * 4
        tot = acc + na if na else nv
        return f""".p2align 6
.amdhsa_kernel {self.name}
  .amdhsa_next_free_vgpr {tot}
  .amdhsa_next_free_sgpr {max(ns, 16)}
  .amdhsa_accum_offset {acc}
  .amdhsa_group_segment_fixed_size 0
  .amdhsa_kernarg_size 88
  .amdhsa_user_sgpr_count 2
  .amdhsa_user_sgpr_kernarg_segment_ptr 1
  .amdhsa_system_sgpr_workgroup_id_x 1
.end_amdhsa_kernel
"""


def vr(lo, n=1):
    return f"v{lo}" if n == 1 else f"v[{lo}:{lo+n-1}]"


def sr(lo, n=1):
    return f"s{lo}" if n == 1 else f"s[{lo}:{lo+n-1}]"


def interleave(*streams):
    streams = [s for s in streams if s]
    idx = [0] * len(streams)
    out = []
    tot = sum(len(s) for s in streams)
    for _ in range(tot):
        best = min((i for i in range(len(streams)) if idx[i] < len(streams[i])),
                   key=lambda i: (idx[i] + 0.5) / len(streams[i]))
        out.append(streams[best][idx[best]])
        idx[best] += 1
    return out


def build_file(header_comment, launches, kernels):
    out = [header_comment.rstrip()]
    for (k, g, b, lds) in launches:
        out.append(f"; @launch kernel={k} grid=({g},1,1) block=({b},1,1) lds={lds}")
    out.append('.amdgcn_target "amdgcn-amd-amdhsa--gfx950"')
    out.append(".text")
    for k in kernels:
        out.append(k.text())
    out.append('.section .rodata,"a"')
    for k in kernels:
        out.append(k.descriptor(getattr(k, "min_vgpr", 0)))
    return "\n".join(out)
```

```python
from asmlib import *
from layout import *
sTagS = 99
RT = lambda i: None


def arrive(k, phase, srd, sW, sT, vT):
    L = k.newlabel("noarr")
    k(f"""
    s_cmp_lg_u32 s{sW}, 8
    s_cbranch_scc1 {L}
    s_lshl_b32 s{sT}, s2, 6
    s_add_u32 s{sT}, s{sT}, {WS_FLAG + phase*16384}
    v_mov_b32 v{vT}, s{sTagS}
    v_mov_b32 v{vT+1}, 0
    s_mov_b64 exec, 1
    buffer_store_dword v{vT}, v{vT+1}, {sr(srd,4)}, s{sT} offen sc0 sc1
    s_mov_b64 exec, -1
    {L}:
    """)


def wait(k, phase, srd, sW, sT, vT, vLane):
    L, Lr = k.newlabel("nowait"), k.newlabel("gpoll")
    k(f"""
    s_cmp_lg_u32 s{sW}, 8
    s_cbranch_scc1 {L}
    v_lshlrev_b32 v{vT}, 6, v{vLane}
    s_mov_b32 s{sT+1}, 400000
    {Lr}:
    """)
    for i in range(4):
        k(f"s_mov_b32 s{sT}, {WS_FLAG + phase*16384 + 4096*i}\nbuffer_load_dword v{vT+1+i}, v{vT}, {sr(srd,4)}, s{sT} offen sc0 sc1")
    k(f"""
    v_xor_b32 v{vT+1}, s{sTagS}, v{vT+1}
    v_xor_b32 v{vT+2}, s{sTagS}, v{vT+2}
    v_xor_b32 v{vT+3}, s{sTagS}, v{vT+3}
    v_xor_b32 v{vT+4}, s{sTagS}, v{vT+4}
    v_or_b32 v{vT+1}, v{vT+1}, v{vT+2}
    v_or3_b32 v{vT+1}, v{vT+1}, v{vT+3}, v{vT+4}
    v_cmp_ne_u32 vcc, 0, v{vT+1}
    s_cmp_eq_u64 vcc, 0
    s_cbranch_scc1 {L}
    s_sleep 1
    s_sub_u32 s{sT+1}, s{sT+1}, 1
    s_cbranch_scc0 {Lr}
    {L}:
    """)
    RT(3 + 3 * phase)
```

```python
import os
import struct
from asmlib import *
from layout import *

X = set(os.environ.get('K1X', '').split(','))
STAGE = 32768
NS = 4
O_W = 16384
L_IMG = NS * STAGE
L_TAG = L_IMG + 16384
L_CSW = L_TAG + 256
L_RS = L_CSW + 4096
LDS_K1 = L_RS + 1024

vLane = 1
vL16 = 2
vDX, vDW = 3, 5
vAX = 9
vAW = 13
vTag = 15
vT = 16
ACC = 32
FX = 96
FW = 108
vGR = 156
vGC = 160
vGA = 164
vK = 0

sWS, sXS, sWW, sWI, sDBG = 4, 8, 12, 16, 20
sW, sRH, sRB, sCG, sUn = 24, 25, 26, 27, 28
sKX, sKW, sKQ = 29, 30, 31
sMX, sMW = 32, 33
sKind, sIdx, sT32, sGU = 34, 35, 36, 37
sCSo = 38
sT = 40
sSpin = 61

C0 = -2.0 * 1.4426950408889634 * 0.7978845608028654
C1 = C0 * 0.044715
QS = 0.25 * 1.4426950408889634
STAMP = False
FUSED = False
sTagS = 99
WT = os.environ.get('WT', '')
BC = "op_sel_hi:[1,0]"


def f32(x):
    return "0x%08x" % struct.unpack("<I", struct.pack("<f", x))[0]


def stamp(k, i):
    if STAMP:
        if i == 0:
            k("s_memrealtime s[80:81]")
        if i == 3:
            k("s_memrealtime s[82:83]")
        k(f"s_memtime {sr(64+2*i,2)}\ns_waitcnt lgkmcnt(0)")


def stamp_store(k, n):
    if not STAMP:
        return
    k(f"s_mul_i32 s62, s2, 12\ns_add_u32 s62, s62, s{sW}\ns_lshl_b32 s62, s62, 5\ns_add_u32 s62, s62, {WS_STAMP}")
    for i in range(n):
        k(f"s_sub_u32 s63, s{64+2*i}, s64\nv_mov_b32 v{vT}, s63\nv_mov_b32 v{vT+1}, 0\nbuffer_store_dword v{vT}, v{vT+1}, {sr(sWS,4)}, s62 offen offset:{4*i}")
    for j, r in ((6, 80), (7, 82)):
        k(f"v_mov_b32 v{vT}, s{r}\nv_mov_b32 v{vT+1}, 0\nbuffer_store_dword v{vT}, v{vT+1}, {sr(sWS,4)}, s62 offen offset:{4*j}")


def mfma32(d, a, b, c):
    cs = "0" if c is None else vr(c, 16)
    return f"v_mfma_f32_32x32x16_bf16 {vr(d,16)}, {vr(a,4)}, {vr(b,4)}, {cs}"


def dma(t):
    base = (t % NS) * STAGE
    out = []
    for j in range(4):
        e = f"s_add_u32 m0, s{sMX}, {base+1024*j}\n"
        if j == 2:
            e += f"s_add_u32 s{sT}, s{sKX}, 16384\n"
        e += f"buffer_load_dwordx4 v{vDX+j%2}, {sr(sXS,4)}, s{sT if j >= 2 else sKX} offen lds"
        out.append(e)
    srd, so, va, pitch = (sWI, sKW, vDW, 3584) if t < 8 else (sWW, sKQ, vDW + 1, 3072)
    for j in range(4):
        e = (f"s_add_u32 m0, s{sMW}, {base+1024*j}\nbuffer_load_dwordx4 v{va}, {sr(srd,4)}, s{so} offen lds\n"
             f"s_add_u32 s{so}, s{so}, {pitch*(8 if j < 3 else 40)}")
        if j == 3:
            e += (f"\ns_add_u32 s{sKX}, s{sKX}, 128\ns_and_b32 s{sKX}, s{sKX}, 1023\n"
                  f"s_cselect_b32 s{sT}, 0, {512*pitch}\ns_sub_u32 s{so}, s{so}, s{sT}")
        out.append(e)
    return out


def loader(k):
    t0, t1, t2, t3 = vT, vT + 1, vT + 2, vT + 3
    k(f"""
    s_setprio 3
    s_lshl_b32 s{sMX}, s{sUn}, 12
    v_lshrrev_b32 v{t0}, 3, v{vLane}
    v_and_b32 v{t1}, 7, v{vLane}
    v_lshrrev_b32 v{t2}, 1, v{t0}
    v_xor_b32 v{t2}, v{t2}, v{t1}
    v_lshlrev_b32 v{t2}, 4, v{t2}
    v_lshl_add_u32 v{t2}, v{t0}, 10, v{t2}
    s_lshl_b32 s{sT+5}, s{sRB}, 17
    s_lshl_b32 s{sT+6}, s{sUn}, 15
    s_add_u32 s{sT+5}, s{sT+5}, s{sT+6}
    v_add_u32 v{vDX}, s{sT+5}, v{t2}
    v_xor_b32 v{t2}, 64, v{t2}
    s_add_u32 s{sT+5}, s{sT+5}, 8192
    v_add_u32 v{vDX+1}, s{sT+5}, v{t2}
    ; W: chunk = (l%8) ^ (4*((row>>1)&1)), row = l/8
    v_lshlrev_b32 v{t2}, 1, v{t0}
    v_and_b32 v{t2}, 4, v{t2}
    v_xor_b32 v{t2}, v{t2}, v{t1}
    v_lshlrev_b32 v{t2}, 4, v{t2}
    v_mul_u32_u24 v{t3}, 3584, v{t0}
    v_add_u32 v{vDW}, v{t3}, v{t2}
    v_mul_u32_u24 v{t3}, 3072, v{t0}
    v_add_u32 v{vDW+1}, v{t3}, v{t2}
    s_lshr_b32 s{sT+1}, s{sUn}, 1
    s_and_b32 s{sT+2}, s{sUn}, 1
    s_lshl_b32 s{sKW}, s{sCG}, 7
    s_cmp_eq_u32 s{sT+1}, 0
    s_cselect_b32 s{sT+3}, 1792, 0
    s_add_u32 s{sKW}, s{sKW}, s{sT+3}
    s_mul_i32 s{sT+3}, s{sT+2}, {32*3584}
    s_add_u32 s{sKW}, s{sKW}, s{sT+3}
    s_lshl_b32 s{sKQ}, s{sCG}, 8
    s_lshl_b32 s{sT+3}, s{sT+1}, 7
    s_add_u32 s{sKQ}, s{sKQ}, s{sT+3}
    s_mul_i32 s{sT+3}, s{sT+2}, {32*3072}
    s_add_u32 s{sKQ}, s{sKQ}, s{sT+3}
    s_add_u32 s{sMW}, s{sMX}, {O_W}
    s_lshr_b32 s{sT+3}, s2, 3
    s_and_b32 s{sT+3}, s{sT+3}, {7 if 'rot' in X else 0}
    s_lshl_b32 s{sKX}, s{sT+3}, 7
    s_mul_i32 s{sT+4}, s{sT+3}, {64*3584}
    s_add_u32 s{sKW}, s{sKW}, s{sT+4}
    s_mul_i32 s{sT+4}, s{sT+3}, {64*3072}
    s_add_u32 s{sKQ}, s{sKQ}, s{sT+4}
    s_waitcnt lgkmcnt(0)
    """)
    for a in dma(0):
        k(a, tag=("st", 0))
    for a in dma(1):
        k(a, tag=("st", 1))
    stamp(k, 1)
    for t in range(16):
        if t == 5:
            k(f"s_cmp_ge_u32 s{sCG}, 12\ns_cbranch_scc1 k1_ltail")
        k.wait_tag(("st", t))
        k("s_waitcnt lgkmcnt(0)\ns_barrier")
        if t == 0:
            for a in dma(2):
                k(a, tag=("st", 2))
        if t + 3 < 16 and 'nodma' not in X:
            for a in dma(t + 3):
                k(a, tag=("st", t + 3))
        if t == 1:
            k(f"buffer_load_dword v{vTag}, v{vGA+2}, {sr(sDBG,4)}, 0 offen sc0 sc1")
        if t == 3:
            L = k.newlabel("notag")
            k(f"s_cmp_lg_u32 s{sW}, 8\ns_cbranch_scc1 {L}")
            poll_tag(k, True)
            k(f"s_mov_b32 s{sTagS}, s{sT}\nv_mov_b32 v{t0}, {L_TAG}\nds_write_b32 v{t0}, v{vTag}\n{L}:")
    k("s_branch k1_ldone")
    k.label("k1_ltail")
    for t in range(5, 8):
        k.wait_tag(("st", t))
        k("s_barrier")
    if FUSED:
        for t in range(8):
            k("s_barrier")
    k.label("k1_ldone")


def reads(ks, buf):
    out = [f"ds_read_b128 {vr(FX+4*buf,4)}, v{vAX+ks}"]
    for c in range(4):
        d = FW + 16 * buf + 4 * c
        o = (c // 2) * 8192 + ks * 2048
        out.append(f"ds_read_b64_tr_b16 {vr(d,2)}, v{vAW+c%2} offset:{o}")
        out.append(f"ds_read_b64_tr_b16 {vr(d+2,2)}, v{vAW+c%2} offset:{o+512}")
    return out


def mms(buf, first):
    return [mfma32(ACC + 16 * c, FW + 16 * buf + 4 * c, FX + 4 * buf, None if first else ACC + 16 * c) for c in range(4)]


def gather_loads():
    e = ""
    for un in range(2):
        e += f"buffer_load_dwordx2 {vr(vGC+2*un,2)}, v{vGA+1}, {sr(sWS,4)}, s{sCSo+un} offen sc0 sc1\n"
    return e


def check_tags(k, regs, Lok, tmp):
    k(f"v_xor_b32 v{tmp}, v{regs[0]}, v{vTag}")
    for r in regs[1:]:
        k(f"v_xor_b32 v{tmp+1}, v{r}, v{vTag}\nv_or_b32 v{tmp}, v{tmp}, v{tmp+1}")
    k(f"v_cmp_ne_u32 vcc, 0, v{tmp}\ns_cmp_eq_u64 vcc, 0\ns_cbranch_scc1 {Lok}")


def poll_tag(k, first_issued):
    Lr, Lok = k.newlabel("tagpoll"), k.newlabel("tagok")
    if first_issued:
        k(f"v_readfirstlane_b32 s{sT}, v{vTag}\ns_cmp_lg_u32 s{sT}, 0\ns_cbranch_scc1 {Lok}")
    k(f"""
    {Lr}:
    buffer_load_dword v{vTag}, v{vGA+2}, {sr(sDBG,4)}, 0 offen sc0 sc1
    v_readfirstlane_b32 s{sT}, v{vTag}
    s_cmp_lg_u32 s{sT}, 0
    s_cbranch_scc1 {Lok}
    s_sleep 2
    s_sub_u32 s{sSpin}, s{sSpin}, 1
    s_cbranch_scc0 {Lr}
    {Lok}:
    """)


def main_loop(k):
    t0 = vT
    LA = 2
    for p in range(8):
        k("s_waitcnt lgkmcnt(0)\ns_barrier")
        if p > 0:
            step = STAGE if p % NS else -(NS - 1) * STAGE
            for r in (vAX, vAX + 1, vAX + 2, vAX + 3, vAW, vAW + 1):
                k(f"v_add_u32 v{r}, {step & 0xffffffff:#x}, v{r}")
        for ks in range(4):
            g = 4 * p + ks
            r = reads(ks, g % 3)
            m = mms((g - LA) % 3, g - LA == 0) if g >= LA else []
            seq = interleave(m, r) if ks < 3 else (m[:1] + r[:5] + m[1:2] + r[5:] + m[2:])
            for a in seq:
                k(a)
            if p == 5 and ks == 0:
                k(f"v_mov_b32 v{t0}, {L_TAG}\nds_read_b32 v{vTag}, v{t0}")
            if p == 6 and ks == 2:
                k(gather_loads())
    for g in range(32 - LA, 32):
        for a in mms(g % 3, False):
            k(a)


def row_stats(k):
    t0, t1, t2, t3 = vT, vT + 1, vT + 2, vT + 3
    S = ACC
    D = ACC + 8
    U = ACC + 40
    for i in range(4):
        k(f"v_mov_b32 v{S+i}, 0")
    if 'rprio' in X:
        k("s_setprio 2")

    def crunch(b):
        for i in range(16):
            u = U + 2 * (i % 4)
            k(f"""
            v_lshlrev_b32 v{u}, 16, v{D+16*b+i}
            v_and_b32 v{u+1}, 0xffff0000, v{D+16*b+i}
            v_add_f32 v{S}, v{S}, v{u}
            v_add_f32 v{S+1}, v{S+1}, v{u+1}
            v_fmac_f32 v{S+2}, v{u}, v{u}
            v_fmac_f32 v{S+3}, v{u+1}, v{u+1}
            """)
    for p in range(8):
        k("s_waitcnt lgkmcnt(0)\ns_barrier")
        o = (p % 2) * STAGE
        if p in (2, 6):
            for r in range(4):
                k(f"v_add_u32 v{vAX+r}, {2*STAGE}, v{vAX+r}")
        if p == 4:
            for r in range(4):
                k(f"v_subrev_u32 v{vAX+r}, {2*STAGE}, v{vAX+r}")
        for ks in range(4):
            k(f"ds_read_b128 {vr(D+16*(p%2)+4*ks,4)}, v{vAX+ks} offset:{o}")
        if 'nocr' not in X:
            crunch(p % 2)
    for r in range(4):
        k(f"v_subrev_u32 v{vAX+r}, {2*STAGE}, v{vAX+r}")
    k(f"""
    v_add_f32 v{S}, v{S}, v{S+1}
    v_add_f32 v{S+2}, v{S+2}, v{S+3}
    v_mov_b32 v{t0}, v{S}
    v_mov_b32 v{t1}, v{S+2}
    v_permlane32_swap_b32 v{S}, v{t0}
    v_permlane32_swap_b32 v{S+2}, v{t1}
    v_add_f32 v{t0}, v{t0}, v{S}
    v_add_f32 v{t1}, v{t1}, v{S+2}
    v_mul_f32 v{t0}, {f32(1.0/512)}, v{t0}
    v_mul_f32 v{t1}, {f32(1.0/512)}, v{t1}
    v_fma_f32 v{t1}, -v{t0}, v{t0}, v{t1}
    v_max_f32 v{t1}, 0, v{t1}
    v_add_f32 v{t1}, {f32(1e-5)}, v{t1}
    v_rsq_f32 v{t1}, v{t1}
    v_mul_f32 v{t0}, v{t0}, v{t1}
    ds_write_b32 v{vGA}, v{t1}
    ds_write_b32 v{vGA}, v{t0} offset:512
    """)


def epi_addr(k):
    t0, t1, t2, t3 = vT, vT + 1, vT + 2, vT + 3
    k(f"""
    s_lshl_b32 s{sT}, s{sW}, 9
    s_add_u32 s{sT}, s{sT}, {L_CSW}
    v_lshlrev_b32 v{t0}, 2, v{vLane}
    v_add_u32 v{vT+4}, s{sT}, v{t0}
    v_lshrrev_b32 v{t2}, 5, v{vLane}             ; h
    v_lshlrev_b32 v{vT+6}, 5, v{t2}
    v_add_u32 v{vT+6}, s{sT}, v{vT+6}
    v_lshlrev_b32 v{vT+5}, 3, v{vLane}
    v_mov_b32 v3, {f32(C0)}
    v_and_b32 v{t0}, 31, v{vLane}
    v_and_b32 v{t1}, 1, v{t0}
    v_bfe_u32 v{t3}, v{t0}, 1, 1
    v_lshl_or_b32 v{t1}, v{t3}, 2, v{t1}
    v_bfe_u32 v{t3}, v{t0}, 2, 1
    v_lshl_or_b32 v{t1}, v{t3}, 1, v{t1}
    v_xor_b32 v{t1}, v{t1}, v{t2}
    v_lshlrev_b32 v{t1}, 4, v{t1}
    v_lshl_add_u32 v{t1}, v{t0}, 7, v{t1}
    v_add_u32 v{vT+8}, s{sT+1}, v{t1}
    v_xor_b32 v{vT+9}, 32, v{vT+8}
    v_xor_b32 v{vT+10}, 64, v{vT+8}
    v_xor_b32 v{vT+11}, 96, v{vT+8}
    v_bfe_u32 v{t0}, v{vLane}, 2, 2
    v_and_b32 v{t1}, 1, v{t0}
    v_lshrrev_b32 v{t3}, 1, v{t0}
    v_lshl_or_b32 v{t1}, v{t3}, 2, v{t1}
    v_bfe_u32 v{t3}, v{vLane}, 4, 1
    v_lshlrev_b32 v{t3}, 1, v{t3}
    v_and_b32 v{vT+7}, 1, v{vLane}
    v_or_b32 v{t3}, v{t3}, v{vT+7}
    v_xor_b32 v{t1}, v{t1}, v{t3}
    v_lshlrev_b32 v{t1}, 4, v{t1}
    v_lshl_add_u32 v{t0}, v{t2}, 3, v{t0}
    v_lshl_add_u32 v{t1}, v{t0}, 7, v{t1}
    v_bfe_u32 v{t3}, v{vLane}, 1, 1
    v_lshl_add_u32 v{t1}, v{t3}, 3, v{t1}
    v_add_u32 v{vT+12}, s{sT+1}, v{t1}
    v_xor_b32 v{vT+13}, 32, v{vT+12}
    v_xor_b32 v{vT+14}, 64, v{vT+12}
    v_xor_b32 v{vT+15}, 96, v{vT+12}
    v_and_b32 v{t0}, 15, v{vLane}
    v_lshlrev_b32 v{t0}, 4, v{t0}
    v_lshl_add_u32 v{t0}, v{t2}, 8, v{t0}
    v_bfe_u32 v{t3}, v{vLane}, 4, 1
    v_lshl_add_u32 v{vT+7}, v{t3}, 16, v{t0}
    """)


def get_stats(k):
    t0 = vT
    tagregs = [vGC + 1, vGC + 3]
    Lr, Lok = k.newlabel("g1"), k.newlabel("g1ok")
    check_tags(k, tagregs, Lok, t0)
    k(f"{Lr}:\ns_sleep 2")
    k(gather_loads())
    check_tags(k, tagregs, Lok, t0)
    k(f"s_sub_u32 s{sSpin}, s{sSpin}, 1\ns_cbranch_scc0 {Lr}\n{Lok}:")
    k(f"ds_write_b32 v{vT+4}, v{vGC}\nds_write_b32 v{vT+4}, v{vGC+2} offset:256\nds_read_b32 v{vGR}, v{vGA}\nds_read_b32 v{vGR+2}, v{vGA} offset:512\ns_waitcnt lgkmcnt(0)")


def cs_reads(un):
    out = []
    for c in range(4):
        out.append(f"ds_read_b128 {vr(FW+8*c,4)}, v{vT+6} offset:{un*256+c*64}")
        out.append(f"ds_read_b128 {vr(FW+8*c+4,4)}, v{vT+6} offset:{un*256+c*64+16}")
    return out


def pack(A):
    return [f"v_cvt_pk_bf16_f32 v{A+8*c+i}, v{A+8*c+2*i}, v{A+8*c+2*i+1}" for c in range(4) for i in range(4)]


def tr_store(k, A, lane_reg, s0, kstride):
    for c in range(4):
        k(f"ds_write_b128 v{vT+8+c}, {vr(A+8*c,4)}")
    k(f"s_add_u32 s{sT+3}, s{s0}, 131072\ns_waitcnt lgkmcnt(0)")
    for ct in range(2):
        for ks in range(2):
            d = A + 8 * ct + 4 * ks
            k(f"ds_read_b64_tr_b16 {vr(d,2)}, v{vT+12+2*ct} offset:{ks*2048}")
            k(f"ds_read_b64_tr_b16 {vr(d+2,2)}, v{vT+13+2*ct} offset:{ks*2048+512}")
    for ct in range(2):
        for ks in range(2):
            k(f"buffer_store_dwordx4 {vr(A+8*ct+4*ks,4)}, v{lane_reg}, {sr(sWS,4)}, s{(s0, sT+3)[ct]} offen offset:{ks*kstride} {WT}")


def z_epilogue(k):
    t0, t1, t2, t3 = vT, vT + 1, vT + 2, vT + 3
    k("s_barrier")
    if 'zprio' in X:
        k("s_setprio 2")
    get_stats(k)
    k(f"s_mov_b32 s{sT+10}, {f32(C1)}")
    S = FX

    def unit_ops(un):
        A = ACC + 32 * un
        ops = list(cs_reads(un))
        for i in range(32):
            ops.append(f"v_mul_f32 v{A+i}, v{A+i}, v{vGR}")
        for i in range(32):
            ops.append(f"v_fma_f32 v{A+i}, -v{vGR+2}, v{FW+i}, v{A+i}")
        for h in range(2):
            R = [A + 16 * h + i for i in range(16)]
            T = [FW + i for i in range(16)]
            ops += [f"v_mul_f32 v{t}, v{r}, v{r}" for r, t in zip(R, T)]
            ops += [f"v_fma_f32 v{t}, v{t}, s{sT+10}, v3" for r, t in zip(R, T)]
            ops += [f"v_mul_f32 v{t}, v{t}, v{r}" for r, t in zip(R, T)]
            ops += [f"v_exp_f32 v{t}, v{t}" for r, t in zip(R, T)]
            ops += [f"v_add_f32 v{t}, 1.0, v{t}" for r, t in zip(R, T)]
            ops += [f"v_rcp_f32 v{t}, v{t}" for r, t in zip(R, T)]
            ops += [f"v_mul_f32 v{r}, v{r}, v{t}" for r, t in zip(R, T)]
        return ops

    ops = unit_ops(0)
    A = ACC
    ops += [f"v_add_f32 v{S}, v{A}, v{A+1}", f"v_mul_f32 v{S+2}, v{A}, v{A}", f"v_add_f32 v{S+1}, v{A+2}, v{A+3}",
            f"v_mul_f32 v{S+3}, v{A+1}, v{A+1}", f"v_fmac_f32 v{S+2}, v{A+2}, v{A+2}", f"v_fmac_f32 v{S+3}, v{A+3}, v{A+3}"]
    for i in range(4, 32):
        ops += [f"v_add_f32 v{S+i%2}, v{S+i%2}, v{A+i}", f"v_fmac_f32 v{S+2+i%2}, v{A+i}, v{A+i}"]
    ops.append(f"""
    v_add_f32 v{S}, v{S}, v{S+1}
    v_add_f32 v{S+2}, v{S+2}, v{S+3}
    v_permlane32_swap_b32 v{S}, v{S+2}
    v_add_f32 v{S}, v{S}, v{S+2}
    v_mov_b32 v{S+1}, v{vTag}
    s_mul_i32 s{sT+4}, s{sT32}, {14*512}
    s_add_u32 s{sT+4}, s{sT+4}, {WS_S2}
    s_lshl_b32 s{sT+1}, s{sCG}, 9
    s_add_u32 s{sT+1}, s{sT+1}, s{sT+4}
    buffer_store_dwordx2 {vr(S,2)}, v{vT+5}, {sr(sWS,4)}, s{sT+1} offen sc0 sc1
    """)
    n0 = len(ops)
    ops += unit_ops(1)
    ops += pack(ACC + 32)
    cost = [2 if o.startswith(("v_exp", "v_rcp")) else 1 for o in ops]
    tot = sum(cost)
    nb = 7
    acc, nxt, placed = 0, 1, 0
    for i, (o, c) in enumerate(zip(ops, cost)):
        if not ('noz' in X and o.startswith('v_')):
            k(o)
        if i == n0 - 1:
            stamp(k, 4)
        acc += c
        if placed < nb and acc >= tot * nxt / nb - 1e-9:
            k("s_barrier")
            placed += 1
            nxt += 1
    assert placed == nb
    G = FW

    def g2loads():
        for i in range(7):
            if i % 4 == 0:
                k(f"s_add_u32 s{sT}, s{sT+4}, {1024*i}")
            k(f"buffer_load_dwordx4 {vr(G+4*i,4)}, v{vL16}, {sr(sWS,4)}, s{sT} offen offset:{1024*(i%4)} sc0 sc1")
    g2loads()
    k(f"""
    s_mul_i32 s{sT+1}, s{sT32}, {56*1024}
    s_lshl_b32 s{sT+2}, s{sCG}, 12
    s_add_u32 s{sT+1}, s{sT+1}, s{sT+2}
    s_add_u32 s{sT+1}, s{sT+1}, {WS_Z1}
    """)
    for c in range(4):
        k(f"buffer_store_dwordx4 {vr(ACC+32+8*c,4)}, v{vL16}, {sr(sWS,4)}, s{sT+1} offen offset:{1024*c} {WT}")
    stamp(k, 5)
    Lr, Lok = k.newlabel("g2"), k.newlabel("g2ok")
    check_tags(k, [G + 2 * j + 1 for j in range(14)], Lok, t0)
    k(f"{Lr}:")
    g2loads()
    check_tags(k, [G + 2 * j + 1 for j in range(14)], Lok, t0)
    k(f"s_sleep 1\ns_sub_u32 s{sSpin}, s{sSpin}, 1\ns_cbranch_scc0 {Lr}\n{Lok}:")
    stamp(k, 1)
    for i in range(1, 7):
        k(f"v_add_f32 v{G}, v{G}, v{G+4*i}\nv_add_f32 v{G+2}, v{G+2}, v{G+4*i+2}")
    k(f"""
    v_mov_b32 v{t0}, v{G}
    v_mov_b32 v{t1}, v{G+2}
    v_permlane32_swap_b32 v{G}, v{t0}
    v_permlane32_swap_b32 v{G+2}, v{t1}
    v_add_f32 v{G}, v{G}, v{t0}
    v_add_f32 v{G+1}, v{G+2}, v{t1}
    s_lshl_b32 s{sT}, s{sW}, 9
    s_add_u32 s{sT}, s{sT}, {L_CSW}
    v_and_b32 v{t2}, 31, v{vLane}
    v_lshlrev_b32 v{t3}, 3, v{t2}
    v_add_u32 v{t3}, s{sT}, v{t3}
    ds_write_b64 v{t3}, {vr(G,2)}
    v_lshlrev_b32 v{t3}, 2, v{t2}
    v_add_u32 v{t3}, s{sT}, v{t3}
    s_waitcnt lgkmcnt(0)
    ds_read_b32 v{t0}, v{t3}
    ds_read_b32 v{t1}, v{t3} offset:128
    s_lshl_b32 s{sT}, s{sCG}, 18
    s_lshl_b32 s{sT+1}, s{sT32}, 11
    s_add_u32 s{sT}, s{sT}, s{sT+1}
    s_add_u32 s{sT}, s{sT}, {WS_Z2}
    v_mul_f32 v{t0}, {f32(1.0/896)}, v{t0}
    v_mul_f32 v{t1}, {f32(1.0/896)}, v{t1}
    v_fma_f32 v{t1}, -v{t0}, v{t0}, v{t1}
    v_max_f32 v{t1}, 0, v{t1}
    v_add_f32 v{t1}, {f32(1e-5)}, v{t1}
    v_rsq_f32 v{t1}, v{t1}
    v_mul_f32 v{t0}, v{t0}, v{t1}
    """)
    for i in range(32):
        k(f"v_fma_f32 v{A+i}, v{A+i}, v{t1}, -v{t0}")
    for o in pack(A):
        k(o)
    tr_store(k, A, vL16, sT, 1024)


def q_epilogue(k):
    get_stats(k)
    k(f"""
    s_cmp_eq_u32 s{sKind}, 0
    s_cselect_b32 s{sT}, {f32(QS)}, 1.0
    v_mul_f32 v4, s{sT}, v{vGR}
    v_mul_f32 v5, s{sT}, v{vGR+2}
    s_lshl_b32 s{sT}, s{sCG}, 19
    s_lshl_b32 s{sT+1}, s{sT32}, 10
    s_add_u32 s{sT}, s{sT}, s{sT+1}
    s_add_u32 s{sT}, s{sT}, {WS_Q}
    """)
    for un in range(2):
        A = ACC + 32 * un
        for o in cs_reads(un):
            k(o)
        for i in range(0, 32, 2):
            k(f"v_pk_mul_f32 {vr(A+i,2)}, {vr(A+i,2)}, v[4:5] {BC}")
        for i in range(0, 32, 2):
            k(f"v_pk_fma_f32 {vr(A+i,2)}, {vr(FW+i,2)}, v[4:5], {vr(A+i,2)} op_sel:[0,1,0] op_sel_hi:[1,1,1] neg_lo:[1,0,0] neg_hi:[1,0,0]")
        for o in pack(A):
            k(o)
        Lv, Ld = k.newlabel("qv"), k.newlabel("qd")
        k(f"s_cmp_eq_u32 s{sKind}, 2\ns_cbranch_scc1 {Lv}")
        for c in range(4):
            k(f"buffer_store_dwordx4 {vr(A+8*c,4)}, v{vL16}, {sr(sWS,4)}, s{sT} offen {WT}\ns_add_u32 s{sT}, s{sT}, 65536")
        k(f"s_branch {Ld}\n{Lv}:")
        tr_store(k, A, vT + 7, sT, 512)
        k(f"s_add_u32 s{sT}, s{sT}, 262144\n{Ld}:")


def wave_allsum(k, regs, tmps):
    for sh in (8, 4, 2, 1):
        for r in regs:
            k(f"v_add_f32_dpp v{r}, v{r}, v{r} row_ror:{sh} row_mask:0xf bank_mask:0xf")
    for sw in ("v_permlane16_swap_b32", "v_permlane32_swap_b32"):
        for r, t in zip(regs, tmps):
            k(f"v_mov_b32 v{t}, v{r}")
        for r, t in zip(regs, tmps):
            k(f"{sw} v{r}, v{t}")
        for r, t in zip(regs, tmps):
            k(f"v_add_f32 v{r}, v{r}, v{t}")


def helper(k):
    t0, t1, t2, t3 = vT, vT + 1, vT + 2, vT + 3
    A = FX
    k(f"""
    s_cmp_ge_u32 s2, 28
    s_cbranch_scc1 k1_hpre
    s_add_u32 s{sGU}, s2, 24
    s_min_u32 s{sT}, s2, 23
    s_lshl_b32 s{sT+1}, s2, 7
    s_lshl_b32 s{sT+2}, s{sT}, 7
    s_lshl_b32 s{sT+4}, s{sW}, 6
    s_sub_u32 s{sT+5}, s{sW}, 8
    s_lshl_b32 s{sT+5}, s{sT+5}, 7
    s_cmp_lt_u32 s{sW}, 8
    s_cselect_b32 s{sGU}, s{sGU}, s{sT}
    s_cselect_b32 s{sT+1}, s{sT+1}, s{sT+2}
    s_cselect_b32 s{sT+4}, s{sT+4}, s{sT+5}
    s_cselect_b32 s{sT+3}, 512, 0
    s_cselect_b32 s{sWW}, s{sWI}, s{sWW}
    s_cselect_b32 s{sWW+1}, s{sWI+1}, s{sWW+1}
    s_cselect_b32 s{sWW+2}, s{sWI+2}, s{sWW+2}
    s_add_u32 s{sT+3}, s{sT+3}, 3072             ; pitch
    v_lshrrev_b32 v{t0}, 3, v{vLane}
    v_add_u32 v{t0}, s{sT+4}, v{t0}
    v_mul_lo_u32 v{t0}, v{t0}, s{sT+3}
    v_and_b32 v{t1}, 7, v{vLane}
    v_lshl_add_u32 v{t0}, v{t1}, 4, v{t0}
    s_lshl_b32 s{sT+3}, s{sT+3}, 3
    """)

    def loads(b):
        for i in range(8):
            k(f"buffer_load_dwordx4 {vr(ACC+32*b+4*i,4)}, v{t0}, {sr(sWW,4)}, s{sT+1} offen")
            k(f"s_add_u32 s{sT+1}, s{sT+1}, s{sT+3}")

    def accum(b):
        for i in range(8):
            for r in range(4):
                src = ACC + 32 * b + 4 * i + r
                if i == 0 and b == 0:
                    k(f"v_lshlrev_b32 v{A+2*r}, 16, v{src}\nv_and_b32 v{A+2*r+1}, 0xffff0000, v{src}")
                else:
                    k(f"v_lshlrev_b32 v{t2}, 16, v{src}\nv_and_b32 v{t3}, 0xffff0000, v{src}\n"
                      f"v_pk_add_f32 {vr(A+2*r,2)}, {vr(A+2*r,2)}, {vr(t2,2)}")

    def reduce_write():
        regs = [A + i for i in range(8)]
        tm = [A + 8 + i for i in range(8)]
        for r in regs:
            k(f"v_add_f32_dpp v{r}, v{r}, v{r} row_ror:8 row_mask:0xf bank_mask:0xf")
        for sw in ("v_permlane16_swap_b32", "v_permlane32_swap_b32"):
            for r, t in zip(regs, tm):
                k(f"v_mov_b32 v{t}, v{r}")
            for r, t in zip(regs, tm):
                k(f"{sw} v{r}, v{t}")
            for r, t in zip(regs, tm):
                k(f"v_add_f32 v{r}, v{r}, v{t}")
        k(f"""
        s_lshl_b32 s{sT}, s{sW}, 8
        v_lshlrev_b32 v{t0}, 5, v{t1}
        v_add_u32 v{t0}, s{sT}, v{t0}
        ds_write_b128 v{t0}, {vr(A,4)}
        ds_write_b128 v{t0}, {vr(A+4,4)} offset:16
        s_waitcnt lgkmcnt(0)
        """)

    def publish(n):
        k(f"s_lshl_b32 s{sT}, s{sW}, 8\nv_lshlrev_b32 v{t0}, 2, v{vLane}\nv_add_u32 v{t0}, s{sT}, v{t0}")
        for i in range(n):
            k(f"ds_read_b32 v{A+i}, v{t0} offset:{256*i}")
        poll_tag(k, True)
        for i in range(1, n):
            k(f"v_add_f32 v{A}, v{A}, v{A+i}")
        k(f"""
        s_lshl_b32 s{sT}, s{sGU}, 9
        s_add_u32 s{sT}, s{sT}, {WS_CS}
        v_lshlrev_b32 v{t0}, 3, v{vLane}
        v_mov_b32 v{A+1}, v{vTag}
        buffer_store_dwordx2 {vr(A,2)}, v{t0}, {sr(sWS,4)}, s{sT} offen sc0 sc1
        """)
    loads(0)
    k(f"s_cmp_ge_u32 s{sW}, 8\ns_cbranch_scc1 k1_hq")
    k(f"s_setprio 2\nbuffer_load_dword v{vT+8}, v{vGA+2}, {sr(sDBG,4)}, 0 offen sc0 sc1")
    accum(0)
    reduce_write()
    k(f"s_barrier\ns_cmp_lg_u32 s{sW}, 0\ns_cbranch_scc1 k1_hz\nv_or_b32 v{vTag}, v{vTag}, v{vT+8}")
    publish(8)
    k.label("k1_hz")
    if FUSED:
        k("s_barrier")
    k("s_branch k1_hpre")
    k.label("k1_hq")
    loads(1)
    k("s_barrier")
    accum(0)
    accum(1)
    reduce_write()
    k(f"s_barrier\ns_cmp_lg_u32 s{sW}, 8\ns_cbranch_scc1 k1_hpre")
    publish(4)
    k.label("k1_hpre")
    if FUSED:
        k(f"s_cmp_lg_u32 s{sW}, 8\ns_cbranch_scc1 k1_fin")
        poll_tag(k, True)
        k(f"s_mov_b32 s{sTagS}, s{sT}")


def gen_k1(k=None):
    if k is None:
        k = Kernel("k1_kernel")
    t0, t1, t2, t3 = vT, vT + 1, vT + 2, vT + 3
    stamp(k, 0)
    if STAMP:
        for i in (1, 2, 4, 5):
            k(f"s_mov_b64 {sr(64+2*i,2)}, s[64:65]")
    k(f"""
    s_cmp_ge_u32 s2, 256
    s_cbranch_scc1 {'fz_end' if FUSED else 'k1_end'}
    s_load_dwordx2 {sr(sXS,2)}, s[0:1], {KA_X}
    s_load_dwordx2 {sr(sWW,2)}, s[0:1], {KA_WQKV}
    s_load_dwordx2 {sr(sWI,2)}, s[0:1], {KA_WIN}
    s_load_dwordx2 {sr(sWS,2)}, s[0:1], {KA_WS}
    s_load_dwordx2 {sr(sDBG,2)}, s[0:1], {KA_DBG}
    s_memrealtime {sr(sT+14,2)}
    v_lshrrev_b32 v{t0}, 6, v0
    v_and_b32 v{vLane}, 63, v0
    v_readfirstlane_b32 s{sW}, v{t0}
    v_lshlrev_b32 v{vL16}, 4, v{vLane}
    s_mov_b32 s{sWS+2}, {WS_SIZE}
    s_mov_b32 s{sWS+3}, 0x00020000
    s_mov_b32 s{sXS+2}, {2048*1024}
    s_mov_b32 s{sXS+3}, 0x00020000
    s_mov_b32 s{sWW+2}, {512*3072}
    s_mov_b32 s{sWW+3}, 0x00020000
    s_mov_b32 s{sWI+2}, {512*3584}
    s_mov_b32 s{sWI+3}, 0x00020000
    s_mov_b32 s{sDBG+2}, 256
    s_mov_b32 s{sDBG+3}, 0x00020000
    s_mov_b32 s{sSpin}, 200000
    s_mov_b32 s{sTagS}, 0
    s_and_b32 s{sT}, s2, 63
    s_lshl_b32 s{sT}, s{sT}, 2
    v_mov_b32 v{vGA+2}, s{sT}
    s_cmp_lt_u32 s2, 32
    s_cbranch_scc1 k1_helper
    ; xcd = wg&7, j = (wg>>3) - 4 (0..27): rb = 4(xcd/2) + j/7, cg = 7(xcd%2) + j%7
    s_and_b32 s{sT}, s2, 7
    s_lshr_b32 s{sT+1}, s2, 3
    s_sub_u32 s{sT+1}, s{sT+1}, 4
    s_mul_i32 s{sT+5}, s{sT+1}, 37
    s_lshr_b32 s{sT+5}, s{sT+5}, 8
    s_mul_i32 s{sT+6}, s{sT+5}, 7
    s_sub_u32 s{sCG}, s{sT+1}, s{sT+6}
    s_and_b32 s{sT+2}, s2, 1
    s_mul_i32 s{sT+6}, s{sT+2}, 7
    s_add_u32 s{sCG}, s{sCG}, s{sT+6}
    s_lshr_b32 s{sRB}, s{sT}, 1
    s_lshl_b32 s{sRB}, s{sRB}, 2
    s_add_u32 s{sRB}, s{sRB}, s{sT+5}
    s_lshr_b32 s{sRH}, s{sW}, 2
    s_and_b32 s{sUn}, s{sW}, 3
    s_cmp_ge_u32 s{sW}, 8
    s_cbranch_scc1 k1_loader
    s_lshr_b32 s{sKind}, s{sCG}, 2
    s_cmp_eq_u32 s{sRH}, 0
    s_cselect_b32 s{sKind}, 4, s{sKind}
    s_add_u32 s{sT}, s{sCG}, 38
    s_add_u32 s{sT+1}, s{sCG}, 24
    s_lshl_b32 s{sT+2}, s{sCG}, 1
    s_add_u32 s{sT+3}, s{sT+2}, 1
    s_cmp_eq_u32 s{sRH}, 0
    s_cselect_b32 s{sT}, s{sT}, s{sT+2}
    s_cselect_b32 s{sT+1}, s{sT+1}, s{sT+3}
    s_lshl_b32 s{sCSo}, s{sT}, 9
    s_add_u32 s{sCSo}, s{sCSo}, {WS_CS}
    s_lshl_b32 s{sCSo+1}, s{sT+1}, 9
    s_add_u32 s{sCSo+1}, s{sCSo+1}, {WS_CS}
    s_lshl_b32 s{sT32}, s{sRB}, 2
    s_add_u32 s{sT32}, s{sT32}, s{sUn}
    v_and_b32 v{t0}, 31, v{vLane}
    v_and_b32 v{t1}, 0x13, v{t0}
    v_and_b32 v{t2}, 4, v{t0}
    v_lshl_or_b32 v{t1}, v{t2}, 1, v{t1}
    v_and_b32 v{t2}, 8, v{t0}
    v_lshrrev_b32 v{t2}, 1, v{t2}
    v_or_b32 v{t1}, v{t1}, v{t2}
    s_cmp_eq_u32 s{sKind}, 1
    s_cselect_b64 vcc, -1, 0
    v_cndmask_b32 v{t0}, v{t0}, v{t1}, vcc       ; tok
    v_lshrrev_b32 v{t1}, 5, v{vLane}             ; h
    v_bfe_u32 v{t2}, v{t0}, 1, 3
    v_xor_b32 v{t2}, v{t2}, v{t1}
    v_lshlrev_b32 v{t2}, 4, v{t2}
    v_lshl_add_u32 v{t2}, v{t0}, 7, v{t2}
    s_lshl_b32 s{sT}, s{sUn}, 12
    v_add_u32 v{vAX}, s{sT}, v{t2}
    v_xor_b32 v{vAX+1}, 32, v{vAX}
    v_xor_b32 v{vAX+2}, 64, v{vAX}
    v_xor_b32 v{vAX+3}, 96, v{vAX}
    s_lshl_b32 s{sT}, s{sUn}, 7
    s_add_u32 s{sT}, s{sT}, {L_RS}
    v_lshlrev_b32 v{t0}, 2, v{t0}
    v_add_u32 v{vGA}, s{sT}, v{t0}
    v_lshlrev_b32 v{vGA+1}, 3, v{vLane}
    v_bfe_u32 v{t0}, v{vLane}, 2, 2
    v_lshl_add_u32 v{t1}, v{t1}, 3, v{t0}
    v_bfe_u32 v{t2}, v{vLane}, 4, 1
    v_lshlrev_b32 v{t2}, 1, v{t2}
    v_and_b32 v{t3}, 1, v{vLane}
    v_or_b32 v{t2}, v{t2}, v{t3}
    v_lshlrev_b32 v{t0}, 1, v{t0}
    v_and_b32 v{t0}, 4, v{t0}
    v_xor_b32 v{t2}, v{t2}, v{t0}
    v_lshlrev_b32 v{t2}, 4, v{t2}
    v_lshl_add_u32 v{t2}, v{t1}, 7, v{t2}
    v_bfe_u32 v{t3}, v{vLane}, 1, 1
    v_lshl_add_u32 v{t2}, v{t3}, 3, v{t2}
    v_add_u32 v{vAW}, {O_W}, v{t2}
    v_xor_b32 v{vAW+1}, 64, v{vAW}
    s_lshl_b32 s{sT+1}, s{sUn}, 12
    s_cmp_eq_u32 s{sRH}, 0
    s_cselect_b32 s{sT+2}, {L_IMG}, 0
    s_add_u32 s{sT+1}, s{sT+1}, s{sT+2}
    """)
    epi_addr(k)
    k(f"""
    s_waitcnt lgkmcnt(0)
    s_cmp_eq_u32 s{sRH}, 0
    s_cbranch_scc1 k1_main
    """)
    row_stats(k)
    k(f"s_cmp_ge_u32 s{sCG}, 12\ns_cbranch_scc1 k1_fin0\ns_setprio {0 if 'zprio' in X else 2}")
    k.label("k1_main")
    main_loop(k)
    stamp(k, 2)
    k(f"s_cmp_eq_u32 s{sRH}, 0\ns_cbranch_scc0 k1_q")
    z_epilogue(k)
    k("s_branch k1_fin")
    k.label("k1_q")
    q_epilogue(k)
    k("s_branch k1_fin")
    k.label("k1_loader")
    loader(k)
    stamp(k, 2)
    k("s_branch k1_fin")
    k.label("k1_helper")
    k(f"""
    s_waitcnt lgkmcnt(0)
    v_mov_b32 v{vTag}, 0
    s_or_b32 s{sT+4}, s2, s{sW}
    s_cmp_lg_u32 s{sT+4}, 0
    s_cbranch_scc1 k1_nonce_done
    s_or_b32 s{sT+14}, s{sT+14}, 1
    v_mov_b32 v{vTag}, s{sT+14}
    v_lshlrev_b32 v{t3}, 2, v{vLane}
    buffer_store_dword v{vTag}, v{t3}, {sr(sDBG,4)}, 0 offen sc0 sc1
    k1_nonce_done:
    """)
    if 'nosweep' not in X:
        k(f"""
        s_mul_i32 s{sT}, s2, 12
        s_add_u32 s{sT}, s{sT}, s{sW}
        s_lshl_b32 s{sT+1}, s{sT}, 13
        v_lshlrev_b32 v{t0}, 7, v{vLane}
        buffer_load_dword v{vT+9}, v{t0}, {sr(sXS,4)}, s{sT+1} offen
        s_sub_u32 s{sT+2}, {383*8192}, s{sT+1}
        buffer_load_dword v{vT+10}, v{t0}, {sr(sWI,4)}, s{sT+2} offen
        buffer_load_dword v{vT+11}, v{t0}, {sr(sWW,4)}, s{sT+1} offen
        """)
    helper(k)
    k("s_branch k1_fin")
    k.label("k1_fin0")
    k("s_waitcnt lgkmcnt(0)\ns_barrier")
    if FUSED:
        for t in range(7):
            k("s_barrier")
    k.label("k1_fin")
    if STAMP:
        k("s_waitcnt vmcnt(0)")
    stamp(k, 3)
    stamp_store(k, 6)
    if FUSED:
        return k
    k("""
    k1_end:
    s_endpgm
    """)
    k.finish()
    return k


if __name__ == "__main__":
    import sys
    STAMP = "stamp" in sys.argv
    k = gen_k1()
    print(build_file("; test", [("k1_kernel", 256, 768, LDS_K1)], [k]))
```

```python
import os
from asmlib import *
from layout import *

X = set(os.environ.get('K2X', '').split(','))
NS = 4
STAGE = 30720
O_Z, O_K, O_V = 16384, 24576, 26624
LDS_K2 = NS * STAGE

vLane = 1
vAL = 2
vT = 4
vQ, vK0, vK1, vV = 12, 16, 20, 24
vS0, vS1, vP, vO = 40, 56, 72, 80
vC = 96
vDA, vDZ, vDK, vDV = 12, 16, 17, 18
vAB = 20
vG = 28
vGA = 60
vGB = 92
vZ1 = 108
vBias = 124
sWS, sWSP, sBSP = 4, 8, 12
sW, sHead, sQT, sTB, sFB, sIdx = 16, 17, 18, 19, 20, 21
sOA, sOZ, sOK, sOV, sCnt = 22, 23, 24, 25, 26
sMA, sMZ, sMK, sMV = 27, 28, 29, 30
sVM, sLo = 32, 34
sT = 36
sPA, sPB, sPX, sPo = 68, 72, 76, 90

STAMP = False
FUSED = False
import gbar
WT = os.environ.get('WT', '')


def stamp(k, i):
    if STAMP:
        if i == 0:
            k("s_memrealtime s[80:81]")
        if i == 3:
            k("s_memrealtime s[82:83]")
        k(f"s_memtime {sr(60+2*i,2)}\ns_waitcnt lgkmcnt(0)")


def stamp_store(k, n):
    if not STAMP:
        return
    k(f"s_mul_i32 s58, s2, 12\ns_add_u32 s58, s58, s{sW}\ns_lshl_b32 s58, s58, 5\ns_add_u32 s58, s58, {WS_STAMP + 1*262144}")
    for i in range(n):
        k(f"s_sub_u32 s59, s{60+2*i}, s60\nv_mov_b32 v{vT}, s59\nv_mov_b32 v{vT+1}, 0\nbuffer_store_dword v{vT}, v{vT+1}, {sr(sWS,4)}, s58 offen offset:{4*i}")
    for j, r in ((6, 80), (7, 82)):
        k(f"v_mov_b32 v{vT}, s{r}\nv_mov_b32 v{vT+1}, 0\nbuffer_store_dword v{vT}, v{vT+1}, {sr(sWS,4)}, s58 offen offset:{4*j}")


def mfma32(d, a, b, c):
    cs = "0" if c is None else vr(c, 16)
    return f"v_mfma_f32_32x32x16_bf16 {vr(d,16)}, {vr(a,4)}, {vr(b,4)}, {cs}"


def so(slot):
    return slot // 2, (slot % 2) * STAGE


def rd_k(slot, T):
    s, o = so(slot)
    return f"ds_read_b128 {vr(vK0+4*T,4)}, v{vAL+s} offset:{o+O_K+(1-T)*1024}"


def rd_v(slot, T, u):
    s, o = so(slot)
    return f"ds_read_b128 {vr(vV+8*T+4*u,4)}, v{vAL+s} offset:{o+O_V+T*2048+u*1024}"


def phase(k, S, Snext, Knext, Vprev1, Vcur0, extras):
    E = lambda i: f"v_exp_f32 v{S+i}, v{S+i}"
    C = lambda i: f"v_cvt_pk_bf16_f32 v{vP+i}, v{S+2*i}, v{S+2*i+1}"
    PVp = mfma32(vO, Vprev1, vP + 4, vO) if Vprev1 is not None else None
    PVc = mfma32(vO, Vcur0, vP, vO)
    SM = mfma32(Snext, Knext, vQ, None) if Knext is not None else None
    seq = [E(0), E(1), PVp, E(2), E(3), C(0), E(4), E(5), C(1), E(6), SM, E(7), C(2), E(8), C(3), E(9), E(10), E(11), C(4), PVc,
           E(12), E(13), C(5), E(14), E(15), C(6), C(7)]
    for pos, ins in enumerate(seq):
        if ins is not None:
            if 'noattn' in X:
                ins = None
            elif 'nopv' in X and ins in (PVp, PVc):
                ins = None
            elif 'noexp' in X and 'v_exp' in ins:
                ins = None
            elif 'nocvt' in X and 'v_cvt' in ins:
                ins = None
        if ins is not None:
            k(ins)
        for a in extras.get(pos, []):
            if 'noard' in X and a.startswith('ds_read'):
                continue
            if 'nosp' in X and a.startswith('s_setprio'):
                continue
            k(a)


def attn_iter(k, slot, first, last_slot):
    k("s_waitcnt lgkmcnt(0)")
    k("s_barrier")
    ex1 = {0: [rd_k(slot, 1)], 4: [rd_v(slot, 0, 0)], 7: [rd_v(slot, 0, 1)]}
    if first:
        for a in (rd_k(slot, 1), rd_v(slot, 0, 0), rd_v(slot, 0, 1)):
            k(a)
    else:
        k("s_setprio 3")
        ex1[13] = ["s_setprio 2"]
        ex1[26] = ["s_setprio 1"]
        phase(k, vS1, vS0, vK0, vV + 4, vV + 8, ex1)
    ex2 = {0: [rd_k(slot, 0)], 4: [rd_v(slot, 1, 0)], 7: [rd_v(slot, 1, 1)], 13: ["s_setprio 0"]}
    if last_slot:
        ex2[14] = [f"s_sub_u32 s{sCnt}, s{sCnt}, 1\ns_cmp_lg_u32 s{sCnt}, 0"]
    phase(k, vS0, vS1, vK1, None if first else vV + 12, vV + 0, ex2)


def attn_loop(k):
    L = k.newlabel("aloop")
    k(f"s_mov_b32 s{sCnt}, 7")
    stamp(k, 1)
    k(mfma32(vS0, vK0, vQ, None))
    for slot in range(4):
        attn_iter(k, slot, slot == 0, False)
    k(".p2align 6")
    k.label(L)
    for slot in range(4):
        attn_iter(k, slot, False, slot == 3)
    k(f"s_cbranch_scc1 {L}")
    k("s_waitcnt lgkmcnt(0)\ns_barrier")
    stamp(k, 2)
    phase(k, vS1, None, None, vV + 4, vV + 8, {})
    k(mfma32(vO, vV + 12, vP + 4, vO))


def dma_group(slot, gemm):
    base = slot * STAGE
    out = []
    if gemm:
        out.append(f"s_add_u32 m0, s{sMK}, {base}\ns_mov_b64 exec, {sr(sLo,2)}\nbuffer_load_dwordx4 v{vDK}, {sr(sWS,4)}, s{sOK} offen lds\n"
                   f"s_add_u32 m0, s{sMV}, {base}\ns_mov_b64 exec, {sr(sVM,2)}\nbuffer_load_dwordx4 v{vDV}, {sr(sWS,4)}, s{sOK} offen lds\n"
                   f"s_mov_b64 exec, -1\ns_add_u32 s{sOK}, s{sOK}, 2048")
    else:
        out.append(f"s_add_u32 m0, s{sMK}, {base}\ns_mov_b64 exec, {sr(sLo,2)}\nbuffer_load_dwordx4 v{vDK}, {sr(sWS,4)}, s{sOK} offen lds\n"
                   f"buffer_load_dwordx4 v{vDK}, {sr(sWS,4)}, s{sOK} offen offset:1024 lds\n"
                   f"s_add_u32 m0, s{sMV}, {base}\ns_mov_b64 exec, {sr(sVM,2)}\nbuffer_load_dwordx4 v{vDV}, {sr(sWS,4)}, s{sOK} offen lds\n"
                   f"s_add_u32 m0, s{sMV}, {base+1024}\ns_nop 0\nbuffer_load_dwordx4 v{vDV}, {sr(sWS,4)}, s{sOK} offen offset:1024 lds\n"
                   f"s_mov_b64 exec, -1\ns_add_u32 s{sOK}, s{sOK}, 2048")
    if gemm:
        for p in range(4):
            out.append(f"s_add_u32 m0, s{sMA}, {base+1024*p}\ns_nop 0\nbuffer_load_dwordx4 v{vDA+p}, {sr(sWSP,4)}, s{sOA} offen lds"
                       + (f"\ns_add_u32 s{sOA}, s{sOA}, 128" if p == 3 else ""))
        out.append(f"s_add_u32 m0, s{sMZ}, {base}\ns_nop 0\nbuffer_load_dwordx4 v{vDZ}, {sr(sWS,4)}, s{sOZ} offen lds")
        out.append(f"s_add_u32 m0, s{sMZ}, {base}\ns_nop 0\nbuffer_load_dwordx4 v{vDZ}, {sr(sWS,4)}, s{sOZ} offen offset:1024 lds\ns_add_u32 s{sOZ}, s{sOZ}, 4096")
    return out


def rd_g(slot, ks):
    s, o = so(slot)
    return [f"ds_read_b128 {vr(vGB+4*ks,4)}, v{vAB+4*s+ks} offset:{o}",
            f"ds_read_b128 {vr(vGA+8*ks,4)}, v{vAL+s} offset:{o+O_Z+ks*1024}",
            f"ds_read_b128 {vr(vGA+8*ks+4,4)}, v{vAL+s} offset:{o+O_Z+4096+ks*1024}"]


def mm_g(ks):
    return [mfma32(vG, vGA + 8 * ks, vGB + 4 * ks, vG), mfma32(vG + 16, vGA + 8 * ks + 4, vGB + 4 * ks, vG + 16)]


def gemm_loop(k, gemm):
    nd = 8 if gemm else 4
    k(f"s_mov_b32 s{sCnt}, 8")
    stamp(k, 1)
    for part in (0,):
        L = k.newlabel("gloop")
        k(".p2align 6")
        k.label(L)
        if 'prof' in X:
            k(f"""
            s_memtime s[84:85]
            s_memrealtime s[86:87]
            s_waitcnt lgkmcnt(0)
            v_mov_b32 v{vT}, s84
            v_mov_b32 v{vT+1}, s86
            s_lshl_b32 s88, s2, 8
            s_lshl_b32 s89, s{sCnt}, 3
            s_add_u32 s88, s88, s89
            s_add_u32 s88, s88, {WS_STAMP + 3*262144}
            v_mov_b32 v{vT+2}, 0
            buffer_store_dwordx2 {vr(vT,2)}, v{vT+2}, {sr(sWS,4)}, s88 offen
            """)
        for jj in range(4):
            slot = (jj + 1) % 4
            k(f"s_waitcnt vmcnt({(4 if 'nogdma' in X else 2*nd)}) lgkmcnt(0)")
            k("s_barrier")
            dm = dma_group((slot + 3) % 4, gemm)
            if gemm:
                r = [rd_g(slot, ks) for ks in range(4)]
                m = [mm_g(ks) for ks in range(4)]
                seq = (r[0] + [m[2][0], dm[0], m[2][1]] + r[1] + [m[3][0], dm[1], m[3][1], dm[2]] + r[2] + [m[0][0], dm[3], m[0][1], dm[4]]
                       + r[3] + [m[1][0], dm[5], m[1][1], dm[6]])
            else:
                seq = list(dm)
            if jj == 0:
                k(f"s_cmp_eq_u32 s{sCnt}, 1\ns_cselect_b32 s{sT}, 0x70000000, 0\ns_add_u32 s{sOK}, s{sOK}, s{sT}")
            for a in seq:
                if 'nogdma' in X and ' lds' in a and 'exec' not in a:
                    continue
                if 'nogmm' in X and 'mfma' in a:
                    continue
                if 'nogrd' in X and 'ds_read' in a:
                    continue
                k(a)
            if jj == 0:
                k(f"s_add_u32 s{sOA}, s{sOA}, s{sT}\ns_add_u32 s{sOZ}, s{sOZ}, s{sT}")
        k(f"s_sub_u32 s{sCnt}, s{sCnt}, 1\ns_cmp_lg_u32 s{sCnt}, {part}\ns_cbranch_scc1 {L}")
    stamp(k, 2)
    if gemm:
        for a in mm_g(2) + mm_g(3):
            k(a)


def gen_k2(k=None):
    if k is None:
        k = Kernel("k2_kernel")
    t0, t1, t2, t3 = vT, vT + 1, vT + 2, vT + 3
    stamp(k, 0)
    if not FUSED:
        k("s_cmp_ge_u32 s2, 256\ns_cbranch_scc1 k2_end")
    k(f"""
    s_setprio 0
    s_load_dwordx2 {sr(sWS,2)}, s[0:1], {KA_WS}
    s_load_dwordx2 {sr(sWSP,2)}, s[0:1], {KA_WSP}
    s_load_dwordx2 {sr(sBSP,2)}, s[0:1], {KA_BSP}
    v_lshrrev_b32 v{t0}, 6, v0
    v_and_b32 v{vLane}, 63, v0
    v_readfirstlane_b32 s{sW}, v{t0}
    s_and_b32 s{sT}, s2, 7
    s_lshr_b32 s{sIdx}, s2, 3
    s_lshr_b32 s{sT+2}, s{sIdx}, 3
    s_lshl_b32 s{sHead}, s{sT}, 2
    s_add_u32 s{sHead}, s{sHead}, s{sT+2}
    s_lshl_b32 s{sT+3}, s{sHead}, 16             ; head*65536
    s_mov_b32 s{sWS+2}, {WS_SIZE}
    s_mov_b32 s{sWS+3}, 0x00020000
    s_mov_b32 s{sWSP+2}, {2048*2048*2}
    s_mov_b32 s{sWSP+3}, 0x00020000
    s_mov_b32 s{sBSP+2}, 4096
    s_mov_b32 s{sBSP+3}, 0x00020000
    s_mov_b32 s{sVM}, 0x0000ffff
    s_mov_b32 s{sVM+1}, 0x0000ffff
    v_lshlrev_b32 v{vAL}, 4, v{vLane}
    v_add_u32 v{vAL+1}, {2*STAGE}, v{vAL}
    s_cmp_ge_u32 s{sW}, 8
    s_cbranch_scc1 k2_gemm
    """)
    k(f"""
    s_and_b32 s{sQT}, s{sIdx}, 7
    s_lshl_b32 s{sQT}, s{sQT}, 3
    s_add_u32 s{sQT}, s{sQT}, s{sW}
    s_lshl_b32 s{sT+5}, s{sQT}, 10
    s_add_u32 s{sT+5}, s{sT+5}, s{sT+3}
    s_add_u32 s{sT+7}, s{sT+5}, {WS_Q}
    s_add_u32 s{sT+8}, s{sT+3}, {WS_K}
    s_waitcnt lgkmcnt(0)
    """)
    qk = (f"buffer_load_dwordx4 {vr(vQ,4)}, v{vAL}, {sr(sWS,4)}, s{sT+7} offen\n"
          f"buffer_load_dwordx4 {vr(vK0,4)}, v{vAL}, {sr(sWS,4)}, s{sT+8} offen")
    if not FUSED:
        k(qk)
    k(f"""
    v_and_b32 v{t0}, 27, v{vLane}
    v_mov_b32 v{t1}, 0x3f803f80
    v_cmp_eq_u32 vcc, 16, v{t0}
    v_cndmask_b32 v{t1}, 0, v{t1}, vcc
    """)
    for i in range(8):
        k(f"v_mov_b32 v{vV+i}, v{t1}")
    k(f"""
    s_lshr_b32 s{sT+5}, s{sW}, 1
    s_mul_i32 s{sT+5}, s{sT+5}, {STAGE}
    s_and_b32 s{sT+6}, s{sW}, 1
    s_lshl_b32 s{sT+6}, s{sT+6}, 11
    s_add_u32 s{sT+5}, s{sT+5}, s{sT+6}
    v_add_u32 v{t0}, s{sT+5}, v{vAL}
    s_not_b64 exec, {sr(sVM,2)}
    ds_write_b128 v{t0}, {vr(vV,4)} offset:{O_V}
    ds_write_b128 v{t0}, {vr(vV,4)} offset:{O_V+1024}
    s_mov_b64 exec, -1
    """)
    for i in range(16):
        k(f"v_mov_b32 v{vO+i}, 0")
    if FUSED:
        k("s_barrier")
        k(qk)
    attn_loop(k)
    k(f"v_mul_f32 v{t0}, 0, v{vO}")
    for i in range(1, 8):
        k(f"v_fma_f32 v{t0}, v{vO+i}, 0, v{t0}")
    k(f"""
    v_add_f32 v{t0}, v{t0}, v{vO+8}
    v_mov_b32 v{t1}, 0x17800000                  ; 2^-80
    v_mov_b32 v{t2}, 0x67800000                  ; 2^80
    v_cmp_ge_f32 vcc, v{t0}, v{t1}
    v_cmp_le_f32 {sr(sT+10,2)}, v{t0}, v{t2}
    s_and_b64 vcc, vcc, {sr(sT+10,2)}
    s_cmp_eq_u64 vcc, -1
    s_cbranch_scc1 k2_store_o
    """)
    vM = vT
    k(f"""
    s_add_u32 s{sT+10}, s{sT+3}, {WS_K}
    s_add_u32 s{sT+11}, s{sT+3}, {WS_V}
    v_mov_b32 v{vM}, 0xff800000
    s_mov_b32 s{sCnt}, 64
    s_mov_b32 s{sT+12}, s{sT+10}
    k2_slow1:
    buffer_load_dwordx4 {vr(vK0,4)}, v{vAL}, {sr(sWS,4)}, s{sT+12} offen
    {mfma32(vS0, vK0, vQ, None)}
    """)
    for i in range(8):
        k(f"v_max3_f32 v{vM}, v{vS0+2*i}, v{vS0+2*i+1}, v{vM}")
    k(f"""
    s_add_u32 s{sT+12}, s{sT+12}, 1024
    s_sub_u32 s{sCnt}, s{sCnt}, 1
    s_cmp_lg_u32 s{sCnt}, 0
    s_cbranch_scc1 k2_slow1
    v_mov_b32 v{t1}, v{vM}
    v_permlane32_swap_b32 v{vM}, v{t1}
    v_max_f32 v{vM}, v{vM}, v{t1}
    v_sub_f32 v{vM}, 0, v{vM}
    """)
    for i in range(16):
        k(f"v_mov_b32 v{vC+i}, v{vM}")
        k(f"v_mov_b32 v{vO+i}, 0")
    k(f"""
    v_lshrrev_b32 v{t2}, 5, v{vLane}
    v_and_b32 v{t1}, 15, v{vLane}
    v_lshlrev_b32 v{t1}, 4, v{t1}
    v_lshl_add_u32 v{t1}, v{t2}, 8, v{t1}        ; (l/32)*256 + (l%16)*16
    s_mov_b32 s{sCnt}, 64
    k2_slow2:
    buffer_load_dwordx4 {vr(vK0,4)}, v{vAL}, {sr(sWS,4)}, s{sT+10} offen
    s_mov_b64 exec, {sr(sVM,2)}
    buffer_load_dwordx4 {vr(vV,4)}, v{t1}, {sr(sWS,4)}, s{sT+11} offen
    buffer_load_dwordx4 {vr(vV+4,4)}, v{t1}, {sr(sWS,4)}, s{sT+11} offen offset:512
    s_mov_b64 exec, -1
    {mfma32(vS0, vK0, vQ, vC)}
    """)
    for i in range(16):
        k(f"v_exp_f32 v{vS0+i}, v{vS0+i}")
    for i in range(8):
        k(f"v_cvt_pk_bf16_f32 v{vP+i}, v{vS0+2*i}, v{vS0+2*i+1}")
    k(f"""
    {mfma32(vO, vV, vP, vO)}
    {mfma32(vO, vV+4, vP+4, vO)}
    s_add_u32 s{sT+10}, s{sT+10}, 1024
    s_add_u32 s{sT+11}, s{sT+11}, 1024
    s_sub_u32 s{sCnt}, s{sCnt}, 1
    s_cmp_lg_u32 s{sCnt}, 0
    s_cbranch_scc1 k2_slow2
    """)
    k.label("k2_store_o")
    k(f"v_rcp_f32 v{t0}, v{vO+8}")
    for i in range(8):
        k(f"v_mul_f32 v{vO+i}, v{vO+i}, v{t0}")
    for i in range(4):
        k(f"v_cvt_pk_bf16_f32 v{vP+i}, v{vO+2*i}, v{vO+2*i+1}")
    k(f"""
    s_lshl_b32 s{sT+9}, s{sQT}, 5
    s_add_u32 s{sT+9}, s{sT+9}, s{sHead}
    s_lshl_b32 s{sT+9}, s{sT+9}, 10
    s_add_u32 s{sT+9}, s{sT+9}, {WS_O}
    buffer_store_dwordx4 {vr(vP,4)}, v{vAL}, {sr(sWS,4)}, s{sT+9} offen {WT}
    s_branch k2_fin
    """)
    k.label("k2_gemm")
    sG = sT + 4
    k(f"""
    s_setprio 3
    s_sub_u32 s{sG}, s{sW}, 8                    ; g = 0..3
    s_and_b32 s{sTB}, s{sT}, 3
    s_lshl_b32 s{sTB}, s{sTB}, 2
    s_and_b32 s{sT+2}, s{sIdx}, 3
    s_add_u32 s{sTB}, s{sTB}, s{sT+2}
    s_lshr_b32 s{sFB}, s{sT}, 2
    s_mul_i32 s{sFB}, s{sFB}, 7
    s_lshr_b32 s{sT+2}, s{sIdx}, 2
    s_add_u32 s{sFB}, s{sFB}, s{sT+2}
    s_mov_b32 s{sLo}, -1
    s_mov_b32 s{sLo+1}, 0
    s_mov_b32 s{sOA}, 0
    s_mov_b32 s{sOZ}, 0
    s_mov_b32 s{sOK}, 0
    s_lshl_b32 s{sMA}, s{sG}, 12
    s_lshl_b32 s{sMZ}, s{sG}, 11
    s_add_u32 s{sMZ}, s{sMZ}, {O_Z}
    s_lshl_b32 s{sMK}, s{sG}, 9
    s_add_u32 s{sMK}, s{sMK}, {O_K}
    s_lshl_b32 s{sMV}, s{sG}, 10
    s_add_u32 s{sMV}, s{sMV}, {O_V}
    s_lshl_b32 s{sT+5}, s{sG}, 9
    s_add_u32 s{sT+5}, s{sT+5}, s{sT+3}
    s_add_u32 s{sT+6}, s{sT+5}, {WS_K+1024}
    v_add_u32 v{vDK}, s{sT+6}, v{vAL}
    ; V DMA: WS_V + head*65536 + g*512 + (l/32)*256 + (l%16)*16
    v_lshrrev_b32 v{t0}, 5, v{vLane}
    v_and_b32 v{t1}, 15, v{vLane}
    v_lshlrev_b32 v{t1}, 4, v{t1}
    v_lshl_add_u32 v{t1}, v{t0}, 8, v{t1}
    s_add_u32 s{sT+6}, s{sT+5}, {WS_V}
    v_add_u32 v{vDV}, s{sT+6}, v{t1}
    s_waitcnt lgkmcnt(0)
    s_cmp_ge_u32 s{sIdx}, 28
    s_cbranch_scc1 k2_loader
    """)
    if not FUSED:
        k(dma_group(0, True)[0])
    k(f"""
    v_lshrrev_b32 v{t0}, 3, v{vLane}
    s_lshl_b32 s{sT+5}, s{sG}, 5
    v_add_u32 v{t0}, s{sT+5}, v{t0}
    v_and_b32 v{t1}, 7, v{vLane}
    s_lshl_b32 s{sT+6}, s{sTB}, 19
    """)
    for p in range(4):
        k(f"""
        v_add_u32 v{t2}, {8*p}, v{t0}
        v_bfe_u32 v{t3}, v{t2}, 1, 3
        v_xor_b32 v{t3}, v{t3}, v{t1}
        v_lshlrev_b32 v{t3}, 4, v{t3}
        v_lshl_add_u32 v{vDA+p}, v{t2}, 12, v{t3}
        v_add_u32 v{vDA+p}, s{sT+6}, v{vDA+p}
        """)
    k(f"""
    s_lshr_b32 s{sT+5}, s{sG}, 1
    s_lshl_b32 s{sT+6}, s{sFB}, 1
    s_add_u32 s{sT+5}, s{sT+5}, s{sT+6}
    s_lshl_b32 s{sT+5}, s{sT+5}, 17
    s_and_b32 s{sT+7}, s{sG}, 1
    s_lshl_b32 s{sT+7}, s{sT+7}, 11
    s_add_u32 s{sT+5}, s{sT+5}, s{sT+7}
    s_add_u32 s{sT+5}, s{sT+5}, {WS_Z2}
    v_add_u32 v{vDZ}, s{sT+5}, v{vAL}
    """)
    if not FUSED:
        for a in dma_group(1, True):
            k(a)
        k("s_waitcnt vmcnt(8)\ns_barrier")
    else:
        for st in range(1, 4):
            for a in dma_group(st, True)[1:5]:
                k(a)
    k(f"""
    s_lshl_b32 s{sT+7}, s{sTB}, 2
    s_add_u32 s{sT+7}, s{sT+7}, s{sG}
    s_mul_i32 s{sT+8}, s{sT+7}, 56
    s_lshl_b32 s{sT+9}, s{sFB}, 2
    s_add_u32 s{sT+8}, s{sT+8}, s{sT+9}
    s_lshl_b32 s{sT+8}, s{sT+8}, 10
    s_lshl_b32 s{sT+7}, s{sT+7}, 6
    s_add_u32 s{sT+9}, s{sT+8}, {WS_Z1}
    v_and_b32 v{t0}, 31, v{vLane}
    v_lshlrev_b32 v{t0}, 1, v{t0}
    """)
    def z1loads():
        k(f"buffer_load_ushort v{vBias}, v{vT+4}, {sr(sBSP,4)}, s{sT+13} offen")
        for i in range(4):
            k(f"buffer_load_dwordx4 {vr(vZ1+4*i,4)}, v{vAL}, {sr(sWS,4)}, s{sT+9} offen offset:{1024*i}")
    k(f"v_mov_b32 v{vT+4}, v{t0}\ns_mov_b32 s{sT+13}, s{sT+7}")
    if not FUSED:
        for st in range(2, 4):
            for a in dma_group(st, True):
                k(a)
        z1loads()
    k(f"""
    v_lshrrev_b32 v{t0}, 5, v{vLane}
    v_and_b32 v{t1}, 31, v{vLane}
    s_lshl_b32 s{sT+7}, s{sG}, 5
    v_add_u32 v{t1}, s{sT+7}, v{t1}
    v_bfe_u32 v{t2}, v{t1}, 1, 3
    v_xor_b32 v{t2}, v{t2}, v{t0}
    v_lshlrev_b32 v{t2}, 4, v{t2}
    v_lshl_add_u32 v{vAB}, v{t1}, 7, v{t2}
    v_xor_b32 v{vAB+1}, 32, v{vAB}
    v_xor_b32 v{vAB+2}, 64, v{vAB}
    v_xor_b32 v{vAB+3}, 96, v{vAB}
    """)
    for i in range(4):
        k(f"v_add_u32 v{vAB+4+i}, {2*STAGE}, v{vAB+i}")
    for i in range(32):
        k(f"v_mov_b32 v{vG+i}, 0")
    for i in range(16):
        k(f"v_mov_b32 v{vGA+16+i}, 0")
    for i in range(8):
        k(f"v_mov_b32 v{vGB+8+i}, 0")
    if FUSED:
        gbar.wait(k, 0, sWS, sW, sT + 10, vZ1, vLane)
        k("s_barrier")
        k(dma_group(0, True)[0])
        for st in range(1, 4):
            g = dma_group(st, True)
            for a in [g[0]] + g[5:]:
                k(a)
            if st == 1:
                k("s_waitcnt vmcnt(4)\ns_barrier")
        z1loads()
        k("s_waitcnt vmcnt(13)")
    k("s_setprio 0")
    gemm_loop(k, True)
    k(f"s_add_u32 s{sT+9}, s{sT+8}, {WS_U}")
    k(f"v_lshlrev_b32 v{vBias}, 16, v{vBias}")
    for i in range(16):
        a, b = vT + 2 * (i % 4), vT + 2 * (i % 4) + 1
        k(f"""
        v_lshlrev_b32 v{a}, 16, v{vZ1+i}
        v_and_b32 v{b}, 0xffff0000, v{vZ1+i}
        v_add_f32 v{vG+2*i}, v{vG+2*i}, v{vBias}
        v_add_f32 v{vG+2*i+1}, v{vG+2*i+1}, v{vBias}
        v_mul_f32 v{a}, v{a}, v{vG+2*i}
        v_mul_f32 v{b}, v{b}, v{vG+2*i+1}
        v_cvt_pk_bf16_f32 v{vZ1+i}, v{a}, v{b}
        """)
        if i % 4 == 3:
            k(f"buffer_store_dwordx4 {vr(vZ1+i-3,4)}, v{vAL}, {sr(sWS,4)}, s{sT+9} offen offset:{1024*(i//4)} {WT}")
    k("s_branch k2_fin")
    k.label("k2_loader")
    k(f"""
    s_load_dwordx2 {sr(sPA,2)}, s[0:1], {KA_WO}
    s_load_dwordx2 {sr(sPB,2)}, s[0:1], {KA_WOUT}
    s_load_dwordx2 {sr(sPX,2)}, s[0:1], {KA_X}
    s_mov_b32 s{sPA+2}, {512*1024}
    s_mov_b32 s{sPA+3}, 0x00020000
    s_mov_b32 s{sPB+2}, {896*1024}
    s_mov_b32 s{sPB+3}, 0x00020000
    s_mov_b32 s{sPX+2}, {2048*1024}
    s_mov_b32 s{sPX+3}, 0x00020000
    """)
    if FUSED:
        gbar.wait(k, 0, sWS, sW, sT + 10, vZ1, vLane)
        k("s_barrier")
    k(f"s_cmp_ge_u32 s{sG}, 2\ns_cbranch_scc1 k2_pref")
    k(dma_group(0, False)[0])
    k("s_waitcnt vmcnt(0)\ns_barrier")
    for st in range(1, 4):
        for a in dma_group(st, False):
            k(a)
    gemm_loop(k, False)
    k("s_branch k2_fin")
    k.label("k2_pref")
    k(f"""
    s_sub_u32 s{sT+5}, s{sIdx}, 28
    s_lshl_b32 s{sT+5}, s{sT+5}, 1
    s_add_u32 s{sT+5}, s{sT+5}, s{sG}
    s_sub_u32 s{sT+5}, s{sT+5}, 2                ; 0..7
    s_lshl_b32 s{sPo}, s{sT+5}, 16
    s_mul_i32 s{sPo+1}, s{sT+5}, {112*1024}
    s_lshl_b32 s{sPo+2}, s{sT+5}, 15
    s_and_b32 s{sT+6}, s2, 7
    s_lshl_b32 s{sT+6}, s{sT+6}, 18
    s_add_u32 s{sPo+2}, s{sPo+2}, s{sT+6}
    v_lshlrev_b32 v{vT}, 7, v{vLane}
    s_waitcnt lgkmcnt(0)
    """)
    stamp(k, 1)
    lo = []
    for srd, so, cnt in ((sPX, sPo + 2, 4), (sPB, sPo + 1, 14), (sPA, sPo, 8)):
        for j in range(cnt):
            lo.append(f"buffer_load_dword v{vG+len(lo)}, v{vT}, {sr(srd,4)}, s{so} offen\ns_add_u32 s{so}, s{so}, 8192")
    PF0 = int(os.environ.get('PF0', '16'))
    for it in range(33):
        k("s_barrier")
        if it >= PF0 and 'nopf' not in X:
            for a in lo[2 * (it - PF0): 2 * (it - PF0) + 2]:
                k(a)
    stamp(k, 2)
    k.label("k2_fin")
    if STAMP:
        k("s_waitcnt vmcnt(0)")
    stamp(k, 3)
    stamp_store(k, 4)
    if FUSED:
        return k
    k("""
    k2_end:
    s_endpgm
    """)
    k.finish()
    return k


if __name__ == "__main__":
    import sys
    STAMP = "stamp" in sys.argv
    k = gen_k2()
    print(build_file("; test", [("k2_kernel", 256, 768, LDS_K2)], [k]))
```

```python
import os
from asmlib import *
from layout import *

X = set(os.environ.get('K3X', '').split(','))
NS = 5
STAGE = 32768
LDS_K3 = NS * STAGE
NST = 11

vLane = 1
vL16 = 2
vDW = 3
vAT = 5
vAW = 8
vT = 12
vX = 20
vA1, vA2 = 28, 44
vFA = 60
vFB = 92
vOA = 124

sWS, sWA, sWB, sXS, sOUT = 4, 8, 12, 16, 20
sW, sR, sWq, sTB, sNB = 24, 25, 26, 27, 28
sTA, sTBb, sWbA, sWbB, sM = 29, 30, 31, 32, 33
sT = 36

STAMP = False
FUSED = False
import gbar


def stamp(k, i):
    if STAMP:
        if i == 0:
            k("s_memrealtime s[80:81]")
        if i == 3:
            k("s_memrealtime s[82:83]")
        k(f"s_memtime {sr(60+2*i,2)}\ns_waitcnt lgkmcnt(0)")


def stamp_store(k, n):
    if not STAMP:
        return
    k(f"s_mul_i32 s58, s2, 12\ns_add_u32 s58, s58, s{sW}\ns_lshl_b32 s58, s58, 5\ns_add_u32 s58, s58, {WS_STAMP + 2*262144}")
    for i in range(n):
        k(f"s_sub_u32 s59, s{60+2*i}, s60\nv_mov_b32 v{vT}, s59\nv_mov_b32 v{vT+1}, 0\nbuffer_store_dword v{vT}, v{vT+1}, {sr(sWS,4)}, s58 offen offset:{4*i}")
    for j, r in ((6, 80), (7, 82)):
        k(f"v_mov_b32 v{vT}, s{r}\nv_mov_b32 v{vT+1}, 0\nbuffer_store_dword v{vT}, v{vT+1}, {sr(sWS,4)}, s58 offen offset:{4*j}")


def mfma32(d, a, b, c):
    cs = "0" if c is None else vr(c, 16)
    return f"v_mfma_f32_32x32x16_bf16 {vr(d,16)}, {vr(a,4)}, {vr(b,4)}, {cs}"


def dma_t(k, st):
    base = (st % NS) * STAGE
    tb, j = (sTA, st) if st < 8 else (sTBb, st - 8)
    k(f"s_add_u32 s{sT}, s{tb}, {j*4096}\ns_add_u32 m0, s{sM}, {base}")
    for i in range(4):
        k(f"buffer_load_dwordx4 v{vL16}, {sr(sWS,4)}, s{sT} offen offset:{1024*i} lds", tag=("s3", st))


def dma_w(k, st):
    base = (st % NS) * STAGE
    wb, srd, j = (sWbA, sWA, st) if st < 8 else (sWbB, sWB, st - 8)
    for i in range(4):
        k(f"s_add_u32 s{sT+1}, s{wb}, {j*65536 + i*8192}\ns_add_u32 m0, s{sM}, {base+8192+1024*i}")
        k(f"buffer_load_dwordx4 v{vDW}, {sr(srd,4)}, s{sT+1} offen lds", tag=("s3", st))


def reads(st, ks):
    slot = st % NS
    s, o = slot // 2, (slot % 2) * STAGE
    b = st % 2
    fa, fb = vFA + 16 * b + 4 * ks, vFB + 16 * b + 4 * ks
    return [f"ds_read_b64_tr_b16 {vr(fa,2)}, v{vAW+s} offset:{o+ks*2048}",
            f"ds_read_b64_tr_b16 {vr(fa+2,2)}, v{vAW+s} offset:{o+ks*2048+512}",
            f"ds_read_b128 {vr(fb,4)}, v{vAT+s} offset:{o+ks*1024}"]


def common_setup(k):
    t0 = vT
    k(f"""
    s_load_dwordx2 {sr(sWS,2)}, s[0:1], {KA_WS}
    s_load_dwordx2 {sr(sWA,2)}, s[0:1], {KA_WO}
    s_load_dwordx2 {sr(sWB,2)}, s[0:1], {KA_WOUT}
    s_load_dwordx2 {sr(sXS,2)}, s[0:1], {KA_X}
    s_load_dwordx2 {sr(sOUT,2)}, s[0:1], {KA_OUT}
    v_lshrrev_b32 v{t0}, 6, v0
    v_and_b32 v{vLane}, 63, v0
    v_readfirstlane_b32 s{sW}, v{t0}
    v_lshlrev_b32 v{vL16}, 4, v{vLane}
    s_and_b32 s{sT}, s2, 7
    s_lshr_b32 s{sT+1}, s2, 3
    s_lshl_b32 s{sTB}, s{sT}, 2
    s_lshr_b32 s{sT+2}, s{sT+1}, 3
    s_add_u32 s{sTB}, s{sTB}, s{sT+2}
    s_and_b32 s{sNB}, s{sT+1}, 7
    s_mov_b32 s{sWS+2}, {WS_SIZE}
    s_mov_b32 s{sWS+3}, 0x00020000
    s_mov_b32 s{sWA+2}, {896*1024}
    s_mov_b32 s{sWA+3}, 0x00020000
    s_mov_b32 s{sWB+2}, {896*1024}
    s_mov_b32 s{sWB+3}, 0x00020000
    s_mov_b32 s{sXS+2}, {2048*1024}
    s_mov_b32 s{sXS+3}, 0x00020000
    s_mov_b32 s{sOUT+2}, {2048*1024}
    s_mov_b32 s{sOUT+3}, 0x00020000
    """)


def loader_setup(k):
    t0, t1, t2 = vT, vT + 1, vT + 2
    k(f"""
    s_setprio 3
    s_bfe_u32 s{sR}, s{sW}, 0x10001              ; role = (w-8)/2
    s_and_b32 s{sWq}, s{sW}, 1                   ; half
    s_lshl_b32 s{sT}, s{sTB}, 1
    s_add_u32 s{sT}, s{sT}, s{sWq}               ; tt
    s_lshl_b32 s{sT+2}, s{sT}, 15
    s_add_u32 s{sT+2}, s{sT+2}, {WS_O}           ; X baseA
    s_mul_i32 s{sT+3}, s{sT}, {56*1024}
    s_add_u32 s{sT+3}, s{sT+3}, {WS_U}           ; X baseB
    s_add_u32 s{sT+4}, s{sT+3}, {12*1024}        ; Y baseA
    s_add_u32 s{sT+5}, s{sT+3}, {44*1024}        ; Y baseB
    s_cmp_eq_u32 s{sR}, 0
    s_cselect_b32 s{sTA}, s{sT+2}, s{sT+4}
    s_cselect_b32 s{sTBb}, s{sT+3}, s{sT+5}
    s_cselect_b32 s{sWbA}, 0, {3*65536}
    s_cselect_b32 s{sWbB}, 0, {11*65536}
    s_lshl_b32 s{sM}, s{sR}, 14
    s_lshl_b32 s{sT}, s{sWq}, 12
    s_add_u32 s{sM}, s{sM}, s{sT}
    v_lshrrev_b32 v{t0}, 3, v{vLane}
    v_and_b32 v{t1}, 7, v{vLane}
    v_lshlrev_b32 v{t2}, 1, v{t0}
    v_and_b32 v{t2}, 4, v{t2}
    v_xor_b32 v{t1}, v{t1}, v{t2}
    v_lshlrev_b32 v{t1}, 4, v{t1}
    v_lshl_add_u32 v{t1}, v{t0}, 10, v{t1}
    s_lshl_b32 s{sT}, s{sWq}, 15
    s_lshl_b32 s{sT+1}, s{sNB}, 7
    s_add_u32 s{sT}, s{sT}, s{sT+1}
    v_add_u32 v{vDW}, s{sT}, v{t1}
    s_waitcnt lgkmcnt(0)
    s_cmp_eq_u32 s{sR}, 0
    s_cselect_b32 s{sWA}, s{sWA}, s{sWB}
    s_cselect_b32 s{sWA+1}, s{sWA+1}, s{sWB+1}
    s_cselect_b32 s{sWA+2}, {512*1024}, s{sWB+2}
    """)


def loader_main(k, wfirst):
    if wfirst:
        for st in range(NS):
            dma_t(k, st)
    else:
        for st in range(2):
            dma_t(k, st)
            dma_w(k, st)
    stamp(k, 1)
    for st in range(NST):
        k.wait_tag(("s3", st))
        k("s_barrier")
        if st == 0 and not wfirst:
            for s2_ in range(2, NS):
                dma_t(k, s2_)
                dma_w(k, s2_)
        if st >= 1 and st + NS - 1 < NST:
            dma_t(k, st + NS - 1)
            dma_w(k, st + NS - 1)
    stamp(k, 2)
    k("s_barrier")


def compute_setup(k):
    t0, t1, t2, t3 = vT, vT + 1, vT + 2, vT + 3
    k(f"""
    s_lshr_b32 s{sR}, s{sW}, 2
    s_and_b32 s{sWq}, s{sW}, 3
    s_lshl_b32 s{sT}, s{sR}, 14
    s_and_b32 s{sT+1}, s{sWq}, 1                 ; tt
    s_lshl_b32 s{sT+2}, s{sT+1}, 12
    s_add_u32 s{sT+2}, s{sT+2}, s{sT}
    v_add_u32 v{vAT}, s{sT+2}, v{vL16}
    s_lshr_b32 s{sT+3}, s{sWq}, 1                ; nt
    v_bfe_u32 v{t0}, v{vLane}, 2, 2
    v_lshrrev_b32 v{t1}, 5, v{vLane}
    v_lshl_add_u32 v{t1}, v{t1}, 3, v{t0}
    v_bfe_u32 v{t2}, v{vLane}, 4, 1
    v_lshlrev_b32 v{t2}, 1, v{t2}
    v_and_b32 v{t3}, 1, v{vLane}
    v_add_u32 v{t2}, v{t2}, v{t3}
    s_lshl_b32 s{sT+4}, s{sT+3}, 2
    v_add_u32 v{t2}, s{sT+4}, v{t2}
    v_lshlrev_b32 v{t0}, 1, v{t0}
    v_and_b32 v{t0}, 4, v{t0}
    v_xor_b32 v{t2}, v{t2}, v{t0}
    v_lshlrev_b32 v{t2}, 4, v{t2}
    v_lshl_add_u32 v{t2}, v{t1}, 7, v{t2}
    v_bfe_u32 v{t3}, v{vLane}, 1, 1
    v_lshl_add_u32 v{t2}, v{t3}, 3, v{t2}
    s_add_u32 s{sT+4}, s{sT}, 8192
    v_add_u32 v{vAW}, s{sT+4}, v{t2}
    v_add_u32 v{vAT+1}, {2*STAGE}, v{vAT}
    v_add_u32 v{vAT+2}, {4*STAGE}, v{vAT}
    v_add_u32 v{vAW+1}, {2*STAGE}, v{vAW}
    v_add_u32 v{vAW+2}, {4*STAGE}, v{vAW}
    ; out / x address: row = tb*64 + tt*32 + l%32 ; col bytes = nb*128 + nt*64 + role*32 + h*16
    v_and_b32 v{t0}, 31, v{vLane}
    v_lshlrev_b32 v{t0}, 10, v{t0}
    v_lshrrev_b32 v{t1}, 5, v{vLane}
    v_lshl_add_u32 v{t0}, v{t1}, 4, v{t0}
    s_lshl_b32 s{sT+4}, s{sTB}, 16
    s_lshl_b32 s{sT+5}, s{sT+1}, 15
    s_add_u32 s{sT+4}, s{sT+4}, s{sT+5}
    s_lshl_b32 s{sT+5}, s{sNB}, 7
    s_add_u32 s{sT+4}, s{sT+4}, s{sT+5}
    s_lshl_b32 s{sT+5}, s{sT+3}, 6
    s_add_u32 s{sT+4}, s{sT+4}, s{sT+5}
    s_lshl_b32 s{sT+5}, s{sR}, 5
    s_add_u32 s{sT+4}, s{sT+4}, s{sT+5}
    v_add_u32 v{vOA}, s{sT+4}, v{t0}
    s_waitcnt lgkmcnt(0)
    buffer_load_dwordx4 {vr(vX,4)}, v{vOA}, {sr(sXS,4)}, 0 offen
    """)


def compute_main(k):
    t0 = vT
    stamp(k, 1)
    for st in range(NST + 1):
        mm = []
        if st > 0:
            p = st - 1
            acc = vA1 if p < 8 else vA2
            b = p % 2
            for ks in range(4):
                first = (p == 0 or p == 8) and ks == 0
                mm.append(mfma32(acc, vFA + 16 * b + 4 * ks, vFB + 16 * b + 4 * ks, None if first else acc))
        if st < NST:
            k("s_waitcnt lgkmcnt(0)\ns_barrier")
            seq = []
            for ks in range(4):
                seq += reads(st, ks)
                if ks < len(mm):
                    seq.append(mm[ks])
            for a in seq:
                k(a)
        else:
            for a in mm:
                k(a)
    stamp(k, 2)
    S, T = vFA, vFA + 8
    k(f"""
    s_mul_i32 s{sT}, s{sWq}, 6144
    s_add_u32 s{sT}, s{sT}, {STAGE}
    v_add_u32 v{t0}, s{sT}, v{vL16}
    s_cmp_eq_u32 s{sR}, 0
    s_cbranch_scc1 k3_x
    """)
    for i in range(0, 16, 2):
        k(f"v_pk_add_f32 {vr(vA1+i,2)}, {vr(vA1+i,2)}, {vr(vA2+i,2)}")
    k(f"""
    ds_write_b128 v{t0}, {vr(vA1,4)} offset:4096
    ds_write_b128 v{t0}, {vr(vA1+4,4)} offset:5120
    s_waitcnt lgkmcnt(0)
    s_barrier
    ds_read_b128 {vr(S,4)}, v{t0}
    ds_read_b128 {vr(S+4,4)}, v{t0} offset:1024
    ds_read_b128 {vr(T,4)}, v{t0} offset:2048
    ds_read_b128 {vr(T+4,4)}, v{t0} offset:3072
    """)
    for i in range(0, 8, 2):
        k(f"v_pk_add_f32 {vr(T+i,2)}, {vr(T+i,2)}, {vr(vA1+8+i,2)}")
    k("s_branch k3_fin1")
    k.label("k3_x")
    k(f"""
    ds_write_b128 v{t0}, {vr(vA1+8,4)}
    ds_write_b128 v{t0}, {vr(vA1+12,4)} offset:1024
    ds_write_b128 v{t0}, {vr(vA2+8,4)} offset:2048
    ds_write_b128 v{t0}, {vr(vA2+12,4)} offset:3072
    s_waitcnt lgkmcnt(0)
    s_barrier
    ds_read_b128 {vr(T,4)}, v{t0} offset:4096
    ds_read_b128 {vr(T+4,4)}, v{t0} offset:5120
    """)
    for i in range(8):
        k(f"v_mov_b32 v{S+i}, v{vA1+i}")
    for i in range(0, 8, 2):
        k(f"v_pk_add_f32 {vr(T+i,2)}, {vr(T+i,2)}, {vr(vA2+i,2)}")
    k.label("k3_fin1")
    E, F = vFB, vFB + 8
    k(f"s_mov_b32 s{sT}, 0xbfb8aa3b")
    for i in range(8):
        k(f"v_mul_f32 v{E+i}, s{sT}, v{T+i}")
    for i in range(8):
        k(f"v_exp_f32 v{E+i}, v{E+i}")
    for i in range(0, 8, 2):
        k(f"v_pk_mul_f32 {vr(T+i,2)}, {vr(T+i,2)}, {vr(S+i,2)}")
    for i in range(8):
        k(f"v_add_f32 v{E+i}, 1.0, v{E+i}")
    for i in range(8):
        k(f"v_rcp_f32 v{E+i}, v{E+i}")
    for i in range(4):
        k(f"v_lshlrev_b32 v{F+2*i}, 16, v{vX+i}\nv_and_b32 v{F+2*i+1}, 0xffff0000, v{vX+i}")
    for i in range(0, 8, 2):
        k(f"v_pk_fma_f32 {vr(F+i,2)}, {vr(T+i,2)}, {vr(E+i,2)}, {vr(F+i,2)}")
    for i in range(4):
        k(f"v_cvt_pk_bf16_f32 v{vX+i}, v{F+2*i}, v{F+2*i+1}")
    k(f"buffer_store_dwordx4 {vr(vX,4)}, v{vOA}, {sr(sOUT,4)}, 0 offen")


def gen_k3(k=None):
    if k is None:
        k = Kernel("k3_kernel")
    stamp(k, 0)
    if not FUSED:
        k("s_cmp_ge_u32 s2, 256\ns_cbranch_scc1 k3_end")
    k("s_setprio 0")
    common_setup(k)
    k(f"s_cmp_ge_u32 s{sW}, 8\ns_cbranch_scc1 k3_loader")
    compute_setup(k)
    if FUSED:
        k("s_barrier")
    compute_main(k)
    k("s_branch k3_fin")
    k.label("k3_loader")
    loader_setup(k)
    if FUSED:
        for st in range(NS):
            dma_w(k, st)
        gbar.wait(k, 1, sWS, sW, sT + 10, vA1, vLane)
        k("s_barrier")
    loader_main(k, FUSED)
    k.label("k3_fin")
    if STAMP:
        k("s_waitcnt vmcnt(0)")
    stamp(k, 3)
    stamp_store(k, 4)
    if FUSED:
        return k
    k("k3_end:\ns_endpgm")
    k.finish()
    return k


if __name__ == "__main__":
    import sys
    STAMP = "stamp" in sys.argv
    k = gen_k3()
    print(build_file("; test", [("k3_kernel", 256, 768, LDS_K3)], [k]))
```

```python
import sys, os
os.environ.setdefault("WT", "sc1")
from asmlib import *
import k1, k2, k3, gbar
NAME = "recurrent_scan__softmax_full_mha__mixer_gmlp__prompt_kernel"
ref = open("recurrent_scan__softmax_full_mha__mixer_gmlp__prompt.s.ref").read()
hdr = "\n".join(l for l in ref.split("\n") if l.startswith(";") and "@launch" not in l and "Override" not in l and "grid=ceil" not in l)
if os.environ.get('STAMP'):
    k1.STAMP = k2.STAMP = k3.STAMP = True
k1.FUSED = k2.FUSED = k3.FUSED = True
k = Kernel("fz_kernel")
k1.gen_k1(k)
k("s_waitcnt vmcnt(0) lgkmcnt(0)\ns_barrier")
gbar.arrive(k, 0, k1.sWS, k1.sW, k1.sT, k1.vT)
k2.gen_k2(k)
k("s_waitcnt vmcnt(0) lgkmcnt(0)\ns_barrier")
gbar.arrive(k, 1, k2.sWS, k2.sW, k2.sT, k2.vT)
k3.gen_k3(k)
k("fz_end:\ns_endpgm")
k.finish()
txt = build_file(hdr, [("fz_kernel", 256, 768, 163840)], [k])
out = sys.argv[1] if len(sys.argv) > 1 else "recurrent_scan__softmax_full_mha__mixer_gmlp__prompt.s"
open(out, "w").write(txt)
print("wrote", out, len(txt))
```

```python
import os
import struct
from asmlib import *
from layout import *

X = set(os.environ.get('K1X', '').split(','))
STAGE = 32768
NS = 4
O_W = 16384
L_IMG = NS * STAGE
L_TAG = L_IMG + 16384
L_CSW = L_TAG + 256
L_RS = L_CSW + 4096
LDS_K1 = L_RS + 1024

vLane = 1
vL16 = 2
vDX, vDW = 3, 5
vAX = 9
vAW = 13
vTag = 15
vT = 16
ACC = 32
FX = 96
FW = 108
vGR = 156
vGC = 160
vGA = 164
vK = 0

sWS, sXS, sWW, sWI, sDBG = 4, 8, 12, 16, 20
sW, sRH, sRB, sCG, sUn = 24, 25, 26, 27, 28
sKX, sKW, sKQ = 29, 30, 31
sMX, sMW = 32, 33
sKind, sIdx, sT32, sGU = 34, 35, 36, 37
sCSo = 38
sT = 40
sSpin = 61

C0 = -2.0 * 1.4426950408889634 * 0.7978845608028654
C1 = C0 * 0.044715
QS = 0.25 * 1.4426950408889634
STAMP = False
FUSED = False
sTagS = 99
WT = os.environ.get('WT', '')
BC = "op_sel_hi:[1,0]"


def f32(x):
    return "0x%08x" % struct.unpack("<I", struct.pack("<f", x))[0]


def stamp(k, i):
    if STAMP:
        if i == 0:
            k("s_memrealtime s[80:81]")
        if i == 3:
            k("s_memrealtime s[82:83]")
        k(f"s_memtime {sr(64+2*i,2)}\ns_waitcnt lgkmcnt(0)")


def stamp_store(k, n):
    if not STAMP:
        return
    k(f"s_mul_i32 s62, s2, 12\ns_add_u32 s62, s62, s{sW}\ns_lshl_b32 s62, s62, 5\ns_add_u32 s62, s62, {WS_STAMP}")
    for i in range(n):
        k(f"s_sub_u32 s63, s{64+2*i}, s64\nv_mov_b32 v{vT}, s63\nv_mov_b32 v{vT+1}, 0\nbuffer_store_dword v{vT}, v{vT+1}, {sr(sWS,4)}, s62 offen offset:{4*i}")
    for j, r in ((6, 80), (7, 82)):
        k(f"v_mov_b32 v{vT}, s{r}\nv_mov_b32 v{vT+1}, 0\nbuffer_store_dword v{vT}, v{vT+1}, {sr(sWS,4)}, s62 offen offset:{4*j}")


def mfma32(d, a, b, c):
    cs = "0" if c is None else vr(c, 16)
    return f"v_mfma_f32_32x32x16_bf16 {vr(d,16)}, {vr(a,4)}, {vr(b,4)}, {cs}"


def dma(t):
    base = (t % NS) * STAGE
    out = []
    for j in range(4):
        e = f"s_add_u32 m0, s{sMX}, {base+1024*j}\n"
        if j == 2:
            e += f"s_add_u32 s{sT}, s{sKX}, 16384\n"
        e += f"buffer_load_dwordx4 v{vDX+j%2}, {sr(sXS,4)}, s{sT if j >= 2 else sKX} offen lds"
        out.append(e)
    srd, so, va, pitch = (sWI, sKW, vDW, 3584) if t < 8 else (sWW, sKQ, vDW + 1, 3072)
    for j in range(4):
        e = (f"s_add_u32 m0, s{sMW}, {base+1024*j}\nbuffer_load_dwordx4 v{va}, {sr(srd,4)}, s{so} offen lds\n"
             f"s_add_u32 s{so}, s{so}, {pitch*(8 if j < 3 else 40)}")
        if j == 3:
            e += (f"\ns_add_u32 s{sKX}, s{sKX}, 128\ns_and_b32 s{sKX}, s{sKX}, 1023\n"
                  f"s_cselect_b32 s{sT}, 0, {512*pitch}\ns_sub_u32 s{so}, s{so}, s{sT}")
        out.append(e)
    return out


def loader(k):
    t0, t1, t2, t3 = vT, vT + 1, vT + 2, vT + 3
    k(f"""
    s_setprio 3
    s_lshl_b32 s{sMX}, s{sUn}, 12
    v_lshrrev_b32 v{t0}, 3, v{vLane}
    v_and_b32 v{t1}, 7, v{vLane}
    v_lshrrev_b32 v{t2}, 1, v{t0}
    v_xor_b32 v{t2}, v{t2}, v{t1}
    v_lshlrev_b32 v{t2}, 4, v{t2}
    v_lshl_add_u32 v{t2}, v{t0}, 10, v{t2}
    s_lshl_b32 s{sT+5}, s{sRB}, 17
    s_lshl_b32 s{sT+6}, s{sUn}, 15
    s_add_u32 s{sT+5}, s{sT+5}, s{sT+6}
    v_add_u32 v{vDX}, s{sT+5}, v{t2}
    v_xor_b32 v{t2}, 64, v{t2}
    s_add_u32 s{sT+5}, s{sT+5}, 8192
    v_add_u32 v{vDX+1}, s{sT+5}, v{t2}
    ; W: chunk = (l%8) ^ (4*((row>>1)&1)), row = l/8
    v_lshlrev_b32 v{t2}, 1, v{t0}
    v_and_b32 v{t2}, 4, v{t2}
    v_xor_b32 v{t2}, v{t2}, v{t1}
    v_lshlrev_b32 v{t2}, 4, v{t2}
    v_mul_u32_u24 v{t3}, 3584, v{t0}
    v_add_u32 v{vDW}, v{t3}, v{t2}
    v_mul_u32_u24 v{t3}, 3072, v{t0}
    v_add_u32 v{vDW+1}, v{t3}, v{t2}
    s_lshr_b32 s{sT+1}, s{sUn}, 1
    s_and_b32 s{sT+2}, s{sUn}, 1
    s_lshl_b32 s{sKW}, s{sCG}, 7
    s_cmp_eq_u32 s{sT+1}, 0
    s_cselect_b32 s{sT+3}, 1792, 0
    s_add_u32 s{sKW}, s{sKW}, s{sT+3}
    s_mul_i32 s{sT+3}, s{sT+2}, {32*3584}
    s_add_u32 s{sKW}, s{sKW}, s{sT+3}
    s_lshl_b32 s{sKQ}, s{sCG}, 8
    s_lshl_b32 s{sT+3}, s{sT+1}, 7
    s_add_u32 s{sKQ}, s{sKQ}, s{sT+3}
    s_mul_i32 s{sT+3}, s{sT+2}, {32*3072}
    s_add_u32 s{sKQ}, s{sKQ}, s{sT+3}
    s_add_u32 s{sMW}, s{sMX}, {O_W}
    s_lshr_b32 s{sT+3}, s2, 3
    s_and_b32 s{sT+3}, s{sT+3}, {7 if 'rot' in X else 0}
    s_lshl_b32 s{sKX}, s{sT+3}, 7
    s_mul_i32 s{sT+4}, s{sT+3}, {64*3584}
    s_add_u32 s{sKW}, s{sKW}, s{sT+4}
    s_mul_i32 s{sT+4}, s{sT+3}, {64*3072}
    s_add_u32 s{sKQ}, s{sKQ}, s{sT+4}
    s_waitcnt lgkmcnt(0)
    """)
    for a in dma(0):
        k(a, tag=("st", 0))
    for a in dma(1):
        k(a, tag=("st", 1))
    stamp(k, 1)
    for t in range(16):
        if t == 5:
            k(f"s_cmp_ge_u32 s{sCG}, 12\ns_cbranch_scc1 k1_ltail")
        k.wait_tag(("st", t))
        k("s_waitcnt lgkmcnt(0)\ns_barrier")
        if t == 0:
            for a in dma(2):
                k(a, tag=("st", 2))
        if t + 3 < 16 and 'nodma' not in X:
            for a in dma(t + 3):
                k(a, tag=("st", t + 3))
        if t == 1:
            k(f"buffer_load_dword v{vTag}, v{vGA+2}, {sr(sDBG,4)}, 0 offen sc0 sc1")
        if t == 3:
            L = k.newlabel("notag")
            k(f"s_cmp_lg_u32 s{sW}, 8\ns_cbranch_scc1 {L}")
            poll_tag(k, True)
            k(f"s_mov_b32 s{sTagS}, s{sT}\nv_mov_b32 v{t0}, {L_TAG}\nds_write_b32 v{t0}, v{vTag}\n{L}:")
    k("s_branch k1_ldone")
    k.label("k1_ltail")
    for t in range(5, 8):
        k.wait_tag(("st", t))
        k("s_barrier")
    if FUSED:
        for t in range(8):
            k("s_barrier")
    k.label("k1_ldone")


def reads(ks, buf):
    out = [f"ds_read_b128 {vr(FX+4*buf,4)}, v{vAX+ks}"]
    for c in range(4):
        d = FW + 16 * buf + 4 * c
        o = (c // 2) * 8192 + ks * 2048
        out.append(f"ds_read_b64_tr_b16 {vr(d,2)}, v{vAW+c%2} offset:{o}")
        out.append(f"ds_read_b64_tr_b16 {vr(d+2,2)}, v{vAW+c%2} offset:{o+512}")
    return out


def mms(buf, first):
    return [mfma32(ACC + 16 * c, FW + 16 * buf + 4 * c, FX + 4 * buf, None if first else ACC + 16 * c) for c in range(4)]


def gather_loads():
    e = ""
    for un in range(2):
        e += f"buffer_load_dwordx2 {vr(vGC+2*un,2)}, v{vGA+1}, {sr(sWS,4)}, s{sCSo+un} offen sc0 sc1\n"
    return e


def check_tags(k, regs, Lok, tmp):
    k(f"v_xor_b32 v{tmp}, v{regs[0]}, v{vTag}")
    for r in regs[1:]:
        k(f"v_xor_b32 v{tmp+1}, v{r}, v{vTag}\nv_or_b32 v{tmp}, v{tmp}, v{tmp+1}")
    k(f"v_cmp_ne_u32 vcc, 0, v{tmp}\ns_cmp_eq_u64 vcc, 0\ns_cbranch_scc1 {Lok}")


def poll_tag(k, first_issued):
    Lr, Lok = k.newlabel("tagpoll"), k.newlabel("tagok")
    if first_issued:
        k(f"v_readfirstlane_b32 s{sT}, v{vTag}\ns_cmp_lg_u32 s{sT}, 0\ns_cbranch_scc1 {Lok}")
    k(f"""
    {Lr}:
    buffer_load_dword v{vTag}, v{vGA+2}, {sr(sDBG,4)}, 0 offen sc0 sc1
    v_readfirstlane_b32 s{sT}, v{vTag}
    s_cmp_lg_u32 s{sT}, 0
    s_cbranch_scc1 {Lok}
    s_sleep 2
    s_sub_u32 s{sSpin}, s{sSpin}, 1
    s_cbranch_scc0 {Lr}
    {Lok}:
    """)


def main_loop(k):
    t0 = vT
    LA = 2
    for p in range(8):
        k("s_waitcnt lgkmcnt(0)\ns_barrier")
        if p > 0:
            step = STAGE if p % NS else -(NS - 1) * STAGE
            for r in (vAX, vAX + 1, vAX + 2, vAX + 3, vAW, vAW + 1):
                k(f"v_add_u32 v{r}, {step & 0xffffffff:#x}, v{r}")
        for ks in range(4):
            g = 4 * p + ks
            r = reads(ks, g % 3)
            m = mms((g - LA) % 3, g - LA == 0) if g >= LA else []
            seq = interleave(m, r) if ks < 3 else (m[:1] + r[:5] + m[1:2] + r[5:] + m[2:])
            for a in seq:
                k(a)
            if p == 5 and ks == 0:
                k(f"v_mov_b32 v{t0}, {L_TAG}\nds_read_b32 v{vTag}, v{t0}")
            if p == 6 and ks == 2:
                k(gather_loads())
    for g in range(32 - LA, 32):
        for a in mms(g % 3, False):
            k(a)


def row_stats(k):
    t0, t1, t2, t3 = vT, vT + 1, vT + 2, vT + 3
    S = ACC
    D = ACC + 8
    U = ACC + 40
    for i in range(4):
        k(f"v_mov_b32 v{S+i}, 0")
    if 'rprio' in X:
        k("s_setprio 2")

    def crunch(b):
        for i in range(16):
            u = U + 2 * (i % 4)
            k(f"""
            v_lshlrev_b32 v{u}, 16, v{D+16*b+i}
            v_and_b32 v{u+1}, 0xffff0000, v{D+16*b+i}
            v_add_f32 v{S}, v{S}, v{u}
            v_add_f32 v{S+1}, v{S+1}, v{u+1}
            v_fmac_f32 v{S+2}, v{u}, v{u}
            v_fmac_f32 v{S+3}, v{u+1}, v{u+1}
            """)
    for p in range(8):
        k("s_waitcnt lgkmcnt(0)\ns_barrier")
        o = (p % 2) * STAGE
        if p in (2, 6):
            for r in range(4):
                k(f"v_add_u32 v{vAX+r}, {2*STAGE}, v{vAX+r}")
        if p == 4:
            for r in range(4):
                k(f"v_subrev_u32 v{vAX+r}, {2*STAGE}, v{vAX+r}")
        for ks in range(4):
            k(f"ds_read_b128 {vr(D+16*(p%2)+4*ks,4)}, v{vAX+ks} offset:{o}")
        if 'nocr' not in X:
            crunch(p % 2)
    for r in range(4):
        k(f"v_subrev_u32 v{vAX+r}, {2*STAGE}, v{vAX+r}")
    k(f"""
    v_add_f32 v{S}, v{S}, v{S+1}
    v_add_f32 v{S+2}, v{S+2}, v{S+3}
    v_mov_b32 v{t0}, v{S}
    v_mov_b32 v{t1}, v{S+2}
    v_permlane32_swap_b32 v{S}, v{t0}
    v_permlane32_swap_b32 v{S+2}, v{t1}
    v_add_f32 v{t0}, v{t0}, v{S}
    v_add_f32 v{t1}, v{t1}, v{S+2}
    v_mul_f32 v{t0}, {f32(1.0/512)}, v{t0}
    v_mul_f32 v{t1}, {f32(1.0/512)}, v{t1}
    v_fma_f32 v{t1}, -v{t0}, v{t0}, v{t1}
    v_max_f32 v{t1}, 0, v{t1}
    v_add_f32 v{t1}, {f32(1e-5)}, v{t1}
    v_rsq_f32 v{t1}, v{t1}
    v_mul_f32 v{t0}, v{t0}, v{t1}
    ds_write_b32 v{vGA}, v{t1}
    ds_write_b32 v{vGA}, v{t0} offset:512
    """)


def epi_addr(k):
    t0, t1, t2, t3 = vT, vT + 1, vT + 2, vT + 3
    k(f"""
    s_lshl_b32 s{sT}, s{sW}, 9
    s_add_u32 s{sT}, s{sT}, {L_CSW}
    v_lshlrev_b32 v{t0}, 2, v{vLane}
    v_add_u32 v{vT+4}, s{sT}, v{t0}
    v_lshrrev_b32 v{t2}, 5, v{vLane}             ; h
    v_lshlrev_b32 v{vT+6}, 5, v{t2}
    v_add_u32 v{vT+6}, s{sT}, v{vT+6}
    v_lshlrev_b32 v{vT+5}, 3, v{vLane}
    v_mov_b32 v3, {f32(C0)}
    v_and_b32 v{t0}, 31, v{vLane}
    v_and_b32 v{t1}, 1, v{t0}
    v_bfe_u32 v{t3}, v{t0}, 1, 1
    v_lshl_or_b32 v{t1}, v{t3}, 2, v{t1}
    v_bfe_u32 v{t3}, v{t0}, 2, 1
    v_lshl_or_b32 v{t1}, v{t3}, 1, v{t1}
    v_xor_b32 v{t1}, v{t1}, v{t2}
    v_lshlrev_b32 v{t1}, 4, v{t1}
    v_lshl_add_u32 v{t1}, v{t0}, 7, v{t1}
    v_add_u32 v{vT+8}, s{sT+1}, v{t1}
    v_xor_b32 v{vT+9}, 32, v{vT+8}
    v_xor_b32 v{vT+10}, 64, v{vT+8}
    v_xor_b32 v{vT+11}, 96, v{vT+8}
    v_bfe_u32 v{t0}, v{vLane}, 2, 2
    v_and_b32 v{t1}, 1, v{t0}
    v_lshrrev_b32 v{t3}, 1, v{t0}
    v_lshl_or_b32 v{t1}, v{t3}, 2, v{t1}
    v_bfe_u32 v{t3}, v{vLane}, 4, 1
    v_lshlrev_b32 v{t3}, 1, v{t3}
    v_and_b32 v{vT+7}, 1, v{vLane}
    v_or_b32 v{t3}, v{t3}, v{vT+7}
    v_xor_b32 v{t1}, v{t1}, v{t3}
    v_lshlrev_b32 v{t1}, 4, v{t1}
    v_lshl_add_u32 v{t0}, v{t2}, 3, v{t0}
    v_lshl_add_u32 v{t1}, v{t0}, 7, v{t1}
    v_bfe_u32 v{t3}, v{vLane}, 1, 1
    v_lshl_add_u32 v{t1}, v{t3}, 3, v{t1}
    v_add_u32 v{vT+12}, s{sT+1}, v{t1}
    v_xor_b32 v{vT+13}, 32, v{vT+12}
    v_xor_b32 v{vT+14}, 64, v{vT+12}
    v_xor_b32 v{vT+15}, 96, v{vT+12}
    v_and_b32 v{t0}, 15, v{vLane}
    v_lshlrev_b32 v{t0}, 4, v{t0}
    v_lshl_add_u32 v{t0}, v{t2}, 8, v{t0}
    v_bfe_u32 v{t3}, v{vLane}, 4, 1
    v_lshl_add_u32 v{vT+7}, v{t3}, 16, v{t0}
    """)


def get_stats(k):
    t0 = vT
    tagregs = [vGC + 1, vGC + 3]
    Lr, Lok = k.newlabel("g1"), k.newlabel("g1ok")
    check_tags(k, tagregs, Lok, t0)
    k(f"{Lr}:\ns_sleep 2")
    k(gather_loads())
    check_tags(k, tagregs, Lok, t0)
    k(f"s_sub_u32 s{sSpin}, s{sSpin}, 1\ns_cbranch_scc0 {Lr}\n{Lok}:")
    k(f"ds_write_b32 v{vT+4}, v{vGC}\nds_write_b32 v{vT+4}, v{vGC+2} offset:256\nds_read_b32 v{vGR}, v{vGA}\nds_read_b32 v{vGR+2}, v{vGA} offset:512\ns_waitcnt lgkmcnt(0)")


def cs_reads(un):
    out = []
    for c in range(4):
        out.append(f"ds_read_b128 {vr(FW+8*c,4)}, v{vT+6} offset:{un*256+c*64}")
        out.append(f"ds_read_b128 {vr(FW+8*c+4,4)}, v{vT+6} offset:{un*256+c*64+16}")
    return out


def pack(A):
    return [f"v_cvt_pk_bf16_f32 v{A+8*c+i}, v{A+8*c+2*i}, v{A+8*c+2*i+1}" for c in range(4) for i in range(4)]


def tr_store(k, A, lane_reg, s0, kstride):
    for c in range(4):
        k(f"ds_write_b128 v{vT+8+c}, {vr(A+8*c,4)}")
    k(f"s_add_u32 s{sT+3}, s{s0}, 131072\ns_waitcnt lgkmcnt(0)")
    for ct in range(2):
        for ks in range(2):
            d = A + 8 * ct + 4 * ks
            k(f"ds_read_b64_tr_b16 {vr(d,2)}, v{vT+12+2*ct} offset:{ks*2048}")
            k(f"ds_read_b64_tr_b16 {vr(d+2,2)}, v{vT+13+2*ct} offset:{ks*2048+512}")
    for ct in range(2):
        for ks in range(2):
            k(f"buffer_store_dwordx4 {vr(A+8*ct+4*ks,4)}, v{lane_reg}, {sr(sWS,4)}, s{(s0, sT+3)[ct]} offen offset:{ks*kstride} {WT}")


def z_epilogue(k):
    t0, t1, t2, t3 = vT, vT + 1, vT + 2, vT + 3
    k("s_barrier")
    if 'zprio' in X:
        k("s_setprio 2")
    get_stats(k)
    k(f"s_mov_b32 s{sT+10}, {f32(C1)}")
    S = FX

    def unit_ops(un):
        A = ACC + 32 * un
        ops = list(cs_reads(un))
        for i in range(32):
            ops.append(f"v_mul_f32 v{A+i}, v{A+i}, v{vGR}")
        for i in range(32):
            ops.append(f"v_fma_f32 v{A+i}, -v{vGR+2}, v{FW+i}, v{A+i}")
        for h in range(2):
            R = [A + 16 * h + i for i in range(16)]
            T = [FW + i for i in range(16)]
            ops += [f"v_mul_f32 v{t}, v{r}, v{r}" for r, t in zip(R, T)]
            ops += [f"v_fma_f32 v{t}, v{t}, s{sT+10}, v3" for r, t in zip(R, T)]
            ops += [f"v_mul_f32 v{t}, v{t}, v{r}" for r, t in zip(R, T)]
            ops += [f"v_exp_f32 v{t}, v{t}" for r, t in zip(R, T)]
            ops += [f"v_add_f32 v{t}, 1.0, v{t}" for r, t in zip(R, T)]
            ops += [f"v_rcp_f32 v{t}, v{t}" for r, t in zip(R, T)]
            ops += [f"v_mul_f32 v{r}, v{r}, v{t}" for r, t in zip(R, T)]
        return ops

    ops = unit_ops(0)
    A = ACC
    ops += [f"v_add_f32 v{S}, v{A}, v{A+1}", f"v_mul_f32 v{S+2}, v{A}, v{A}", f"v_add_f32 v{S+1}, v{A+2}, v{A+3}",
            f"v_mul_f32 v{S+3}, v{A+1}, v{A+1}", f"v_fmac_f32 v{S+2}, v{A+2}, v{A+2}", f"v_fmac_f32 v{S+3}, v{A+3}, v{A+3}"]
    for i in range(4, 32):
        ops += [f"v_add_f32 v{S+i%2}, v{S+i%2}, v{A+i}", f"v_fmac_f32 v{S+2+i%2}, v{A+i}, v{A+i}"]
    ops.append(f"""
    v_add_f32 v{S}, v{S}, v{S+1}
    v_add_f32 v{S+2}, v{S+2}, v{S+3}
    v_permlane32_swap_b32 v{S}, v{S+2}
    v_add_f32 v{S}, v{S}, v{S+2}
    v_mov_b32 v{S+1}, v{vTag}
    s_mul_i32 s{sT+4}, s{sT32}, {14*512}
    s_add_u32 s{sT+4}, s{sT+4}, {WS_S2}
    s_lshl_b32 s{sT+1}, s{sCG}, 9
    s_add_u32 s{sT+1}, s{sT+1}, s{sT+4}
    buffer_store_dwordx2 {vr(S,2)}, v{vT+5}, {sr(sWS,4)}, s{sT+1} offen sc0 sc1
    """)
    n0 = len(ops)
    ops += unit_ops(1)
    ops += pack(ACC + 32)
    cost = [2 if o.startswith(("v_exp", "v_rcp")) else 1 for o in ops]
    tot = sum(cost)
    nb = 7
    acc, nxt, placed = 0, 1, 0
    for i, (o, c) in enumerate(zip(ops, cost)):
        if not ('noz' in X and o.startswith('v_')):
            k(o)
        if i == n0 - 1:
            stamp(k, 4)
        acc += c
        if placed < nb and acc >= tot * nxt / nb - 1e-9:
            k("s_barrier")
            placed += 1
            nxt += 1
    assert placed == nb
    G = FW

    def g2loads():
        for i in range(7):
            if i % 4 == 0:
                k(f"s_add_u32 s{sT}, s{sT+4}, {1024*i}")
            k(f"buffer_load_dwordx4 {vr(G+4*i,4)}, v{vL16}, {sr(sWS,4)}, s{sT} offen offset:{1024*(i%4)} sc0 sc1")
    g2loads()
    k(f"""
    s_mul_i32 s{sT+1}, s{sT32}, {56*1024}
    s_lshl_b32 s{sT+2}, s{sCG}, 12
    s_add_u32 s{sT+1}, s{sT+1}, s{sT+2}
    s_add_u32 s{sT+1}, s{sT+1}, {WS_Z1}
    """)
    for c in range(4):
        k(f"buffer_store_dwordx4 {vr(ACC+32+8*c,4)}, v{vL16}, {sr(sWS,4)}, s{sT+1} offen offset:{1024*c} {WT}")
    stamp(k, 5)
    Lr, Lok = k.newlabel("g2"), k.newlabel("g2ok")
    check_tags(k, [G + 2 * j + 1 for j in range(14)], Lok, t0)
    k(f"{Lr}:")
    g2loads()
    check_tags(k, [G + 2 * j + 1 for j in range(14)], Lok, t0)
    k(f"s_sleep 1\ns_sub_u32 s{sSpin}, s{sSpin}, 1\ns_cbranch_scc0 {Lr}\n{Lok}:")
    stamp(k, 1)
    for i in range(1, 7):
        k(f"v_add_f32 v{G}, v{G}, v{G+4*i}\nv_add_f32 v{G+2}, v{G+2}, v{G+4*i+2}")
    k(f"""
    v_mov_b32 v{t0}, v{G}
    v_mov_b32 v{t1}, v{G+2}
    v_permlane32_swap_b32 v{G}, v{t0}
    v_permlane32_swap_b32 v{G+2}, v{t1}
    v_add_f32 v{G}, v{G}, v{t0}
    v_add_f32 v{G+1}, v{G+2}, v{t1}
    s_lshl_b32 s{sT}, s{sW}, 9
    s_add_u32 s{sT}, s{sT}, {L_CSW}
    v_and_b32 v{t2}, 31, v{vLane}
    v_lshlrev_b32 v{t3}, 3, v{t2}
    v_add_u32 v{t3}, s{sT}, v{t3}
    ds_write_b64 v{t3}, {vr(G,2)}
    v_lshlrev_b32 v{t3}, 2, v{t2}
    v_add_u32 v{t3}, s{sT}, v{t3}
    s_waitcnt lgkmcnt(0)
    ds_read_b32 v{t0}, v{t3}
    ds_read_b32 v{t1}, v{t3} offset:128
    s_lshl_b32 s{sT}, s{sCG}, 18
    s_lshl_b32 s{sT+1}, s{sT32}, 11
    s_add_u32 s{sT}, s{sT}, s{sT+1}
    s_add_u32 s{sT}, s{sT}, {WS_Z2}
    v_mul_f32 v{t0}, {f32(1.0/896)}, v{t0}
    v_mul_f32 v{t1}, {f32(1.0/896)}, v{t1}
    v_fma_f32 v{t1}, -v{t0}, v{t0}, v{t1}
    v_max_f32 v{t1}, 0, v{t1}
    v_add_f32 v{t1}, {f32(1e-5)}, v{t1}
    v_rsq_f32 v{t1}, v{t1}
    v_mul_f32 v{t0}, v{t0}, v{t1}
    """)
    for i in range(32):
        k(f"v_fma_f32 v{A+i}, v{A+i}, v{t1}, -v{t0}")
    for o in pack(A):
        k(o)
    tr_store(k, A, vL16, sT, 1024)


def q_epilogue(k):
    get_stats(k)
    k(f"""
    s_cmp_eq_u32 s{sKind}, 0
    s_cselect_b32 s{sT}, {f32(QS)}, 1.0
    v_mul_f32 v4, s{sT}, v{vGR}
    v_mul_f32 v5, s{sT}, v{vGR+2}
    s_lshl_b32 s{sT}, s{sCG}, 19
    s_lshl_b32 s{sT+1}, s{sT32}, 10
    s_add_u32 s{sT}, s{sT}, s{sT+1}
    s_add_u32 s{sT}, s{sT}, {WS_Q}
    """)
    for un in range(2):
        A = ACC + 32 * un
        for o in cs_reads(un):
            k(o)
        for i in range(0, 32, 2):
            k(f"v_pk_mul_f32 {vr(A+i,2)}, {vr(A+i,2)}, v[4:5] {BC}")
        for i in range(0, 32, 2):
            k(f"v_pk_fma_f32 {vr(A+i,2)}, {vr(FW+i,2)}, v[4:5], {vr(A+i,2)} op_sel:[0,1,0] op_sel_hi:[1,1,1] neg_lo:[1,0,0] neg_hi:[1,0,0]")
        for o in pack(A):
            k(o)
        Lv, Ld = k.newlabel("qv"), k.newlabel("qd")
        k(f"s_cmp_eq_u32 s{sKind}, 2\ns_cbranch_scc1 {Lv}")
        for c in range(4):
            k(f"buffer_store_dwordx4 {vr(A+8*c,4)}, v{vL16}, {sr(sWS,4)}, s{sT} offen {WT}\ns_add_u32 s{sT}, s{sT}, 65536")
        k(f"s_branch {Ld}\n{Lv}:")
        tr_store(k, A, vT + 7, sT, 512)
        k(f"s_add_u32 s{sT}, s{sT}, 262144\n{Ld}:")


def wave_allsum(k, regs, tmps):
    for sh in (8, 4, 2, 1):
        for r in regs:
            k(f"v_add_f32_dpp v{r}, v{r}, v{r} row_ror:{sh} row_mask:0xf bank_mask:0xf")
    for sw in ("v_permlane16_swap_b32", "v_permlane32_swap_b32"):
        for r, t in zip(regs, tmps):
            k(f"v_mov_b32 v{t}, v{r}")
        for r, t in zip(regs, tmps):
            k(f"{sw} v{r}, v{t}")
        for r, t in zip(regs, tmps):
            k(f"v_add_f32 v{r}, v{r}, v{t}")


def helper(k):
    t0, t1, t2, t3 = vT, vT + 1, vT + 2, vT + 3
    A = FX
    k(f"""
    s_cmp_ge_u32 s2, 28
    s_cbranch_scc1 k1_hpre
    s_add_u32 s{sGU}, s2, 24
    s_min_u32 s{sT}, s2, 23
    s_lshl_b32 s{sT+1}, s2, 7
    s_lshl_b32 s{sT+2}, s{sT}, 7
    s_lshl_b32 s{sT+4}, s{sW}, 6
    s_sub_u32 s{sT+5}, s{sW}, 8
    s_lshl_b32 s{sT+5}, s{sT+5}, 7
    s_cmp_lt_u32 s{sW}, 8
    s_cselect_b32 s{sGU}, s{sGU}, s{sT}
    s_cselect_b32 s{sT+1}, s{sT+1}, s{sT+2}
    s_cselect_b32 s{sT+4}, s{sT+4}, s{sT+5}
    s_cselect_b32 s{sT+3}, 512, 0
    s_cselect_b32 s{sWW}, s{sWI}, s{sWW}
    s_cselect_b32 s{sWW+1}, s{sWI+1}, s{sWW+1}
    s_cselect_b32 s{sWW+2}, s{sWI+2}, s{sWW+2}
    s_add_u32 s{sT+3}, s{sT+3}, 3072             ; pitch
    v_lshrrev_b32 v{t0}, 3, v{vLane}
    v_add_u32 v{t0}, s{sT+4}, v{t0}
    v_mul_lo_u32 v{t0}, v{t0}, s{sT+3}
    v_and_b32 v{t1}, 7, v{vLane}
    v_lshl_add_u32 v{t0}, v{t1}, 4, v{t0}
    s_lshl_b32 s{sT+3}, s{sT+3}, 3
    """)

    def loads(b):
        for i in range(8):
            k(f"buffer_load_dwordx4 {vr(ACC+32*b+4*i,4)}, v{t0}, {sr(sWW,4)}, s{sT+1} offen")
            k(f"s_add_u32 s{sT+1}, s{sT+1}, s{sT+3}")

    def accum(b):
        for i in range(8):
            for r in range(4):
                src = ACC + 32 * b + 4 * i + r
                if i == 0 and b == 0:
                    k(f"v_lshlrev_b32 v{A+2*r}, 16, v{src}\nv_and_b32 v{A+2*r+1}, 0xffff0000, v{src}")
                else:
                    k(f"v_lshlrev_b32 v{t2}, 16, v{src}\nv_and_b32 v{t3}, 0xffff0000, v{src}\n"
                      f"v_pk_add_f32 {vr(A+2*r,2)}, {vr(A+2*r,2)}, {vr(t2,2)}")

    def reduce_write():
        regs = [A + i for i in range(8)]
        tm = [A + 8 + i for i in range(8)]
        for r in regs:
            k(f"v_add_f32_dpp v{r}, v{r}, v{r} row_ror:8 row_mask:0xf bank_mask:0xf")
        for sw in ("v_permlane16_swap_b32", "v_permlane32_swap_b32"):
            for r, t in zip(regs, tm):
                k(f"v_mov_b32 v{t}, v{r}")
            for r, t in zip(regs, tm):
                k(f"{sw} v{r}, v{t}")
            for r, t in zip(regs, tm):
                k(f"v_add_f32 v{r}, v{r}, v{t}")
        k(f"""
        s_lshl_b32 s{sT}, s{sW}, 8
        v_lshlrev_b32 v{t0}, 5, v{t1}
        v_add_u32 v{t0}, s{sT}, v{t0}
        ds_write_b128 v{t0}, {vr(A,4)}
        ds_write_b128 v{t0}, {vr(A+4,4)} offset:16
        s_waitcnt lgkmcnt(0)
        """)

    def publish(n):
        k(f"s_lshl_b32 s{sT}, s{sW}, 8\nv_lshlrev_b32 v{t0}, 2, v{vLane}\nv_add_u32 v{t0}, s{sT}, v{t0}")
        for i in range(n):
            k(f"ds_read_b32 v{A+i}, v{t0} offset:{256*i}")
        poll_tag(k, True)
        for i in range(1, n):
            k(f"v_add_f32 v{A}, v{A}, v{A+i}")
        k(f"""
        s_lshl_b32 s{sT}, s{sGU}, 9
        s_add_u32 s{sT}, s{sT}, {WS_CS}
        v_lshlrev_b32 v{t0}, 3, v{vLane}
        v_mov_b32 v{A+1}, v{vTag}
        buffer_store_dwordx2 {vr(A,2)}, v{t0}, {sr(sWS,4)}, s{sT} offen sc0 sc1
        """)
    loads(0)
    k(f"s_cmp_ge_u32 s{sW}, 8\ns_cbranch_scc1 k1_hq")
    k(f"s_setprio 2\nbuffer_load_dword v{vT+8}, v{vGA+2}, {sr(sDBG,4)}, 0 offen sc0 sc1")
    accum(0)
    reduce_write()
    k(f"s_barrier\ns_cmp_lg_u32 s{sW}, 0\ns_cbranch_scc1 k1_hz\nv_or_b32 v{vTag}, v{vTag}, v{vT+8}")
    publish(8)
    k.label("k1_hz")
    if FUSED:
        k("s_barrier")
    k("s_branch k1_hpre")
    k.label("k1_hq")
    loads(1)
    k("s_barrier")
    accum(0)
    accum(1)
    reduce_write()
    k(f"s_barrier\ns_cmp_lg_u32 s{sW}, 8\ns_cbranch_scc1 k1_hpre")
    publish(4)
    k.label("k1_hpre")
    if FUSED:
        k(f"s_cmp_lg_u32 s{sW}, 8\ns_cbranch_scc1 k1_fin")
        poll_tag(k, True)
        k(f"s_mov_b32 s{sTagS}, s{sT}")


def gen_k1(k=None):
    if k is None:
        k = Kernel("k1_kernel")
    t0, t1, t2, t3 = vT, vT + 1, vT + 2, vT + 3
    stamp(k, 0)
    if STAMP:
        for i in (1, 2, 4, 5):
            k(f"s_mov_b64 {sr(64+2*i,2)}, s[64:65]")
    k(f"""
    s_cmp_ge_u32 s2, 256
    s_cbranch_scc1 {'fz_end' if FUSED else 'k1_end'}
    s_load_dwordx2 {sr(sXS,2)}, s[0:1], {KA_X}
    s_load_dwordx2 {sr(sWW,2)}, s[0:1], {KA_WQKV}
    s_load_dwordx2 {sr(sWI,2)}, s[0:1], {KA_WIN}
    s_load_dwordx2 {sr(sWS,2)}, s[0:1], {KA_WS}
    s_load_dwordx2 {sr(sDBG,2)}, s[0:1], {KA_DBG}
    s_memrealtime {sr(sT+14,2)}
    v_lshrrev_b32 v{t0}, 6, v0
    v_and_b32 v{vLane}, 63, v0
    v_readfirstlane_b32 s{sW}, v{t0}
    v_lshlrev_b32 v{vL16}, 4, v{vLane}
    s_mov_b32 s{sWS+2}, {WS_SIZE}
    s_mov_b32 s{sWS+3}, 0x00020000
    s_mov_b32 s{sXS+2}, {2048*1024}
    s_mov_b32 s{sXS+3}, 0x00020000
    s_mov_b32 s{sWW+2}, {512*3072}
    s_mov_b32 s{sWW+3}, 0x00020000
    s_mov_b32 s{sWI+2}, {512*3584}
    s_mov_b32 s{sWI+3}, 0x00020000
    s_mov_b32 s{sDBG+2}, 256
    s_mov_b32 s{sDBG+3}, 0x00020000
    s_mov_b32 s{sSpin}, 200000
    s_mov_b32 s{sTagS}, 0
    s_and_b32 s{sT}, s2, 31
    s_lshl_b32 s{sT}, s{sT}, 2
    s_add_u32 s{sT}, s{sT}, 128
    v_mov_b32 v{vGA+2}, s{sT}
    s_cmp_lt_u32 s2, 32
    s_cbranch_scc1 k1_helper
    ; xcd = wg&7, j = (wg>>3) - 4 (0..27): rb = 4(xcd/2) + j/7, cg = 7(xcd%2) + j%7
    s_and_b32 s{sT}, s2, 7
    s_lshr_b32 s{sT+1}, s2, 3
    s_sub_u32 s{sT+1}, s{sT+1}, 4
    s_mul_i32 s{sT+5}, s{sT+1}, 37
    s_lshr_b32 s{sT+5}, s{sT+5}, 8
    s_mul_i32 s{sT+6}, s{sT+5}, 7
    s_sub_u32 s{sCG}, s{sT+1}, s{sT+6}
    s_and_b32 s{sT+2}, s2, 1
    s_mul_i32 s{sT+6}, s{sT+2}, 7
    s_add_u32 s{sCG}, s{sCG}, s{sT+6}
    s_lshr_b32 s{sRB}, s{sT}, 1
    s_lshl_b32 s{sRB}, s{sRB}, 2
    s_add_u32 s{sRB}, s{sRB}, s{sT+5}
    s_lshr_b32 s{sRH}, s{sW}, 2
    s_and_b32 s{sUn}, s{sW}, 3
    s_cmp_ge_u32 s{sW}, 8
    s_cbranch_scc1 k1_loader
    s_lshr_b32 s{sKind}, s{sCG}, 2
    s_cmp_eq_u32 s{sRH}, 0
    s_cselect_b32 s{sKind}, 4, s{sKind}
    s_add_u32 s{sT}, s{sCG}, 38
    s_add_u32 s{sT+1}, s{sCG}, 24
    s_lshl_b32 s{sT+2}, s{sCG}, 1
    s_add_u32 s{sT+3}, s{sT+2}, 1
    s_cmp_eq_u32 s{sRH}, 0
    s_cselect_b32 s{sT}, s{sT}, s{sT+2}
    s_cselect_b32 s{sT+1}, s{sT+1}, s{sT+3}
    s_lshl_b32 s{sCSo}, s{sT}, 9
    s_add_u32 s{sCSo}, s{sCSo}, {WS_CS}
    s_lshl_b32 s{sCSo+1}, s{sT+1}, 9
    s_add_u32 s{sCSo+1}, s{sCSo+1}, {WS_CS}
    s_lshl_b32 s{sT32}, s{sRB}, 2
    s_add_u32 s{sT32}, s{sT32}, s{sUn}
    v_and_b32 v{t0}, 31, v{vLane}
    v_and_b32 v{t1}, 0x13, v{t0}
    v_and_b32 v{t2}, 4, v{t0}
    v_lshl_or_b32 v{t1}, v{t2}, 1, v{t1}
    v_and_b32 v{t2}, 8, v{t0}
    v_lshrrev_b32 v{t2}, 1, v{t2}
    v_or_b32 v{t1}, v{t1}, v{t2}
    s_cmp_eq_u32 s{sKind}, 1
    s_cselect_b64 vcc, -1, 0
    v_cndmask_b32 v{t0}, v{t0}, v{t1}, vcc       ; tok
    v_lshrrev_b32 v{t1}, 5, v{vLane}             ; h
    v_bfe_u32 v{t2}, v{t0}, 1, 3
    v_xor_b32 v{t2}, v{t2}, v{t1}
    v_lshlrev_b32 v{t2}, 4, v{t2}
    v_lshl_add_u32 v{t2}, v{t0}, 7, v{t2}
    s_lshl_b32 s{sT}, s{sUn}, 12
    v_add_u32 v{vAX}, s{sT}, v{t2}
    v_xor_b32 v{vAX+1}, 32, v{vAX}
    v_xor_b32 v{vAX+2}, 64, v{vAX}
    v_xor_b32 v{vAX+3}, 96, v{vAX}
    s_lshl_b32 s{sT}, s{sUn}, 7
    s_add_u32 s{sT}, s{sT}, {L_RS}
    v_lshlrev_b32 v{t0}, 2, v{t0}
    v_add_u32 v{vGA}, s{sT}, v{t0}
    v_lshlrev_b32 v{vGA+1}, 3, v{vLane}
    v_bfe_u32 v{t0}, v{vLane}, 2, 2
    v_lshl_add_u32 v{t1}, v{t1}, 3, v{t0}
    v_bfe_u32 v{t2}, v{vLane}, 4, 1
    v_lshlrev_b32 v{t2}, 1, v{t2}
    v_and_b32 v{t3}, 1, v{vLane}
    v_or_b32 v{t2}, v{t2}, v{t3}
    v_lshlrev_b32 v{t0}, 1, v{t0}
    v_and_b32 v{t0}, 4, v{t0}
    v_xor_b32 v{t2}, v{t2}, v{t0}
    v_lshlrev_b32 v{t2}, 4, v{t2}
    v_lshl_add_u32 v{t2}, v{t1}, 7, v{t2}
    v_bfe_u32 v{t3}, v{vLane}, 1, 1
    v_lshl_add_u32 v{t2}, v{t3}, 3, v{t2}
    v_add_u32 v{vAW}, {O_W}, v{t2}
    v_xor_b32 v{vAW+1}, 64, v{vAW}
    s_lshl_b32 s{sT+1}, s{sUn}, 12
    s_cmp_eq_u32 s{sRH}, 0
    s_cselect_b32 s{sT+2}, {L_IMG}, 0
    s_add_u32 s{sT+1}, s{sT+1}, s{sT+2}
    """)
    epi_addr(k)
    k(f"""
    s_waitcnt lgkmcnt(0)
    s_cmp_eq_u32 s{sRH}, 0
    s_cbranch_scc1 k1_main
    """)
    row_stats(k)
    k(f"s_cmp_ge_u32 s{sCG}, 12\ns_cbranch_scc1 k1_fin0\ns_setprio {0 if 'zprio' in X else 2}")
    k.label("k1_main")
    main_loop(k)
    stamp(k, 2)
    k(f"s_cmp_eq_u32 s{sRH}, 0\ns_cbranch_scc0 k1_q")
    z_epilogue(k)
    k("s_branch k1_fin")
    k.label("k1_q")
    q_epilogue(k)
    k("s_branch k1_fin")
    k.label("k1_loader")
    loader(k)
    stamp(k, 2)
    k("s_branch k1_fin")
    k.label("k1_helper")
    k(f"""
    s_waitcnt lgkmcnt(0)
    v_mov_b32 v{vTag}, 0
    s_or_b32 s{sT+4}, s2, s{sW}
    s_cmp_lg_u32 s{sT+4}, 0
    s_cbranch_scc1 k1_nonce_done
    s_or_b32 s{sT+14}, s{sT+14}, 1
    v_mov_b32 v{vTag}, s{sT+14}
    v_lshlrev_b32 v{t3}, 2, v{vLane}
    buffer_store_dword v{vTag}, v{t3}, {sr(sDBG,4)}, 0 offen offset:128 sc0 sc1
    k1_nonce_done:
    """)
    if 'nosweep' not in X:
        k(f"""
        s_mul_i32 s{sT}, s2, 12
        s_add_u32 s{sT}, s{sT}, s{sW}
        s_lshl_b32 s{sT+1}, s{sT}, 13
        v_lshlrev_b32 v{t0}, 7, v{vLane}
        buffer_load_dword v{vT+9}, v{t0}, {sr(sXS,4)}, s{sT+1} offen
        s_sub_u32 s{sT+2}, {383*8192}, s{sT+1}
        buffer_load_dword v{vT+10}, v{t0}, {sr(sWI,4)}, s{sT+2} offen
        buffer_load_dword v{vT+11}, v{t0}, {sr(sWW,4)}, s{sT+1} offen
        """)
    helper(k)
    k("s_branch k1_fin")
    k.label("k1_fin0")
    k("s_waitcnt lgkmcnt(0)\ns_barrier")
    if FUSED:
        for t in range(7):
            k("s_barrier")
    k.label("k1_fin")
    if STAMP:
        k("s_waitcnt vmcnt(0)")
    stamp(k, 3)
    stamp_store(k, 6)
    if FUSED:
        return k
    k("""
    k1_end:
    s_endpgm
    """)
    k.finish()
    return k


if __name__ == "__main__":
    import sys
    STAMP = "stamp" in sys.argv
    k = gen_k1()
    print(build_file("; test", [("k1_kernel", 256, 768, LDS_K1)], [k]))
```

```python
import sys, os
os.environ.setdefault("WT", "sc1")
from asmlib import *
import k1, k2, k3, gbar
NAME = "recurrent_scan__softmax_full_mha__mixer_gmlp__prompt_kernel"
ref = open("recurrent_scan__softmax_full_mha__mixer_gmlp__prompt.s.ref").read()
hdr = "\n".join(l for l in ref.split("\n") if l.startswith(";") and "@launch" not in l and "Override" not in l and "grid=ceil" not in l)
if os.environ.get('STAMP'):
    k1.STAMP = k2.STAMP = k3.STAMP = True
k1.FUSED = k2.FUSED = k3.FUSED = True
k = Kernel("fz_kernel")
DBG = os.environ.get('DBGT')
def rt(i):
    if DBG:
        k(f"s_memrealtime s[92:93]\ns_waitcnt lgkmcnt(0)\nv_writelane_b32 v167, s92, {i}")
gbar.RT = rt
if DBG:
    k("v_mov_b32 v167, 0")
rt(0)
k1.gen_k1(k)
rt(1)
k("s_waitcnt vmcnt(0) lgkmcnt(0)\ns_barrier")
rt(2)
gbar.arrive(k, 0, k1.sWS, k1.sW, k1.sT, k1.vT)
k2.gen_k2(k)
rt(4)
k("s_waitcnt vmcnt(0) lgkmcnt(0)\ns_barrier")
rt(5)
gbar.arrive(k, 1, k2.sWS, k2.sW, k2.sT, k2.vT)
k3.gen_k3(k)
rt(7)
if DBG:
    k(f"""
    s_cmp_lg_u32 s2, {DBG}
    s_cbranch_scc1 fz_end
    s_cmp_lg_u32 s{k3.sW}, 8
    s_cbranch_scc1 fz_end
    s_load_dwordx2 s[92:93], s[0:1], 72
    s_mov_b32 s94, 64
    s_mov_b32 s95, 0x00020000
    v_readlane_b32 s96, v167, 0
    v_and_b32 v1, 63, v0
    v_lshlrev_b32 v1, 2, v1
    v_subrev_u32 v167, s96, v167
    s_waitcnt lgkmcnt(0)
    buffer_store_dword v167, v1, s[92:95], 0 offen
    """)
k("fz_end:\ns_endpgm")
k.finish()
txt = build_file(hdr, [("fz_kernel", 256, 768, 163840)], [k])
out = sys.argv[1] if len(sys.argv) > 1 else "recurrent_scan__softmax_full_mha__mixer_gmlp__prompt.s"
open(out, "w").write(txt)
print("wrote", out, len(txt))
```

```python
from asmlib import *
from layout import *
sTagS = 99
sSlot = 98
RT = lambda i: None


def arrive(k, phase, srd, sW, sT, vT):
    L = k.newlabel("noarr")
    k(f"""
    s_cmp_lg_u32 s{sW}, 8
    s_cbranch_scc1 {L}
    s_lshl_b32 s{sT}, {'s%d' % sSlot if phase == 0 else 's2'}, 6
    s_add_u32 s{sT}, s{sT}, {WS_FLAG + phase*16384}
    v_mov_b32 v{vT}, s{sTagS}
    v_mov_b32 v{vT+1}, 0
    s_mov_b64 exec, 1
    buffer_store_dword v{vT}, v{vT+1}, {sr(srd,4)}, s{sT} offen sc0 sc1
    s_mov_b64 exec, -1
    {L}:
    """)


def wait(k, phase, srd, sW, sT, vT, slot_code, wave=8):
    L, Lr = k.newlabel("nowait"), k.newlabel("gpoll")
    k(f"s_cmp_lg_u32 s{sW}, {wave}\ns_cbranch_scc1 {L}")
    k(slot_code)
    k(f"""
    v_lshlrev_b32 v{vT}, 6, v{vT}
    s_mov_b32 s{sT+1}, 600000
    s_mov_b32 s{sT}, {WS_FLAG + phase*16384}
    {Lr}:
    buffer_load_dword v{vT+1}, v{vT}, {sr(srd,4)}, s{sT} offen sc0 sc1
    v_cmp_ne_u32 vcc, s{sTagS}, v{vT+1}
    s_cmp_eq_u64 vcc, 0
    s_cbranch_scc1 {L}
    s_sleep 1
    s_sub_u32 s{sT+1}, s{sT+1}, 1
    s_cbranch_scc0 {Lr}
    {L}:
    """)
    RT(3 + 3 * phase)
```

```python
import os
import struct
from asmlib import *
from layout import *

X = set(os.environ.get('K1X', '').split(','))
STAGE = 32768
NS = 4
O_W = 16384
L_IMG = NS * STAGE
L_TAG = L_IMG + 16384
L_CSW = L_TAG + 256
L_RS = L_CSW + 4096
LDS_K1 = L_RS + 1024

vLane = 1
vL16 = 2
vDX, vDW = 3, 5
vAX = 9
vAW = 13
vTag = 15
vT = 16
ACC = 32
FX = 96
FW = 108
vGR = 156
vGC = 160
vGA = 164
vK = 0

sWS, sXS, sWW, sWI, sDBG = 4, 8, 12, 16, 20
sW, sRH, sRB, sCG, sUn = 24, 25, 26, 27, 28
sKX, sKW, sKQ = 29, 30, 31
sMX, sMW = 32, 33
sKind, sIdx, sT32, sGU = 34, 35, 36, 37
sCSo = 38
sT = 40
sSpin = 61

C0 = -2.0 * 1.4426950408889634 * 0.7978845608028654
C1 = C0 * 0.044715
QS = 0.25 * 1.4426950408889634
STAMP = False
FUSED = False
sTagS = 99
WT = os.environ.get('WT', '')
BC = "op_sel_hi:[1,0]"


def f32(x):
    return "0x%08x" % struct.unpack("<I", struct.pack("<f", x))[0]


def stamp(k, i):
    if STAMP:
        if i == 0:
            k("s_memrealtime s[80:81]")
        if i == 3:
            k("s_memrealtime s[82:83]")
        k(f"s_memtime {sr(64+2*i,2)}\ns_waitcnt lgkmcnt(0)")


def stamp_store(k, n):
    if not STAMP:
        return
    k(f"s_mul_i32 s62, s2, 12\ns_add_u32 s62, s62, s{sW}\ns_lshl_b32 s62, s62, 5\ns_add_u32 s62, s62, {WS_STAMP}")
    for i in range(n):
        k(f"s_sub_u32 s63, s{64+2*i}, s64\nv_mov_b32 v{vT}, s63\nv_mov_b32 v{vT+1}, 0\nbuffer_store_dword v{vT}, v{vT+1}, {sr(sWS,4)}, s62 offen offset:{4*i}")
    for j, r in ((6, 80), (7, 82)):
        k(f"v_mov_b32 v{vT}, s{r}\nv_mov_b32 v{vT+1}, 0\nbuffer_store_dword v{vT}, v{vT+1}, {sr(sWS,4)}, s62 offen offset:{4*j}")


def mfma32(d, a, b, c):
    cs = "0" if c is None else vr(c, 16)
    return f"v_mfma_f32_32x32x16_bf16 {vr(d,16)}, {vr(a,4)}, {vr(b,4)}, {cs}"


def dma(t):
    base = (t % NS) * STAGE
    out = []
    for j in range(4):
        e = f"s_add_u32 m0, s{sMX}, {base+1024*j}\n"
        if j == 2:
            e += f"s_add_u32 s{sT}, s{sKX}, 16384\n"
        e += f"buffer_load_dwordx4 v{vDX+j%2}, {sr(sXS,4)}, s{sT if j >= 2 else sKX} offen lds"
        out.append(e)
    srd, so, va, pitch = (sWI, sKW, vDW, 3584) if t < 8 else (sWW, sKQ, vDW + 1, 3072)
    for j in range(4):
        e = (f"s_add_u32 m0, s{sMW}, {base+1024*j}\nbuffer_load_dwordx4 v{va}, {sr(srd,4)}, s{so} offen lds\n"
             f"s_add_u32 s{so}, s{so}, {pitch*(8 if j < 3 else 40)}")
        if j == 3:
            e += (f"\ns_add_u32 s{sKX}, s{sKX}, 128\ns_and_b32 s{sKX}, s{sKX}, 1023\n"
                  f"s_cselect_b32 s{sT}, 0, {512*pitch}\ns_sub_u32 s{so}, s{so}, s{sT}")
        out.append(e)
    return out


def loader(k):
    t0, t1, t2, t3 = vT, vT + 1, vT + 2, vT + 3
    k(f"""
    s_setprio 3
    s_lshl_b32 s{sMX}, s{sUn}, 12
    v_lshrrev_b32 v{t0}, 3, v{vLane}
    v_and_b32 v{t1}, 7, v{vLane}
    v_lshrrev_b32 v{t2}, 1, v{t0}
    v_xor_b32 v{t2}, v{t2}, v{t1}
    v_lshlrev_b32 v{t2}, 4, v{t2}
    v_lshl_add_u32 v{t2}, v{t0}, 10, v{t2}
    s_lshl_b32 s{sT+5}, s{sRB}, 17
    s_lshl_b32 s{sT+6}, s{sUn}, 15
    s_add_u32 s{sT+5}, s{sT+5}, s{sT+6}
    v_add_u32 v{vDX}, s{sT+5}, v{t2}
    v_xor_b32 v{t2}, 64, v{t2}
    s_add_u32 s{sT+5}, s{sT+5}, 8192
    v_add_u32 v{vDX+1}, s{sT+5}, v{t2}
    ; W: chunk = (l%8) ^ (4*((row>>1)&1)), row = l/8
    v_lshlrev_b32 v{t2}, 1, v{t0}
    v_and_b32 v{t2}, 4, v{t2}
    v_xor_b32 v{t2}, v{t2}, v{t1}
    v_lshlrev_b32 v{t2}, 4, v{t2}
    v_mul_u32_u24 v{t3}, 3584, v{t0}
    v_add_u32 v{vDW}, v{t3}, v{t2}
    v_mul_u32_u24 v{t3}, 3072, v{t0}
    v_add_u32 v{vDW+1}, v{t3}, v{t2}
    s_lshr_b32 s{sT+1}, s{sUn}, 1
    s_and_b32 s{sT+2}, s{sUn}, 1
    s_lshl_b32 s{sKW}, s{sCG}, 7
    s_cmp_eq_u32 s{sT+1}, 0
    s_cselect_b32 s{sT+3}, 1792, 0
    s_add_u32 s{sKW}, s{sKW}, s{sT+3}
    s_mul_i32 s{sT+3}, s{sT+2}, {32*3584}
    s_add_u32 s{sKW}, s{sKW}, s{sT+3}
    s_lshl_b32 s{sKQ}, s{sCG}, 8
    s_lshl_b32 s{sT+3}, s{sT+1}, 7
    s_add_u32 s{sKQ}, s{sKQ}, s{sT+3}
    s_mul_i32 s{sT+3}, s{sT+2}, {32*3072}
    s_add_u32 s{sKQ}, s{sKQ}, s{sT+3}
    s_add_u32 s{sMW}, s{sMX}, {O_W}
    s_and_b32 s{sT+3}, s2, {7 if 'rot' in X else (6 if 'rot6' in X else 0)}
    s_lshl_b32 s{sKX}, s{sT+3}, 7
    s_mul_i32 s{sT+4}, s{sT+3}, {64*3584}
    s_add_u32 s{sKW}, s{sKW}, s{sT+4}
    s_mul_i32 s{sT+4}, s{sT+3}, {64*3072}
    s_add_u32 s{sKQ}, s{sKQ}, s{sT+4}
    s_waitcnt lgkmcnt(0)
    """)
    for a in dma(0):
        k(a, tag=("st", 0))
    for a in dma(1):
        k(a, tag=("st", 1))
    stamp(k, 1)
    for t in range(16):
        if t == 5:
            k(f"s_cmp_ge_u32 s{sCG}, 12\ns_cbranch_scc1 k1_ltail")
        k.wait_tag(("st", t))
        k("s_waitcnt lgkmcnt(0)\ns_barrier")
        if t == 0:
            for a in dma(2):
                k(a, tag=("st", 2))
        if t + 3 < 16 and 'nodma' not in X:
            for a in dma(t + 3):
                k(a, tag=("st", t + 3))
        if t == 1:
            k(f"buffer_load_dword v{vTag}, v{vGA+2}, {sr(sDBG,4)}, 0 offen sc0 sc1")
        if t == 3:
            L = k.newlabel("notag")
            k(f"s_cmp_lg_u32 s{sW}, 8\ns_cbranch_scc1 {L}")
            poll_tag(k, True)
            k(f"s_mov_b32 s{sTagS}, s{sT}\nv_mov_b32 v{t0}, {L_TAG}\nds_write_b32 v{t0}, v{vTag}\n{L}:")
    k("s_branch k1_ldone")
    k.label("k1_ltail")
    for t in range(5, 8):
        k.wait_tag(("st", t))
        k("s_barrier")
    if FUSED:
        for t in range(8):
            k("s_barrier")
    k.label("k1_ldone")


def reads(ks, buf):
    out = [f"ds_read_b128 {vr(FX+4*buf,4)}, v{vAX+ks}"]
    for c in range(4):
        d = FW + 16 * buf + 4 * c
        o = (c // 2) * 8192 + ks * 2048
        out.append(f"ds_read_b64_tr_b16 {vr(d,2)}, v{vAW+c%2} offset:{o}")
        out.append(f"ds_read_b64_tr_b16 {vr(d+2,2)}, v{vAW+c%2} offset:{o+512}")
    return out


def mms(buf, first):
    return [mfma32(ACC + 16 * c, FW + 16 * buf + 4 * c, FX + 4 * buf, None if first else ACC + 16 * c) for c in range(4)]


def gather_loads():
    e = ""
    for un in range(2):
        e += f"buffer_load_dwordx2 {vr(vGC+2*un,2)}, v{vGA+1}, {sr(sWS,4)}, s{sCSo+un} offen sc0 sc1\n"
    return e


def check_tags(k, regs, Lok, tmp):
    k(f"v_xor_b32 v{tmp}, v{regs[0]}, v{vTag}")
    for r in regs[1:]:
        k(f"v_xor_b32 v{tmp+1}, v{r}, v{vTag}\nv_or_b32 v{tmp}, v{tmp}, v{tmp+1}")
    k(f"v_cmp_ne_u32 vcc, 0, v{tmp}\ns_cmp_eq_u64 vcc, 0\ns_cbranch_scc1 {Lok}")


def poll_tag(k, first_issued):
    Lr, Lok = k.newlabel("tagpoll"), k.newlabel("tagok")
    if first_issued:
        k(f"v_readfirstlane_b32 s{sT}, v{vTag}\ns_cmp_lg_u32 s{sT}, 0\ns_cbranch_scc1 {Lok}")
    k(f"""
    {Lr}:
    buffer_load_dword v{vTag}, v{vGA+2}, {sr(sDBG,4)}, 0 offen sc0 sc1
    v_readfirstlane_b32 s{sT}, v{vTag}
    s_cmp_lg_u32 s{sT}, 0
    s_cbranch_scc1 {Lok}
    s_sleep 2
    s_sub_u32 s{sSpin}, s{sSpin}, 1
    s_cbranch_scc0 {Lr}
    {Lok}:
    """)


def main_loop(k):
    t0 = vT
    LA = 2
    for p in range(8):
        k("s_waitcnt lgkmcnt(0)\ns_barrier")
        if p > 0:
            step = STAGE if p % NS else -(NS - 1) * STAGE
            for r in (vAX, vAX + 1, vAX + 2, vAX + 3, vAW, vAW + 1):
                k(f"v_add_u32 v{r}, {step & 0xffffffff:#x}, v{r}")
        for ks in range(4):
            g = 4 * p + ks
            r = reads(ks, g % 3)
            m = mms((g - LA) % 3, g - LA == 0) if g >= LA else []
            seq = interleave(m, r) if ks < 3 else (m[:1] + r[:5] + m[1:2] + r[5:] + m[2:])
            for a in seq:
                k(a)
            if p == 5 and ks == 0:
                k(f"v_mov_b32 v{t0}, {L_TAG}\nds_read_b32 v{vTag}, v{t0}")
            if p == 6 and ks == 2:
                k(gather_loads())
    for g in range(32 - LA, 32):
        for a in mms(g % 3, False):
            k(a)


def row_stats(k):
    t0, t1, t2, t3 = vT, vT + 1, vT + 2, vT + 3
    S = ACC
    D = ACC + 8
    U = ACC + 40
    for i in range(4):
        k(f"v_mov_b32 v{S+i}, 0")
    if 'rprio' in X:
        k("s_setprio 2")

    def crunch(b):
        for i in range(16):
            u = U + 2 * (i % 4)
            k(f"""
            v_lshlrev_b32 v{u}, 16, v{D+16*b+i}
            v_and_b32 v{u+1}, 0xffff0000, v{D+16*b+i}
            v_add_f32 v{S}, v{S}, v{u}
            v_add_f32 v{S+1}, v{S+1}, v{u+1}
            v_fmac_f32 v{S+2}, v{u}, v{u}
            v_fmac_f32 v{S+3}, v{u+1}, v{u+1}
            """)
    for p in range(8):
        k("s_waitcnt lgkmcnt(0)\ns_barrier")
        o = (p % 2) * STAGE
        if p in (2, 6):
            for r in range(4):
                k(f"v_add_u32 v{vAX+r}, {2*STAGE}, v{vAX+r}")
        if p == 4:
            for r in range(4):
                k(f"v_subrev_u32 v{vAX+r}, {2*STAGE}, v{vAX+r}")
        for ks in range(4):
            k(f"ds_read_b128 {vr(D+16*(p%2)+4*ks,4)}, v{vAX+ks} offset:{o}")
        if 'nocr' not in X:
            crunch(p % 2)
    for r in range(4):
        k(f"v_subrev_u32 v{vAX+r}, {2*STAGE}, v{vAX+r}")
    k(f"""
    v_add_f32 v{S}, v{S}, v{S+1}
    v_add_f32 v{S+2}, v{S+2}, v{S+3}
    v_mov_b32 v{t0}, v{S}
    v_mov_b32 v{t1}, v{S+2}
    v_permlane32_swap_b32 v{S}, v{t0}
    v_permlane32_swap_b32 v{S+2}, v{t1}
    v_add_f32 v{t0}, v{t0}, v{S}
    v_add_f32 v{t1}, v{t1}, v{S+2}
    v_mul_f32 v{t0}, {f32(1.0/512)}, v{t0}
    v_mul_f32 v{t1}, {f32(1.0/512)}, v{t1}
    v_fma_f32 v{t1}, -v{t0}, v{t0}, v{t1}
    v_max_f32 v{t1}, 0, v{t1}
    v_add_f32 v{t1}, {f32(1e-5)}, v{t1}
    v_rsq_f32 v{t1}, v{t1}
    v_mul_f32 v{t0}, v{t0}, v{t1}
    ds_write_b32 v{vGA}, v{t1}
    ds_write_b32 v{vGA}, v{t0} offset:512
    """)


def epi_addr(k):
    t0, t1, t2, t3 = vT, vT + 1, vT + 2, vT + 3
    k(f"""
    s_lshl_b32 s{sT}, s{sW}, 9
    s_add_u32 s{sT}, s{sT}, {L_CSW}
    v_lshlrev_b32 v{t0}, 2, v{vLane}
    v_add_u32 v{vT+4}, s{sT}, v{t0}
    v_lshrrev_b32 v{t2}, 5, v{vLane}             ; h
    v_lshlrev_b32 v{vT+6}, 5, v{t2}
    v_add_u32 v{vT+6}, s{sT}, v{vT+6}
    v_lshlrev_b32 v{vT+5}, 3, v{vLane}
    v_mov_b32 v3, {f32(C0)}
    v_and_b32 v{t0}, 31, v{vLane}
    v_and_b32 v{t1}, 1, v{t0}
    v_bfe_u32 v{t3}, v{t0}, 1, 1
    v_lshl_or_b32 v{t1}, v{t3}, 2, v{t1}
    v_bfe_u32 v{t3}, v{t0}, 2, 1
    v_lshl_or_b32 v{t1}, v{t3}, 1, v{t1}
    v_xor_b32 v{t1}, v{t1}, v{t2}
    v_lshlrev_b32 v{t1}, 4, v{t1}
    v_lshl_add_u32 v{t1}, v{t0}, 7, v{t1}
    v_add_u32 v{vT+8}, s{sT+1}, v{t1}
    v_xor_b32 v{vT+9}, 32, v{vT+8}
    v_xor_b32 v{vT+10}, 64, v{vT+8}
    v_xor_b32 v{vT+11}, 96, v{vT+8}
    v_bfe_u32 v{t0}, v{vLane}, 2, 2
    v_and_b32 v{t1}, 1, v{t0}
    v_lshrrev_b32 v{t3}, 1, v{t0}
    v_lshl_or_b32 v{t1}, v{t3}, 2, v{t1}
    v_bfe_u32 v{t3}, v{vLane}, 4, 1
    v_lshlrev_b32 v{t3}, 1, v{t3}
    v_and_b32 v{vT+7}, 1, v{vLane}
    v_or_b32 v{t3}, v{t3}, v{vT+7}
    v_xor_b32 v{t1}, v{t1}, v{t3}
    v_lshlrev_b32 v{t1}, 4, v{t1}
    v_lshl_add_u32 v{t0}, v{t2}, 3, v{t0}
    v_lshl_add_u32 v{t1}, v{t0}, 7, v{t1}
    v_bfe_u32 v{t3}, v{vLane}, 1, 1
    v_lshl_add_u32 v{t1}, v{t3}, 3, v{t1}
    v_add_u32 v{vT+12}, s{sT+1}, v{t1}
    v_xor_b32 v{vT+13}, 32, v{vT+12}
    v_xor_b32 v{vT+14}, 64, v{vT+12}
    v_xor_b32 v{vT+15}, 96, v{vT+12}
    v_and_b32 v{t0}, 15, v{vLane}
    v_lshlrev_b32 v{t0}, 4, v{t0}
    v_lshl_add_u32 v{t0}, v{t2}, 8, v{t0}
    v_bfe_u32 v{t3}, v{vLane}, 4, 1
    v_lshl_add_u32 v{vT+7}, v{t3}, 16, v{t0}
    """)


def get_stats(k):
    t0 = vT
    tagregs = [vGC + 1, vGC + 3]
    Lr, Lok = k.newlabel("g1"), k.newlabel("g1ok")
    check_tags(k, tagregs, Lok, t0)
    k(f"{Lr}:\ns_sleep 2")
    k(gather_loads())
    check_tags(k, tagregs, Lok, t0)
    k(f"s_sub_u32 s{sSpin}, s{sSpin}, 1\ns_cbranch_scc0 {Lr}\n{Lok}:")
    k(f"ds_write_b32 v{vT+4}, v{vGC}\nds_write_b32 v{vT+4}, v{vGC+2} offset:256\nds_read_b32 v{vGR}, v{vGA}\nds_read_b32 v{vGR+2}, v{vGA} offset:512\ns_waitcnt lgkmcnt(0)")


def cs_reads(un):
    out = []
    for c in range(4):
        out.append(f"ds_read_b128 {vr(FW+8*c,4)}, v{vT+6} offset:{un*256+c*64}")
        out.append(f"ds_read_b128 {vr(FW+8*c+4,4)}, v{vT+6} offset:{un*256+c*64+16}")
    return out


def pack(A):
    return [f"v_cvt_pk_bf16_f32 v{A+8*c+i}, v{A+8*c+2*i}, v{A+8*c+2*i+1}" for c in range(4) for i in range(4)]


def tr_store(k, A, lane_reg, s0, kstride):
    for c in range(4):
        k(f"ds_write_b128 v{vT+8+c}, {vr(A+8*c,4)}")
    k(f"s_add_u32 s{sT+3}, s{s0}, 131072\ns_waitcnt lgkmcnt(0)")
    for ct in range(2):
        for ks in range(2):
            d = A + 8 * ct + 4 * ks
            k(f"ds_read_b64_tr_b16 {vr(d,2)}, v{vT+12+2*ct} offset:{ks*2048}")
            k(f"ds_read_b64_tr_b16 {vr(d+2,2)}, v{vT+13+2*ct} offset:{ks*2048+512}")
    for ct in range(2):
        for ks in range(2):
            k(f"buffer_store_dwordx4 {vr(A+8*ct+4*ks,4)}, v{lane_reg}, {sr(sWS,4)}, s{(s0, sT+3)[ct]} offen offset:{ks*kstride} {WT}")


def z_epilogue(k):
    t0, t1, t2, t3 = vT, vT + 1, vT + 2, vT + 3
    k("s_barrier")
    if 'zprio' in X:
        k("s_setprio 2")
    get_stats(k)
    k(f"s_mov_b32 s{sT+10}, {f32(C1)}")
    S = FX

    def unit_ops(un):
        A = ACC + 32 * un
        ops = list(cs_reads(un))
        for i in range(32):
            ops.append(f"v_mul_f32 v{A+i}, v{A+i}, v{vGR}")
        for i in range(32):
            ops.append(f"v_fma_f32 v{A+i}, -v{vGR+2}, v{FW+i}, v{A+i}")
        for h in range(2):
            R = [A + 16 * h + i for i in range(16)]
            T = [FW + i for i in range(16)]
            ops += [f"v_mul_f32 v{t}, v{r}, v{r}" for r, t in zip(R, T)]
            ops += [f"v_fma_f32 v{t}, v{t}, s{sT+10}, v3" for r, t in zip(R, T)]
            ops += [f"v_mul_f32 v{t}, v{t}, v{r}" for r, t in zip(R, T)]
            ops += [f"v_exp_f32 v{t}, v{t}" for r, t in zip(R, T)]
            ops += [f"v_add_f32 v{t}, 1.0, v{t}" for r, t in zip(R, T)]
            ops += [f"v_rcp_f32 v{t}, v{t}" for r, t in zip(R, T)]
            ops += [f"v_mul_f32 v{r}, v{r}, v{t}" for r, t in zip(R, T)]
        return ops

    ops = unit_ops(0)
    A = ACC
    ops += [f"v_add_f32 v{S}, v{A}, v{A+1}", f"v_mul_f32 v{S+2}, v{A}, v{A}", f"v_add_f32 v{S+1}, v{A+2}, v{A+3}",
            f"v_mul_f32 v{S+3}, v{A+1}, v{A+1}", f"v_fmac_f32 v{S+2}, v{A+2}, v{A+2}", f"v_fmac_f32 v{S+3}, v{A+3}, v{A+3}"]
    for i in range(4, 32):
        ops += [f"v_add_f32 v{S+i%2}, v{S+i%2}, v{A+i}", f"v_fmac_f32 v{S+2+i%2}, v{A+i}, v{A+i}"]
    ops.append(f"""
    v_add_f32 v{S}, v{S}, v{S+1}
    v_add_f32 v{S+2}, v{S+2}, v{S+3}
    v_permlane32_swap_b32 v{S}, v{S+2}
    v_add_f32 v{S}, v{S}, v{S+2}
    v_mov_b32 v{S+1}, v{vTag}
    s_mul_i32 s{sT+4}, s{sT32}, {14*512}
    s_add_u32 s{sT+4}, s{sT+4}, {WS_S2}
    s_lshl_b32 s{sT+1}, s{sCG}, 9
    s_add_u32 s{sT+1}, s{sT+1}, s{sT+4}
    buffer_store_dwordx2 {vr(S,2)}, v{vT+5}, {sr(sWS,4)}, s{sT+1} offen sc0 sc1
    """)
    n0 = len(ops)
    ops += unit_ops(1)
    ops += pack(ACC + 32)
    cost = [2 if o.startswith(("v_exp", "v_rcp")) else 1 for o in ops]
    tot = sum(cost)
    nb = 7
    acc, nxt, placed = 0, 1, 0
    for i, (o, c) in enumerate(zip(ops, cost)):
        if not ('noz' in X and o.startswith('v_')):
            k(o)
        if i == n0 - 1:
            stamp(k, 4)
        acc += c
        if placed < nb and acc >= tot * nxt / nb - 1e-9:
            k("s_barrier")
            placed += 1
            nxt += 1
    assert placed == nb
    G = FW

    def g2loads():
        for i in range(7):
            if i % 4 == 0:
                k(f"s_add_u32 s{sT}, s{sT+4}, {1024*i}")
            k(f"buffer_load_dwordx4 {vr(G+4*i,4)}, v{vL16}, {sr(sWS,4)}, s{sT} offen offset:{1024*(i%4)} sc0 sc1")
    g2loads()
    k(f"""
    s_mul_i32 s{sT+1}, s{sT32}, {56*1024}
    s_lshl_b32 s{sT+2}, s{sCG}, 12
    s_add_u32 s{sT+1}, s{sT+1}, s{sT+2}
    s_add_u32 s{sT+1}, s{sT+1}, {WS_Z1}
    """)
    for c in range(4):
        k(f"buffer_store_dwordx4 {vr(ACC+32+8*c,4)}, v{vL16}, {sr(sWS,4)}, s{sT+1} offen offset:{1024*c} {WT}")
    stamp(k, 5)
    Lr, Lok = k.newlabel("g2"), k.newlabel("g2ok")
    check_tags(k, [G + 2 * j + 1 for j in range(14)], Lok, t0)
    k(f"{Lr}:")
    g2loads()
    check_tags(k, [G + 2 * j + 1 for j in range(14)], Lok, t0)
    k(f"s_sleep 1\ns_sub_u32 s{sSpin}, s{sSpin}, 1\ns_cbranch_scc0 {Lr}\n{Lok}:")
    stamp(k, 1)
    for i in range(1, 7):
        k(f"v_add_f32 v{G}, v{G}, v{G+4*i}\nv_add_f32 v{G+2}, v{G+2}, v{G+4*i+2}")
    k(f"""
    v_mov_b32 v{t0}, v{G}
    v_mov_b32 v{t1}, v{G+2}
    v_permlane32_swap_b32 v{G}, v{t0}
    v_permlane32_swap_b32 v{G+2}, v{t1}
    v_add_f32 v{G}, v{G}, v{t0}
    v_add_f32 v{G+1}, v{G+2}, v{t1}
    s_lshl_b32 s{sT}, s{sW}, 9
    s_add_u32 s{sT}, s{sT}, {L_CSW}
    v_and_b32 v{t2}, 31, v{vLane}
    v_lshlrev_b32 v{t3}, 3, v{t2}
    v_add_u32 v{t3}, s{sT}, v{t3}
    ds_write_b64 v{t3}, {vr(G,2)}
    v_lshlrev_b32 v{t3}, 2, v{t2}
    v_add_u32 v{t3}, s{sT}, v{t3}
    s_waitcnt lgkmcnt(0)
    ds_read_b32 v{t0}, v{t3}
    ds_read_b32 v{t1}, v{t3} offset:128
    s_lshl_b32 s{sT}, s{sCG}, 18
    s_lshl_b32 s{sT+1}, s{sT32}, 11
    s_add_u32 s{sT}, s{sT}, s{sT+1}
    s_add_u32 s{sT}, s{sT}, {WS_Z2}
    v_mul_f32 v{t0}, {f32(1.0/896)}, v{t0}
    v_mul_f32 v{t1}, {f32(1.0/896)}, v{t1}
    v_fma_f32 v{t1}, -v{t0}, v{t0}, v{t1}
    v_max_f32 v{t1}, 0, v{t1}
    v_add_f32 v{t1}, {f32(1e-5)}, v{t1}
    v_rsq_f32 v{t1}, v{t1}
    v_mul_f32 v{t0}, v{t0}, v{t1}
    """)
    for i in range(32):
        k(f"v_fma_f32 v{A+i}, v{A+i}, v{t1}, -v{t0}")
    for o in pack(A):
        k(o)
    tr_store(k, A, vL16, sT, 1024)


def q_epilogue(k):
    get_stats(k)
    k(f"""
    s_cmp_eq_u32 s{sKind}, 0
    s_cselect_b32 s{sT}, {f32(QS)}, 1.0
    v_mul_f32 v4, s{sT}, v{vGR}
    v_mul_f32 v5, s{sT}, v{vGR+2}
    s_lshl_b32 s{sT}, s{sCG}, 19
    s_lshl_b32 s{sT+1}, s{sT32}, 10
    s_add_u32 s{sT}, s{sT}, s{sT+1}
    s_add_u32 s{sT}, s{sT}, {WS_Q}
    """)
    for un in range(2):
        A = ACC + 32 * un
        for o in cs_reads(un):
            k(o)
        for i in range(0, 32, 2):
            k(f"v_pk_mul_f32 {vr(A+i,2)}, {vr(A+i,2)}, v[4:5] {BC}")
        for i in range(0, 32, 2):
            k(f"v_pk_fma_f32 {vr(A+i,2)}, {vr(FW+i,2)}, v[4:5], {vr(A+i,2)} op_sel:[0,1,0] op_sel_hi:[1,1,1] neg_lo:[1,0,0] neg_hi:[1,0,0]")
        for o in pack(A):
            k(o)
        Lv, Ld = k.newlabel("qv"), k.newlabel("qd")
        k(f"s_cmp_eq_u32 s{sKind}, 2\ns_cbranch_scc1 {Lv}")
        for c in range(4):
            k(f"buffer_store_dwordx4 {vr(A+8*c,4)}, v{vL16}, {sr(sWS,4)}, s{sT} offen {WT}\ns_add_u32 s{sT}, s{sT}, 65536")
        k(f"s_branch {Ld}\n{Lv}:")
        tr_store(k, A, vT + 7, sT, 512)
        k(f"s_add_u32 s{sT}, s{sT}, 262144\n{Ld}:")


def wave_allsum(k, regs, tmps):
    for sh in (8, 4, 2, 1):
        for r in regs:
            k(f"v_add_f32_dpp v{r}, v{r}, v{r} row_ror:{sh} row_mask:0xf bank_mask:0xf")
    for sw in ("v_permlane16_swap_b32", "v_permlane32_swap_b32"):
        for r, t in zip(regs, tmps):
            k(f"v_mov_b32 v{t}, v{r}")
        for r, t in zip(regs, tmps):
            k(f"{sw} v{r}, v{t}")
        for r, t in zip(regs, tmps):
            k(f"v_add_f32 v{r}, v{r}, v{t}")


def helper(k):
    t0, t1, t2, t3 = vT, vT + 1, vT + 2, vT + 3
    A = FX
    k(f"""
    s_cmp_ge_u32 s2, 28
    s_cbranch_scc1 k1_hpre
    s_add_u32 s{sGU}, s2, 24
    s_min_u32 s{sT}, s2, 23
    s_lshl_b32 s{sT+1}, s2, 7
    s_lshl_b32 s{sT+2}, s{sT}, 7
    s_lshl_b32 s{sT+4}, s{sW}, 6
    s_sub_u32 s{sT+5}, s{sW}, 8
    s_lshl_b32 s{sT+5}, s{sT+5}, 7
    s_cmp_lt_u32 s{sW}, 8
    s_cselect_b32 s{sGU}, s{sGU}, s{sT}
    s_cselect_b32 s{sT+1}, s{sT+1}, s{sT+2}
    s_cselect_b32 s{sT+4}, s{sT+4}, s{sT+5}
    s_cselect_b32 s{sT+3}, 512, 0
    s_cselect_b32 s{sWW}, s{sWI}, s{sWW}
    s_cselect_b32 s{sWW+1}, s{sWI+1}, s{sWW+1}
    s_cselect_b32 s{sWW+2}, s{sWI+2}, s{sWW+2}
    s_add_u32 s{sT+3}, s{sT+3}, 3072             ; pitch
    v_lshrrev_b32 v{t0}, 3, v{vLane}
    v_add_u32 v{t0}, s{sT+4}, v{t0}
    v_mul_lo_u32 v{t0}, v{t0}, s{sT+3}
    v_and_b32 v{t1}, 7, v{vLane}
    v_lshl_add_u32 v{t0}, v{t1}, 4, v{t0}
    s_lshl_b32 s{sT+3}, s{sT+3}, 3
    """)

    def loads(b):
        for i in range(8):
            k(f"buffer_load_dwordx4 {vr(ACC+32*b+4*i,4)}, v{t0}, {sr(sWW,4)}, s{sT+1} offen")
            k(f"s_add_u32 s{sT+1}, s{sT+1}, s{sT+3}")

    def accum(b):
        for i in range(8):
            for r in range(4):
                src = ACC + 32 * b + 4 * i + r
                if i == 0 and b == 0:
                    k(f"v_lshlrev_b32 v{A+2*r}, 16, v{src}\nv_and_b32 v{A+2*r+1}, 0xffff0000, v{src}")
                else:
                    k(f"v_lshlrev_b32 v{t2}, 16, v{src}\nv_and_b32 v{t3}, 0xffff0000, v{src}\n"
                      f"v_pk_add_f32 {vr(A+2*r,2)}, {vr(A+2*r,2)}, {vr(t2,2)}")

    def reduce_write():
        regs = [A + i for i in range(8)]
        tm = [A + 8 + i for i in range(8)]
        for r in regs:
            k(f"v_add_f32_dpp v{r}, v{r}, v{r} row_ror:8 row_mask:0xf bank_mask:0xf")
        for sw in ("v_permlane16_swap_b32", "v_permlane32_swap_b32"):
            for r, t in zip(regs, tm):
                k(f"v_mov_b32 v{t}, v{r}")
            for r, t in zip(regs, tm):
                k(f"{sw} v{r}, v{t}")
            for r, t in zip(regs, tm):
                k(f"v_add_f32 v{r}, v{r}, v{t}")
        k(f"""
        s_lshl_b32 s{sT}, s{sW}, 8
        v_lshlrev_b32 v{t0}, 5, v{t1}
        v_add_u32 v{t0}, s{sT}, v{t0}
        ds_write_b128 v{t0}, {vr(A,4)}
        ds_write_b128 v{t0}, {vr(A+4,4)} offset:16
        s_waitcnt lgkmcnt(0)
        """)

    def publish(n):
        k(f"s_lshl_b32 s{sT}, s{sW}, 8\nv_lshlrev_b32 v{t0}, 2, v{vLane}\nv_add_u32 v{t0}, s{sT}, v{t0}")
        for i in range(n):
            k(f"ds_read_b32 v{A+i}, v{t0} offset:{256*i}")
        poll_tag(k, True)
        for i in range(1, n):
            k(f"v_add_f32 v{A}, v{A}, v{A+i}")
        k(f"""
        s_lshl_b32 s{sT}, s{sGU}, 9
        s_add_u32 s{sT}, s{sT}, {WS_CS}
        v_lshlrev_b32 v{t0}, 3, v{vLane}
        v_mov_b32 v{A+1}, v{vTag}
        buffer_store_dwordx2 {vr(A,2)}, v{t0}, {sr(sWS,4)}, s{sT} offen sc0 sc1
        """)
    loads(0)
    k(f"s_cmp_ge_u32 s{sW}, 8\ns_cbranch_scc1 k1_hq")
    k(f"s_setprio 2\nbuffer_load_dword v{vT+8}, v{vGA+2}, {sr(sDBG,4)}, 0 offen sc0 sc1")
    accum(0)
    reduce_write()
    k(f"s_barrier\ns_cmp_lg_u32 s{sW}, 0\ns_cbranch_scc1 k1_hz\nv_or_b32 v{vTag}, v{vTag}, v{vT+8}")
    publish(8)
    k.label("k1_hz")
    if FUSED:
        k("s_barrier")
    k("s_branch k1_hpre")
    k.label("k1_hq")
    loads(1)
    k("s_barrier")
    accum(0)
    accum(1)
    reduce_write()
    k(f"s_barrier\ns_cmp_lg_u32 s{sW}, 8\ns_cbranch_scc1 k1_hpre")
    publish(4)
    k.label("k1_hpre")
    if FUSED:
        k(f"s_cmp_lg_u32 s{sW}, 8\ns_cbranch_scc1 k1_fin")
        poll_tag(k, True)
        k(f"s_mov_b32 s{sTagS}, s{sT}")


def gen_k1(k=None):
    if k is None:
        k = Kernel("k1_kernel")
    t0, t1, t2, t3 = vT, vT + 1, vT + 2, vT + 3
    stamp(k, 0)
    if STAMP:
        for i in (1, 2, 4, 5):
            k(f"s_mov_b64 {sr(64+2*i,2)}, s[64:65]")
    k(f"""
    s_cmp_ge_u32 s2, 256
    s_cbranch_scc1 {'fz_end' if FUSED else 'k1_end'}
    s_load_dwordx2 {sr(sXS,2)}, s[0:1], {KA_X}
    s_load_dwordx2 {sr(sWW,2)}, s[0:1], {KA_WQKV}
    s_load_dwordx2 {sr(sWI,2)}, s[0:1], {KA_WIN}
    s_load_dwordx2 {sr(sWS,2)}, s[0:1], {KA_WS}
    s_load_dwordx2 {sr(sDBG,2)}, s[0:1], {KA_DBG}
    s_memrealtime {sr(sT+14,2)}
    v_lshrrev_b32 v{t0}, 6, v0
    v_and_b32 v{vLane}, 63, v0
    v_readfirstlane_b32 s{sW}, v{t0}
    v_lshlrev_b32 v{vL16}, 4, v{vLane}
    s_mov_b32 s{sWS+2}, {WS_SIZE}
    s_mov_b32 s{sWS+3}, 0x00020000
    s_mov_b32 s{sXS+2}, {2048*1024}
    s_mov_b32 s{sXS+3}, 0x00020000
    s_mov_b32 s{sWW+2}, {512*3072}
    s_mov_b32 s{sWW+3}, 0x00020000
    s_mov_b32 s{sWI+2}, {512*3584}
    s_mov_b32 s{sWI+3}, 0x00020000
    s_mov_b32 s{sDBG+2}, 256
    s_mov_b32 s{sDBG+3}, 0x00020000
    s_mov_b32 s{sSpin}, 200000
    s_mov_b32 s{sTagS}, 0
    s_mov_b32 s98, 255
    s_and_b32 s{sT}, s2, 31
    s_lshl_b32 s{sT}, s{sT}, 2
    s_add_u32 s{sT}, s{sT}, 128
    v_mov_b32 v{vGA+2}, s{sT}
    s_cmp_lt_u32 s2, 32
    s_cbranch_scc1 k1_helper
    ; xcd = wg&7, j = (wg>>3) - 4 (0..27): rb = 4(xcd/2) + j/7, cg = 7(xcd%2) + j%7
    s_and_b32 s{sT}, s2, 7
    s_lshr_b32 s{sT+1}, s2, 3
    s_sub_u32 s{sT+1}, s{sT+1}, 4
    s_mul_i32 s{sT+5}, s{sT+1}, 37
    s_lshr_b32 s{sT+5}, s{sT+5}, 8
    s_mul_i32 s{sT+6}, s{sT+5}, 7
    s_sub_u32 s{sCG}, s{sT+1}, s{sT+6}
    s_and_b32 s{sT+2}, s2, 1
    s_mul_i32 s{sT+6}, s{sT+2}, 7
    s_add_u32 s{sCG}, s{sCG}, s{sT+6}
    s_lshr_b32 s{sRB}, s{sT}, 1
    s_lshl_b32 s{sRB}, s{sRB}, 2
    s_add_u32 s{sRB}, s{sRB}, s{sT+5}
    s_lshl_b32 s98, s{sRB}, 4
    s_add_u32 s98, s98, s{sCG}
    s_lshr_b32 s{sRH}, s{sW}, 2
    s_and_b32 s{sUn}, s{sW}, 3
    s_cmp_ge_u32 s{sW}, 8
    s_cbranch_scc1 k1_loader
    s_lshr_b32 s{sKind}, s{sCG}, 2
    s_cmp_eq_u32 s{sRH}, 0
    s_cselect_b32 s{sKind}, 4, s{sKind}
    s_add_u32 s{sT}, s{sCG}, 38
    s_add_u32 s{sT+1}, s{sCG}, 24
    s_lshl_b32 s{sT+2}, s{sCG}, 1
    s_add_u32 s{sT+3}, s{sT+2}, 1
    s_cmp_eq_u32 s{sRH}, 0
    s_cselect_b32 s{sT}, s{sT}, s{sT+2}
    s_cselect_b32 s{sT+1}, s{sT+1}, s{sT+3}
    s_lshl_b32 s{sCSo}, s{sT}, 9
    s_add_u32 s{sCSo}, s{sCSo}, {WS_CS}
    s_lshl_b32 s{sCSo+1}, s{sT+1}, 9
    s_add_u32 s{sCSo+1}, s{sCSo+1}, {WS_CS}
    s_lshl_b32 s{sT32}, s{sRB}, 2
    s_add_u32 s{sT32}, s{sT32}, s{sUn}
    v_and_b32 v{t0}, 31, v{vLane}
    v_and_b32 v{t1}, 0x13, v{t0}
    v_and_b32 v{t2}, 4, v{t0}
    v_lshl_or_b32 v{t1}, v{t2}, 1, v{t1}
    v_and_b32 v{t2}, 8, v{t0}
    v_lshrrev_b32 v{t2}, 1, v{t2}
    v_or_b32 v{t1}, v{t1}, v{t2}
    s_cmp_eq_u32 s{sKind}, 1
    s_cselect_b64 vcc, -1, 0
    v_cndmask_b32 v{t0}, v{t0}, v{t1}, vcc       ; tok
    v_lshrrev_b32 v{t1}, 5, v{vLane}             ; h
    v_bfe_u32 v{t2}, v{t0}, 1, 3
    v_xor_b32 v{t2}, v{t2}, v{t1}
    v_lshlrev_b32 v{t2}, 4, v{t2}
    v_lshl_add_u32 v{t2}, v{t0}, 7, v{t2}
    s_lshl_b32 s{sT}, s{sUn}, 12
    v_add_u32 v{vAX}, s{sT}, v{t2}
    v_xor_b32 v{vAX+1}, 32, v{vAX}
    v_xor_b32 v{vAX+2}, 64, v{vAX}
    v_xor_b32 v{vAX+3}, 96, v{vAX}
    s_lshl_b32 s{sT}, s{sUn}, 7
    s_add_u32 s{sT}, s{sT}, {L_RS}
    v_lshlrev_b32 v{t0}, 2, v{t0}
    v_add_u32 v{vGA}, s{sT}, v{t0}
    v_lshlrev_b32 v{vGA+1}, 3, v{vLane}
    v_bfe_u32 v{t0}, v{vLane}, 2, 2
    v_lshl_add_u32 v{t1}, v{t1}, 3, v{t0}
    v_bfe_u32 v{t2}, v{vLane}, 4, 1
    v_lshlrev_b32 v{t2}, 1, v{t2}
    v_and_b32 v{t3}, 1, v{vLane}
    v_or_b32 v{t2}, v{t2}, v{t3}
    v_lshlrev_b32 v{t0}, 1, v{t0}
    v_and_b32 v{t0}, 4, v{t0}
    v_xor_b32 v{t2}, v{t2}, v{t0}
    v_lshlrev_b32 v{t2}, 4, v{t2}
    v_lshl_add_u32 v{t2}, v{t1}, 7, v{t2}
    v_bfe_u32 v{t3}, v{vLane}, 1, 1
    v_lshl_add_u32 v{t2}, v{t3}, 3, v{t2}
    v_add_u32 v{vAW}, {O_W}, v{t2}
    v_xor_b32 v{vAW+1}, 64, v{vAW}
    s_lshl_b32 s{sT+1}, s{sUn}, 12
    s_cmp_eq_u32 s{sRH}, 0
    s_cselect_b32 s{sT+2}, {L_IMG}, 0
    s_add_u32 s{sT+1}, s{sT+1}, s{sT+2}
    """)
    epi_addr(k)
    k(f"""
    s_waitcnt lgkmcnt(0)
    s_cmp_eq_u32 s{sRH}, 0
    s_cbranch_scc1 k1_main
    """)
    row_stats(k)
    k(f"s_cmp_ge_u32 s{sCG}, 12\ns_cbranch_scc1 k1_fin0\ns_setprio {0 if 'zprio' in X else 2}")
    k.label("k1_main")
    main_loop(k)
    stamp(k, 2)
    k(f"s_cmp_eq_u32 s{sRH}, 0\ns_cbranch_scc0 k1_q")
    z_epilogue(k)
    k("s_branch k1_fin")
    k.label("k1_q")
    q_epilogue(k)
    k("s_branch k1_fin")
    k.label("k1_loader")
    loader(k)
    stamp(k, 2)
    k("s_branch k1_fin")
    k.label("k1_helper")
    k(f"""
    s_waitcnt lgkmcnt(0)
    v_mov_b32 v{vTag}, 0
    s_or_b32 s{sT+4}, s2, s{sW}
    s_cmp_lg_u32 s{sT+4}, 0
    s_cbranch_scc1 k1_nonce_done
    s_or_b32 s{sT+14}, s{sT+14}, 1
    v_mov_b32 v{vTag}, s{sT+14}
    v_lshlrev_b32 v{t3}, 2, v{vLane}
    buffer_store_dword v{vTag}, v{t3}, {sr(sDBG,4)}, 0 offen offset:128 sc0 sc1
    k1_nonce_done:
    """)
    if 'nosweep' not in X:
        k(f"""
        s_mul_i32 s{sT}, s2, 12
        s_add_u32 s{sT}, s{sT}, s{sW}
        s_lshl_b32 s{sT+1}, s{sT}, 13
        v_lshlrev_b32 v{t0}, 7, v{vLane}
        s_sub_u32 s{sT+2}, {383*8192}, s{sT+1}
        buffer_load_dword v{vT+9}, v{t0}, {sr(sXS,4)}, s{sT+2} offen
        """)
    helper(k)
    k("s_branch k1_fin")
    k.label("k1_fin0")
    k("s_waitcnt lgkmcnt(0)\ns_barrier")
    if FUSED:
        for t in range(7):
            k("s_barrier")
    k.label("k1_fin")
    if STAMP:
        k("s_waitcnt vmcnt(0)")
    stamp(k, 3)
    stamp_store(k, 6)
    if FUSED:
        return k
    k("""
    k1_end:
    s_endpgm
    """)
    k.finish()
    return k


if __name__ == "__main__":
    import sys
    STAMP = "stamp" in sys.argv
    k = gen_k1()
    print(build_file("; test", [("k1_kernel", 256, 768, LDS_K1)], [k]))
```

```python
import os
from asmlib import *
from layout import *

X = set(os.environ.get('K2X', '').split(','))
NS = 4
STAGE = 30720
O_Z, O_K, O_V = 16384, 24576, 26624
LDS_K2 = NS * STAGE

vLane = 1
vAL = 2
vT = 4
vQ, vK0, vK1, vV = 12, 16, 20, 24
vS0, vS1, vP, vO = 40, 56, 72, 80
vC = 96
vDA, vDZ, vDK, vDV = 12, 16, 17, 18
vAB = 20
vG = 28
vGA = 60
vGB = 92
vZ1 = 108
vBias = 124
sWS, sWSP, sBSP = 4, 8, 12
sW, sHead, sQT, sTB, sFB, sIdx = 16, 17, 18, 19, 20, 21
sOA, sOZ, sOK, sOV, sCnt = 22, 23, 24, 25, 26
sMA, sMZ, sMK, sMV = 27, 28, 29, 30
sVM, sLo = 32, 34
sT = 36
sPA, sPB, sPX, sPo = 68, 72, 76, 90

STAMP = False
FUSED = False
import gbar
WT = os.environ.get('WT', '')


def stamp(k, i):
    if STAMP:
        if i == 0:
            k("s_memrealtime s[80:81]")
        if i == 3:
            k("s_memrealtime s[82:83]")
        k(f"s_memtime {sr(60+2*i,2)}\ns_waitcnt lgkmcnt(0)")


def stamp_store(k, n):
    if not STAMP:
        return
    k(f"s_mul_i32 s58, s2, 12\ns_add_u32 s58, s58, s{sW}\ns_lshl_b32 s58, s58, 5\ns_add_u32 s58, s58, {WS_STAMP + 1*262144}")
    for i in range(n):
        k(f"s_sub_u32 s59, s{60+2*i}, s60\nv_mov_b32 v{vT}, s59\nv_mov_b32 v{vT+1}, 0\nbuffer_store_dword v{vT}, v{vT+1}, {sr(sWS,4)}, s58 offen offset:{4*i}")
    for j, r in ((6, 80), (7, 82)):
        k(f"v_mov_b32 v{vT}, s{r}\nv_mov_b32 v{vT+1}, 0\nbuffer_store_dword v{vT}, v{vT+1}, {sr(sWS,4)}, s58 offen offset:{4*j}")


def mfma32(d, a, b, c):
    cs = "0" if c is None else vr(c, 16)
    return f"v_mfma_f32_32x32x16_bf16 {vr(d,16)}, {vr(a,4)}, {vr(b,4)}, {cs}"


def so(slot):
    return slot // 2, (slot % 2) * STAGE


def rd_k(slot, T):
    s, o = so(slot)
    return f"ds_read_b128 {vr(vK0+4*T,4)}, v{vAL+s} offset:{o+O_K+(1-T)*1024}"


def rd_v(slot, T, u):
    s, o = so(slot)
    return f"ds_read_b128 {vr(vV+8*T+4*u,4)}, v{vAL+s} offset:{o+O_V+T*2048+u*1024}"


def phase(k, S, Snext, Knext, Vprev1, Vcur0, extras):
    E = lambda i: f"v_exp_f32 v{S+i}, v{S+i}"
    C = lambda i: f"v_cvt_pk_bf16_f32 v{vP+i}, v{S+2*i}, v{S+2*i+1}"
    PVp = mfma32(vO, Vprev1, vP + 4, vO) if Vprev1 is not None else None
    PVc = mfma32(vO, Vcur0, vP, vO)
    SM = mfma32(Snext, Knext, vQ, None) if Knext is not None else None
    seq = [E(0), E(1), PVp, E(2), E(3), C(0), E(4), E(5), C(1), E(6), SM, E(7), C(2), E(8), C(3), E(9), E(10), E(11), C(4), PVc,
           E(12), E(13), C(5), E(14), E(15), C(6), C(7)]
    for pos, ins in enumerate(seq):
        if ins is not None:
            if 'noattn' in X:
                ins = None
            elif 'nopv' in X and ins in (PVp, PVc):
                ins = None
            elif 'noexp' in X and 'v_exp' in ins:
                ins = None
            elif 'nocvt' in X and 'v_cvt' in ins:
                ins = None
        if ins is not None:
            k(ins)
        for a in extras.get(pos, []):
            if 'noard' in X and a.startswith('ds_read'):
                continue
            if 'nosp' in X and a.startswith('s_setprio'):
                continue
            k(a)


def attn_iter(k, slot, first, last_slot):
    k("s_waitcnt lgkmcnt(0)")
    k("s_barrier")
    ex1 = {0: [rd_k(slot, 1)], 4: [rd_v(slot, 0, 0)], 7: [rd_v(slot, 0, 1)]}
    if first:
        for a in (rd_k(slot, 1), rd_v(slot, 0, 0), rd_v(slot, 0, 1)):
            k(a)
    else:
        k("s_setprio 3")
        ex1[13] = ["s_setprio 2"]
        ex1[26] = ["s_setprio 1"]
        phase(k, vS1, vS0, vK0, vV + 4, vV + 8, ex1)
    ex2 = {0: [rd_k(slot, 0)], 4: [rd_v(slot, 1, 0)], 7: [rd_v(slot, 1, 1)], 13: ["s_setprio 0"]}
    if last_slot:
        ex2[14] = [f"s_sub_u32 s{sCnt}, s{sCnt}, 1\ns_cmp_lg_u32 s{sCnt}, 0"]
    phase(k, vS0, vS1, vK1, None if first else vV + 12, vV + 0, ex2)


def attn_loop(k):
    L = k.newlabel("aloop")
    k(f"s_mov_b32 s{sCnt}, 7")
    stamp(k, 1)
    k(mfma32(vS0, vK0, vQ, None))
    for slot in range(4):
        attn_iter(k, slot, slot == 0, False)
    k(".p2align 6")
    k.label(L)
    for slot in range(4):
        attn_iter(k, slot, False, slot == 3)
    k(f"s_cbranch_scc1 {L}")
    k("s_waitcnt lgkmcnt(0)\ns_barrier")
    stamp(k, 2)
    phase(k, vS1, None, None, vV + 4, vV + 8, {})
    k(mfma32(vO, vV + 12, vP + 4, vO))


def dma_group(slot, gemm):
    base = slot * STAGE
    out = []
    if gemm:
        out.append(f"s_add_u32 m0, s{sMK}, {base}\ns_mov_b64 exec, {sr(sLo,2)}\nbuffer_load_dwordx4 v{vDK}, {sr(sWS,4)}, s{sOK} offen lds\n"
                   f"s_add_u32 m0, s{sMV}, {base}\ns_mov_b64 exec, {sr(sVM,2)}\nbuffer_load_dwordx4 v{vDV}, {sr(sWS,4)}, s{sOK} offen lds\n"
                   f"s_mov_b64 exec, -1\ns_add_u32 s{sOK}, s{sOK}, 2048")
    else:
        out.append(f"s_add_u32 m0, s{sMK}, {base}\ns_mov_b64 exec, {sr(sLo,2)}\nbuffer_load_dwordx4 v{vDK}, {sr(sWS,4)}, s{sOK} offen lds\n"
                   f"buffer_load_dwordx4 v{vDK}, {sr(sWS,4)}, s{sOK} offen offset:1024 lds\n"
                   f"s_add_u32 m0, s{sMV}, {base}\ns_mov_b64 exec, {sr(sVM,2)}\nbuffer_load_dwordx4 v{vDV}, {sr(sWS,4)}, s{sOK} offen lds\n"
                   f"s_add_u32 m0, s{sMV}, {base+1024}\ns_nop 0\nbuffer_load_dwordx4 v{vDV}, {sr(sWS,4)}, s{sOK} offen offset:1024 lds\n"
                   f"s_mov_b64 exec, -1\ns_add_u32 s{sOK}, s{sOK}, 2048")
    if gemm:
        for p in range(4):
            out.append(f"s_add_u32 m0, s{sMA}, {base+1024*p}\ns_nop 0\nbuffer_load_dwordx4 v{vDA+p}, {sr(sWSP,4)}, s{sOA} offen lds"
                       + (f"\ns_add_u32 s{sOA}, s{sOA}, 128" if p == 3 else ""))
        out.append(f"s_add_u32 m0, s{sMZ}, {base}\ns_nop 0\nbuffer_load_dwordx4 v{vDZ}, {sr(sWS,4)}, s{sOZ} offen lds")
        out.append(f"s_add_u32 m0, s{sMZ}, {base}\ns_nop 0\nbuffer_load_dwordx4 v{vDZ}, {sr(sWS,4)}, s{sOZ} offen offset:1024 lds\ns_add_u32 s{sOZ}, s{sOZ}, 4096")
    return out


def rd_g(slot, ks):
    s, o = so(slot)
    return [f"ds_read_b128 {vr(vGB+4*ks,4)}, v{vAB+4*s+ks} offset:{o}",
            f"ds_read_b128 {vr(vGA+8*ks,4)}, v{vAL+s} offset:{o+O_Z+ks*1024}",
            f"ds_read_b128 {vr(vGA+8*ks+4,4)}, v{vAL+s} offset:{o+O_Z+4096+ks*1024}"]


def mm_g(ks):
    return [mfma32(vG, vGA + 8 * ks, vGB + 4 * ks, vG), mfma32(vG + 16, vGA + 8 * ks + 4, vGB + 4 * ks, vG + 16)]


def gemm_loop(k, gemm):
    nd = 8 if gemm else 4
    k(f"s_mov_b32 s{sCnt}, 8")
    stamp(k, 1)
    for part in (0,):
        L = k.newlabel("gloop")
        k(".p2align 6")
        k.label(L)
        if 'prof' in X:
            k(f"""
            s_memtime s[84:85]
            s_memrealtime s[86:87]
            s_waitcnt lgkmcnt(0)
            v_mov_b32 v{vT}, s84
            v_mov_b32 v{vT+1}, s86
            s_lshl_b32 s88, s2, 8
            s_lshl_b32 s89, s{sCnt}, 3
            s_add_u32 s88, s88, s89
            s_add_u32 s88, s88, {WS_STAMP + 3*262144}
            v_mov_b32 v{vT+2}, 0
            buffer_store_dwordx2 {vr(vT,2)}, v{vT+2}, {sr(sWS,4)}, s88 offen
            """)
        for jj in range(4):
            slot = (jj + 1) % 4
            k(f"s_waitcnt vmcnt({(4 if 'nogdma' in X else 2*nd)}) lgkmcnt(0)")
            k("s_barrier")
            dm = dma_group((slot + 3) % 4, gemm)
            if gemm:
                r = [rd_g(slot, ks) for ks in range(4)]
                m = [mm_g(ks) for ks in range(4)]
                seq = (r[0] + [m[2][0], dm[0], m[2][1]] + r[1] + [m[3][0], dm[1], m[3][1], dm[2]] + r[2] + [m[0][0], dm[3], m[0][1], dm[4]]
                       + r[3] + [m[1][0], dm[5], m[1][1], dm[6]])
            else:
                seq = list(dm)
            if jj == 0:
                k(f"s_cmp_eq_u32 s{sCnt}, 1\ns_cselect_b32 s{sT}, 0x70000000, 0\ns_add_u32 s{sOK}, s{sOK}, s{sT}")
            for a in seq:
                if 'nogdma' in X and ' lds' in a and 'exec' not in a:
                    continue
                if 'nogmm' in X and 'mfma' in a:
                    continue
                if 'nogrd' in X and 'ds_read' in a:
                    continue
                k(a)
            if jj == 0:
                k(f"s_add_u32 s{sOA}, s{sOA}, s{sT}\ns_add_u32 s{sOZ}, s{sOZ}, s{sT}")
        k(f"s_sub_u32 s{sCnt}, s{sCnt}, 1\ns_cmp_lg_u32 s{sCnt}, {part}\ns_cbranch_scc1 {L}")
    stamp(k, 2)
    if gemm:
        for a in mm_g(2) + mm_g(3):
            k(a)


def dep_slots(gemm):
    v, s = vZ1, sT + 10
    zc = f"s{sFB}" if gemm else f"s{s}"
    return f"""
    s_lshr_b32 s{s+2}, s{sHead}, 3
    s_add_u32 s{s}, s{s+2}, 4
    s_add_u32 s{s+1}, s{s+2}, 8
    v_mov_b32 v{v+1}, s{s}
    v_mov_b32 v{v+2}, s{s+1}
    v_cmp_lt_u32 vcc, 15, v{vLane}
    v_cndmask_b32 v{v+1}, v{v+1}, v{v+2}, vcc
    v_mov_b32 v{v+2}, {zc}
    v_cmp_lt_u32 vcc, 31, v{vLane}
    v_cndmask_b32 v{v+1}, v{v+1}, v{v+2}, vcc
    v_and_b32 v{v}, 15, v{vLane}
    v_lshl_add_u32 v{v}, v{v}, 4, v{v+1}
    s_and_b32 s{s}, s{sIdx}, 7
    s_lshl_b32 s{s}, s{s}, 5
    s_add_u32 s{s}, s{s}, s{s+2}
    v_and_b32 v{v+1}, 1, v{vLane}
    v_lshlrev_b32 v{v+1}, 4, v{v+1}
    v_add_u32 v{v+1}, s{s}, v{v+1}
    v_cmp_lt_u32 vcc, 47, v{vLane}
    v_cndmask_b32 v{v}, v{v}, v{v+1}, vcc
    """


def gen_k2(k=None):
    if k is None:
        k = Kernel("k2_kernel")
    t0, t1, t2, t3 = vT, vT + 1, vT + 2, vT + 3
    stamp(k, 0)
    if not FUSED:
        k("s_cmp_ge_u32 s2, 256\ns_cbranch_scc1 k2_end")
    k(f"""
    s_setprio 0
    s_load_dwordx2 {sr(sWS,2)}, s[0:1], {KA_WS}
    s_load_dwordx2 {sr(sWSP,2)}, s[0:1], {KA_WSP}
    s_load_dwordx2 {sr(sBSP,2)}, s[0:1], {KA_BSP}
    v_lshrrev_b32 v{t0}, 6, v0
    v_and_b32 v{vLane}, 63, v0
    v_readfirstlane_b32 s{sW}, v{t0}
    s_and_b32 s{sT}, s2, 7
    s_lshr_b32 s{sIdx}, s2, 3
    s_lshr_b32 s{sT+2}, s{sIdx}, 3
    s_lshl_b32 s{sHead}, s{sT}, 2
    s_add_u32 s{sHead}, s{sHead}, s{sT+2}
    s_lshl_b32 s{sT+3}, s{sHead}, 16             ; head*65536
    s_mov_b32 s{sWS+2}, {WS_SIZE}
    s_mov_b32 s{sWS+3}, 0x00020000
    s_mov_b32 s{sWSP+2}, {2048*2048*2}
    s_mov_b32 s{sWSP+3}, 0x00020000
    s_mov_b32 s{sBSP+2}, 4096
    s_mov_b32 s{sBSP+3}, 0x00020000
    s_mov_b32 s{sVM}, 0x0000ffff
    s_mov_b32 s{sVM+1}, 0x0000ffff
    v_lshlrev_b32 v{vAL}, 4, v{vLane}
    v_add_u32 v{vAL+1}, {2*STAGE}, v{vAL}
    s_cmp_ge_u32 s{sW}, 8
    s_cbranch_scc1 k2_gemm
    """)
    k(f"""
    s_and_b32 s{sQT}, s{sIdx}, 7
    s_lshl_b32 s{sQT}, s{sQT}, 3
    s_add_u32 s{sQT}, s{sQT}, s{sW}
    s_lshl_b32 s{sT+5}, s{sQT}, 10
    s_add_u32 s{sT+5}, s{sT+5}, s{sT+3}
    s_add_u32 s{sT+7}, s{sT+5}, {WS_Q}
    s_add_u32 s{sT+8}, s{sT+3}, {WS_K}
    s_waitcnt lgkmcnt(0)
    """)
    qk = (f"buffer_load_dwordx4 {vr(vQ,4)}, v{vAL}, {sr(sWS,4)}, s{sT+7} offen\n"
          f"buffer_load_dwordx4 {vr(vK0,4)}, v{vAL}, {sr(sWS,4)}, s{sT+8} offen")
    if not FUSED:
        k(qk)
    k(f"""
    v_and_b32 v{t0}, 27, v{vLane}
    v_mov_b32 v{t1}, 0x3f803f80
    v_cmp_eq_u32 vcc, 16, v{t0}
    v_cndmask_b32 v{t1}, 0, v{t1}, vcc
    """)
    for i in range(8):
        k(f"v_mov_b32 v{vV+i}, v{t1}")
    k(f"""
    s_lshr_b32 s{sT+5}, s{sW}, 1
    s_mul_i32 s{sT+5}, s{sT+5}, {STAGE}
    s_and_b32 s{sT+6}, s{sW}, 1
    s_lshl_b32 s{sT+6}, s{sT+6}, 11
    s_add_u32 s{sT+5}, s{sT+5}, s{sT+6}
    v_add_u32 v{t0}, s{sT+5}, v{vAL}
    s_not_b64 exec, {sr(sVM,2)}
    ds_write_b128 v{t0}, {vr(vV,4)} offset:{O_V}
    ds_write_b128 v{t0}, {vr(vV,4)} offset:{O_V+1024}
    s_mov_b64 exec, -1
    """)
    for i in range(16):
        k(f"v_mov_b32 v{vO+i}, 0")
    if FUSED:
        k("s_barrier")
        k(qk)
    attn_loop(k)
    k(f"v_mul_f32 v{t0}, 0, v{vO}")
    for i in range(1, 8):
        k(f"v_fma_f32 v{t0}, v{vO+i}, 0, v{t0}")
    k(f"""
    v_add_f32 v{t0}, v{t0}, v{vO+8}
    v_mov_b32 v{t1}, 0x17800000                  ; 2^-80
    v_mov_b32 v{t2}, 0x67800000                  ; 2^80
    v_cmp_ge_f32 vcc, v{t0}, v{t1}
    v_cmp_le_f32 {sr(sT+10,2)}, v{t0}, v{t2}
    s_and_b64 vcc, vcc, {sr(sT+10,2)}
    s_cmp_eq_u64 vcc, -1
    s_cbranch_scc1 k2_store_o
    """)
    vM = vT
    k(f"""
    s_add_u32 s{sT+10}, s{sT+3}, {WS_K}
    s_add_u32 s{sT+11}, s{sT+3}, {WS_V}
    v_mov_b32 v{vM}, 0xff800000
    s_mov_b32 s{sCnt}, 64
    s_mov_b32 s{sT+12}, s{sT+10}
    k2_slow1:
    buffer_load_dwordx4 {vr(vK0,4)}, v{vAL}, {sr(sWS,4)}, s{sT+12} offen
    {mfma32(vS0, vK0, vQ, None)}
    """)
    for i in range(8):
        k(f"v_max3_f32 v{vM}, v{vS0+2*i}, v{vS0+2*i+1}, v{vM}")
    k(f"""
    s_add_u32 s{sT+12}, s{sT+12}, 1024
    s_sub_u32 s{sCnt}, s{sCnt}, 1
    s_cmp_lg_u32 s{sCnt}, 0
    s_cbranch_scc1 k2_slow1
    v_mov_b32 v{t1}, v{vM}
    v_permlane32_swap_b32 v{vM}, v{t1}
    v_max_f32 v{vM}, v{vM}, v{t1}
    v_sub_f32 v{vM}, 0, v{vM}
    """)
    for i in range(16):
        k(f"v_mov_b32 v{vC+i}, v{vM}")
        k(f"v_mov_b32 v{vO+i}, 0")
    k(f"""
    v_lshrrev_b32 v{t2}, 5, v{vLane}
    v_and_b32 v{t1}, 15, v{vLane}
    v_lshlrev_b32 v{t1}, 4, v{t1}
    v_lshl_add_u32 v{t1}, v{t2}, 8, v{t1}        ; (l/32)*256 + (l%16)*16
    s_mov_b32 s{sCnt}, 64
    k2_slow2:
    buffer_load_dwordx4 {vr(vK0,4)}, v{vAL}, {sr(sWS,4)}, s{sT+10} offen
    s_mov_b64 exec, {sr(sVM,2)}
    buffer_load_dwordx4 {vr(vV,4)}, v{t1}, {sr(sWS,4)}, s{sT+11} offen
    buffer_load_dwordx4 {vr(vV+4,4)}, v{t1}, {sr(sWS,4)}, s{sT+11} offen offset:512
    s_mov_b64 exec, -1
    {mfma32(vS0, vK0, vQ, vC)}
    """)
    for i in range(16):
        k(f"v_exp_f32 v{vS0+i}, v{vS0+i}")
    for i in range(8):
        k(f"v_cvt_pk_bf16_f32 v{vP+i}, v{vS0+2*i}, v{vS0+2*i+1}")
    k(f"""
    {mfma32(vO, vV, vP, vO)}
    {mfma32(vO, vV+4, vP+4, vO)}
    s_add_u32 s{sT+10}, s{sT+10}, 1024
    s_add_u32 s{sT+11}, s{sT+11}, 1024
    s_sub_u32 s{sCnt}, s{sCnt}, 1
    s_cmp_lg_u32 s{sCnt}, 0
    s_cbranch_scc1 k2_slow2
    """)
    k.label("k2_store_o")
    k(f"v_rcp_f32 v{t0}, v{vO+8}")
    for i in range(8):
        k(f"v_mul_f32 v{vO+i}, v{vO+i}, v{t0}")
    for i in range(4):
        k(f"v_cvt_pk_bf16_f32 v{vP+i}, v{vO+2*i}, v{vO+2*i+1}")
    k(f"""
    s_lshl_b32 s{sT+9}, s{sQT}, 5
    s_add_u32 s{sT+9}, s{sT+9}, s{sHead}
    s_lshl_b32 s{sT+9}, s{sT+9}, 10
    s_add_u32 s{sT+9}, s{sT+9}, {WS_O}
    buffer_store_dwordx4 {vr(vP,4)}, v{vAL}, {sr(sWS,4)}, s{sT+9} offen {WT}
    s_branch k2_fin
    """)
    k.label("k2_gemm")
    sG = sT + 4
    k(f"""
    s_setprio 3
    s_sub_u32 s{sG}, s{sW}, 8                    ; g = 0..3
    s_and_b32 s{sTB}, s{sT}, 3
    s_lshl_b32 s{sTB}, s{sTB}, 2
    s_and_b32 s{sT+2}, s{sIdx}, 3
    s_add_u32 s{sTB}, s{sTB}, s{sT+2}
    s_lshr_b32 s{sFB}, s{sT}, 2
    s_mul_i32 s{sFB}, s{sFB}, 7
    s_lshr_b32 s{sT+2}, s{sIdx}, 2
    s_add_u32 s{sFB}, s{sFB}, s{sT+2}
    s_mov_b32 s{sLo}, -1
    s_mov_b32 s{sLo+1}, 0
    s_mov_b32 s{sOA}, 0
    s_mov_b32 s{sOZ}, 0
    s_mov_b32 s{sOK}, 0
    s_lshl_b32 s{sMA}, s{sG}, 12
    s_lshl_b32 s{sMZ}, s{sG}, 11
    s_add_u32 s{sMZ}, s{sMZ}, {O_Z}
    s_lshl_b32 s{sMK}, s{sG}, 9
    s_add_u32 s{sMK}, s{sMK}, {O_K}
    s_lshl_b32 s{sMV}, s{sG}, 10
    s_add_u32 s{sMV}, s{sMV}, {O_V}
    s_lshl_b32 s{sT+5}, s{sG}, 9
    s_add_u32 s{sT+5}, s{sT+5}, s{sT+3}
    s_add_u32 s{sT+6}, s{sT+5}, {WS_K+1024}
    v_add_u32 v{vDK}, s{sT+6}, v{vAL}
    ; V DMA: WS_V + head*65536 + g*512 + (l/32)*256 + (l%16)*16
    v_lshrrev_b32 v{t0}, 5, v{vLane}
    v_and_b32 v{t1}, 15, v{vLane}
    v_lshlrev_b32 v{t1}, 4, v{t1}
    v_lshl_add_u32 v{t1}, v{t0}, 8, v{t1}
    s_add_u32 s{sT+6}, s{sT+5}, {WS_V}
    v_add_u32 v{vDV}, s{sT+6}, v{t1}
    s_waitcnt lgkmcnt(0)
    s_cmp_ge_u32 s{sIdx}, 28
    s_cbranch_scc1 k2_loader
    """)
    if not FUSED:
        k(dma_group(0, True)[0])
    k(f"""
    v_lshrrev_b32 v{t0}, 3, v{vLane}
    s_lshl_b32 s{sT+5}, s{sG}, 5
    v_add_u32 v{t0}, s{sT+5}, v{t0}
    v_and_b32 v{t1}, 7, v{vLane}
    s_lshl_b32 s{sT+6}, s{sTB}, 19
    """)
    for p in range(4):
        k(f"""
        v_add_u32 v{t2}, {8*p}, v{t0}
        v_bfe_u32 v{t3}, v{t2}, 1, 3
        v_xor_b32 v{t3}, v{t3}, v{t1}
        v_lshlrev_b32 v{t3}, 4, v{t3}
        v_lshl_add_u32 v{vDA+p}, v{t2}, 12, v{t3}
        v_add_u32 v{vDA+p}, s{sT+6}, v{vDA+p}
        """)
    k(f"""
    s_lshr_b32 s{sT+5}, s{sG}, 1
    s_lshl_b32 s{sT+6}, s{sFB}, 1
    s_add_u32 s{sT+5}, s{sT+5}, s{sT+6}
    s_lshl_b32 s{sT+5}, s{sT+5}, 17
    s_and_b32 s{sT+7}, s{sG}, 1
    s_lshl_b32 s{sT+7}, s{sT+7}, 11
    s_add_u32 s{sT+5}, s{sT+5}, s{sT+7}
    s_add_u32 s{sT+5}, s{sT+5}, {WS_Z2}
    v_add_u32 v{vDZ}, s{sT+5}, v{vAL}
    """)
    if not FUSED:
        for a in dma_group(1, True):
            k(a)
        k("s_waitcnt vmcnt(8)\ns_barrier")
    else:
        for st in range(1, 4):
            for a in dma_group(st, True)[1:5]:
                k(a)
    k(f"""
    s_lshl_b32 s{sT+7}, s{sTB}, 2
    s_add_u32 s{sT+7}, s{sT+7}, s{sG}
    s_mul_i32 s{sT+8}, s{sT+7}, 56
    s_lshl_b32 s{sT+9}, s{sFB}, 2
    s_add_u32 s{sT+8}, s{sT+8}, s{sT+9}
    s_lshl_b32 s{sT+8}, s{sT+8}, 10
    s_lshl_b32 s{sT+7}, s{sT+7}, 6
    s_add_u32 s{sT+9}, s{sT+8}, {WS_Z1}
    v_and_b32 v{t0}, 31, v{vLane}
    v_lshlrev_b32 v{t0}, 1, v{t0}
    """)
    def z1loads():
        k(f"buffer_load_ushort v{vBias}, v{vT+4}, {sr(sBSP,4)}, s{sT+13} offen")
        for i in range(4):
            k(f"buffer_load_dwordx4 {vr(vZ1+4*i,4)}, v{vAL}, {sr(sWS,4)}, s{sT+9} offen offset:{1024*i}")
    k(f"v_mov_b32 v{vT+4}, v{t0}\ns_mov_b32 s{sT+13}, s{sT+7}")
    if not FUSED:
        for st in range(2, 4):
            for a in dma_group(st, True):
                k(a)
        z1loads()
    k(f"""
    v_lshrrev_b32 v{t0}, 5, v{vLane}
    v_and_b32 v{t1}, 31, v{vLane}
    s_lshl_b32 s{sT+7}, s{sG}, 5
    v_add_u32 v{t1}, s{sT+7}, v{t1}
    v_bfe_u32 v{t2}, v{t1}, 1, 3
    v_xor_b32 v{t2}, v{t2}, v{t0}
    v_lshlrev_b32 v{t2}, 4, v{t2}
    v_lshl_add_u32 v{vAB}, v{t1}, 7, v{t2}
    v_xor_b32 v{vAB+1}, 32, v{vAB}
    v_xor_b32 v{vAB+2}, 64, v{vAB}
    v_xor_b32 v{vAB+3}, 96, v{vAB}
    """)
    for i in range(4):
        k(f"v_add_u32 v{vAB+4+i}, {2*STAGE}, v{vAB+i}")
    for i in range(32):
        k(f"v_mov_b32 v{vG+i}, 0")
    for i in range(16):
        k(f"v_mov_b32 v{vGA+16+i}, 0")
    for i in range(8):
        k(f"v_mov_b32 v{vGB+8+i}, 0")
    if FUSED:
        gbar.wait(k, 0, sWS, sW, sT + 10, vZ1, dep_slots(True))
        k("s_barrier")
        k(dma_group(0, True)[0])
        for st in range(1, 4):
            g = dma_group(st, True)
            for a in [g[0]] + g[5:]:
                k(a)
            if st == 1:
                k("s_waitcnt vmcnt(4)\ns_barrier")
        z1loads()
        k("s_waitcnt vmcnt(13)")
    k("s_setprio 0")
    gemm_loop(k, True)
    k(f"s_add_u32 s{sT+9}, s{sT+8}, {WS_U}")
    k(f"v_lshlrev_b32 v{vBias}, 16, v{vBias}")
    for i in range(16):
        a, b = vT + 2 * (i % 4), vT + 2 * (i % 4) + 1
        k(f"""
        v_lshlrev_b32 v{a}, 16, v{vZ1+i}
        v_and_b32 v{b}, 0xffff0000, v{vZ1+i}
        v_add_f32 v{vG+2*i}, v{vG+2*i}, v{vBias}
        v_add_f32 v{vG+2*i+1}, v{vG+2*i+1}, v{vBias}
        v_mul_f32 v{a}, v{a}, v{vG+2*i}
        v_mul_f32 v{b}, v{b}, v{vG+2*i+1}
        v_cvt_pk_bf16_f32 v{vZ1+i}, v{a}, v{b}
        """)
        if i % 4 == 3:
            k(f"buffer_store_dwordx4 {vr(vZ1+i-3,4)}, v{vAL}, {sr(sWS,4)}, s{sT+9} offen offset:{1024*(i//4)} {WT}")
    k("s_branch k2_fin")
    k.label("k2_loader")
    k(f"""
    s_load_dwordx2 {sr(sPA,2)}, s[0:1], {KA_WO}
    s_load_dwordx2 {sr(sPB,2)}, s[0:1], {KA_WOUT}
    s_load_dwordx2 {sr(sPX,2)}, s[0:1], {KA_X}
    s_mov_b32 s{sPA+2}, {512*1024}
    s_mov_b32 s{sPA+3}, 0x00020000
    s_mov_b32 s{sPB+2}, {896*1024}
    s_mov_b32 s{sPB+3}, 0x00020000
    s_mov_b32 s{sPX+2}, {2048*1024}
    s_mov_b32 s{sPX+3}, 0x00020000
    """)
    if FUSED:
        gbar.wait(k, 0, sWS, sW, sT + 10, vZ1, dep_slots(False))
        k("s_barrier")
    k(f"s_cmp_ge_u32 s{sG}, 2\ns_cbranch_scc1 k2_pref")
    k(dma_group(0, False)[0])
    k("s_waitcnt vmcnt(0)\ns_barrier")
    for st in range(1, 4):
        for a in dma_group(st, False):
            k(a)
    gemm_loop(k, False)
    k("s_branch k2_fin")
    k.label("k2_pref")
    k(f"""
    s_sub_u32 s{sT+5}, s{sIdx}, 28
    s_lshl_b32 s{sT+5}, s{sT+5}, 1
    s_add_u32 s{sT+5}, s{sT+5}, s{sG}
    s_sub_u32 s{sT+5}, s{sT+5}, 2                ; 0..7
    s_lshl_b32 s{sPo}, s{sT+5}, 16
    s_mul_i32 s{sPo+1}, s{sT+5}, {112*1024}
    s_lshl_b32 s{sPo+2}, s{sT+5}, 15
    s_and_b32 s{sT+6}, s2, 7
    s_lshl_b32 s{sT+6}, s{sT+6}, 18
    s_add_u32 s{sPo+2}, s{sPo+2}, s{sT+6}
    v_lshlrev_b32 v{vT}, 7, v{vLane}
    s_waitcnt lgkmcnt(0)
    """)
    stamp(k, 1)
    lo = []
    for srd, so, cnt in ((sPX, sPo + 2, 4), (sPB, sPo + 1, 14), (sPA, sPo, 8)):
        for j in range(cnt):
            lo.append(f"buffer_load_dword v{vG+len(lo)}, v{vT}, {sr(srd,4)}, s{so} offen\ns_add_u32 s{so}, s{so}, 8192")
    PF0 = int(os.environ.get('PF0', '16'))
    for it in range(33):
        k("s_barrier")
        if it >= PF0 and 'nopf' not in X:
            for a in lo[2 * (it - PF0): 2 * (it - PF0) + 2]:
                k(a)
    stamp(k, 2)
    k.label("k2_fin")
    if STAMP:
        k("s_waitcnt vmcnt(0)")
    stamp(k, 3)
    stamp_store(k, 4)
    if FUSED:
        return k
    k("""
    k2_end:
    s_endpgm
    """)
    k.finish()
    return k


if __name__ == "__main__":
    import sys
    STAMP = "stamp" in sys.argv
    k = gen_k2()
    print(build_file("; test", [("k2_kernel", 256, 768, LDS_K2)], [k]))
```

```python
import os
from asmlib import *
from layout import *

X = set(os.environ.get('K3X', '').split(','))
NS = 5
STAGE = 32768
LDS_K3 = NS * STAGE
NST = 11

vLane = 1
vL16 = 2
vDW = 3
vAT = 5
vAW = 8
vT = 12
vX = 20
vA1, vA2 = 28, 44
vFA = 60
vFB = 92
vOA = 124

sWS, sWA, sWB, sXS, sOUT = 4, 8, 12, 16, 20
sW, sR, sWq, sTB, sNB = 24, 25, 26, 27, 28
sTA, sTBb, sWbA, sWbB, sM = 29, 30, 31, 32, 33
sT = 36

STAMP = False
FUSED = False
import gbar


def stamp(k, i):
    if STAMP:
        if i == 0:
            k("s_memrealtime s[80:81]")
        if i == 3:
            k("s_memrealtime s[82:83]")
        k(f"s_memtime {sr(60+2*i,2)}\ns_waitcnt lgkmcnt(0)")


def stamp_store(k, n):
    if not STAMP:
        return
    k(f"s_mul_i32 s58, s2, 12\ns_add_u32 s58, s58, s{sW}\ns_lshl_b32 s58, s58, 5\ns_add_u32 s58, s58, {WS_STAMP + 2*262144}")
    for i in range(n):
        k(f"s_sub_u32 s59, s{60+2*i}, s60\nv_mov_b32 v{vT}, s59\nv_mov_b32 v{vT+1}, 0\nbuffer_store_dword v{vT}, v{vT+1}, {sr(sWS,4)}, s58 offen offset:{4*i}")
    for j, r in ((6, 80), (7, 82)):
        k(f"v_mov_b32 v{vT}, s{r}\nv_mov_b32 v{vT+1}, 0\nbuffer_store_dword v{vT}, v{vT+1}, {sr(sWS,4)}, s58 offen offset:{4*j}")


def mfma32(d, a, b, c):
    cs = "0" if c is None else vr(c, 16)
    return f"v_mfma_f32_32x32x16_bf16 {vr(d,16)}, {vr(a,4)}, {vr(b,4)}, {cs}"


def dma_t(k, st):
    base = (st % NS) * STAGE
    tb, j = (sTA, st) if st < 8 else (sTBb, st - 8)
    k(f"s_add_u32 s{sT}, s{tb}, {j*4096}\ns_add_u32 m0, s{sM}, {base}")
    for i in range(4):
        k(f"buffer_load_dwordx4 v{vL16}, {sr(sWS,4)}, s{sT} offen offset:{1024*i} lds", tag=("s3", st))


def dma_w(k, st):
    base = (st % NS) * STAGE
    wb, srd, j = (sWbA, sWA, st) if st < 8 else (sWbB, sWB, st - 8)
    for i in range(4):
        k(f"s_add_u32 s{sT+1}, s{wb}, {j*65536 + i*8192}\ns_add_u32 m0, s{sM}, {base+8192+1024*i}")
        k(f"buffer_load_dwordx4 v{vDW}, {sr(srd,4)}, s{sT+1} offen lds", tag=("s3", st))


def reads(st, ks):
    slot = st % NS
    s, o = slot // 2, (slot % 2) * STAGE
    b = st % 2
    fa, fb = vFA + 16 * b + 4 * ks, vFB + 16 * b + 4 * ks
    return [f"ds_read_b64_tr_b16 {vr(fa,2)}, v{vAW+s} offset:{o+ks*2048}",
            f"ds_read_b64_tr_b16 {vr(fa+2,2)}, v{vAW+s} offset:{o+ks*2048+512}",
            f"ds_read_b128 {vr(fb,4)}, v{vAT+s} offset:{o+ks*1024}"]


def common_setup(k):
    t0 = vT
    k(f"""
    s_load_dwordx2 {sr(sWS,2)}, s[0:1], {KA_WS}
    s_load_dwordx2 {sr(sWA,2)}, s[0:1], {KA_WO}
    s_load_dwordx2 {sr(sWB,2)}, s[0:1], {KA_WOUT}
    s_load_dwordx2 {sr(sXS,2)}, s[0:1], {KA_X}
    s_load_dwordx2 {sr(sOUT,2)}, s[0:1], {KA_OUT}
    v_lshrrev_b32 v{t0}, 6, v0
    v_and_b32 v{vLane}, 63, v0
    v_readfirstlane_b32 s{sW}, v{t0}
    v_lshlrev_b32 v{vL16}, 4, v{vLane}
    s_and_b32 s{sT}, s2, 7
    s_lshr_b32 s{sT+1}, s2, 3
    s_lshl_b32 s{sTB}, s{sT}, 2
    s_lshr_b32 s{sT+2}, s{sT+1}, 3
    s_add_u32 s{sTB}, s{sTB}, s{sT+2}
    s_and_b32 s{sNB}, s{sT+1}, 7
    s_mov_b32 s{sWS+2}, {WS_SIZE}
    s_mov_b32 s{sWS+3}, 0x00020000
    s_mov_b32 s{sWA+2}, {896*1024}
    s_mov_b32 s{sWA+3}, 0x00020000
    s_mov_b32 s{sWB+2}, {896*1024}
    s_mov_b32 s{sWB+3}, 0x00020000
    s_mov_b32 s{sXS+2}, {2048*1024}
    s_mov_b32 s{sXS+3}, 0x00020000
    s_mov_b32 s{sOUT+2}, {2048*1024}
    s_mov_b32 s{sOUT+3}, 0x00020000
    """)


def loader_setup(k):
    t0, t1, t2 = vT, vT + 1, vT + 2
    k(f"""
    s_setprio 3
    s_bfe_u32 s{sR}, s{sW}, 0x10001              ; role = (w-8)/2
    s_and_b32 s{sWq}, s{sW}, 1                   ; half
    s_lshl_b32 s{sT}, s{sTB}, 1
    s_add_u32 s{sT}, s{sT}, s{sWq}               ; tt
    s_lshl_b32 s{sT+2}, s{sT}, 15
    s_add_u32 s{sT+2}, s{sT+2}, {WS_O}           ; X baseA
    s_mul_i32 s{sT+3}, s{sT}, {56*1024}
    s_add_u32 s{sT+3}, s{sT+3}, {WS_U}           ; X baseB
    s_add_u32 s{sT+4}, s{sT+3}, {12*1024}        ; Y baseA
    s_add_u32 s{sT+5}, s{sT+3}, {44*1024}        ; Y baseB
    s_cmp_eq_u32 s{sR}, 0
    s_cselect_b32 s{sTA}, s{sT+2}, s{sT+4}
    s_cselect_b32 s{sTBb}, s{sT+3}, s{sT+5}
    s_cselect_b32 s{sWbA}, 0, {3*65536}
    s_cselect_b32 s{sWbB}, 0, {11*65536}
    s_lshl_b32 s{sM}, s{sR}, 14
    s_lshl_b32 s{sT}, s{sWq}, 12
    s_add_u32 s{sM}, s{sM}, s{sT}
    v_lshrrev_b32 v{t0}, 3, v{vLane}
    v_and_b32 v{t1}, 7, v{vLane}
    v_lshlrev_b32 v{t2}, 1, v{t0}
    v_and_b32 v{t2}, 4, v{t2}
    v_xor_b32 v{t1}, v{t1}, v{t2}
    v_lshlrev_b32 v{t1}, 4, v{t1}
    v_lshl_add_u32 v{t1}, v{t0}, 10, v{t1}
    s_lshl_b32 s{sT}, s{sWq}, 15
    s_lshl_b32 s{sT+1}, s{sNB}, 7
    s_add_u32 s{sT}, s{sT}, s{sT+1}
    v_add_u32 v{vDW}, s{sT}, v{t1}
    s_waitcnt lgkmcnt(0)
    s_cmp_eq_u32 s{sR}, 0
    s_cselect_b32 s{sWA}, s{sWA}, s{sWB}
    s_cselect_b32 s{sWA+1}, s{sWA+1}, s{sWB+1}
    s_cselect_b32 s{sWA+2}, {512*1024}, s{sWB+2}
    """)


def loader_main(k, wfirst):
    if wfirst:
        for st in range(NS):
            dma_t(k, st)
    else:
        for st in range(2):
            dma_t(k, st)
            dma_w(k, st)
    stamp(k, 1)
    for st in range(NST):
        k.wait_tag(("s3", st))
        k("s_barrier")
        if st == 0 and not wfirst:
            for s2_ in range(2, NS):
                dma_t(k, s2_)
                dma_w(k, s2_)
        if st >= 1 and st + NS - 1 < NST:
            dma_t(k, st + NS - 1)
            dma_w(k, st + NS - 1)
    stamp(k, 2)
    k("s_barrier")


def compute_setup(k):
    t0, t1, t2, t3 = vT, vT + 1, vT + 2, vT + 3
    k(f"""
    s_lshr_b32 s{sR}, s{sW}, 2
    s_and_b32 s{sWq}, s{sW}, 3
    s_lshl_b32 s{sT}, s{sR}, 14
    s_and_b32 s{sT+1}, s{sWq}, 1                 ; tt
    s_lshl_b32 s{sT+2}, s{sT+1}, 12
    s_add_u32 s{sT+2}, s{sT+2}, s{sT}
    v_add_u32 v{vAT}, s{sT+2}, v{vL16}
    s_lshr_b32 s{sT+3}, s{sWq}, 1                ; nt
    v_bfe_u32 v{t0}, v{vLane}, 2, 2
    v_lshrrev_b32 v{t1}, 5, v{vLane}
    v_lshl_add_u32 v{t1}, v{t1}, 3, v{t0}
    v_bfe_u32 v{t2}, v{vLane}, 4, 1
    v_lshlrev_b32 v{t2}, 1, v{t2}
    v_and_b32 v{t3}, 1, v{vLane}
    v_add_u32 v{t2}, v{t2}, v{t3}
    s_lshl_b32 s{sT+4}, s{sT+3}, 2
    v_add_u32 v{t2}, s{sT+4}, v{t2}
    v_lshlrev_b32 v{t0}, 1, v{t0}
    v_and_b32 v{t0}, 4, v{t0}
    v_xor_b32 v{t2}, v{t2}, v{t0}
    v_lshlrev_b32 v{t2}, 4, v{t2}
    v_lshl_add_u32 v{t2}, v{t1}, 7, v{t2}
    v_bfe_u32 v{t3}, v{vLane}, 1, 1
    v_lshl_add_u32 v{t2}, v{t3}, 3, v{t2}
    s_add_u32 s{sT+4}, s{sT}, 8192
    v_add_u32 v{vAW}, s{sT+4}, v{t2}
    v_add_u32 v{vAT+1}, {2*STAGE}, v{vAT}
    v_add_u32 v{vAT+2}, {4*STAGE}, v{vAT}
    v_add_u32 v{vAW+1}, {2*STAGE}, v{vAW}
    v_add_u32 v{vAW+2}, {4*STAGE}, v{vAW}
    ; out / x address: row = tb*64 + tt*32 + l%32 ; col bytes = nb*128 + nt*64 + role*32 + h*16
    v_and_b32 v{t0}, 31, v{vLane}
    v_lshlrev_b32 v{t0}, 10, v{t0}
    v_lshrrev_b32 v{t1}, 5, v{vLane}
    v_lshl_add_u32 v{t0}, v{t1}, 4, v{t0}
    s_lshl_b32 s{sT+4}, s{sTB}, 16
    s_lshl_b32 s{sT+5}, s{sT+1}, 15
    s_add_u32 s{sT+4}, s{sT+4}, s{sT+5}
    s_lshl_b32 s{sT+5}, s{sNB}, 7
    s_add_u32 s{sT+4}, s{sT+4}, s{sT+5}
    s_lshl_b32 s{sT+5}, s{sT+3}, 6
    s_add_u32 s{sT+4}, s{sT+4}, s{sT+5}
    s_lshl_b32 s{sT+5}, s{sR}, 5
    s_add_u32 s{sT+4}, s{sT+4}, s{sT+5}
    v_add_u32 v{vOA}, s{sT+4}, v{t0}
    s_waitcnt lgkmcnt(0)
    buffer_load_dwordx4 {vr(vX,4)}, v{vOA}, {sr(sXS,4)}, 0 offen
    """)


def compute_main(k):
    t0 = vT
    stamp(k, 1)
    for st in range(NST + 1):
        mm = []
        if st > 0:
            p = st - 1
            acc = vA1 if p < 8 else vA2
            b = p % 2
            for ks in range(4):
                first = (p == 0 or p == 8) and ks == 0
                mm.append(mfma32(acc, vFA + 16 * b + 4 * ks, vFB + 16 * b + 4 * ks, None if first else acc))
        if st < NST:
            k("s_waitcnt lgkmcnt(0)\ns_barrier")
            seq = []
            for ks in range(4):
                seq += reads(st, ks)
                if ks < len(mm):
                    seq.append(mm[ks])
            for a in seq:
                k(a)
        else:
            for a in mm:
                k(a)
    stamp(k, 2)
    S, T = vFA, vFA + 8
    k(f"""
    s_mul_i32 s{sT}, s{sWq}, 6144
    s_add_u32 s{sT}, s{sT}, {STAGE}
    v_add_u32 v{t0}, s{sT}, v{vL16}
    s_cmp_eq_u32 s{sR}, 0
    s_cbranch_scc1 k3_x
    """)
    for i in range(0, 16, 2):
        k(f"v_pk_add_f32 {vr(vA1+i,2)}, {vr(vA1+i,2)}, {vr(vA2+i,2)}")
    k(f"""
    ds_write_b128 v{t0}, {vr(vA1,4)} offset:4096
    ds_write_b128 v{t0}, {vr(vA1+4,4)} offset:5120
    s_waitcnt lgkmcnt(0)
    s_barrier
    ds_read_b128 {vr(S,4)}, v{t0}
    ds_read_b128 {vr(S+4,4)}, v{t0} offset:1024
    ds_read_b128 {vr(T,4)}, v{t0} offset:2048
    ds_read_b128 {vr(T+4,4)}, v{t0} offset:3072
    """)
    for i in range(0, 8, 2):
        k(f"v_pk_add_f32 {vr(T+i,2)}, {vr(T+i,2)}, {vr(vA1+8+i,2)}")
    k("s_branch k3_fin1")
    k.label("k3_x")
    k(f"""
    ds_write_b128 v{t0}, {vr(vA1+8,4)}
    ds_write_b128 v{t0}, {vr(vA1+12,4)} offset:1024
    ds_write_b128 v{t0}, {vr(vA2+8,4)} offset:2048
    ds_write_b128 v{t0}, {vr(vA2+12,4)} offset:3072
    s_waitcnt lgkmcnt(0)
    s_barrier
    ds_read_b128 {vr(T,4)}, v{t0} offset:4096
    ds_read_b128 {vr(T+4,4)}, v{t0} offset:5120
    """)
    for i in range(8):
        k(f"v_mov_b32 v{S+i}, v{vA1+i}")
    for i in range(0, 8, 2):
        k(f"v_pk_add_f32 {vr(T+i,2)}, {vr(T+i,2)}, {vr(vA2+i,2)}")
    k.label("k3_fin1")
    E, F = vFB, vFB + 8
    k(f"s_mov_b32 s{sT}, 0xbfb8aa3b")
    for i in range(8):
        k(f"v_mul_f32 v{E+i}, s{sT}, v{T+i}")
    for i in range(8):
        k(f"v_exp_f32 v{E+i}, v{E+i}")
    for i in range(0, 8, 2):
        k(f"v_pk_mul_f32 {vr(T+i,2)}, {vr(T+i,2)}, {vr(S+i,2)}")
    for i in range(8):
        k(f"v_add_f32 v{E+i}, 1.0, v{E+i}")
    for i in range(8):
        k(f"v_rcp_f32 v{E+i}, v{E+i}")
    for i in range(4):
        k(f"v_lshlrev_b32 v{F+2*i}, 16, v{vX+i}\nv_and_b32 v{F+2*i+1}, 0xffff0000, v{vX+i}")
    for i in range(0, 8, 2):
        k(f"v_pk_fma_f32 {vr(F+i,2)}, {vr(T+i,2)}, {vr(E+i,2)}, {vr(F+i,2)}")
    for i in range(4):
        k(f"v_cvt_pk_bf16_f32 v{vX+i}, v{F+2*i}, v{F+2*i+1}")
    k(f"buffer_store_dwordx4 {vr(vX,4)}, v{vOA}, {sr(sOUT,4)}, 0 offen")


def dep_slots():
    v, s = vA1, sT + 10
    return f"""
    s_lshr_b32 s{s}, s{sTB}, 2
    s_lshl_b32 s{s}, s{s}, 3
    v_and_b32 v{v}, 3, v{vLane}
    v_lshlrev_b32 v{v}, 6, v{v}
    v_bfe_u32 v{v+1}, v{vLane}, 2, 3
    v_add3_u32 v{v}, v{v}, v{v+1}, s{s}
    v_subrev_u32 v{v+1}, 32, v{vLane}
    v_min_u32 v{v+1}, 13, v{v+1}
    v_cmp_lt_u32 vcc, 6, v{v+1}
    v_subrev_u32 v{v+2}, 7, v{v+1}
    v_cndmask_b32 v{v+1}, v{v+1}, v{v+2}, vcc
    v_lshlrev_b32 v{v+1}, 5, v{v+1}
    v_cndmask_b32 v{v+2}, 0, 4, vcc
    s_lshr_b32 s{s}, s{sTB}, 1
    s_and_b32 s{s+1}, s{s}, 3
    s_lshl_b32 s{s+1}, s{s+1}, 3
    s_lshr_b32 s{s}, s{s}, 2
    s_add_u32 s{s}, s{s}, s{s+1}
    v_add3_u32 v{v+1}, v{v+1}, v{v+2}, s{s}
    v_cmp_lt_u32 vcc, 31, v{vLane}
    v_cndmask_b32 v{v}, v{v}, v{v+1}, vcc
    """


def gen_k3(k=None):
    if k is None:
        k = Kernel("k3_kernel")
    stamp(k, 0)
    if not FUSED:
        k("s_cmp_ge_u32 s2, 256\ns_cbranch_scc1 k3_end")
    k("s_setprio 0")
    common_setup(k)
    k(f"s_cmp_ge_u32 s{sW}, 8\ns_cbranch_scc1 k3_loader")
    compute_setup(k)
    if FUSED:
        k("s_barrier")
    compute_main(k)
    k("s_branch k3_fin")
    k.label("k3_loader")
    loader_setup(k)
    if FUSED:
        for st in range(NS):
            dma_w(k, st)
        gbar.wait(k, 1, sWS, sW, sT + 10, vA1, dep_slots())
        k("s_barrier")
    loader_main(k, FUSED)
    k.label("k3_fin")
    if STAMP:
        k("s_waitcnt vmcnt(0)")
    stamp(k, 3)
    stamp_store(k, 4)
    if FUSED:
        return k
    k("k3_end:\ns_endpgm")
    k.finish()
    return k


if __name__ == "__main__":
    import sys
    STAMP = "stamp" in sys.argv
    k = gen_k3()
    print(build_file("; test", [("k3_kernel", 256, 768, LDS_K3)], [k]))
```

```python
import os
import struct
from asmlib import *
from layout import *

X = set(os.environ.get('K1X', '').split(','))
STAGE = 32768
NS = 4
O_W = 16384
L_IMG = NS * STAGE
L_TAG = L_IMG + 16384
L_CSW = L_TAG + 256
L_RS = L_CSW + 4096
LDS_K1 = L_RS + 1024

vLane = 1
vL16 = 2
vDX, vDW = 3, 5
vAX = 9
vAW = 13
vTag = 15
vT = 16
ACC = 32
FX = 96
FW = 108
vGR = 156
vGC = 160
vGA = 164
vK = 0

sWS, sXS, sWW, sWI, sDBG = 4, 8, 12, 16, 20
sW, sRH, sRB, sCG, sUn = 24, 25, 26, 27, 28
sKX, sKW, sKQ = 29, 30, 31
sMX, sMW = 32, 33
sKind, sIdx, sT32, sGU = 34, 35, 36, 37
sCSo = 38
sT = 40
sSpin = 61

C0 = -2.0 * 1.4426950408889634 * 0.7978845608028654
C1 = C0 * 0.044715
QS = 0.25 * 1.4426950408889634
STAMP = False
FUSED = False
sTagS = 99
WT = os.environ.get('WT', '')
BC = "op_sel_hi:[1,0]"


def f32(x):
    return "0x%08x" % struct.unpack("<I", struct.pack("<f", x))[0]


def stamp(k, i):
    if STAMP:
        if i == 0:
            k("s_memrealtime s[80:81]")
        if i == 3:
            k("s_memrealtime s[82:83]")
        k(f"s_memtime {sr(64+2*i,2)}\ns_waitcnt lgkmcnt(0)")


def stamp_store(k, n):
    if not STAMP:
        return
    k(f"s_mul_i32 s62, s2, 12\ns_add_u32 s62, s62, s{sW}\ns_lshl_b32 s62, s62, 5\ns_add_u32 s62, s62, {WS_STAMP}")
    for i in range(n):
        k(f"s_sub_u32 s63, s{64+2*i}, s64\nv_mov_b32 v{vT}, s63\nv_mov_b32 v{vT+1}, 0\nbuffer_store_dword v{vT}, v{vT+1}, {sr(sWS,4)}, s62 offen offset:{4*i}")
    for j, r in ((6, 80), (7, 82)):
        k(f"v_mov_b32 v{vT}, s{r}\nv_mov_b32 v{vT+1}, 0\nbuffer_store_dword v{vT}, v{vT+1}, {sr(sWS,4)}, s62 offen offset:{4*j}")


def mfma32(d, a, b, c):
    cs = "0" if c is None else vr(c, 16)
    return f"v_mfma_f32_32x32x16_bf16 {vr(d,16)}, {vr(a,4)}, {vr(b,4)}, {cs}"


def dma(t):
    base = (t % NS) * STAGE
    out = []
    for j in range(4):
        e = f"s_add_u32 m0, s{sMX}, {base+1024*j}\n"
        if j == 2:
            e += f"s_add_u32 s{sT}, s{sKX}, 16384\n"
        e += f"buffer_load_dwordx4 v{vDX+j%2}, {sr(sXS,4)}, s{sT if j >= 2 else sKX} offen lds"
        out.append(e)
    srd, so, va, pitch = (sWI, sKW, vDW, 3584) if t < 8 else (sWW, sKQ, vDW + 1, 3072)
    for j in range(4):
        e = (f"s_add_u32 m0, s{sMW}, {base+1024*j}\nbuffer_load_dwordx4 v{va}, {sr(srd,4)}, s{so} offen lds\n"
             f"s_add_u32 s{so}, s{so}, {pitch*(8 if j < 3 else 40)}")
        if j == 3:
            e += (f"\ns_add_u32 s{sKX}, s{sKX}, 128\ns_and_b32 s{sKX}, s{sKX}, 1023\n"
                  f"s_cselect_b32 s{sT}, 0, {512*pitch}\ns_sub_u32 s{so}, s{so}, s{sT}")
        out.append(e)
    return out


def loader(k):
    t0, t1, t2, t3 = vT, vT + 1, vT + 2, vT + 3
    k(f"""
    s_setprio 3
    s_lshl_b32 s{sMX}, s{sUn}, 12
    v_lshrrev_b32 v{t0}, 3, v{vLane}
    v_and_b32 v{t1}, 7, v{vLane}
    v_lshrrev_b32 v{t2}, 1, v{t0}
    v_xor_b32 v{t2}, v{t2}, v{t1}
    v_lshlrev_b32 v{t2}, 4, v{t2}
    v_lshl_add_u32 v{t2}, v{t0}, 10, v{t2}
    s_lshl_b32 s{sT+5}, s{sRB}, 17
    s_lshl_b32 s{sT+6}, s{sUn}, 15
    s_add_u32 s{sT+5}, s{sT+5}, s{sT+6}
    v_add_u32 v{vDX}, s{sT+5}, v{t2}
    v_xor_b32 v{t2}, 64, v{t2}
    s_add_u32 s{sT+5}, s{sT+5}, 8192
    v_add_u32 v{vDX+1}, s{sT+5}, v{t2}
    ; W: chunk = (l%8) ^ (4*((row>>1)&1)), row = l/8
    v_lshlrev_b32 v{t2}, 1, v{t0}
    v_and_b32 v{t2}, 4, v{t2}
    v_xor_b32 v{t2}, v{t2}, v{t1}
    v_lshlrev_b32 v{t2}, 4, v{t2}
    v_mul_u32_u24 v{t3}, 3584, v{t0}
    v_add_u32 v{vDW}, v{t3}, v{t2}
    v_mul_u32_u24 v{t3}, 3072, v{t0}
    v_add_u32 v{vDW+1}, v{t3}, v{t2}
    s_lshr_b32 s{sT+1}, s{sUn}, 1
    s_and_b32 s{sT+2}, s{sUn}, 1
    s_lshl_b32 s{sKW}, s{sCG}, 7
    s_cmp_eq_u32 s{sT+1}, 0
    s_cselect_b32 s{sT+3}, 1792, 0
    s_add_u32 s{sKW}, s{sKW}, s{sT+3}
    s_mul_i32 s{sT+3}, s{sT+2}, {32*3584}
    s_add_u32 s{sKW}, s{sKW}, s{sT+3}
    s_lshl_b32 s{sKQ}, s{sCG}, 8
    s_lshl_b32 s{sT+3}, s{sT+1}, 7
    s_add_u32 s{sKQ}, s{sKQ}, s{sT+3}
    s_mul_i32 s{sT+3}, s{sT+2}, {32*3072}
    s_add_u32 s{sKQ}, s{sKQ}, s{sT+3}
    s_add_u32 s{sMW}, s{sMX}, {O_W}
    s_and_b32 s{sT+3}, s2, {7 if 'rot' in X else (6 if 'rot6' in X else 0)}
    s_lshl_b32 s{sKX}, s{sT+3}, 7
    s_mul_i32 s{sT+4}, s{sT+3}, {64*3584}
    s_add_u32 s{sKW}, s{sKW}, s{sT+4}
    s_mul_i32 s{sT+4}, s{sT+3}, {64*3072}
    s_add_u32 s{sKQ}, s{sKQ}, s{sT+4}
    s_waitcnt lgkmcnt(0)
    """)
    for a in dma(0):
        k(a, tag=("st", 0))
    for a in dma(1):
        k(a, tag=("st", 1))
    stamp(k, 1)
    for t in range(16):
        if t == 5:
            k(f"s_cmp_ge_u32 s{sCG}, 12\ns_cbranch_scc1 k1_ltail")
        k.wait_tag(("st", t))
        k("s_waitcnt lgkmcnt(0)\ns_barrier")
        if 'prof' in X:
            k(f"s_memtime s[84:85]\ns_memrealtime s[86:87]\ns_waitcnt lgkmcnt(0)\nv_writelane_b32 v40, s84, {t}\nv_writelane_b32 v41, s86, {t}")
        if t == 0:
            for a in dma(2):
                k(a, tag=("st", 2))
        if t + 3 < 16 and 'nodma' not in X:
            for a in dma(t + 3):
                k(a, tag=("st", t + 3))
    if 'prof' in X:
        k(f"""
        v_writelane_b32 v40, s64, 16
        v_writelane_b32 v41, s80, 16
        s_lshl_b32 s88, s2, 9
        s_add_u32 s88, s88, {WS_STAMP + 3*262144}
        v_lshlrev_b32 v42, 3, v{vLane}
        buffer_store_dwordx2 v[40:41], v42, {sr(sWS,4)}, s88 offen
        """)
    k("s_branch k1_ldone")
    k.label("k1_ltail")
    for t in range(5, 8):
        k.wait_tag(("st", t))
        k("s_barrier")
    if FUSED:
        for t in range(8):
            k("s_barrier")
    k.label("k1_ldone")
    k(f"v_mov_b32 v{t0}, {L_TAG}\nds_read_b32 v{vTag}, v{t0}\nv_readfirstlane_b32 s{sTagS}, v{vTag}")


def reads(ks, buf):
    out = [f"ds_read_b128 {vr(FX+4*buf,4)}, v{vAX+ks}"]
    for c in range(4):
        d = FW + 16 * buf + 4 * c
        o = (c // 2) * 8192 + ks * 2048
        out.append(f"ds_read_b64_tr_b16 {vr(d,2)}, v{vAW+c%2} offset:{o}")
        out.append(f"ds_read_b64_tr_b16 {vr(d+2,2)}, v{vAW+c%2} offset:{o+512}")
    return out


def mms(buf, first):
    return [mfma32(ACC + 16 * c, FW + 16 * buf + 4 * c, FX + 4 * buf, None if first else ACC + 16 * c) for c in range(4)]


def gather_loads():
    e = ""
    if 'lrs' not in X:
        e = f"buffer_load_dwordx4 {vr(vGR,4)}, v{vGA}, {sr(sWS,4)}, 0 offen sc0 sc1\n"
    for un in range(2):
        e += f"buffer_load_dwordx2 {vr(vGC+2*un,2)}, v{vGA+1}, {sr(sWS,4)}, s{sCSo+un} offen sc0 sc1\n"
    return e


def check_tags(k, regs, Lok, tmp):
    k(f"v_xor_b32 v{tmp}, v{regs[0]}, v{vTag}")
    for r in regs[1:]:
        k(f"v_xor_b32 v{tmp+1}, v{r}, v{vTag}\nv_or_b32 v{tmp}, v{tmp}, v{tmp+1}")
    k(f"v_cmp_ne_u32 vcc, 0, v{tmp}\ns_cmp_eq_u64 vcc, 0\ns_cbranch_scc1 {Lok}")


def poll_tag(k, first_issued):
    Lr, Lok = k.newlabel("tagpoll"), k.newlabel("tagok")
    if first_issued:
        k(f"v_readfirstlane_b32 s{sT}, v{vTag}\ns_cmp_lg_u32 s{sT}, 0\ns_cbranch_scc1 {Lok}")
    k(f"""
    {Lr}:
    buffer_load_dword v{vTag}, v{vGA+2}, {sr(sDBG,4)}, 0 offen sc0 sc1
    v_readfirstlane_b32 s{sT}, v{vTag}
    s_cmp_lg_u32 s{sT}, 0
    s_cbranch_scc1 {Lok}
    s_sleep 2
    s_sub_u32 s{sSpin}, s{sSpin}, 1
    s_cbranch_scc0 {Lr}
    {Lok}:
    """)


def main_loop(k):
    t0 = vT
    LA = 2
    for p in range(8):
        k("s_waitcnt lgkmcnt(0)\ns_barrier")
        if p > 0:
            step = STAGE if p % NS else -(NS - 1) * STAGE
            for r in (vAX, vAX + 1, vAX + 2, vAX + 3, vAW, vAW + 1):
                k(f"v_add_u32 v{r}, {step & 0xffffffff:#x}, v{r}")
        for ks in range(4):
            g = 4 * p + ks
            r = reads(ks, g % 3)
            m = mms((g - LA) % 3, g - LA == 0) if g >= LA else []
            seq = interleave(m, r) if ks < 3 else (m[:1] + r[:5] + m[1:2] + r[5:] + m[2:])
            for a in seq:
                k(a)
            if p == 5 and ks == 0:
                k(f"v_mov_b32 v{t0}, {L_TAG}\nds_read_b32 v{vTag}, v{t0}")
            if p == 6 and ks == 2:
                k(gather_loads())
    for g in range(32 - LA, 32):
        for a in mms(g % 3, False):
            k(a)


def row_stats(k):
    t0, t1, t2, t3 = vT, vT + 1, vT + 2, vT + 3
    S = ACC
    D = ACC + 8
    U = ACC + 40
    for i in range(4):
        k(f"v_mov_b32 v{S+i}, 0")
    if 'rprio' in X:
        k("s_setprio 2")

    def crunch(b):
        for i in range(16):
            u = U + 2 * (i % 4)
            k(f"""
            v_lshlrev_b32 v{u}, 16, v{D+16*b+i}
            v_and_b32 v{u+1}, 0xffff0000, v{D+16*b+i}
            v_add_f32 v{S}, v{S}, v{u}
            v_add_f32 v{S+1}, v{S+1}, v{u+1}
            v_fmac_f32 v{S+2}, v{u}, v{u}
            v_fmac_f32 v{S+3}, v{u+1}, v{u+1}
            """)
    for p in range(8):
        k("s_waitcnt lgkmcnt(0)\ns_barrier")
        o = (p % 2) * STAGE
        if p in (2, 6):
            for r in range(4):
                k(f"v_add_u32 v{vAX+r}, {2*STAGE}, v{vAX+r}")
        if p == 4:
            for r in range(4):
                k(f"v_subrev_u32 v{vAX+r}, {2*STAGE}, v{vAX+r}")
        for ks in range(4):
            k(f"ds_read_b128 {vr(D+16*(p%2)+4*ks,4)}, v{vAX+ks} offset:{o}")
        if 'nocr' not in X:
            crunch(p % 2)
    for r in range(4):
        k(f"v_subrev_u32 v{vAX+r}, {2*STAGE}, v{vAX+r}")
    k(f"""
    v_add_f32 v{S}, v{S}, v{S+1}
    v_add_f32 v{S+2}, v{S+2}, v{S+3}
    v_mov_b32 v{t0}, v{S}
    v_mov_b32 v{t1}, v{S+2}
    v_permlane32_swap_b32 v{S}, v{t0}
    v_permlane32_swap_b32 v{S+2}, v{t1}
    v_add_f32 v{t0}, v{t0}, v{S}
    v_add_f32 v{t1}, v{t1}, v{S+2}
    v_mul_f32 v{t0}, {f32(1.0/512)}, v{t0}
    v_mul_f32 v{t1}, {f32(1.0/512)}, v{t1}
    v_fma_f32 v{t1}, -v{t0}, v{t0}, v{t1}
    v_max_f32 v{t1}, 0, v{t1}
    v_add_f32 v{t1}, {f32(1e-5)}, v{t1}
    v_rsq_f32 v{t1}, v{t1}
    v_mul_f32 v{t0}, v{t0}, v{t1}
    ds_write_b32 v{vGA}, v{t1}
    ds_write_b32 v{vGA}, v{t0} offset:512
    """)


def epi_addr(k):
    t0, t1, t2, t3 = vT, vT + 1, vT + 2, vT + 3
    k(f"""
    s_lshl_b32 s{sT}, s{sW}, 9
    s_add_u32 s{sT}, s{sT}, {L_CSW}
    v_lshlrev_b32 v{t0}, 2, v{vLane}
    v_add_u32 v{vT+4}, s{sT}, v{t0}
    v_lshrrev_b32 v{t2}, 5, v{vLane}             ; h
    v_lshlrev_b32 v{vT+6}, 5, v{t2}
    v_add_u32 v{vT+6}, s{sT}, v{vT+6}
    v_lshlrev_b32 v{vT+5}, 3, v{vLane}
    v_mov_b32 v3, {f32(C0)}
    v_and_b32 v{t0}, 31, v{vLane}
    v_and_b32 v{t1}, 1, v{t0}
    v_bfe_u32 v{t3}, v{t0}, 1, 1
    v_lshl_or_b32 v{t1}, v{t3}, 2, v{t1}
    v_bfe_u32 v{t3}, v{t0}, 2, 1
    v_lshl_or_b32 v{t1}, v{t3}, 1, v{t1}
    v_xor_b32 v{t1}, v{t1}, v{t2}
    v_lshlrev_b32 v{t1}, 4, v{t1}
    v_lshl_add_u32 v{t1}, v{t0}, 7, v{t1}
    v_add_u32 v{vT+8}, s{sT+1}, v{t1}
    v_xor_b32 v{vT+9}, 32, v{vT+8}
    v_xor_b32 v{vT+10}, 64, v{vT+8}
    v_xor_b32 v{vT+11}, 96, v{vT+8}
    v_bfe_u32 v{t0}, v{vLane}, 2, 2
    v_and_b32 v{t1}, 1, v{t0}
    v_lshrrev_b32 v{t3}, 1, v{t0}
    v_lshl_or_b32 v{t1}, v{t3}, 2, v{t1}
    v_bfe_u32 v{t3}, v{vLane}, 4, 1
    v_lshlrev_b32 v{t3}, 1, v{t3}
    v_and_b32 v{vT+7}, 1, v{vLane}
    v_or_b32 v{t3}, v{t3}, v{vT+7}
    v_xor_b32 v{t1}, v{t1}, v{t3}
    v_lshlrev_b32 v{t1}, 4, v{t1}
    v_lshl_add_u32 v{t0}, v{t2}, 3, v{t0}
    v_lshl_add_u32 v{t1}, v{t0}, 7, v{t1}
    v_bfe_u32 v{t3}, v{vLane}, 1, 1
    v_lshl_add_u32 v{t1}, v{t3}, 3, v{t1}
    v_add_u32 v{vT+12}, s{sT+1}, v{t1}
    v_xor_b32 v{vT+13}, 32, v{vT+12}
    v_xor_b32 v{vT+14}, 64, v{vT+12}
    v_xor_b32 v{vT+15}, 96, v{vT+12}
    v_and_b32 v{t0}, 15, v{vLane}
    v_lshlrev_b32 v{t0}, 4, v{t0}
    v_lshl_add_u32 v{t0}, v{t2}, 8, v{t0}
    v_bfe_u32 v{t3}, v{vLane}, 4, 1
    v_lshl_add_u32 v{vT+7}, v{t3}, 16, v{t0}
    """)


def get_stats(k):
    t0 = vT
    tagregs = [vGC + 1, vGC + 3] + ([vGR + 1, vGR + 3] if 'lrs' not in X else [])
    Lr, Lok = k.newlabel("g1"), k.newlabel("g1ok")
    check_tags(k, tagregs, Lok, t0)
    k(f"{Lr}:\ns_sleep 2")
    k(gather_loads())
    check_tags(k, tagregs, Lok, t0)
    k(f"s_sub_u32 s{sSpin}, s{sSpin}, 1\ns_cbranch_scc0 {Lr}\n{Lok}:")
    k(f"ds_write_b32 v{vT+4}, v{vGC}\nds_write_b32 v{vT+4}, v{vGC+2} offset:256")
    if 'lrs' in X:
        k(f"ds_read_b32 v{vGR}, v{vGA}\nds_read_b32 v{vGR+2}, v{vGA} offset:512")
    k("s_waitcnt lgkmcnt(0)")


def cs_reads(un):
    out = []
    for c in range(4):
        out.append(f"ds_read_b128 {vr(FW+8*c,4)}, v{vT+6} offset:{un*256+c*64}")
        out.append(f"ds_read_b128 {vr(FW+8*c+4,4)}, v{vT+6} offset:{un*256+c*64+16}")
    return out


def pack(A):
    return [f"v_cvt_pk_bf16_f32 v{A+8*c+i}, v{A+8*c+2*i}, v{A+8*c+2*i+1}" for c in range(4) for i in range(4)]


def tr_store(k, A, lane_reg, s0, kstride):
    for c in range(4):
        k(f"ds_write_b128 v{vT+8+c}, {vr(A+8*c,4)}")
    k(f"s_add_u32 s{sT+3}, s{s0}, 131072\ns_waitcnt lgkmcnt(0)")
    for ct in range(2):
        for ks in range(2):
            d = A + 8 * ct + 4 * ks
            k(f"ds_read_b64_tr_b16 {vr(d,2)}, v{vT+12+2*ct} offset:{ks*2048}")
            k(f"ds_read_b64_tr_b16 {vr(d+2,2)}, v{vT+13+2*ct} offset:{ks*2048+512}")
    for ct in range(2):
        for ks in range(2):
            k(f"buffer_store_dwordx4 {vr(A+8*ct+4*ks,4)}, v{lane_reg}, {sr(sWS,4)}, s{(s0, sT+3)[ct]} offen offset:{ks*kstride} {WT}")


def z_epilogue(k):
    t0, t1, t2, t3 = vT, vT + 1, vT + 2, vT + 3
    k("s_barrier")
    if 'zprio' in X:
        k("s_setprio 2")
    get_stats(k)
    k(f"s_mov_b32 s{sT+10}, {f32(C1)}")
    S = FX

    def unit_ops(un):
        A = ACC + 32 * un
        ops = list(cs_reads(un))
        for i in range(32):
            ops.append(f"v_mul_f32 v{A+i}, v{A+i}, v{vGR}")
        for i in range(32):
            ops.append(f"v_fma_f32 v{A+i}, -v{vGR+2}, v{FW+i}, v{A+i}")
        for h in range(2):
            R = [A + 16 * h + i for i in range(16)]
            T = [FW + i for i in range(16)]
            ops += [f"v_mul_f32 v{t}, v{r}, v{r}" for r, t in zip(R, T)]
            ops += [f"v_fma_f32 v{t}, v{t}, s{sT+10}, v3" for r, t in zip(R, T)]
            ops += [f"v_mul_f32 v{t}, v{t}, v{r}" for r, t in zip(R, T)]
            ops += [f"v_exp_f32 v{t}, v{t}" for r, t in zip(R, T)]
            ops += [f"v_add_f32 v{t}, 1.0, v{t}" for r, t in zip(R, T)]
            ops += [f"v_rcp_f32 v{t}, v{t}" for r, t in zip(R, T)]
            ops += [f"v_mul_f32 v{r}, v{r}, v{t}" for r, t in zip(R, T)]
        return ops

    ops = unit_ops(0)
    A = ACC
    ops += [f"v_add_f32 v{S}, v{A}, v{A+1}", f"v_mul_f32 v{S+2}, v{A}, v{A}", f"v_add_f32 v{S+1}, v{A+2}, v{A+3}",
            f"v_mul_f32 v{S+3}, v{A+1}, v{A+1}", f"v_fmac_f32 v{S+2}, v{A+2}, v{A+2}", f"v_fmac_f32 v{S+3}, v{A+3}, v{A+3}"]
    for i in range(4, 32):
        ops += [f"v_add_f32 v{S+i%2}, v{S+i%2}, v{A+i}", f"v_fmac_f32 v{S+2+i%2}, v{A+i}, v{A+i}"]
    ops.append(f"""
    v_add_f32 v{S}, v{S}, v{S+1}
    v_add_f32 v{S+2}, v{S+2}, v{S+3}
    v_permlane32_swap_b32 v{S}, v{S+2}
    v_add_f32 v{S}, v{S}, v{S+2}
    v_mov_b32 v{S+1}, v{vTag}
    s_mul_i32 s{sT+4}, s{sT32}, {14*512}
    s_add_u32 s{sT+4}, s{sT+4}, {WS_S2}
    s_lshl_b32 s{sT+1}, s{sCG}, 9
    s_add_u32 s{sT+1}, s{sT+1}, s{sT+4}
    buffer_store_dwordx2 {vr(S,2)}, v{vT+5}, {sr(sWS,4)}, s{sT+1} offen sc0 sc1
    """)
    n0 = len(ops)
    ops += unit_ops(1)
    ops += pack(ACC + 32)
    cost = [2 if o.startswith(("v_exp", "v_rcp")) else (3 if o.startswith("ds_") else (25 if "\n" in o else 1)) for o in ops]
    HEAD = int(os.environ.get('ZHEAD', '70'))
    tot = sum(cost) + HEAD
    nb = 7
    acc, nxt, placed = HEAD, 1, 0
    for i, (o, c) in enumerate(zip(ops, cost)):
        if not ('noz' in X and o.startswith('v_')):
            k(o)
        if i == n0 - 1:
            stamp(k, 4)
        acc += c
        if placed < nb and acc >= tot * nxt / nb - 1e-9:
            k("s_barrier")
            placed += 1
            nxt += 1
    assert placed == nb
    G = FW

    def g2loads():
        for i in range(7):
            if i % 4 == 0:
                k(f"s_add_u32 s{sT}, s{sT+4}, {1024*i}")
            k(f"buffer_load_dwordx4 {vr(G+4*i,4)}, v{vL16}, {sr(sWS,4)}, s{sT} offen offset:{1024*(i%4)} sc0 sc1")
    g2loads()
    k(f"""
    s_mul_i32 s{sT+1}, s{sT32}, {56*1024}
    s_lshl_b32 s{sT+2}, s{sCG}, 12
    s_add_u32 s{sT+1}, s{sT+1}, s{sT+2}
    s_add_u32 s{sT+1}, s{sT+1}, {WS_Z1}
    """)
    for c in range(4):
        k(f"buffer_store_dwordx4 {vr(ACC+32+8*c,4)}, v{vL16}, {sr(sWS,4)}, s{sT+1} offen offset:{1024*c} {WT}")
    stamp(k, 5)
    Lr, Lok = k.newlabel("g2"), k.newlabel("g2ok")
    check_tags(k, [G + 2 * j + 1 for j in range(14)], Lok, t0)
    k(f"{Lr}:")
    g2loads()
    check_tags(k, [G + 2 * j + 1 for j in range(14)], Lok, t0)
    k(f"s_sleep 1\ns_sub_u32 s{sSpin}, s{sSpin}, 1\ns_cbranch_scc0 {Lr}\n{Lok}:")
    stamp(k, 1)
    for i in range(1, 7):
        k(f"v_add_f32 v{G}, v{G}, v{G+4*i}\nv_add_f32 v{G+2}, v{G+2}, v{G+4*i+2}")
    k(f"""
    v_mov_b32 v{t0}, v{G}
    v_mov_b32 v{t1}, v{G+2}
    v_permlane32_swap_b32 v{G}, v{t0}
    v_permlane32_swap_b32 v{G+2}, v{t1}
    v_add_f32 v{G}, v{G}, v{t0}
    v_add_f32 v{G+1}, v{G+2}, v{t1}
    s_lshl_b32 s{sT}, s{sW}, 9
    s_add_u32 s{sT}, s{sT}, {L_CSW}
    v_and_b32 v{t2}, 31, v{vLane}
    v_lshlrev_b32 v{t3}, 3, v{t2}
    v_add_u32 v{t3}, s{sT}, v{t3}
    ds_write_b64 v{t3}, {vr(G,2)}
    v_lshlrev_b32 v{t3}, 2, v{t2}
    v_add_u32 v{t3}, s{sT}, v{t3}
    s_waitcnt lgkmcnt(0)
    ds_read_b32 v{t0}, v{t3}
    ds_read_b32 v{t1}, v{t3} offset:128
    s_lshl_b32 s{sT}, s{sCG}, 18
    s_lshl_b32 s{sT+1}, s{sT32}, 11
    s_add_u32 s{sT}, s{sT}, s{sT+1}
    s_add_u32 s{sT}, s{sT}, {WS_Z2}
    v_mul_f32 v{t0}, {f32(1.0/896)}, v{t0}
    v_mul_f32 v{t1}, {f32(1.0/896)}, v{t1}
    v_fma_f32 v{t1}, -v{t0}, v{t0}, v{t1}
    v_max_f32 v{t1}, 0, v{t1}
    v_add_f32 v{t1}, {f32(1e-5)}, v{t1}
    v_rsq_f32 v{t1}, v{t1}
    v_mul_f32 v{t0}, v{t0}, v{t1}
    """)
    for i in range(32):
        k(f"v_fma_f32 v{A+i}, v{A+i}, v{t1}, -v{t0}")
    for o in pack(A):
        k(o)
    tr_store(k, A, vL16, sT, 1024)


def q_epilogue(k):
    get_stats(k)
    k(f"""
    s_cmp_eq_u32 s{sKind}, 0
    s_cselect_b32 s{sT}, {f32(QS)}, 1.0
    v_mul_f32 v4, s{sT}, v{vGR}
    v_mul_f32 v5, s{sT}, v{vGR+2}
    s_lshl_b32 s{sT}, s{sCG}, 19
    s_lshl_b32 s{sT+1}, s{sT32}, 10
    s_add_u32 s{sT}, s{sT}, s{sT+1}
    s_add_u32 s{sT}, s{sT}, {WS_Q}
    """)
    for un in range(2):
        A = ACC + 32 * un
        for o in cs_reads(un):
            k(o)
        for i in range(0, 32, 2):
            k(f"v_pk_mul_f32 {vr(A+i,2)}, {vr(A+i,2)}, v[4:5] {BC}")
        for i in range(0, 32, 2):
            k(f"v_pk_fma_f32 {vr(A+i,2)}, {vr(FW+i,2)}, v[4:5], {vr(A+i,2)} op_sel:[0,1,0] op_sel_hi:[1,1,1] neg_lo:[1,0,0] neg_hi:[1,0,0]")
        for o in pack(A):
            k(o)
        Lv, Ld = k.newlabel("qv"), k.newlabel("qd")
        k(f"s_cmp_eq_u32 s{sKind}, 2\ns_cbranch_scc1 {Lv}")
        for c in range(4):
            k(f"buffer_store_dwordx4 {vr(A+8*c,4)}, v{vL16}, {sr(sWS,4)}, s{sT} offen {WT}\ns_add_u32 s{sT}, s{sT}, 65536")
        k(f"s_branch {Ld}\n{Lv}:")
        tr_store(k, A, vT + 7, sT, 512)
        k(f"s_add_u32 s{sT}, s{sT}, 262144\n{Ld}:")


def wave_allsum(k, regs, tmps):
    for sh in (8, 4, 2, 1):
        for r in regs:
            k(f"v_add_f32_dpp v{r}, v{r}, v{r} row_ror:{sh} row_mask:0xf bank_mask:0xf")
    for sw in ("v_permlane16_swap_b32", "v_permlane32_swap_b32"):
        for r, t in zip(regs, tmps):
            k(f"v_mov_b32 v{t}, v{r}")
        for r, t in zip(regs, tmps):
            k(f"{sw} v{r}, v{t}")
        for r, t in zip(regs, tmps):
            k(f"v_add_f32 v{r}, v{r}, v{t}")


def helper(k):
    t0, t1, t2, t3 = vT, vT + 1, vT + 2, vT + 3
    A = FX
    if 'lrs' not in X:
        D = ACC
        k(f"""
        s_cmp_lt_u32 s{sW}, 8
        s_cbranch_scc1 k1_hcol
        s_setprio 2
        s_lshl_b32 s{sT+6}, s2, 2
        s_add_u32 s{sT+6}, s{sT+6}, s{sW}
        s_sub_u32 s{sT+6}, s{sT+6}, 8
        s_lshl_b32 s{sT+7}, s{sT+6}, 14
        v_lshrrev_b32 v{t0}, 3, v{vLane}
        v_and_b32 v{t1}, 7, v{vLane}
        v_lshlrev_b32 v{t1}, 4, v{t1}
        v_lshl_add_u32 v{t1}, v{t0}, 10, v{t1}
        s_add_u32 s{sT+8}, s{sT+7}, 8192
        v_mov_b32 v3, 0x3f803f80
        """)
        for b in range(2):
            for i in range(8):
                k(f"buffer_load_dwordx4 {vr(D+32*b+4*i,4)}, v{t1}, {sr(sXS,4)}, s{sT+7+b} offen offset:{128*i}")
        k(f"buffer_load_dword v{vTag}, v{vGA+2}, {sr(sDBG,4)}, 0 offen sc0 sc1")
        for j in range(4):
            k(f"v_mov_b32 v{A+j}, 0")
        for b in range(2):
            for i in range(32):
                k(f"v_dot2c_f32_bf16 v{A+2*b}, v{D+32*b+i}, v3\nv_dot2c_f32_bf16 v{A+2*b+1}, v{D+32*b+i}, v{D+32*b+i}")
        for m in ("quad_perm:[1,0,3,2]", "quad_perm:[2,3,0,1]", "row_half_mirror"):
            for j in range(4):
                k(f"v_add_f32_dpp v{A+j}, v{A+j}, v{A+j} {m} row_mask:0xf bank_mask:0xf")
        k(f"""
        v_and_b32 v{t2}, 1, v{vLane}
        v_cmp_eq_u32 vcc, 1, v{t2}
        v_cndmask_b32 v{A}, v{A}, v{A+2}, vcc
        v_cndmask_b32 v{A+1}, v{A+1}, v{A+3}, vcc
        v_mul_f32 v{A}, {f32(1.0/512)}, v{A}
        v_mul_f32 v{A+1}, {f32(1.0/512)}, v{A+1}
        v_fma_f32 v{A+1}, -v{A}, v{A}, v{A+1}
        v_max_f32 v{A+1}, 0, v{A+1}
        v_add_f32 v{A+1}, {f32(1e-5)}, v{A+1}
        v_rsq_f32 v{D}, v{A+1}
        v_mul_f32 v{D+2}, v{D}, v{A}
        v_lshl_add_u32 v{t0}, v{t2}, 3, v{t0}
        v_lshlrev_b32 v{t0}, 4, v{t0}
        """)
        poll_tag(k, True)
        k(f"""
        v_mov_b32 v{D+1}, v{vTag}
        v_mov_b32 v{D+3}, v{vTag}
        s_lshl_b32 s{sT+7}, s{sT+6}, 8
        s_add_u32 s{sT+7}, s{sT+7}, {WS_RS}
        s_mov_b32 exec_lo, 0x03030303
        s_mov_b32 exec_hi, 0x03030303
        buffer_store_dwordx4 {vr(D,4)}, v{t0}, {sr(sWS,4)}, s{sT+7} offen sc0 sc1
        s_mov_b64 exec, -1
        s_setprio 0
        k1_hcol:
        """)
    k(f"""
    s_cmp_ge_u32 s2, 28
    s_cbranch_scc1 k1_hpre
    s_add_u32 s{sGU}, s2, 24
    s_min_u32 s{sT}, s2, 23
    s_lshl_b32 s{sT+1}, s2, 7
    s_lshl_b32 s{sT+2}, s{sT}, 7
    s_lshl_b32 s{sT+4}, s{sW}, 6
    s_sub_u32 s{sT+5}, s{sW}, 8
    s_lshl_b32 s{sT+5}, s{sT+5}, 7
    s_cmp_lt_u32 s{sW}, 8
    s_cselect_b32 s{sGU}, s{sGU}, s{sT}
    s_cselect_b32 s{sT+1}, s{sT+1}, s{sT+2}
    s_cselect_b32 s{sT+4}, s{sT+4}, s{sT+5}
    s_cselect_b32 s{sT+3}, 512, 0
    s_cselect_b32 s{sWW}, s{sWI}, s{sWW}
    s_cselect_b32 s{sWW+1}, s{sWI+1}, s{sWW+1}
    s_cselect_b32 s{sWW+2}, s{sWI+2}, s{sWW+2}
    s_add_u32 s{sT+3}, s{sT+3}, 3072             ; pitch
    v_lshrrev_b32 v{t0}, 3, v{vLane}
    v_add_u32 v{t0}, s{sT+4}, v{t0}
    v_mul_lo_u32 v{t0}, v{t0}, s{sT+3}
    v_and_b32 v{t1}, 7, v{vLane}
    v_lshl_add_u32 v{t0}, v{t1}, 4, v{t0}
    s_lshl_b32 s{sT+3}, s{sT+3}, 3
    """)

    def loads(b):
        for i in range(8):
            k(f"buffer_load_dwordx4 {vr(ACC+32*b+4*i,4)}, v{t0}, {sr(sWW,4)}, s{sT+1} offen")
            k(f"s_add_u32 s{sT+1}, s{sT+1}, s{sT+3}")

    def accum(b):
        for i in range(8):
            for r in range(4):
                src = ACC + 32 * b + 4 * i + r
                if i == 0 and b == 0:
                    k(f"v_lshlrev_b32 v{A+2*r}, 16, v{src}\nv_and_b32 v{A+2*r+1}, 0xffff0000, v{src}")
                else:
                    k(f"v_lshlrev_b32 v{t2}, 16, v{src}\nv_and_b32 v{t3}, 0xffff0000, v{src}\n"
                      f"v_pk_add_f32 {vr(A+2*r,2)}, {vr(A+2*r,2)}, {vr(t2,2)}")

    def reduce_write():
        regs = [A + i for i in range(8)]
        tm = [A + 8 + i for i in range(8)]
        for r in regs:
            k(f"v_add_f32_dpp v{r}, v{r}, v{r} row_ror:8 row_mask:0xf bank_mask:0xf")
        for sw in ("v_permlane16_swap_b32", "v_permlane32_swap_b32"):
            for r, t in zip(regs, tm):
                k(f"v_mov_b32 v{t}, v{r}")
            for r, t in zip(regs, tm):
                k(f"{sw} v{r}, v{t}")
            for r, t in zip(regs, tm):
                k(f"v_add_f32 v{r}, v{r}, v{t}")
        k(f"""
        s_lshl_b32 s{sT}, s{sW}, 8
        v_lshlrev_b32 v{t0}, 5, v{t1}
        v_add_u32 v{t0}, s{sT}, v{t0}
        ds_write_b128 v{t0}, {vr(A,4)}
        ds_write_b128 v{t0}, {vr(A+4,4)} offset:16
        s_waitcnt lgkmcnt(0)
        """)

    def publish(n):
        k(f"s_lshl_b32 s{sT}, s{sW}, 8\nv_lshlrev_b32 v{t0}, 2, v{vLane}\nv_add_u32 v{t0}, s{sT}, v{t0}")
        for i in range(n):
            k(f"ds_read_b32 v{A+i}, v{t0} offset:{256*i}")
        poll_tag(k, True)
        for i in range(1, n):
            k(f"v_add_f32 v{A}, v{A}, v{A+i}")
        k(f"""
        s_lshl_b32 s{sT}, s{sGU}, 9
        s_add_u32 s{sT}, s{sT}, {WS_CS}
        v_lshlrev_b32 v{t0}, 3, v{vLane}
        v_mov_b32 v{A+1}, v{vTag}
        buffer_store_dwordx2 {vr(A,2)}, v{t0}, {sr(sWS,4)}, s{sT} offen sc0 sc1
        """)
    loads(0)
    k(f"s_cmp_ge_u32 s{sW}, 8\ns_cbranch_scc1 k1_hq")
    k(f"s_setprio 2\nbuffer_load_dword v{vT+8}, v{vGA+2}, {sr(sDBG,4)}, 0 offen sc0 sc1")
    accum(0)
    reduce_write()
    k(f"s_barrier\ns_cmp_lg_u32 s{sW}, 0\ns_cbranch_scc1 k1_hz\nv_or_b32 v{vTag}, v{vTag}, v{vT+8}")
    publish(8)
    k.label("k1_hz")
    if FUSED:
        k("s_barrier")
    k("s_branch k1_hpre")
    k.label("k1_hq")
    loads(1)
    k("s_barrier")
    accum(0)
    accum(1)
    reduce_write()
    k(f"s_barrier\ns_cmp_lg_u32 s{sW}, 8\ns_cbranch_scc1 k1_hpre")
    publish(4)
    k.label("k1_hpre")
    if FUSED:
        k(f"s_cmp_lg_u32 s{sW}, 8\ns_cbranch_scc1 k1_fin")
        poll_tag(k, True)
        k(f"s_mov_b32 s{sTagS}, s{sT}")


def gen_k1(k=None):
    if k is None:
        k = Kernel("k1_kernel")
    t0, t1, t2, t3 = vT, vT + 1, vT + 2, vT + 3
    stamp(k, 0)
    if STAMP:
        for i in (1, 2, 4, 5):
            k(f"s_mov_b64 {sr(64+2*i,2)}, s[64:65]")
    k(f"""
    s_cmp_ge_u32 s2, 256
    s_cbranch_scc1 {'fz_end' if FUSED else 'k1_end'}
    s_load_dwordx2 {sr(sXS,2)}, s[0:1], {KA_X}
    s_load_dwordx2 {sr(sWW,2)}, s[0:1], {KA_WQKV}
    s_load_dwordx2 {sr(sWI,2)}, s[0:1], {KA_WIN}
    s_load_dwordx2 {sr(sWS,2)}, s[0:1], {KA_WS}
    s_load_dwordx2 {sr(sDBG,2)}, s[0:1], {KA_DBG}
    s_memrealtime {sr(sT+14,2)}
    v_lshrrev_b32 v{t0}, 6, v0
    v_and_b32 v{vLane}, 63, v0
    v_readfirstlane_b32 s{sW}, v{t0}
    v_lshlrev_b32 v{vL16}, 4, v{vLane}
    s_mov_b32 s{sWS+2}, {WS_SIZE}
    s_mov_b32 s{sWS+3}, 0x00020000
    s_mov_b32 s{sXS+2}, {2048*1024}
    s_mov_b32 s{sXS+3}, 0x00020000
    s_mov_b32 s{sWW+2}, {512*3072}
    s_mov_b32 s{sWW+3}, 0x00020000
    s_mov_b32 s{sWI+2}, {512*3584}
    s_mov_b32 s{sWI+3}, 0x00020000
    s_mov_b32 s{sDBG+2}, 256
    s_mov_b32 s{sDBG+3}, 0x00020000
    s_mov_b32 s{sSpin}, 200000
    s_mov_b32 s{sTagS}, 0
    s_mov_b32 s98, 255
    s_and_b32 s{sT}, s2, 31
    s_lshl_b32 s{sT}, s{sT}, 2
    s_add_u32 s{sT}, s{sT}, 128
    v_mov_b32 v{vGA+2}, s{sT}
    s_cmp_lt_u32 s2, 32
    s_cbranch_scc1 k1_helper
    ; xcd = wg&7, j = (wg>>3) - 4 (0..27): rb = 4(xcd/2) + j/7, cg = 7(xcd%2) + j%7
    s_and_b32 s{sT}, s2, 7
    s_lshr_b32 s{sT+1}, s2, 3
    s_sub_u32 s{sT+1}, s{sT+1}, 4
    s_mul_i32 s{sT+5}, s{sT+1}, 37
    s_lshr_b32 s{sT+5}, s{sT+5}, 8
    s_mul_i32 s{sT+6}, s{sT+5}, 7
    s_sub_u32 s{sCG}, s{sT+1}, s{sT+6}
    s_and_b32 s{sT+2}, s2, 1
    s_mul_i32 s{sT+6}, s{sT+2}, 7
    s_add_u32 s{sCG}, s{sCG}, s{sT+6}
    s_lshr_b32 s{sRB}, s{sT}, 1
    s_lshl_b32 s{sRB}, s{sRB}, 2
    s_add_u32 s{sRB}, s{sRB}, s{sT+5}
    s_lshl_b32 s98, s{sRB}, 4
    s_add_u32 s98, s98, s{sCG}
    s_lshr_b32 s{sRH}, s{sW}, 2
    s_and_b32 s{sUn}, s{sW}, 3
    s_cmp_ge_u32 s{sW}, 8
    s_cbranch_scc1 k1_loader
    s_lshr_b32 s{sKind}, s{sCG}, 2
    s_cmp_eq_u32 s{sRH}, 0
    s_cselect_b32 s{sKind}, 4, s{sKind}
    s_add_u32 s{sT}, s{sCG}, 38
    s_add_u32 s{sT+1}, s{sCG}, 24
    s_lshl_b32 s{sT+2}, s{sCG}, 1
    s_add_u32 s{sT+3}, s{sT+2}, 1
    s_cmp_eq_u32 s{sRH}, 0
    s_cselect_b32 s{sT}, s{sT}, s{sT+2}
    s_cselect_b32 s{sT+1}, s{sT+1}, s{sT+3}
    s_lshl_b32 s{sCSo}, s{sT}, 9
    s_add_u32 s{sCSo}, s{sCSo}, {WS_CS}
    s_lshl_b32 s{sCSo+1}, s{sT+1}, 9
    s_add_u32 s{sCSo+1}, s{sCSo+1}, {WS_CS}
    s_lshl_b32 s{sT32}, s{sRB}, 2
    s_add_u32 s{sT32}, s{sT32}, s{sUn}
    v_and_b32 v{t0}, 31, v{vLane}
    v_and_b32 v{t1}, 0x13, v{t0}
    v_and_b32 v{t2}, 4, v{t0}
    v_lshl_or_b32 v{t1}, v{t2}, 1, v{t1}
    v_and_b32 v{t2}, 8, v{t0}
    v_lshrrev_b32 v{t2}, 1, v{t2}
    v_or_b32 v{t1}, v{t1}, v{t2}
    s_cmp_eq_u32 s{sKind}, 1
    s_cselect_b64 vcc, -1, 0
    v_cndmask_b32 v{t0}, v{t0}, v{t1}, vcc       ; tok
    v_lshrrev_b32 v{t1}, 5, v{vLane}             ; h
    v_bfe_u32 v{t2}, v{t0}, 1, 3
    v_xor_b32 v{t2}, v{t2}, v{t1}
    v_lshlrev_b32 v{t2}, 4, v{t2}
    v_lshl_add_u32 v{t2}, v{t0}, 7, v{t2}
    s_lshl_b32 s{sT}, s{sUn}, 12
    v_add_u32 v{vAX}, s{sT}, v{t2}
    v_xor_b32 v{vAX+1}, 32, v{vAX}
    v_xor_b32 v{vAX+2}, 64, v{vAX}
    v_xor_b32 v{vAX+3}, 96, v{vAX}
    s_lshl_b32 s{sT}, s{sUn if 'lrs' in X else sT32}, {7 if 'lrs' in X else 9}
    s_add_u32 s{sT}, s{sT}, {L_RS if 'lrs' in X else WS_RS}
    v_lshlrev_b32 v{t0}, {2 if 'lrs' in X else 4}, v{t0}
    v_add_u32 v{vGA}, s{sT}, v{t0}
    v_lshlrev_b32 v{vGA+1}, 3, v{vLane}
    v_bfe_u32 v{t0}, v{vLane}, 2, 2
    v_lshl_add_u32 v{t1}, v{t1}, 3, v{t0}
    v_bfe_u32 v{t2}, v{vLane}, 4, 1
    v_lshlrev_b32 v{t2}, 1, v{t2}
    v_and_b32 v{t3}, 1, v{vLane}
    v_or_b32 v{t2}, v{t2}, v{t3}
    v_lshlrev_b32 v{t0}, 1, v{t0}
    v_and_b32 v{t0}, 4, v{t0}
    v_xor_b32 v{t2}, v{t2}, v{t0}
    v_lshlrev_b32 v{t2}, 4, v{t2}
    v_lshl_add_u32 v{t2}, v{t1}, 7, v{t2}
    v_bfe_u32 v{t3}, v{vLane}, 1, 1
    v_lshl_add_u32 v{t2}, v{t3}, 3, v{t2}
    v_add_u32 v{vAW}, {O_W}, v{t2}
    v_xor_b32 v{vAW+1}, 64, v{vAW}
    s_lshl_b32 s{sT+1}, s{sUn}, 12
    s_cmp_eq_u32 s{sRH}, 0
    s_cselect_b32 s{sT+2}, {L_IMG}, 0
    s_add_u32 s{sT+1}, s{sT+1}, s{sT+2}
    """)
    epi_addr(k)
    k(f"""
    s_waitcnt lgkmcnt(0)
    s_cmp_eq_u32 s{sRH}, 0
    s_cbranch_scc1 k1_main
    """)
    if 'lrs' in X:
        row_stats(k)
    else:
        for i in range(8):
            k("s_waitcnt lgkmcnt(0)\ns_barrier")
            if i == 2:
                k(f"buffer_load_dword v{vTag}, v{vGA+2}, {sr(sDBG,4)}, 0 offen sc0 sc1")
            if i == 3:
                L = k.newlabel("notag")
                k(f"s_cmp_lg_u32 s{sW}, 4\ns_cbranch_scc1 {L}")
                poll_tag(k, True)
                k(f"v_mov_b32 v{t0}, {L_TAG}\nds_write_b32 v{t0}, v{vTag}\n{L}:")
    k(f"s_cmp_ge_u32 s{sCG}, 12\ns_cbranch_scc1 k1_fin0\ns_setprio {0 if 'zprio' in X else 2}")
    k.label("k1_main")
    main_loop(k)
    stamp(k, 2)
    k(f"s_cmp_eq_u32 s{sRH}, 0\ns_cbranch_scc0 k1_q")
    z_epilogue(k)
    k("s_branch k1_fin")
    k.label("k1_q")
    q_epilogue(k)
    k("s_branch k1_fin")
    k.label("k1_loader")
    loader(k)
    stamp(k, 2)
    k("s_branch k1_fin")
    k.label("k1_helper")
    k(f"""
    s_waitcnt lgkmcnt(0)
    v_mov_b32 v{vTag}, 0
    s_or_b32 s{sT+4}, s2, s{sW}
    s_cmp_lg_u32 s{sT+4}, 0
    s_cbranch_scc1 k1_nonce_done
    s_or_b32 s{sT+14}, s{sT+14}, 1
    v_mov_b32 v{vTag}, s{sT+14}
    v_lshlrev_b32 v{t3}, 2, v{vLane}
    buffer_store_dword v{vTag}, v{t3}, {sr(sDBG,4)}, 0 offen offset:128 sc0 sc1
    k1_nonce_done:
    """)
    if 'sweep' in X:
        k(f"""
        s_mul_i32 s{sT}, s2, 12
        s_add_u32 s{sT}, s{sT}, s{sW}
        s_lshl_b32 s{sT+1}, s{sT}, 13
        v_lshlrev_b32 v{t0}, 7, v{vLane}
        s_sub_u32 s{sT+2}, {383*8192}, s{sT+1}
        buffer_load_dword v{vT+9}, v{t0}, {sr(sXS,4)}, s{sT+2} offen
        """)
    helper(k)
    k("s_branch k1_fin")
    k.label("k1_fin0")
    k("s_waitcnt lgkmcnt(0)\ns_barrier")
    if FUSED:
        for t in range(7):
            k("s_barrier")
    k.label("k1_fin")
    if STAMP:
        k("s_waitcnt vmcnt(0)")
    stamp(k, 3)
    stamp_store(k, 6)
    if FUSED:
        return k
    k("""
    k1_end:
    s_endpgm
    """)
    k.finish()
    return k


if __name__ == "__main__":
    import sys
    STAMP = "stamp" in sys.argv
    k = gen_k1()
    print(build_file("; test", [("k1_kernel", 256, 768, LDS_K1)], [k]))
```

```python
import os
from asmlib import *
from layout import *

X = set(os.environ.get('K2X', '').split(','))
NS = 4
STAGE = 30720
O_Z, O_K, O_V = 16384, 24576, 26624
LDS_K2 = NS * STAGE

vLane = 1
vAL = 2
vT = 4
vQ, vK0, vK1, vV = 12, 16, 20, 24
vS0, vS1, vP, vO = 40, 56, 72, 80
vC = 96
vDA, vDZ, vDK, vDV = 12, 16, 17, 18
vAB = 20
vG = 28
vGA = 60
vGB = 92
vZ1 = 108
vBias = 124
sWS, sWSP, sBSP = 4, 8, 12
sW, sHead, sQT, sTB, sFB, sIdx = 16, 17, 18, 19, 20, 21
sOA, sOZ, sOK, sOV, sCnt = 22, 23, 24, 25, 26
sMA, sMZ, sMK, sMV = 27, 28, 29, 30
sVM, sLo = 32, 34
sT = 36
sPA, sPB, sPX, sPo = 68, 72, 76, 90

STAMP = False
FUSED = False
import gbar
WT = os.environ.get('WT', '')


def stamp(k, i):
    if STAMP:
        if i == 0:
            k("s_memrealtime s[80:81]")
        if i == 3:
            k("s_memrealtime s[82:83]")
        k(f"s_memtime {sr(60+2*i,2)}\ns_waitcnt lgkmcnt(0)")


def stamp_store(k, n):
    if not STAMP:
        return
    k(f"s_mul_i32 s58, s2, 12\ns_add_u32 s58, s58, s{sW}\ns_lshl_b32 s58, s58, 5\ns_add_u32 s58, s58, {WS_STAMP + 1*262144}")
    for i in range(n):
        k(f"s_sub_u32 s59, s{60+2*i}, s60\nv_mov_b32 v{vT}, s59\nv_mov_b32 v{vT+1}, 0\nbuffer_store_dword v{vT}, v{vT+1}, {sr(sWS,4)}, s58 offen offset:{4*i}")
    for j, r in ((6, 80), (7, 82)):
        k(f"v_mov_b32 v{vT}, s{r}\nv_mov_b32 v{vT+1}, 0\nbuffer_store_dword v{vT}, v{vT+1}, {sr(sWS,4)}, s58 offen offset:{4*j}")


def mfma32(d, a, b, c):
    cs = "0" if c is None else vr(c, 16)
    return f"v_mfma_f32_32x32x16_bf16 {vr(d,16)}, {vr(a,4)}, {vr(b,4)}, {cs}"


def so(slot):
    return slot // 2, (slot % 2) * STAGE


def rd_k(slot, T):
    s, o = so(slot)
    return f"ds_read_b128 {vr(vK0+4*T,4)}, v{vAL+s} offset:{o+O_K+(1-T)*1024}"


def rd_v(slot, T, u):
    s, o = so(slot)
    return f"ds_read_b128 {vr(vV+8*T+4*u,4)}, v{vAL+s} offset:{o+O_V+T*2048+u*1024}"


def phase(k, S, Snext, Knext, Vprev1, Vcur0, extras):
    E = lambda i: f"v_exp_f32 v{S+i}, v{S+i}"
    C = lambda i: f"v_cvt_pk_bf16_f32 v{vP+i}, v{S+2*i}, v{S+2*i+1}"
    PVp = mfma32(vO, Vprev1, vP + 4, vO) if Vprev1 is not None else None
    PVc = mfma32(vO, Vcur0, vP, vO)
    SM = mfma32(Snext, Knext, vQ, None) if Knext is not None else None
    seq = [E(0), E(1), PVp, E(2), E(3), C(0), E(4), E(5), C(1), E(6), SM, E(7), C(2), E(8), C(3), E(9), E(10), E(11), C(4), PVc,
           E(12), E(13), C(5), E(14), E(15), C(6), C(7)]
    for pos, ins in enumerate(seq):
        if ins is not None:
            if 'noattn' in X:
                ins = None
            elif 'nopv' in X and ins in (PVp, PVc):
                ins = None
            elif 'noexp' in X and 'v_exp' in ins:
                ins = None
            elif 'nocvt' in X and 'v_cvt' in ins:
                ins = None
        if ins is not None:
            k(ins)
        for a in extras.get(pos, []):
            if 'noard' in X and a.startswith('ds_read'):
                continue
            if 'nosp' in X and a.startswith('s_setprio'):
                continue
            k(a)


def attn_iter(k, slot, first, last_slot):
    k("s_waitcnt lgkmcnt(0)")
    k("s_barrier")
    ex1 = {0: [rd_k(slot, 1)], 4: [rd_v(slot, 0, 0)], 7: [rd_v(slot, 0, 1)]}
    if first:
        for a in (rd_k(slot, 1), rd_v(slot, 0, 0), rd_v(slot, 0, 1)):
            k(a)
    else:
        k("s_setprio 3")
        ex1[13] = ["s_setprio 2"]
        ex1[26] = ["s_setprio 1"]
        phase(k, vS1, vS0, vK0, vV + 4, vV + 8, ex1)
    ex2 = {0: [rd_k(slot, 0)], 4: [rd_v(slot, 1, 0)], 7: [rd_v(slot, 1, 1)], 13: ["s_setprio 0"]}
    if last_slot:
        ex2[14] = [f"s_sub_u32 s{sCnt}, s{sCnt}, 1\ns_cmp_lg_u32 s{sCnt}, 0"]
    phase(k, vS0, vS1, vK1, None if first else vV + 12, vV + 0, ex2)


def attn_loop(k):
    L = k.newlabel("aloop")
    k(f"s_mov_b32 s{sCnt}, 7")
    stamp(k, 1)
    k(mfma32(vS0, vK0, vQ, None))
    for slot in range(4):
        attn_iter(k, slot, slot == 0, False)
    k(".p2align 6")
    k.label(L)
    for slot in range(4):
        attn_iter(k, slot, False, slot == 3)
    k(f"s_cbranch_scc1 {L}")
    k("s_waitcnt lgkmcnt(0)\ns_barrier")
    stamp(k, 2)
    phase(k, vS1, None, None, vV + 4, vV + 8, {})
    k(mfma32(vO, vV + 12, vP + 4, vO))


def dma_group(slot, gemm):
    base = slot * STAGE
    out = []
    if gemm:
        out.append(f"s_add_u32 m0, s{sMK}, {base}\ns_mov_b64 exec, {sr(sLo,2)}\nbuffer_load_dwordx4 v{vDK}, {sr(sWS,4)}, s{sOK} offen lds\n"
                   f"s_add_u32 m0, s{sMV}, {base}\ns_mov_b64 exec, {sr(sVM,2)}\nbuffer_load_dwordx4 v{vDV}, {sr(sWS,4)}, s{sOK} offen lds\n"
                   f"s_mov_b64 exec, -1\ns_add_u32 s{sOK}, s{sOK}, 2048")
    else:
        out.append(f"s_add_u32 m0, s{sMK}, {base}\ns_mov_b64 exec, {sr(sLo,2)}\nbuffer_load_dwordx4 v{vDK}, {sr(sWS,4)}, s{sOK} offen lds\n"
                   f"buffer_load_dwordx4 v{vDK}, {sr(sWS,4)}, s{sOK} offen offset:1024 lds\n"
                   f"s_add_u32 m0, s{sMV}, {base}\ns_mov_b64 exec, {sr(sVM,2)}\nbuffer_load_dwordx4 v{vDV}, {sr(sWS,4)}, s{sOK} offen lds\n"
                   f"s_add_u32 m0, s{sMV}, {base+1024}\ns_nop 0\nbuffer_load_dwordx4 v{vDV}, {sr(sWS,4)}, s{sOK} offen offset:1024 lds\n"
                   f"s_mov_b64 exec, -1\ns_add_u32 s{sOK}, s{sOK}, 2048")
    if gemm:
        for p in range(4):
            out.append(f"s_add_u32 m0, s{sMA}, {base+1024*p}\ns_nop 0\nbuffer_load_dwordx4 v{vDA+p}, {sr(sWSP,4)}, s{sOA} offen lds"
                       + (f"\ns_add_u32 s{sOA}, s{sOA}, 128" if p == 3 else ""))
        out.append(f"s_add_u32 m0, s{sMZ}, {base}\ns_nop 0\nbuffer_load_dwordx4 v{vDZ}, {sr(sWS,4)}, s{sOZ} offen lds")
        out.append(f"s_add_u32 m0, s{sMZ}, {base}\ns_nop 0\nbuffer_load_dwordx4 v{vDZ}, {sr(sWS,4)}, s{sOZ} offen offset:1024 lds\ns_add_u32 s{sOZ}, s{sOZ}, 4096")
    return out


def rd_g(slot, ks):
    s, o = so(slot)
    return [f"ds_read_b128 {vr(vGB+4*ks,4)}, v{vAB+4*s+ks} offset:{o}",
            f"ds_read_b128 {vr(vGA+8*ks,4)}, v{vAL+s} offset:{o+O_Z+ks*1024}",
            f"ds_read_b128 {vr(vGA+8*ks+4,4)}, v{vAL+s} offset:{o+O_Z+4096+ks*1024}"]


def mm_g(ks):
    if 'g16' in X:
        m = lambda d, a, b: f"v_mfma_f32_16x16x32_bf16 {vr(d,4)}, {vr(a,4)}, {vr(b,4)}, {vr(d,4)}"
        o = 8 * (ks % 2)
        return [m(vG + o, vGA + 8 * ks, vGB + 4 * ks) + "\n" + m(vG + o + 4, vGA + 8 * ks + 4, vGB + 4 * (ks ^ 1)),
                m(vG + 16 + o, vGA + 8 * ks + 4, vGB + 4 * ks) + "\n" + m(vG + 16 + o + 4, vGA + 8 * ks, vGB + 4 * (ks ^ 1))]
    return [mfma32(vG, vGA + 8 * ks, vGB + 4 * ks, vG), mfma32(vG + 16, vGA + 8 * ks + 4, vGB + 4 * ks, vG + 16)]


def gemm_loop(k, gemm):
    nd = 8 if gemm else 4
    k(f"s_mov_b32 s{sCnt}, 8")
    stamp(k, 1)
    for part in (0,):
        L = k.newlabel("gloop")
        k(".p2align 6")
        k.label(L)
        if 'prof' in X:
            k(f"""
            s_memtime s[84:85]
            s_memrealtime s[86:87]
            s_waitcnt lgkmcnt(0)
            v_mov_b32 v{vT}, s84
            v_mov_b32 v{vT+1}, s86
            s_lshl_b32 s88, s2, 8
            s_lshl_b32 s89, s{sCnt}, 3
            s_add_u32 s88, s88, s89
            s_add_u32 s88, s88, {WS_STAMP + 3*262144}
            v_mov_b32 v{vT+2}, 0
            buffer_store_dwordx2 {vr(vT,2)}, v{vT+2}, {sr(sWS,4)}, s88 offen
            """)
        for jj in range(4):
            slot = (jj + 1) % 4
            k(f"s_waitcnt vmcnt({(4 if 'nogdma' in X else 2*nd)}) lgkmcnt(0)")
            k("s_barrier")
            dm = dma_group((slot + 3) % 4, gemm)
            if gemm:
                r = [rd_g(slot, ks) for ks in range(4)]
                m = [mm_g(ks) for ks in range(4)]
                seq = (r[0] + [m[2][0], dm[0], m[2][1]] + r[1] + [m[3][0], dm[1], m[3][1], dm[2]] + r[2] + [m[0][0], dm[3], m[0][1], dm[4]]
                       + r[3] + [m[1][0], dm[5], m[1][1], dm[6]])
            else:
                seq = list(dm)
            if jj == 0:
                k(f"s_cmp_eq_u32 s{sCnt}, 1\ns_cselect_b32 s{sT}, 0x70000000, 0\ns_add_u32 s{sOK}, s{sOK}, s{sT}")
            for a in seq:
                if 'nogdma' in X and ' lds' in a and 'exec' not in a:
                    continue
                if 'nogmm' in X and 'mfma' in a:
                    continue
                if 'nogrd' in X and 'ds_read' in a:
                    continue
                k(a)
            if jj == 0:
                k(f"s_add_u32 s{sOA}, s{sOA}, s{sT}\ns_add_u32 s{sOZ}, s{sOZ}, s{sT}")
        k(f"s_sub_u32 s{sCnt}, s{sCnt}, 1\ns_cmp_lg_u32 s{sCnt}, {part}\ns_cbranch_scc1 {L}")
    stamp(k, 2)
    if gemm:
        for a in mm_g(2) + mm_g(3):
            k(a)


def dep_slots(gemm):
    v, s = vZ1, sT + 10
    zc = f"s{sFB}" if gemm else f"s{s}"
    return f"""
    s_lshr_b32 s{s+2}, s{sHead}, 3
    s_add_u32 s{s}, s{s+2}, 4
    s_add_u32 s{s+1}, s{s+2}, 8
    v_mov_b32 v{v+1}, s{s}
    v_mov_b32 v{v+2}, s{s+1}
    v_cmp_lt_u32 vcc, 15, v{vLane}
    v_cndmask_b32 v{v+1}, v{v+1}, v{v+2}, vcc
    v_mov_b32 v{v+2}, {zc}
    v_cmp_lt_u32 vcc, 31, v{vLane}
    v_cndmask_b32 v{v+1}, v{v+1}, v{v+2}, vcc
    v_and_b32 v{v}, 15, v{vLane}
    v_lshl_add_u32 v{v}, v{v}, 4, v{v+1}
    s_and_b32 s{s}, s{sIdx}, 7
    s_lshl_b32 s{s}, s{s}, 5
    s_add_u32 s{s}, s{s}, s{s+2}
    v_and_b32 v{v+1}, 1, v{vLane}
    v_lshlrev_b32 v{v+1}, 4, v{v+1}
    v_add_u32 v{v+1}, s{s}, v{v+1}
    v_cmp_lt_u32 vcc, 47, v{vLane}
    v_cndmask_b32 v{v}, v{v}, v{v+1}, vcc
    """


def gen_k2(k=None):
    if k is None:
        k = Kernel("k2_kernel")
    t0, t1, t2, t3 = vT, vT + 1, vT + 2, vT + 3
    stamp(k, 0)
    if not FUSED:
        k("s_cmp_ge_u32 s2, 256\ns_cbranch_scc1 k2_end")
    k(f"""
    s_setprio 0
    s_load_dwordx2 {sr(sWS,2)}, s[0:1], {KA_WS}
    s_load_dwordx2 {sr(sWSP,2)}, s[0:1], {KA_WSP}
    s_load_dwordx2 {sr(sBSP,2)}, s[0:1], {KA_BSP}
    v_lshrrev_b32 v{t0}, 6, v0
    v_and_b32 v{vLane}, 63, v0
    v_readfirstlane_b32 s{sW}, v{t0}
    s_and_b32 s{sT}, s2, 7
    s_lshr_b32 s{sIdx}, s2, 3
    s_lshr_b32 s{sT+2}, s{sIdx}, 3
    s_lshl_b32 s{sHead}, s{sT}, 2
    s_add_u32 s{sHead}, s{sHead}, s{sT+2}
    s_lshl_b32 s{sT+3}, s{sHead}, 16             ; head*65536
    s_mov_b32 s{sWS+2}, {WS_SIZE}
    s_mov_b32 s{sWS+3}, 0x00020000
    s_mov_b32 s{sWSP+2}, {2048*2048*2}
    s_mov_b32 s{sWSP+3}, 0x00020000
    s_mov_b32 s{sBSP+2}, 4096
    s_mov_b32 s{sBSP+3}, 0x00020000
    s_mov_b32 s{sVM}, 0x0000ffff
    s_mov_b32 s{sVM+1}, 0x0000ffff
    v_lshlrev_b32 v{vAL}, 4, v{vLane}
    v_add_u32 v{vAL+1}, {2*STAGE}, v{vAL}
    s_cmp_ge_u32 s{sW}, 8
    s_cbranch_scc1 k2_gemm
    """)
    k(f"""
    s_and_b32 s{sQT}, s{sIdx}, 7
    s_lshl_b32 s{sQT}, s{sQT}, 3
    s_add_u32 s{sQT}, s{sQT}, s{sW}
    s_lshl_b32 s{sT+5}, s{sQT}, 10
    s_add_u32 s{sT+5}, s{sT+5}, s{sT+3}
    s_add_u32 s{sT+7}, s{sT+5}, {WS_Q}
    s_add_u32 s{sT+8}, s{sT+3}, {WS_K}
    s_waitcnt lgkmcnt(0)
    """)
    qk = (f"buffer_load_dwordx4 {vr(vQ,4)}, v{vAL}, {sr(sWS,4)}, s{sT+7} offen\n"
          f"buffer_load_dwordx4 {vr(vK0,4)}, v{vAL}, {sr(sWS,4)}, s{sT+8} offen")
    if not FUSED:
        k(qk)
    k(f"""
    v_and_b32 v{t0}, 27, v{vLane}
    v_mov_b32 v{t1}, 0x3f803f80
    v_cmp_eq_u32 vcc, 16, v{t0}
    v_cndmask_b32 v{t1}, 0, v{t1}, vcc
    """)
    for i in range(8):
        k(f"v_mov_b32 v{vV+i}, v{t1}")
    k(f"""
    s_lshr_b32 s{sT+5}, s{sW}, 1
    s_mul_i32 s{sT+5}, s{sT+5}, {STAGE}
    s_and_b32 s{sT+6}, s{sW}, 1
    s_lshl_b32 s{sT+6}, s{sT+6}, 11
    s_add_u32 s{sT+5}, s{sT+5}, s{sT+6}
    v_add_u32 v{t0}, s{sT+5}, v{vAL}
    s_not_b64 exec, {sr(sVM,2)}
    ds_write_b128 v{t0}, {vr(vV,4)} offset:{O_V}
    ds_write_b128 v{t0}, {vr(vV,4)} offset:{O_V+1024}
    s_mov_b64 exec, -1
    """)
    for i in range(16):
        k(f"v_mov_b32 v{vO+i}, 0")
    if FUSED:
        k("s_barrier")
        k(qk)
    attn_loop(k)
    k(f"v_mul_f32 v{t0}, 0, v{vO}")
    for i in range(1, 8):
        k(f"v_fma_f32 v{t0}, v{vO+i}, 0, v{t0}")
    k(f"""
    v_add_f32 v{t0}, v{t0}, v{vO+8}
    v_mov_b32 v{t1}, 0x17800000                  ; 2^-80
    v_mov_b32 v{t2}, 0x67800000                  ; 2^80
    v_cmp_ge_f32 vcc, v{t0}, v{t1}
    v_cmp_le_f32 {sr(sT+10,2)}, v{t0}, v{t2}
    s_and_b64 vcc, vcc, {sr(sT+10,2)}
    s_cmp_eq_u64 vcc, -1
    s_cbranch_scc1 k2_store_o
    """)
    vM = vT
    k(f"""
    s_add_u32 s{sT+10}, s{sT+3}, {WS_K}
    s_add_u32 s{sT+11}, s{sT+3}, {WS_V}
    v_mov_b32 v{vM}, 0xff800000
    s_mov_b32 s{sCnt}, 64
    s_mov_b32 s{sT+12}, s{sT+10}
    k2_slow1:
    buffer_load_dwordx4 {vr(vK0,4)}, v{vAL}, {sr(sWS,4)}, s{sT+12} offen
    {mfma32(vS0, vK0, vQ, None)}
    """)
    for i in range(8):
        k(f"v_max3_f32 v{vM}, v{vS0+2*i}, v{vS0+2*i+1}, v{vM}")
    k(f"""
    s_add_u32 s{sT+12}, s{sT+12}, 1024
    s_sub_u32 s{sCnt}, s{sCnt}, 1
    s_cmp_lg_u32 s{sCnt}, 0
    s_cbranch_scc1 k2_slow1
    v_mov_b32 v{t1}, v{vM}
    v_permlane32_swap_b32 v{vM}, v{t1}
    v_max_f32 v{vM}, v{vM}, v{t1}
    v_sub_f32 v{vM}, 0, v{vM}
    """)
    for i in range(16):
        k(f"v_mov_b32 v{vC+i}, v{vM}")
        k(f"v_mov_b32 v{vO+i}, 0")
    k(f"""
    v_lshrrev_b32 v{t2}, 5, v{vLane}
    v_and_b32 v{t1}, 15, v{vLane}
    v_lshlrev_b32 v{t1}, 4, v{t1}
    v_lshl_add_u32 v{t1}, v{t2}, 8, v{t1}        ; (l/32)*256 + (l%16)*16
    s_mov_b32 s{sCnt}, 64
    k2_slow2:
    buffer_load_dwordx4 {vr(vK0,4)}, v{vAL}, {sr(sWS,4)}, s{sT+10} offen
    s_mov_b64 exec, {sr(sVM,2)}
    buffer_load_dwordx4 {vr(vV,4)}, v{t1}, {sr(sWS,4)}, s{sT+11} offen
    buffer_load_dwordx4 {vr(vV+4,4)}, v{t1}, {sr(sWS,4)}, s{sT+11} offen offset:512
    s_mov_b64 exec, -1
    {mfma32(vS0, vK0, vQ, vC)}
    """)
    for i in range(16):
        k(f"v_exp_f32 v{vS0+i}, v{vS0+i}")
    for i in range(8):
        k(f"v_cvt_pk_bf16_f32 v{vP+i}, v{vS0+2*i}, v{vS0+2*i+1}")
    k(f"""
    {mfma32(vO, vV, vP, vO)}
    {mfma32(vO, vV+4, vP+4, vO)}
    s_add_u32 s{sT+10}, s{sT+10}, 1024
    s_add_u32 s{sT+11}, s{sT+11}, 1024
    s_sub_u32 s{sCnt}, s{sCnt}, 1
    s_cmp_lg_u32 s{sCnt}, 0
    s_cbranch_scc1 k2_slow2
    """)
    k.label("k2_store_o")
    k(f"v_rcp_f32 v{t0}, v{vO+8}")
    for i in range(8):
        k(f"v_mul_f32 v{vO+i}, v{vO+i}, v{t0}")
    for i in range(4):
        k(f"v_cvt_pk_bf16_f32 v{vP+i}, v{vO+2*i}, v{vO+2*i+1}")
    k(f"""
    s_lshl_b32 s{sT+9}, s{sQT}, 5
    s_add_u32 s{sT+9}, s{sT+9}, s{sHead}
    s_lshl_b32 s{sT+9}, s{sT+9}, 10
    s_add_u32 s{sT+9}, s{sT+9}, {WS_O}
    buffer_store_dwordx4 {vr(vP,4)}, v{vAL}, {sr(sWS,4)}, s{sT+9} offen {WT}
    s_branch k2_fin
    """)
    k.label("k2_gemm")
    sG = sT + 4
    k(f"""
    s_setprio 3
    s_sub_u32 s{sG}, s{sW}, 8                    ; g = 0..3
    s_and_b32 s{sTB}, s{sT}, 3
    s_lshl_b32 s{sTB}, s{sTB}, 2
    s_and_b32 s{sT+2}, s{sIdx}, 3
    s_add_u32 s{sTB}, s{sTB}, s{sT+2}
    s_lshr_b32 s{sFB}, s{sT}, 2
    s_mul_i32 s{sFB}, s{sFB}, 7
    s_lshr_b32 s{sT+2}, s{sIdx}, 2
    s_add_u32 s{sFB}, s{sFB}, s{sT+2}
    s_mov_b32 s{sLo}, -1
    s_mov_b32 s{sLo+1}, 0
    s_mov_b32 s{sOA}, 0
    s_mov_b32 s{sOZ}, 0
    s_mov_b32 s{sOK}, 0
    s_lshl_b32 s{sMA}, s{sG}, 12
    s_lshl_b32 s{sMZ}, s{sG}, 11
    s_add_u32 s{sMZ}, s{sMZ}, {O_Z}
    s_lshl_b32 s{sMK}, s{sG}, 9
    s_add_u32 s{sMK}, s{sMK}, {O_K}
    s_lshl_b32 s{sMV}, s{sG}, 10
    s_add_u32 s{sMV}, s{sMV}, {O_V}
    s_lshl_b32 s{sT+5}, s{sG}, 9
    s_add_u32 s{sT+5}, s{sT+5}, s{sT+3}
    s_add_u32 s{sT+6}, s{sT+5}, {WS_K+1024}
    v_add_u32 v{vDK}, s{sT+6}, v{vAL}
    ; V DMA: WS_V + head*65536 + g*512 + (l/32)*256 + (l%16)*16
    v_lshrrev_b32 v{t0}, 5, v{vLane}
    v_and_b32 v{t1}, 15, v{vLane}
    v_lshlrev_b32 v{t1}, 4, v{t1}
    v_lshl_add_u32 v{t1}, v{t0}, 8, v{t1}
    s_add_u32 s{sT+6}, s{sT+5}, {WS_V}
    v_add_u32 v{vDV}, s{sT+6}, v{t1}
    s_waitcnt lgkmcnt(0)
    s_cmp_ge_u32 s{sIdx}, 28
    s_cbranch_scc1 k2_loader
    """)
    if not FUSED:
        k(dma_group(0, True)[0])
    k(f"""
    v_lshrrev_b32 v{t0}, 3, v{vLane}
    s_lshl_b32 s{sT+5}, s{sG}, 5
    v_add_u32 v{t0}, s{sT+5}, v{t0}
    v_and_b32 v{t1}, 7, v{vLane}
    s_lshl_b32 s{sT+6}, s{sTB}, 19
    """)
    for p in range(4):
        k(f"""
        v_add_u32 v{t2}, {8*p}, v{t0}
        v_bfe_u32 v{t3}, v{t2}, 1, 3
        v_xor_b32 v{t3}, v{t3}, v{t1}
        v_lshlrev_b32 v{t3}, 4, v{t3}
        v_lshl_add_u32 v{vDA+p}, v{t2}, 12, v{t3}
        v_add_u32 v{vDA+p}, s{sT+6}, v{vDA+p}
        """)
    k(f"""
    s_lshr_b32 s{sT+5}, s{sG}, 1
    s_lshl_b32 s{sT+6}, s{sFB}, 1
    s_add_u32 s{sT+5}, s{sT+5}, s{sT+6}
    s_lshl_b32 s{sT+5}, s{sT+5}, 17
    s_and_b32 s{sT+7}, s{sG}, 1
    s_lshl_b32 s{sT+7}, s{sT+7}, 11
    s_add_u32 s{sT+5}, s{sT+5}, s{sT+7}
    s_add_u32 s{sT+5}, s{sT+5}, {WS_Z2}
    v_add_u32 v{vDZ}, s{sT+5}, v{vAL}
    """)
    if not FUSED:
        for a in dma_group(1, True):
            k(a)
        k("s_waitcnt vmcnt(8)\ns_barrier")
    else:
        for st in range(1, 4):
            for a in dma_group(st, True)[1:5]:
                k(a)
    k(f"""
    s_lshl_b32 s{sT+7}, s{sTB}, 2
    s_add_u32 s{sT+7}, s{sT+7}, s{sG}
    s_mul_i32 s{sT+8}, s{sT+7}, 56
    s_lshl_b32 s{sT+9}, s{sFB}, 2
    s_add_u32 s{sT+8}, s{sT+8}, s{sT+9}
    s_lshl_b32 s{sT+8}, s{sT+8}, 10
    s_lshl_b32 s{sT+7}, s{sT+7}, 6
    s_add_u32 s{sT+9}, s{sT+8}, {WS_Z1}
    v_and_b32 v{t0}, 31, v{vLane}
    v_lshlrev_b32 v{t0}, 1, v{t0}
    """)
    def z1loads():
        k(f"buffer_load_ushort v{vBias}, v{vT+4}, {sr(sBSP,4)}, s{sT+13} offen")
        for i in range(4):
            k(f"buffer_load_dwordx4 {vr(vZ1+4*i,4)}, v{vAL}, {sr(sWS,4)}, s{sT+9} offen offset:{1024*i}")
    k(f"v_mov_b32 v{vT+4}, v{t0}\ns_mov_b32 s{sT+13}, s{sT+7}")
    if not FUSED:
        for st in range(2, 4):
            for a in dma_group(st, True):
                k(a)
        z1loads()
    k(f"""
    v_lshrrev_b32 v{t0}, 5, v{vLane}
    v_and_b32 v{t1}, 31, v{vLane}
    s_lshl_b32 s{sT+7}, s{sG}, 5
    v_add_u32 v{t1}, s{sT+7}, v{t1}
    v_bfe_u32 v{t2}, v{t1}, 1, 3
    v_xor_b32 v{t2}, v{t2}, v{t0}
    v_lshlrev_b32 v{t2}, 4, v{t2}
    v_lshl_add_u32 v{vAB}, v{t1}, 7, v{t2}
    v_xor_b32 v{vAB+1}, 32, v{vAB}
    v_xor_b32 v{vAB+2}, 64, v{vAB}
    v_xor_b32 v{vAB+3}, 96, v{vAB}
    """)
    for i in range(4):
        k(f"v_add_u32 v{vAB+4+i}, {2*STAGE}, v{vAB+i}")
    for i in range(32):
        k(f"v_mov_b32 v{vG+i}, 0")
    for i in range(16):
        k(f"v_mov_b32 v{vGA+16+i}, 0")
    for i in range(8):
        k(f"v_mov_b32 v{vGB+8+i}, 0")
    if FUSED:
        gbar.wait(k, 0, sWS, sW, sT + 10, vZ1, dep_slots(True))
        k("s_barrier")
        k(dma_group(0, True)[0])
        for st in range(1, 4):
            g = dma_group(st, True)
            for a in [g[0]] + g[5:]:
                k(a)
            if st == 1:
                k("s_waitcnt vmcnt(4)\ns_barrier")
        z1loads()
        k("s_waitcnt vmcnt(13)")
    k("s_setprio 0")
    gemm_loop(k, True)
    k(f"s_add_u32 s{sT+9}, s{sT+8}, {WS_U}")
    k(f"v_lshlrev_b32 v{vBias}, 16, v{vBias}")
    for i in range(16):
        a, b = vT + 2 * (i % 4), vT + 2 * (i % 4) + 1
        k(f"""
        v_lshlrev_b32 v{a}, 16, v{vZ1+i}
        v_and_b32 v{b}, 0xffff0000, v{vZ1+i}
        v_add_f32 v{vG+2*i}, v{vG+2*i}, v{vBias}
        v_add_f32 v{vG+2*i+1}, v{vG+2*i+1}, v{vBias}
        v_mul_f32 v{a}, v{a}, v{vG+2*i}
        v_mul_f32 v{b}, v{b}, v{vG+2*i+1}
        v_cvt_pk_bf16_f32 v{vZ1+i}, v{a}, v{b}
        """)
        if i % 4 == 3:
            k(f"buffer_store_dwordx4 {vr(vZ1+i-3,4)}, v{vAL}, {sr(sWS,4)}, s{sT+9} offen offset:{1024*(i//4)} {WT}")
    k("s_branch k2_fin")
    k.label("k2_loader")
    k(f"""
    s_load_dwordx2 {sr(sPA,2)}, s[0:1], {KA_WO}
    s_load_dwordx2 {sr(sPB,2)}, s[0:1], {KA_WOUT}
    s_load_dwordx2 {sr(sPX,2)}, s[0:1], {KA_X}
    s_mov_b32 s{sPA+2}, {512*1024}
    s_mov_b32 s{sPA+3}, 0x00020000
    s_mov_b32 s{sPB+2}, {896*1024}
    s_mov_b32 s{sPB+3}, 0x00020000
    s_mov_b32 s{sPX+2}, {2048*1024}
    s_mov_b32 s{sPX+3}, 0x00020000
    """)
    if FUSED:
        gbar.wait(k, 0, sWS, sW, sT + 10, vZ1, dep_slots(False))
        k("s_barrier")
    k(f"s_cmp_ge_u32 s{sG}, 2\ns_cbranch_scc1 k2_pref")
    k(dma_group(0, False)[0])
    k("s_waitcnt vmcnt(0)\ns_barrier")
    for st in range(1, 4):
        for a in dma_group(st, False):
            k(a)
    gemm_loop(k, False)
    k("s_branch k2_fin")
    k.label("k2_pref")
    k(f"""
    s_sub_u32 s{sT+5}, s{sIdx}, 28
    s_lshl_b32 s{sT+5}, s{sT+5}, 1
    s_add_u32 s{sT+5}, s{sT+5}, s{sG}
    s_sub_u32 s{sT+5}, s{sT+5}, 2                ; 0..7
    s_lshl_b32 s{sPo}, s{sT+5}, 16
    s_mul_i32 s{sPo+1}, s{sT+5}, {112*1024}
    s_lshl_b32 s{sPo+2}, s{sT+5}, 15
    s_and_b32 s{sT+6}, s2, 7
    s_lshl_b32 s{sT+6}, s{sT+6}, 18
    s_add_u32 s{sPo+2}, s{sPo+2}, s{sT+6}
    v_lshlrev_b32 v{vT}, 7, v{vLane}
    s_waitcnt lgkmcnt(0)
    """)
    stamp(k, 1)
    lo = []
    for srd, so, cnt in ((sPX, sPo + 2, 4), (sPB, sPo + 1, 14), (sPA, sPo, 8)):
        for j in range(cnt):
            lo.append(f"buffer_load_dword v{vG+len(lo)}, v{vT}, {sr(srd,4)}, s{so} offen\ns_add_u32 s{so}, s{so}, 8192")
    PF0 = int(os.environ.get('PF0', '16'))
    for it in range(33):
        k("s_barrier")
        if it >= PF0 and 'nopf' not in X:
            for a in lo[2 * (it - PF0): 2 * (it - PF0) + 2]:
                k(a)
    stamp(k, 2)
    k.label("k2_fin")
    if STAMP:
        k("s_waitcnt vmcnt(0)")
    stamp(k, 3)
    stamp_store(k, 4)
    if FUSED:
        return k
    k("""
    k2_end:
    s_endpgm
    """)
    k.finish()
    return k


if __name__ == "__main__":
    import sys
    STAMP = "stamp" in sys.argv
    k = gen_k2()
    print(build_file("; test", [("k2_kernel", 256, 768, LDS_K2)], [k]))
```

```python
import sys, os
os.environ.setdefault("WT", "sc1")
from asmlib import *
import k1, k2, k3, gbar
NAME = "recurrent_scan__softmax_full_mha__mixer_gmlp__prompt_kernel"
ref = open("recurrent_scan__softmax_full_mha__mixer_gmlp__prompt.s.ref").read()
hdr = "\n".join(l for l in ref.split("\n") if l.startswith(";") and "@launch" not in l and "Override" not in l and "grid=ceil" not in l)
if os.environ.get('STAMP'):
    k1.STAMP = k2.STAMP = k3.STAMP = True
k1.FUSED = k2.FUSED = k3.FUSED = True
k = Kernel("fz_kernel")
DBG = os.environ.get('DBGT')
def rt(i):
    if DBG:
        k(f"s_memrealtime s[92:93]\ns_waitcnt lgkmcnt(0)\nv_writelane_b32 v167, s92, {i}")
gbar.RT = rt
if DBG:
    k("v_mov_b32 v167, 0")
rt(0)
k1.gen_k1(k)
rt(1)
k("s_waitcnt vmcnt(0) lgkmcnt(0)\ns_barrier")
rt(2)
gbar.arrive(k, 0, k1.sWS, k1.sW, k1.sT, k1.vT)
k2.gen_k2(k)
rt(4)
k("s_waitcnt vmcnt(0) lgkmcnt(0)\ns_barrier")
rt(5)
gbar.arrive(k, 1, k2.sWS, k2.sW, k2.sT, k2.vT)
k3.gen_k3(k)
rt(7)
if DBG:
    k(f"""
    s_cmp_lg_u32 s2, {DBG}
    s_cbranch_scc1 fz_end
    s_cmp_lg_u32 s{k3.sW}, 8
    s_cbranch_scc1 fz_end
    s_load_dwordx2 s[92:93], s[0:1], 72
    s_mov_b32 s94, 64
    s_mov_b32 s95, 0x00020000
    v_readlane_b32 s96, v167, 0
    v_and_b32 v1, 63, v0
    v_lshlrev_b32 v1, 2, v1
    v_subrev_u32 v167, s96, v167
    s_waitcnt lgkmcnt(0)
    buffer_store_dword v167, v1, s[92:95], 0 offen
    """)
k("fz_end:\ns_endpgm")
k.finish()
txt = build_file(hdr, [("fz_kernel", 256, 768, 163840)], [k])
out = sys.argv[1] if len(sys.argv) > 1 else "recurrent_scan__softmax_full_mha__mixer_gmlp__prompt.s"
if os.environ.get("PLAIN"):
    txt = txt.replace("; @launch kernel=fz_kernel grid=", "; @launch grid=")
    import re
    txt = re.sub(r"\bfz_kernel\b(?!_)", NAME, txt)
open(out, "w").write(txt)
print("wrote", out, len(txt))
```

```python
import os
import struct
from asmlib import *
from layout import *

X = set(os.environ.get('K1X', '').split(','))
STAGE = 32768
NS = 4
O_W = 16384
L_IMG = NS * STAGE
L_TAG = L_IMG + 16384
L_CSW = L_TAG + 256
L_RS = L_CSW + 4096
LDS_K1 = L_RS + 1024

vLane = 1
vL16 = 2
vDX, vDW = 3, 5
vAX = 9
vAW = 13
vTag = 15
vT = 16
ACC = 32
FX = 96
FW = 108
vGR = 156
vGC = 160
vGA = 164
vK = 0

sWS, sXS, sWW, sWI, sDBG = 4, 8, 12, 16, 20
sW, sRH, sRB, sCG, sUn = 24, 25, 26, 27, 28
sKX, sKW, sKQ = 29, 30, 31
sMX, sMW = 32, 33
sKind, sIdx, sT32, sGU = 34, 35, 36, 37
sCSo = 38
sT = 40
sSpin = 61

C0 = -2.0 * 1.4426950408889634 * 0.7978845608028654
C1 = C0 * 0.044715
QS = 0.25 * 1.4426950408889634
STAMP = False
FUSED = False
sTagS = 99
WT = os.environ.get('WT', '')
BC = "op_sel_hi:[1,0]"


def f32(x):
    return "0x%08x" % struct.unpack("<I", struct.pack("<f", x))[0]


def stamp(k, i):
    if STAMP:
        if i == 0:
            k("s_memrealtime s[80:81]")
        if i == 3:
            k("s_memrealtime s[82:83]")
        k(f"s_memtime {sr(64+2*i,2)}\ns_waitcnt lgkmcnt(0)")


def stamp_store(k, n):
    if not STAMP:
        return
    k(f"s_mul_i32 s62, s2, 12\ns_add_u32 s62, s62, s{sW}\ns_lshl_b32 s62, s62, 5\ns_add_u32 s62, s62, {WS_STAMP}")
    for i in range(n):
        k(f"s_sub_u32 s63, s{64+2*i}, s64\nv_mov_b32 v{vT}, s63\nv_mov_b32 v{vT+1}, 0\nbuffer_store_dword v{vT}, v{vT+1}, {sr(sWS,4)}, s62 offen offset:{4*i}")
    for j, r in ((6, 80), (7, 82)):
        k(f"v_mov_b32 v{vT}, s{r}\nv_mov_b32 v{vT+1}, 0\nbuffer_store_dword v{vT}, v{vT+1}, {sr(sWS,4)}, s62 offen offset:{4*j}")


def mfma32(d, a, b, c):
    cs = "0" if c is None else vr(c, 16)
    return f"v_mfma_f32_32x32x16_bf16 {vr(d,16)}, {vr(a,4)}, {vr(b,4)}, {cs}"


def dma(t):
    base = (t % NS) * STAGE
    out = []
    for j in range(4):
        e = f"s_add_u32 m0, s{sMX}, {base+1024*j}\n"
        if j == 2:
            e += f"s_add_u32 s{sT}, s{sKX}, 16384\n"
        e += f"buffer_load_dwordx4 v{vDX+j%2}, {sr(sXS,4)}, s{sT if j >= 2 else sKX} offen lds"
        out.append(e)
    srd, so, va, pitch = (sWI, sKW, vDW, 3584) if t < 8 else (sWW, sKQ, vDW + 1, 3072)
    for j in range(4):
        e = (f"s_add_u32 m0, s{sMW}, {base+1024*j}\nbuffer_load_dwordx4 v{va}, {sr(srd,4)}, s{so} offen lds\n"
             f"s_add_u32 s{so}, s{so}, {pitch*(8 if j < 3 else 40)}")
        if j == 3:
            e += (f"\ns_add_u32 s{sKX}, s{sKX}, 128\ns_and_b32 s{sKX}, s{sKX}, 1023\n"
                  f"s_cselect_b32 s{sT}, 0, {512*pitch}\ns_sub_u32 s{so}, s{so}, s{sT}")
        out.append(e)
    return out


def loader(k):
    t0, t1, t2, t3 = vT, vT + 1, vT + 2, vT + 3
    k(f"""
    s_setprio 3
    s_lshl_b32 s{sMX}, s{sUn}, 12
    v_lshrrev_b32 v{t0}, 3, v{vLane}
    v_and_b32 v{t1}, 7, v{vLane}
    v_lshrrev_b32 v{t2}, 1, v{t0}
    v_xor_b32 v{t2}, v{t2}, v{t1}
    v_lshlrev_b32 v{t2}, 4, v{t2}
    v_lshl_add_u32 v{t2}, v{t0}, 10, v{t2}
    s_lshl_b32 s{sT+5}, s{sRB}, 17
    s_lshl_b32 s{sT+6}, s{sUn}, 15
    s_add_u32 s{sT+5}, s{sT+5}, s{sT+6}
    v_add_u32 v{vDX}, s{sT+5}, v{t2}
    v_xor_b32 v{t2}, 64, v{t2}
    s_add_u32 s{sT+5}, s{sT+5}, 8192
    v_add_u32 v{vDX+1}, s{sT+5}, v{t2}
    ; W: chunk = (l%8) ^ (4*((row>>1)&1)), row = l/8
    v_lshlrev_b32 v{t2}, 1, v{t0}
    v_and_b32 v{t2}, 4, v{t2}
    v_xor_b32 v{t2}, v{t2}, v{t1}
    v_lshlrev_b32 v{t2}, 4, v{t2}
    v_mul_u32_u24 v{t3}, 3584, v{t0}
    v_add_u32 v{vDW}, v{t3}, v{t2}
    v_mul_u32_u24 v{t3}, 3072, v{t0}
    v_add_u32 v{vDW+1}, v{t3}, v{t2}
    s_lshr_b32 s{sT+1}, s{sUn}, 1
    s_and_b32 s{sT+2}, s{sUn}, 1
    s_lshl_b32 s{sKW}, s{sCG}, 7
    s_cmp_eq_u32 s{sT+1}, 0
    s_cselect_b32 s{sT+3}, 1792, 0
    s_add_u32 s{sKW}, s{sKW}, s{sT+3}
    s_mul_i32 s{sT+3}, s{sT+2}, {32*3584}
    s_add_u32 s{sKW}, s{sKW}, s{sT+3}
    s_lshl_b32 s{sKQ}, s{sCG}, 8
    s_lshl_b32 s{sT+3}, s{sT+1}, 7
    s_add_u32 s{sKQ}, s{sKQ}, s{sT+3}
    s_mul_i32 s{sT+3}, s{sT+2}, {32*3072}
    s_add_u32 s{sKQ}, s{sKQ}, s{sT+3}
    s_add_u32 s{sMW}, s{sMX}, {O_W}
    s_and_b32 s{sT+3}, s2, {7 if 'rot' in X else (6 if 'rot6' in X else 0)}
    s_lshl_b32 s{sKX}, s{sT+3}, 7
    s_mul_i32 s{sT+4}, s{sT+3}, {64*3584}
    s_add_u32 s{sKW}, s{sKW}, s{sT+4}
    s_mul_i32 s{sT+4}, s{sT+3}, {64*3072}
    s_add_u32 s{sKQ}, s{sKQ}, s{sT+4}
    s_waitcnt lgkmcnt(0)
    """)
    for a in dma(0):
        k(a, tag=("st", 0))
    for a in dma(1):
        k(a, tag=("st", 1))
    stamp(k, 1)
    for t in range(16):
        if t == 5:
            k(f"s_cmp_ge_u32 s{sCG}, 12\ns_cbranch_scc1 k1_ltail")
        k.wait_tag(("st", t))
        k("s_waitcnt lgkmcnt(0)\ns_barrier")
        if 'prof' in X:
            k(f"s_memtime s[84:85]\ns_memrealtime s[86:87]\ns_waitcnt lgkmcnt(0)\nv_writelane_b32 v40, s84, {t}\nv_writelane_b32 v41, s86, {t}")
        if t == 0:
            for a in dma(2):
                k(a, tag=("st", 2))
        if t + 3 < 16 and 'nodma' not in X:
            for a in dma(t + 3):
                k(a, tag=("st", t + 3))
    if 'prof' in X:
        k(f"""
        v_writelane_b32 v40, s64, 16
        v_writelane_b32 v41, s80, 16
        s_lshl_b32 s88, s2, 9
        s_add_u32 s88, s88, {WS_STAMP + 3*262144}
        v_lshlrev_b32 v42, 3, v{vLane}
        buffer_store_dwordx2 v[40:41], v42, {sr(sWS,4)}, s88 offen
        """)
    k("s_branch k1_ldone")
    k.label("k1_ltail")
    for t in range(5, 8):
        k.wait_tag(("st", t))
        k("s_barrier")
    if FUSED:
        for t in range(8):
            k("s_barrier")
    k.label("k1_ldone")
    k(f"v_mov_b32 v{t0}, {L_TAG}\nds_read_b32 v{vTag}, v{t0}\nv_readfirstlane_b32 s{sTagS}, v{vTag}")


def reads(ks, buf):
    out = [f"ds_read_b128 {vr(FX+4*buf,4)}, v{vAX+ks}"]
    for c in range(4):
        d = FW + 16 * buf + 4 * c
        o = (c // 2) * 8192 + ks * 2048
        out.append(f"ds_read_b64_tr_b16 {vr(d,2)}, v{vAW+c%2} offset:{o}")
        out.append(f"ds_read_b64_tr_b16 {vr(d+2,2)}, v{vAW+c%2} offset:{o+512}")
    return out


def mms(buf, first):
    return [mfma32(ACC + 16 * c, FW + 16 * buf + 4 * c, FX + 4 * buf, None if first else ACC + 16 * c) for c in range(4)]


def gather_loads():
    e = ""
    if 'lrs' not in X:
        e = f"buffer_load_dwordx4 {vr(vGR,4)}, v{vGA}, {sr(sWS,4)}, 0 offen sc0 sc1\n"
    for un in range(2):
        e += f"buffer_load_dwordx2 {vr(vGC+2*un,2)}, v{vGA+1}, {sr(sWS,4)}, s{sCSo+un} offen sc0 sc1\n"
    return e


def check_tags(k, regs, Lok, tmp):
    k(f"v_xor_b32 v{tmp}, v{regs[0]}, v{vTag}")
    for r in regs[1:]:
        k(f"v_xor_b32 v{tmp+1}, v{r}, v{vTag}\nv_or_b32 v{tmp}, v{tmp}, v{tmp+1}")
    k(f"v_cmp_ne_u32 vcc, 0, v{tmp}\ns_cmp_eq_u64 vcc, 0\ns_cbranch_scc1 {Lok}")


def poll_tag(k, first_issued):
    Lr, Lok = k.newlabel("tagpoll"), k.newlabel("tagok")
    if first_issued:
        k(f"v_readfirstlane_b32 s{sT}, v{vTag}\ns_cmp_lg_u32 s{sT}, 0\ns_cbranch_scc1 {Lok}")
    k(f"""
    {Lr}:
    buffer_load_dword v{vTag}, v{vGA+2}, {sr(sDBG,4)}, 0 offen sc0 sc1
    v_readfirstlane_b32 s{sT}, v{vTag}
    s_cmp_lg_u32 s{sT}, 0
    s_cbranch_scc1 {Lok}
    s_sleep 2
    s_sub_u32 s{sSpin}, s{sSpin}, 1
    s_cbranch_scc0 {Lr}
    {Lok}:
    """)


def main_loop(k):
    t0 = vT
    LA = 2
    for p in range(8):
        k("s_waitcnt lgkmcnt(0)\ns_barrier")
        if p > 0:
            step = STAGE if p % NS else -(NS - 1) * STAGE
            for r in (vAX, vAX + 1, vAX + 2, vAX + 3, vAW, vAW + 1):
                k(f"v_add_u32 v{r}, {step & 0xffffffff:#x}, v{r}")
        for ks in range(4):
            g = 4 * p + ks
            r = reads(ks, g % 3)
            m = mms((g - LA) % 3, g - LA == 0) if g >= LA else []
            seq = interleave(m, r) if ks < 3 else (m[:1] + r[:5] + m[1:2] + r[5:] + m[2:])
            for a in seq:
                k(a)
            if p == 5 and ks == 0:
                k(f"v_mov_b32 v{t0}, {L_TAG}\nds_read_b32 v{vTag}, v{t0}")
            if p == 6 and ks == 2:
                k(gather_loads())
    for g in range(32 - LA, 32):
        for a in mms(g % 3, False):
            k(a)


def row_stats(k):
    t0, t1, t2, t3 = vT, vT + 1, vT + 2, vT + 3
    S = ACC
    D = ACC + 8
    U = ACC + 40
    for i in range(4):
        k(f"v_mov_b32 v{S+i}, 0")
    if 'rprio' in X:
        k("s_setprio 2")

    def crunch(b):
        for i in range(16):
            u = U + 2 * (i % 4)
            k(f"""
            v_lshlrev_b32 v{u}, 16, v{D+16*b+i}
            v_and_b32 v{u+1}, 0xffff0000, v{D+16*b+i}
            v_add_f32 v{S}, v{S}, v{u}
            v_add_f32 v{S+1}, v{S+1}, v{u+1}
            v_fmac_f32 v{S+2}, v{u}, v{u}
            v_fmac_f32 v{S+3}, v{u+1}, v{u+1}
            """)
    for p in range(8):
        k("s_waitcnt lgkmcnt(0)\ns_barrier")
        o = (p % 2) * STAGE
        if p in (2, 6):
            for r in range(4):
                k(f"v_add_u32 v{vAX+r}, {2*STAGE}, v{vAX+r}")
        if p == 4:
            for r in range(4):
                k(f"v_subrev_u32 v{vAX+r}, {2*STAGE}, v{vAX+r}")
        for ks in range(4):
            k(f"ds_read_b128 {vr(D+16*(p%2)+4*ks,4)}, v{vAX+ks} offset:{o}")
        if 'nocr' not in X:
            crunch(p % 2)
    for r in range(4):
        k(f"v_subrev_u32 v{vAX+r}, {2*STAGE}, v{vAX+r}")
    k(f"""
    v_add_f32 v{S}, v{S}, v{S+1}
    v_add_f32 v{S+2}, v{S+2}, v{S+3}
    v_mov_b32 v{t0}, v{S}
    v_mov_b32 v{t1}, v{S+2}
    v_permlane32_swap_b32 v{S}, v{t0}
    v_permlane32_swap_b32 v{S+2}, v{t1}
    v_add_f32 v{t0}, v{t0}, v{S}
    v_add_f32 v{t1}, v{t1}, v{S+2}
    v_mul_f32 v{t0}, {f32(1.0/512)}, v{t0}
    v_mul_f32 v{t1}, {f32(1.0/512)}, v{t1}
    v_fma_f32 v{t1}, -v{t0}, v{t0}, v{t1}
    v_max_f32 v{t1}, 0, v{t1}
    v_add_f32 v{t1}, {f32(1e-5)}, v{t1}
    v_rsq_f32 v{t1}, v{t1}
    v_mul_f32 v{t0}, v{t0}, v{t1}
    ds_write_b32 v{vGA}, v{t1}
    ds_write_b32 v{vGA}, v{t0} offset:512
    """)


def epi_addr(k):
    t0, t1, t2, t3 = vT, vT + 1, vT + 2, vT + 3
    k(f"""
    s_lshl_b32 s{sT}, s{sW}, 9
    s_add_u32 s{sT}, s{sT}, {L_CSW}
    v_lshlrev_b32 v{t0}, 2, v{vLane}
    v_add_u32 v{vT+4}, s{sT}, v{t0}
    v_lshrrev_b32 v{t2}, 5, v{vLane}             ; h
    v_lshlrev_b32 v{vT+6}, 5, v{t2}
    v_add_u32 v{vT+6}, s{sT}, v{vT+6}
    v_lshlrev_b32 v{vT+5}, 3, v{vLane}
    v_mov_b32 v3, {f32(C0)}
    v_and_b32 v{t0}, 31, v{vLane}
    v_and_b32 v{t1}, 1, v{t0}
    v_bfe_u32 v{t3}, v{t0}, 1, 1
    v_lshl_or_b32 v{t1}, v{t3}, 2, v{t1}
    v_bfe_u32 v{t3}, v{t0}, 2, 1
    v_lshl_or_b32 v{t1}, v{t3}, 1, v{t1}
    v_xor_b32 v{t1}, v{t1}, v{t2}
    v_lshlrev_b32 v{t1}, 4, v{t1}
    v_lshl_add_u32 v{t1}, v{t0}, 7, v{t1}
    v_add_u32 v{vT+8}, s{sT+1}, v{t1}
    v_xor_b32 v{vT+9}, 32, v{vT+8}
    v_xor_b32 v{vT+10}, 64, v{vT+8}
    v_xor_b32 v{vT+11}, 96, v{vT+8}
    v_bfe_u32 v{t0}, v{vLane}, 2, 2
    v_and_b32 v{t1}, 1, v{t0}
    v_lshrrev_b32 v{t3}, 1, v{t0}
    v_lshl_or_b32 v{t1}, v{t3}, 2, v{t1}
    v_bfe_u32 v{t3}, v{vLane}, 4, 1
    v_lshlrev_b32 v{t3}, 1, v{t3}
    v_and_b32 v{vT+7}, 1, v{vLane}
    v_or_b32 v{t3}, v{t3}, v{vT+7}
    v_xor_b32 v{t1}, v{t1}, v{t3}
    v_lshlrev_b32 v{t1}, 4, v{t1}
    v_lshl_add_u32 v{t0}, v{t2}, 3, v{t0}
    v_lshl_add_u32 v{t1}, v{t0}, 7, v{t1}
    v_bfe_u32 v{t3}, v{vLane}, 1, 1
    v_lshl_add_u32 v{t1}, v{t3}, 3, v{t1}
    v_add_u32 v{vT+12}, s{sT+1}, v{t1}
    v_xor_b32 v{vT+13}, 32, v{vT+12}
    v_xor_b32 v{vT+14}, 64, v{vT+12}
    v_xor_b32 v{vT+15}, 96, v{vT+12}
    v_and_b32 v{t0}, 15, v{vLane}
    v_lshlrev_b32 v{t0}, 4, v{t0}
    v_lshl_add_u32 v{t0}, v{t2}, 8, v{t0}
    v_bfe_u32 v{t3}, v{vLane}, 4, 1
    v_lshl_add_u32 v{vT+7}, v{t3}, 16, v{t0}
    """)


def get_stats(k):
    t0 = vT
    tagregs = [vGC + 1, vGC + 3] + ([vGR + 1, vGR + 3] if 'lrs' not in X else [])
    Lr, Lok = k.newlabel("g1"), k.newlabel("g1ok")
    check_tags(k, tagregs, Lok, t0)
    k(f"{Lr}:\ns_sleep 2")
    k(gather_loads())
    check_tags(k, tagregs, Lok, t0)
    k(f"s_sub_u32 s{sSpin}, s{sSpin}, 1\ns_cbranch_scc0 {Lr}\n{Lok}:")
    k(f"ds_write_b32 v{vT+4}, v{vGC}\nds_write_b32 v{vT+4}, v{vGC+2} offset:256")
    if 'lrs' in X:
        k(f"ds_read_b32 v{vGR}, v{vGA}\nds_read_b32 v{vGR+2}, v{vGA} offset:512")
    k("s_waitcnt lgkmcnt(0)")


def cs_reads(un):
    out = []
    for c in range(4):
        out.append(f"ds_read_b128 {vr(FW+8*c,4)}, v{vT+6} offset:{un*256+c*64}")
        out.append(f"ds_read_b128 {vr(FW+8*c+4,4)}, v{vT+6} offset:{un*256+c*64+16}")
    return out


def pack(A):
    return [f"v_cvt_pk_bf16_f32 v{A+8*c+i}, v{A+8*c+2*i}, v{A+8*c+2*i+1}" for c in range(4) for i in range(4)]


def tr_store(k, A, lane_reg, s0, kstride):
    for c in range(4):
        k(f"ds_write_b128 v{vT+8+c}, {vr(A+8*c,4)}")
    k(f"s_add_u32 s{sT+3}, s{s0}, 131072\ns_waitcnt lgkmcnt(0)")
    for ct in range(2):
        for ks in range(2):
            d = A + 8 * ct + 4 * ks
            k(f"ds_read_b64_tr_b16 {vr(d,2)}, v{vT+12+2*ct} offset:{ks*2048}")
            k(f"ds_read_b64_tr_b16 {vr(d+2,2)}, v{vT+13+2*ct} offset:{ks*2048+512}")
    for ct in range(2):
        for ks in range(2):
            k(f"buffer_store_dwordx4 {vr(A+8*ct+4*ks,4)}, v{lane_reg}, {sr(sWS,4)}, s{(s0, sT+3)[ct]} offen offset:{ks*kstride} {WT}")


def z_epilogue(k):
    t0, t1, t2, t3 = vT, vT + 1, vT + 2, vT + 3
    k("s_barrier")
    if 'zprio' in X:
        k("s_setprio 2")
    get_stats(k)
    k(f"s_mov_b32 s{sT+10}, {f32(C1)}")
    S = FX

    def unit_ops(un):
        A = ACC + 32 * un
        ops = list(cs_reads(un))
        for i in range(32):
            ops.append(f"v_mul_f32 v{A+i}, v{A+i}, v{vGR}")
        for i in range(32):
            ops.append(f"v_fma_f32 v{A+i}, -v{vGR+2}, v{FW+i}, v{A+i}")
        for h in range(2):
            R = [A + 16 * h + i for i in range(16)]
            T = [FW + i for i in range(16)]
            ops += [f"v_mul_f32 v{t}, v{r}, v{r}" for r, t in zip(R, T)]
            ops += [f"v_fma_f32 v{t}, v{t}, s{sT+10}, v3" for r, t in zip(R, T)]
            ops += [f"v_mul_f32 v{t}, v{t}, v{r}" for r, t in zip(R, T)]
            ops += [f"v_exp_f32 v{t}, v{t}" for r, t in zip(R, T)]
            ops += [f"v_add_f32 v{t}, 1.0, v{t}" for r, t in zip(R, T)]
            ops += [f"v_rcp_f32 v{t}, v{t}" for r, t in zip(R, T)]
            ops += [f"v_mul_f32 v{r}, v{r}, v{t}" for r, t in zip(R, T)]
        return ops

    ops = unit_ops(0)
    A = ACC
    ops += [f"v_add_f32 v{S}, v{A}, v{A+1}", f"v_mul_f32 v{S+2}, v{A}, v{A}", f"v_add_f32 v{S+1}, v{A+2}, v{A+3}",
            f"v_mul_f32 v{S+3}, v{A+1}, v{A+1}", f"v_fmac_f32 v{S+2}, v{A+2}, v{A+2}", f"v_fmac_f32 v{S+3}, v{A+3}, v{A+3}"]
    for i in range(4, 32):
        ops += [f"v_add_f32 v{S+i%2}, v{S+i%2}, v{A+i}", f"v_fmac_f32 v{S+2+i%2}, v{A+i}, v{A+i}"]
    ops.append(f"""
    v_add_f32 v{S}, v{S}, v{S+1}
    v_add_f32 v{S+2}, v{S+2}, v{S+3}
    v_permlane32_swap_b32 v{S}, v{S+2}
    v_add_f32 v{S}, v{S}, v{S+2}
    v_mov_b32 v{S+1}, v{vTag}
    s_mul_i32 s{sT+4}, s{sT32}, {14*512}
    s_add_u32 s{sT+4}, s{sT+4}, {WS_S2}
    s_lshl_b32 s{sT+1}, s{sCG}, 9
    s_add_u32 s{sT+1}, s{sT+1}, s{sT+4}
    buffer_store_dwordx2 {vr(S,2)}, v{vT+5}, {sr(sWS,4)}, s{sT+1} offen sc0 sc1
    """)
    n0 = len(ops)
    ops += unit_ops(1)
    ops += pack(ACC + 32)
    G = FW

    def g2loads():
        e = ""
        for i in range(7):
            if i % 4 == 0:
                e += f"s_add_u32 s{sT}, s{sT+4}, {1024*i}\n"
            e += f"buffer_load_dwordx4 {vr(G+4*i,4)}, v{vL16}, {sr(sWS,4)}, s{sT} offen offset:{1024*(i%4)} sc0 sc1\n"
        return e
    ops.insert(len(ops) - 16, g2loads())
    e = f"""
    s_mul_i32 s{sT+1}, s{sT32}, {56*1024}
    s_lshl_b32 s{sT+2}, s{sCG}, 12
    s_add_u32 s{sT+1}, s{sT+1}, s{sT+2}
    s_add_u32 s{sT+1}, s{sT+1}, {WS_Z1}
    """
    for c in range(4):
        e += f"buffer_store_dwordx4 {vr(ACC+32+8*c,4)}, v{vL16}, {sr(sWS,4)}, s{sT+1} offen offset:{1024*c} {WT}\n"
    ops.append(e)
    cost = [2 if o.startswith(("v_exp", "v_rcp")) else (3 if o.startswith("ds_") else (25 if "\n" in o else 1)) for o in ops]
    HEAD = int(os.environ.get('ZHEAD', '70'))
    NB1 = int(os.environ.get('ZNB', '5'))
    tot = sum(cost) + HEAD
    acc, nxt, placed = HEAD, 1, 0
    for i, (o, c) in enumerate(zip(ops, cost)):
        if not ('noz' in X and o.startswith('v_')):
            k(o)
        if i == n0 - 1:
            stamp(k, 4)
        acc += c
        if placed < NB1 and acc >= tot * nxt / NB1 - 1e-9:
            k("s_barrier")
            placed += 1
            nxt += 1
    assert placed == NB1
    rest = 7 - NB1
    stamp(k, 5)
    Lr, Lok = k.newlabel("g2"), k.newlabel("g2ok")
    check_tags(k, [G + 2 * j + 1 for j in range(14)], Lok, t0)
    k(f"{Lr}:")
    k(g2loads())
    check_tags(k, [G + 2 * j + 1 for j in range(14)], Lok, t0)
    k(f"s_sleep 1\ns_sub_u32 s{sSpin}, s{sSpin}, 1\ns_cbranch_scc0 {Lr}\n{Lok}:")
    stamp(k, 1)
    for i in range(1, 7):
        k(f"v_add_f32 v{G}, v{G}, v{G+4*i}\nv_add_f32 v{G+2}, v{G+2}, v{G+4*i+2}")
    k(f"""
    v_mov_b32 v{t0}, v{G}
    v_mov_b32 v{t1}, v{G+2}
    v_permlane32_swap_b32 v{G}, v{t0}
    v_permlane32_swap_b32 v{G+2}, v{t1}
    v_add_f32 v{G}, v{G}, v{t0}
    v_add_f32 v{G+1}, v{G+2}, v{t1}
    s_lshl_b32 s{sT}, s{sW}, 9
    s_add_u32 s{sT}, s{sT}, {L_CSW}
    v_and_b32 v{t2}, 31, v{vLane}
    v_lshlrev_b32 v{t3}, 3, v{t2}
    v_add_u32 v{t3}, s{sT}, v{t3}
    ds_write_b64 v{t3}, {vr(G,2)}
    v_lshlrev_b32 v{t3}, 2, v{t2}
    v_add_u32 v{t3}, s{sT}, v{t3}
    s_waitcnt lgkmcnt(0)
    ds_read_b32 v{t0}, v{t3}
    ds_read_b32 v{t1}, v{t3} offset:128
    s_lshl_b32 s{sT}, s{sCG}, 18
    s_lshl_b32 s{sT+1}, s{sT32}, 11
    s_add_u32 s{sT}, s{sT}, s{sT+1}
    s_add_u32 s{sT}, s{sT}, {WS_Z2}
    v_mul_f32 v{t0}, {f32(1.0/896)}, v{t0}
    v_mul_f32 v{t1}, {f32(1.0/896)}, v{t1}
    v_fma_f32 v{t1}, -v{t0}, v{t0}, v{t1}
    v_max_f32 v{t1}, 0, v{t1}
    v_add_f32 v{t1}, {f32(1e-5)}, v{t1}
    v_rsq_f32 v{t1}, v{t1}
    v_mul_f32 v{t0}, v{t0}, v{t1}
    """)
    if rest >= 1:
        k("s_barrier")
    for i in range(32):
        k(f"v_fma_f32 v{A+i}, v{A+i}, v{t1}, -v{t0}")
    for o in pack(A):
        k(o)
    tr_store(k, A, vL16, sT, 1024)
    for i in range(rest - 1):
        k("s_barrier")


def q_epilogue(k):
    get_stats(k)
    k(f"""
    s_cmp_eq_u32 s{sKind}, 0
    s_cselect_b32 s{sT}, {f32(QS)}, 1.0
    v_mul_f32 v4, s{sT}, v{vGR}
    v_mul_f32 v5, s{sT}, v{vGR+2}
    s_lshl_b32 s{sT}, s{sCG}, 19
    s_lshl_b32 s{sT+1}, s{sT32}, 10
    s_add_u32 s{sT}, s{sT}, s{sT+1}
    s_add_u32 s{sT}, s{sT}, {WS_Q}
    """)
    for un in range(2):
        A = ACC + 32 * un
        for o in cs_reads(un):
            k(o)
        for i in range(0, 32, 2):
            k(f"v_pk_mul_f32 {vr(A+i,2)}, {vr(A+i,2)}, v[4:5] {BC}")
        for i in range(0, 32, 2):
            k(f"v_pk_fma_f32 {vr(A+i,2)}, {vr(FW+i,2)}, v[4:5], {vr(A+i,2)} op_sel:[0,1,0] op_sel_hi:[1,1,1] neg_lo:[1,0,0] neg_hi:[1,0,0]")
        for o in pack(A):
            k(o)
        Lv, Ld = k.newlabel("qv"), k.newlabel("qd")
        k(f"s_cmp_eq_u32 s{sKind}, 2\ns_cbranch_scc1 {Lv}")
        for c in range(4):
            k(f"buffer_store_dwordx4 {vr(A+8*c,4)}, v{vL16}, {sr(sWS,4)}, s{sT} offen {WT}\ns_add_u32 s{sT}, s{sT}, 65536")
        k(f"s_branch {Ld}\n{Lv}:")
        tr_store(k, A, vT + 7, sT, 512)
        k(f"s_add_u32 s{sT}, s{sT}, 262144\n{Ld}:")


def wave_allsum(k, regs, tmps):
    for sh in (8, 4, 2, 1):
        for r in regs:
            k(f"v_add_f32_dpp v{r}, v{r}, v{r} row_ror:{sh} row_mask:0xf bank_mask:0xf")
    for sw in ("v_permlane16_swap_b32", "v_permlane32_swap_b32"):
        for r, t in zip(regs, tmps):
            k(f"v_mov_b32 v{t}, v{r}")
        for r, t in zip(regs, tmps):
            k(f"{sw} v{r}, v{t}")
        for r, t in zip(regs, tmps):
            k(f"v_add_f32 v{r}, v{r}, v{t}")


def helper(k):
    t0, t1, t2, t3 = vT, vT + 1, vT + 2, vT + 3
    A = FX
    if 'lrs' not in X:
        D = ACC
        k(f"""
        s_cmp_lt_u32 s{sW}, 8
        s_cbranch_scc1 k1_hcol
        s_setprio 2
        s_lshl_b32 s{sT+6}, s2, 2
        s_add_u32 s{sT+6}, s{sT+6}, s{sW}
        s_sub_u32 s{sT+6}, s{sT+6}, 8
        s_lshl_b32 s{sT+7}, s{sT+6}, 14
        v_lshrrev_b32 v{t0}, 3, v{vLane}
        v_and_b32 v{t1}, 7, v{vLane}
        v_lshlrev_b32 v{t1}, 4, v{t1}
        v_lshl_add_u32 v{t1}, v{t0}, 10, v{t1}
        s_add_u32 s{sT+8}, s{sT+7}, 8192
        v_mov_b32 v3, 0x3f803f80
        """)
        for b in range(2):
            for i in range(8):
                k(f"buffer_load_dwordx4 {vr(D+32*b+4*i,4)}, v{t1}, {sr(sXS,4)}, s{sT+7+b} offen offset:{128*i}")
        k(f"buffer_load_dword v{vTag}, v{vGA+2}, {sr(sDBG,4)}, 0 offen sc0 sc1")
        for j in range(4):
            k(f"v_mov_b32 v{A+j}, 0")
        for b in range(2):
            for i in range(32):
                k(f"v_dot2c_f32_bf16 v{A+2*b}, v{D+32*b+i}, v3\nv_dot2c_f32_bf16 v{A+2*b+1}, v{D+32*b+i}, v{D+32*b+i}")
        for m in ("quad_perm:[1,0,3,2]", "quad_perm:[2,3,0,1]", "row_half_mirror"):
            for j in range(4):
                k(f"v_add_f32_dpp v{A+j}, v{A+j}, v{A+j} {m} row_mask:0xf bank_mask:0xf")
        k(f"""
        v_and_b32 v{t2}, 1, v{vLane}
        v_cmp_eq_u32 vcc, 1, v{t2}
        v_cndmask_b32 v{A}, v{A}, v{A+2}, vcc
        v_cndmask_b32 v{A+1}, v{A+1}, v{A+3}, vcc
        v_mul_f32 v{A}, {f32(1.0/512)}, v{A}
        v_mul_f32 v{A+1}, {f32(1.0/512)}, v{A+1}
        v_fma_f32 v{A+1}, -v{A}, v{A}, v{A+1}
        v_max_f32 v{A+1}, 0, v{A+1}
        v_add_f32 v{A+1}, {f32(1e-5)}, v{A+1}
        v_rsq_f32 v{D}, v{A+1}
        v_mul_f32 v{D+2}, v{D}, v{A}
        v_lshl_add_u32 v{t0}, v{t2}, 3, v{t0}
        v_lshlrev_b32 v{t0}, 4, v{t0}
        """)
        poll_tag(k, True)
        k(f"""
        v_mov_b32 v{D+1}, v{vTag}
        v_mov_b32 v{D+3}, v{vTag}
        s_lshl_b32 s{sT+7}, s{sT+6}, 8
        s_add_u32 s{sT+7}, s{sT+7}, {WS_RS}
        s_mov_b32 exec_lo, 0x03030303
        s_mov_b32 exec_hi, 0x03030303
        buffer_store_dwordx4 {vr(D,4)}, v{t0}, {sr(sWS,4)}, s{sT+7} offen sc0 sc1
        s_mov_b64 exec, -1
        s_setprio 0
        k1_hcol:
        """)
    k(f"""
    s_cmp_ge_u32 s2, 28
    s_cbranch_scc1 k1_hpre
    s_add_u32 s{sGU}, s2, 24
    s_min_u32 s{sT}, s2, 23
    s_lshl_b32 s{sT+1}, s2, 7
    s_lshl_b32 s{sT+2}, s{sT}, 7
    s_lshl_b32 s{sT+4}, s{sW}, 6
    s_sub_u32 s{sT+5}, s{sW}, 8
    s_lshl_b32 s{sT+5}, s{sT+5}, 7
    s_cmp_lt_u32 s{sW}, 8
    s_cselect_b32 s{sGU}, s{sGU}, s{sT}
    s_cselect_b32 s{sT+1}, s{sT+1}, s{sT+2}
    s_cselect_b32 s{sT+4}, s{sT+4}, s{sT+5}
    s_cselect_b32 s{sT+3}, 512, 0
    s_cselect_b32 s{sWW}, s{sWI}, s{sWW}
    s_cselect_b32 s{sWW+1}, s{sWI+1}, s{sWW+1}
    s_cselect_b32 s{sWW+2}, s{sWI+2}, s{sWW+2}
    s_add_u32 s{sT+3}, s{sT+3}, 3072             ; pitch
    v_lshrrev_b32 v{t0}, 3, v{vLane}
    v_add_u32 v{t0}, s{sT+4}, v{t0}
    v_mul_lo_u32 v{t0}, v{t0}, s{sT+3}
    v_and_b32 v{t1}, 7, v{vLane}
    v_lshl_add_u32 v{t0}, v{t1}, 4, v{t0}
    s_lshl_b32 s{sT+3}, s{sT+3}, 3
    """)

    def loads(b):
        for i in range(8):
            k(f"buffer_load_dwordx4 {vr(ACC+32*b+4*i,4)}, v{t0}, {sr(sWW,4)}, s{sT+1} offen")
            k(f"s_add_u32 s{sT+1}, s{sT+1}, s{sT+3}")

    def accum(b):
        for i in range(8):
            for r in range(4):
                src = ACC + 32 * b + 4 * i + r
                if i == 0 and b == 0:
                    k(f"v_lshlrev_b32 v{A+2*r}, 16, v{src}\nv_and_b32 v{A+2*r+1}, 0xffff0000, v{src}")
                else:
                    k(f"v_lshlrev_b32 v{t2}, 16, v{src}\nv_and_b32 v{t3}, 0xffff0000, v{src}\n"
                      f"v_pk_add_f32 {vr(A+2*r,2)}, {vr(A+2*r,2)}, {vr(t2,2)}")

    def reduce_write():
        regs = [A + i for i in range(8)]
        tm = [A + 8 + i for i in range(8)]
        for r in regs:
            k(f"v_add_f32_dpp v{r}, v{r}, v{r} row_ror:8 row_mask:0xf bank_mask:0xf")
        for sw in ("v_permlane16_swap_b32", "v_permlane32_swap_b32"):
            for r, t in zip(regs, tm):
                k(f"v_mov_b32 v{t}, v{r}")
            for r, t in zip(regs, tm):
                k(f"{sw} v{r}, v{t}")
            for r, t in zip(regs, tm):
                k(f"v_add_f32 v{r}, v{r}, v{t}")
        k(f"""
        s_lshl_b32 s{sT}, s{sW}, 8
        v_lshlrev_b32 v{t0}, 5, v{t1}
        v_add_u32 v{t0}, s{sT}, v{t0}
        ds_write_b128 v{t0}, {vr(A,4)}
        ds_write_b128 v{t0}, {vr(A+4,4)} offset:16
        s_waitcnt lgkmcnt(0)
        """)

    def publish(n):
        k(f"s_lshl_b32 s{sT}, s{sW}, 8\nv_lshlrev_b32 v{t0}, 2, v{vLane}\nv_add_u32 v{t0}, s{sT}, v{t0}")
        for i in range(n):
            k(f"ds_read_b32 v{A+i}, v{t0} offset:{256*i}")
        poll_tag(k, True)
        for i in range(1, n):
            k(f"v_add_f32 v{A}, v{A}, v{A+i}")
        k(f"""
        s_lshl_b32 s{sT}, s{sGU}, 9
        s_add_u32 s{sT}, s{sT}, {WS_CS}
        v_lshlrev_b32 v{t0}, 3, v{vLane}
        v_mov_b32 v{A+1}, v{vTag}
        buffer_store_dwordx2 {vr(A,2)}, v{t0}, {sr(sWS,4)}, s{sT} offen sc0 sc1
        """)
    loads(0)
    k(f"s_cmp_ge_u32 s{sW}, 8\ns_cbranch_scc1 k1_hq")
    k(f"s_setprio 2\nbuffer_load_dword v{vT+8}, v{vGA+2}, {sr(sDBG,4)}, 0 offen sc0 sc1")
    accum(0)
    reduce_write()
    k(f"s_barrier\ns_cmp_lg_u32 s{sW}, 0\ns_cbranch_scc1 k1_hz\nv_or_b32 v{vTag}, v{vTag}, v{vT+8}")
    publish(8)
    k.label("k1_hz")
    if FUSED:
        k("s_barrier")
    k("s_branch k1_hpre")
    k.label("k1_hq")
    loads(1)
    k("s_barrier")
    accum(0)
    accum(1)
    reduce_write()
    k(f"s_barrier\ns_cmp_lg_u32 s{sW}, 8\ns_cbranch_scc1 k1_hpre")
    publish(4)
    k.label("k1_hpre")
    if 'hwsp' in X:
        k(f"""
        s_load_dwordx2 {sr(sWI,2)}, s[0:1], {KA_WSP}
        s_mov_b32 s{sWI+2}, {2048*4096}
        s_lshr_b32 s{sT}, s2, 3
        s_mul_i32 s{sT}, s{sT}, 12
        s_add_u32 s{sT}, s{sT}, s{sW}
        s_min_u32 s{sT}, s{sT}, 42
        s_mul_i32 s{sT}, s{sT}, {6*8192}
        s_and_b32 s{sT+1}, s2, 3
        s_lshl_b32 s{sT+1}, s{sT+1}, 21
        s_add_u32 s{sT}, s{sT}, s{sT+1}
        v_lshlrev_b32 v{t0}, 7, v{vLane}
        s_sleep {os.environ.get('WSPD', '0')}
        s_waitcnt lgkmcnt(0)
        """)
        for i in range(6):
            k(f"buffer_load_dword v{ACC+i}, v{t0}, {sr(sWI,4)}, s{sT} offen\ns_add_u32 s{sT}, s{sT}, 8192")
    if FUSED:
        k(f"s_cmp_lg_u32 s{sW}, 8\ns_cbranch_scc1 k1_fin")
        poll_tag(k, True)
        k(f"s_mov_b32 s{sTagS}, s{sT}")


def gen_k1(k=None):
    if k is None:
        k = Kernel("k1_kernel")
    t0, t1, t2, t3 = vT, vT + 1, vT + 2, vT + 3
    stamp(k, 0)
    if STAMP:
        for i in (1, 2, 4, 5):
            k(f"s_mov_b64 {sr(64+2*i,2)}, s[64:65]")
    k(f"""
    s_cmp_ge_u32 s2, 256
    s_cbranch_scc1 {'fz_end' if FUSED else 'k1_end'}
    s_load_dwordx2 {sr(sXS,2)}, s[0:1], {KA_X}
    s_load_dwordx2 {sr(sWW,2)}, s[0:1], {KA_WQKV}
    s_load_dwordx2 {sr(sWI,2)}, s[0:1], {KA_WIN}
    s_load_dwordx2 {sr(sWS,2)}, s[0:1], {KA_WS}
    s_load_dwordx2 {sr(sDBG,2)}, s[0:1], {KA_DBG}
    s_memrealtime {sr(sT+14,2)}
    v_lshrrev_b32 v{t0}, 6, v0
    v_and_b32 v{vLane}, 63, v0
    v_readfirstlane_b32 s{sW}, v{t0}
    v_lshlrev_b32 v{vL16}, 4, v{vLane}
    s_mov_b32 s{sWS+2}, {WS_SIZE}
    s_mov_b32 s{sWS+3}, 0x00020000
    s_mov_b32 s{sXS+2}, {2048*1024}
    s_mov_b32 s{sXS+3}, 0x00020000
    s_mov_b32 s{sWW+2}, {512*3072}
    s_mov_b32 s{sWW+3}, 0x00020000
    s_mov_b32 s{sWI+2}, {512*3584}
    s_mov_b32 s{sWI+3}, 0x00020000
    s_mov_b32 s{sDBG+2}, 256
    s_mov_b32 s{sDBG+3}, 0x00020000
    s_mov_b32 s{sSpin}, 200000
    s_mov_b32 s{sTagS}, 0
    s_mov_b32 s98, 255
    s_and_b32 s{sT}, s2, 31
    s_lshl_b32 s{sT}, s{sT}, 2
    s_add_u32 s{sT}, s{sT}, 128
    v_mov_b32 v{vGA+2}, s{sT}
    s_cmp_lt_u32 s2, 32
    s_cbranch_scc1 k1_helper
    ; xcd = wg&7, j = (wg>>3) - 4 (0..27): rb = 4(xcd/2) + j/7, cg = 7(xcd%2) + j%7
    s_and_b32 s{sT}, s2, 7
    s_lshr_b32 s{sT+1}, s2, 3
    s_sub_u32 s{sT+1}, s{sT+1}, 4
    s_mul_i32 s{sT+5}, s{sT+1}, 37
    s_lshr_b32 s{sT+5}, s{sT+5}, 8
    s_mul_i32 s{sT+6}, s{sT+5}, 7
    s_sub_u32 s{sCG}, s{sT+1}, s{sT+6}
    s_and_b32 s{sT+2}, s2, 1
    s_mul_i32 s{sT+6}, s{sT+2}, 7
    s_add_u32 s{sCG}, s{sCG}, s{sT+6}
    s_lshr_b32 s{sRB}, s{sT}, 1
    s_lshl_b32 s{sRB}, s{sRB}, 2
    s_add_u32 s{sRB}, s{sRB}, s{sT+5}
    s_lshl_b32 s98, s{sRB}, 4
    s_add_u32 s98, s98, s{sCG}
    s_lshr_b32 s{sRH}, s{sW}, 2
    s_and_b32 s{sUn}, s{sW}, 3
    s_cmp_ge_u32 s{sW}, 8
    s_cbranch_scc1 k1_loader
    s_lshr_b32 s{sKind}, s{sCG}, 2
    s_cmp_eq_u32 s{sRH}, 0
    s_cselect_b32 s{sKind}, 4, s{sKind}
    s_add_u32 s{sT}, s{sCG}, 38
    s_add_u32 s{sT+1}, s{sCG}, 24
    s_lshl_b32 s{sT+2}, s{sCG}, 1
    s_add_u32 s{sT+3}, s{sT+2}, 1
    s_cmp_eq_u32 s{sRH}, 0
    s_cselect_b32 s{sT}, s{sT}, s{sT+2}
    s_cselect_b32 s{sT+1}, s{sT+1}, s{sT+3}
    s_lshl_b32 s{sCSo}, s{sT}, 9
    s_add_u32 s{sCSo}, s{sCSo}, {WS_CS}
    s_lshl_b32 s{sCSo+1}, s{sT+1}, 9
    s_add_u32 s{sCSo+1}, s{sCSo+1}, {WS_CS}
    s_lshl_b32 s{sT32}, s{sRB}, 2
    s_add_u32 s{sT32}, s{sT32}, s{sUn}
    v_and_b32 v{t0}, 31, v{vLane}
    v_and_b32 v{t1}, 0x13, v{t0}
    v_and_b32 v{t2}, 4, v{t0}
    v_lshl_or_b32 v{t1}, v{t2}, 1, v{t1}
    v_and_b32 v{t2}, 8, v{t0}
    v_lshrrev_b32 v{t2}, 1, v{t2}
    v_or_b32 v{t1}, v{t1}, v{t2}
    s_cmp_eq_u32 s{sKind}, 1
    s_cselect_b64 vcc, -1, 0
    v_cndmask_b32 v{t0}, v{t0}, v{t1}, vcc       ; tok
    v_lshrrev_b32 v{t1}, 5, v{vLane}             ; h
    v_bfe_u32 v{t2}, v{t0}, 1, 3
    v_xor_b32 v{t2}, v{t2}, v{t1}
    v_lshlrev_b32 v{t2}, 4, v{t2}
    v_lshl_add_u32 v{t2}, v{t0}, 7, v{t2}
    s_lshl_b32 s{sT}, s{sUn}, 12
    v_add_u32 v{vAX}, s{sT}, v{t2}
    v_xor_b32 v{vAX+1}, 32, v{vAX}
    v_xor_b32 v{vAX+2}, 64, v{vAX}
    v_xor_b32 v{vAX+3}, 96, v{vAX}
    s_lshl_b32 s{sT}, s{sUn if 'lrs' in X else sT32}, {7 if 'lrs' in X else 9}
    s_add_u32 s{sT}, s{sT}, {L_RS if 'lrs' in X else WS_RS}
    v_lshlrev_b32 v{t0}, {2 if 'lrs' in X else 4}, v{t0}
    v_add_u32 v{vGA}, s{sT}, v{t0}
    v_lshlrev_b32 v{vGA+1}, 3, v{vLane}
    v_bfe_u32 v{t0}, v{vLane}, 2, 2
    v_lshl_add_u32 v{t1}, v{t1}, 3, v{t0}
    v_bfe_u32 v{t2}, v{vLane}, 4, 1
    v_lshlrev_b32 v{t2}, 1, v{t2}
    v_and_b32 v{t3}, 1, v{vLane}
    v_or_b32 v{t2}, v{t2}, v{t3}
    v_lshlrev_b32 v{t0}, 1, v{t0}
    v_and_b32 v{t0}, 4, v{t0}
    v_xor_b32 v{t2}, v{t2}, v{t0}
    v_lshlrev_b32 v{t2}, 4, v{t2}
    v_lshl_add_u32 v{t2}, v{t1}, 7, v{t2}
    v_bfe_u32 v{t3}, v{vLane}, 1, 1
    v_lshl_add_u32 v{t2}, v{t3}, 3, v{t2}
    v_add_u32 v{vAW}, {O_W}, v{t2}
    v_xor_b32 v{vAW+1}, 64, v{vAW}
    s_lshl_b32 s{sT+1}, s{sUn}, 12
    s_cmp_eq_u32 s{sRH}, 0
    s_cselect_b32 s{sT+2}, {L_IMG}, 0
    s_add_u32 s{sT+1}, s{sT+1}, s{sT+2}
    """)
    epi_addr(k)
    k(f"""
    s_waitcnt lgkmcnt(0)
    s_cmp_eq_u32 s{sRH}, 0
    s_cbranch_scc1 k1_main
    """)
    if 'lrs' in X:
        row_stats(k)
    else:
        for i in range(8):
            k("s_waitcnt lgkmcnt(0)\ns_barrier")
            if i == 2:
                k(f"buffer_load_dword v{vTag}, v{vGA+2}, {sr(sDBG,4)}, 0 offen sc0 sc1")
            W0 = int(os.environ.get('WSP0', '4'))
            if 'qwsp' in X and i == W0:
                k(f"""
                s_load_dwordx2 {sr(sWI,2)}, s[0:1], {KA_WSP}
                s_mov_b32 s{sWI+2}, {2048*4096}
                s_lshr_b32 s{sT+8}, s2, 3
                s_sub_u32 s{sT+8}, s{sT+8}, 4
                s_lshl_b32 s{sT+8}, s{sT+8}, 2
                s_add_u32 s{sT+8}, s{sT+8}, s{sUn}
                s_min_u32 s{sT+8}, s{sT+8}, 85
                s_mul_i32 s{sT+8}, s{sT+8}, {3*8192}
                s_and_b32 s{sT+9}, s2, 3
                s_lshl_b32 s{sT+9}, s{sT+9}, 21
                s_add_u32 s{sT+8}, s{sT+8}, s{sT+9}
                v_lshlrev_b32 v6, 7, v{vLane}
                s_waitcnt lgkmcnt(0)
                """)
            if 'qwsp' in X and W0 <= i < W0 + 3:
                k(f"buffer_load_dword v{vGR+i-W0}, v6, {sr(sWI,4)}, s{sT+8} offen\ns_add_u32 s{sT+8}, s{sT+8}, 8192")
            if i == 3:
                L = k.newlabel("notag")
                k(f"s_cmp_lg_u32 s{sW}, 4\ns_cbranch_scc1 {L}")
                poll_tag(k, True)
                k(f"v_mov_b32 v{t0}, {L_TAG}\nds_write_b32 v{t0}, v{vTag}\n{L}:")
    k(f"s_cmp_ge_u32 s{sCG}, 12\ns_cbranch_scc1 k1_fin0\ns_setprio {0 if 'zprio' in X else 2}")
    k.label("k1_main")
    main_loop(k)
    stamp(k, 2)
    k(f"s_cmp_eq_u32 s{sRH}, 0\ns_cbranch_scc0 k1_q")
    z_epilogue(k)
    k("s_branch k1_fin")
    k.label("k1_q")
    q_epilogue(k)
    k("s_branch k1_fin")
    k.label("k1_loader")
    loader(k)
    stamp(k, 2)
    k("s_branch k1_fin")
    k.label("k1_helper")
    k(f"""
    s_waitcnt lgkmcnt(0)
    v_mov_b32 v{vTag}, 0
    s_or_b32 s{sT+4}, s2, s{sW}
    s_cmp_lg_u32 s{sT+4}, 0
    s_cbranch_scc1 k1_nonce_done
    s_or_b32 s{sT+14}, s{sT+14}, 1
    v_mov_b32 v{vTag}, s{sT+14}
    v_lshlrev_b32 v{t3}, 2, v{vLane}
    buffer_store_dword v{vTag}, v{t3}, {sr(sDBG,4)}, 0 offen offset:128 sc0 sc1
    k1_nonce_done:
    """)
    if 'sweep' in X:
        k(f"""
        s_mul_i32 s{sT}, s2, 12
        s_add_u32 s{sT}, s{sT}, s{sW}
        s_lshl_b32 s{sT+1}, s{sT}, 13
        v_lshlrev_b32 v{t0}, 7, v{vLane}
        s_sub_u32 s{sT+2}, {383*8192}, s{sT+1}
        buffer_load_dword v{vT+9}, v{t0}, {sr(sXS,4)}, s{sT+2} offen
        """)
    helper(k)
    k("s_branch k1_fin")
    k.label("k1_fin0")
    k("s_waitcnt lgkmcnt(0)\ns_barrier")
    if FUSED:
        for t in range(7):
            k("s_barrier")
    k.label("k1_fin")
    if STAMP:
        k("s_waitcnt vmcnt(0)")
    stamp(k, 3)
    stamp_store(k, 6)
    if FUSED:
        return k
    k("""
    k1_end:
    s_endpgm
    """)
    k.finish()
    return k


if __name__ == "__main__":
    import sys
    STAMP = "stamp" in sys.argv
    k = gen_k1()
    print(build_file("; test", [("k1_kernel", 256, 768, LDS_K1)], [k]))
```

```python
import os
from asmlib import *
from layout import *

X = set(os.environ.get('K2X', '').split(','))
NS = 4
STAGE = 30720
O_Z, O_K, O_V = 16384, 24576, 26624
LDS_K2 = NS * STAGE

vLane = 1
vAL = 2
vT = 4
vQ, vK0, vK1, vV = 12, 16, 20, 24
vS0, vS1, vP, vO = 40, 56, 72, 80
vC = 96
vDA, vDZ, vDK, vDV = 12, 16, 17, 18
vAB = 20
vG = 28
vGA = 60
vGB = 92
vZ1 = 108
vBias = 124
sWS, sWSP, sBSP = 4, 8, 12
sW, sHead, sQT, sTB, sFB, sIdx = 16, 17, 18, 19, 20, 21
sOA, sOZ, sOK, sOV, sCnt = 22, 23, 24, 25, 26
sMA, sMZ, sMK, sMV = 27, 28, 29, 30
sVM, sLo = 32, 34
sT = 36
sPA, sPB, sPX, sPo = 68, 72, 76, 84

STAMP = False
FUSED = False
import gbar
import k3f
P3F = False
WT = os.environ.get('WT', '')


def stamp(k, i):
    if STAMP:
        if i == 0:
            k("s_memrealtime s[80:81]")
        if i == 3:
            k("s_memrealtime s[82:83]")
        k(f"s_memtime {sr(60+2*i,2)}\ns_waitcnt lgkmcnt(0)")


def stamp_store(k, n):
    if not STAMP:
        return
    k(f"s_mul_i32 s58, s2, 12\ns_add_u32 s58, s58, s{sW}\ns_lshl_b32 s58, s58, 5\ns_add_u32 s58, s58, {WS_STAMP + 1*262144}")
    for i in range(n):
        k(f"s_sub_u32 s59, s{60+2*i}, s60\nv_mov_b32 v{vT}, s59\nv_mov_b32 v{vT+1}, 0\nbuffer_store_dword v{vT}, v{vT+1}, {sr(sWS,4)}, s58 offen offset:{4*i}")
    for j, r in ((6, 80), (7, 82)):
        k(f"v_mov_b32 v{vT}, s{r}\nv_mov_b32 v{vT+1}, 0\nbuffer_store_dword v{vT}, v{vT+1}, {sr(sWS,4)}, s58 offen offset:{4*j}")


def mfma32(d, a, b, c):
    cs = "0" if c is None else vr(c, 16)
    return f"v_mfma_f32_32x32x16_bf16 {vr(d,16)}, {vr(a,4)}, {vr(b,4)}, {cs}"


def so(slot):
    return slot // 2, (slot % 2) * STAGE


def rd_k(slot, T):
    s, o = so(slot)
    return f"ds_read_b128 {vr(vK0+4*T,4)}, v{vAL+s} offset:{o+O_K+(1-T)*1024}"


def rd_v(slot, T, u):
    s, o = so(slot)
    return f"ds_read_b128 {vr(vV+8*T+4*u,4)}, v{vAL+s} offset:{o+O_V+T*2048+u*1024}"


def phase(k, S, Snext, Knext, Vprev1, Vcur0, extras):
    E = lambda i: f"v_exp_f32 v{S+i}, v{S+i}"
    C = lambda i: f"v_cvt_pk_bf16_f32 v{vP+i}, v{S+2*i}, v{S+2*i+1}"
    PVp = mfma32(vO, Vprev1, vP + 4, vO) if Vprev1 is not None else None
    PVc = mfma32(vO, Vcur0, vP, vO)
    SM = mfma32(Snext, Knext, vQ, None) if Knext is not None else None
    seq = [E(0), E(1), PVp, E(2), E(3), C(0), E(4), E(5), C(1), E(6), SM, E(7), C(2), E(8), C(3), E(9), E(10), E(11), C(4), PVc,
           E(12), E(13), C(5), E(14), E(15), C(6), C(7)]
    for pos, ins in enumerate(seq):
        if ins is not None:
            if 'noattn' in X:
                ins = None
            elif 'nopv' in X and ins in (PVp, PVc):
                ins = None
            elif 'noexp' in X and 'v_exp' in ins:
                ins = None
            elif 'nocvt' in X and 'v_cvt' in ins:
                ins = None
        if ins is not None:
            k(ins)
        for a in extras.get(pos, []):
            if 'noard' in X and a.startswith('ds_read'):
                continue
            if 'nosp' in X and a.startswith('s_setprio'):
                continue
            k(a)


def attn_iter(k, slot, first, last_slot):
    k("s_waitcnt lgkmcnt(0)")
    k("s_barrier")
    ex1 = {0: [rd_k(slot, 1)], 4: [rd_v(slot, 0, 0)], 7: [rd_v(slot, 0, 1)]}
    if first:
        for a in (rd_k(slot, 1), rd_v(slot, 0, 0), rd_v(slot, 0, 1)):
            k(a)
    else:
        k("s_setprio 3")
        ex1[13] = ["s_setprio 2"]
        ex1[26] = ["s_setprio 1"]
        phase(k, vS1, vS0, vK0, vV + 4, vV + 8, ex1)
    ex2 = {0: [rd_k(slot, 0)], 4: [rd_v(slot, 1, 0)], 7: [rd_v(slot, 1, 1)], 13: ["s_setprio 0"]}
    if last_slot:
        ex2[14] = [f"s_sub_u32 s{sCnt}, s{sCnt}, 1\ns_cmp_lg_u32 s{sCnt}, 0"]
    phase(k, vS0, vS1, vK1, None if first else vV + 12, vV + 0, ex2)


def attn_loop(k):
    L = k.newlabel("aloop")
    k(f"s_mov_b32 s{sCnt}, 7")
    stamp(k, 1)
    k(mfma32(vS0, vK0, vQ, None))
    for slot in range(4):
        attn_iter(k, slot, slot == 0, False)
    k(".p2align 6")
    k.label(L)
    for slot in range(4):
        attn_iter(k, slot, False, slot == 3)
    k(f"s_cbranch_scc1 {L}")
    k("s_waitcnt lgkmcnt(0)\ns_barrier")
    stamp(k, 2)
    phase(k, vS1, None, None, vV + 4, vV + 8, {})
    k(mfma32(vO, vV + 12, vP + 4, vO))


def dma_group(slot, gemm):
    base = slot * STAGE
    out = []
    if gemm:
        out.append(f"s_add_u32 m0, s{sMK}, {base}\ns_mov_b64 exec, {sr(sLo,2)}\nbuffer_load_dwordx4 v{vDK}, {sr(sWS,4)}, s{sOK} offen lds\n"
                   f"s_add_u32 m0, s{sMV}, {base}\ns_mov_b64 exec, {sr(sVM,2)}\nbuffer_load_dwordx4 v{vDV}, {sr(sWS,4)}, s{sOK} offen lds\n"
                   f"s_mov_b64 exec, -1\ns_add_u32 s{sOK}, s{sOK}, 2048")
    else:
        out.append(f"s_add_u32 m0, s{sMK}, {base}\ns_mov_b64 exec, {sr(sLo,2)}\nbuffer_load_dwordx4 v{vDK}, {sr(sWS,4)}, s{sOK} offen lds\n"
                   f"buffer_load_dwordx4 v{vDK}, {sr(sWS,4)}, s{sOK} offen offset:1024 lds\n"
                   f"s_add_u32 m0, s{sMV}, {base}\ns_mov_b64 exec, {sr(sVM,2)}\nbuffer_load_dwordx4 v{vDV}, {sr(sWS,4)}, s{sOK} offen lds\n"
                   f"s_add_u32 m0, s{sMV}, {base+1024}\ns_nop 0\nbuffer_load_dwordx4 v{vDV}, {sr(sWS,4)}, s{sOK} offen offset:1024 lds\n"
                   f"s_mov_b64 exec, -1\ns_add_u32 s{sOK}, s{sOK}, 2048")
    if gemm:
        for p in range(4):
            out.append(f"s_add_u32 m0, s{sMA}, {base+1024*p}\ns_nop 0\nbuffer_load_dwordx4 v{vDA+p}, {sr(sWSP,4)}, s{sOA} offen lds"
                       + (f"\ns_add_u32 s{sOA}, s{sOA}, 128" if p == 3 else ""))
        out.append(f"s_add_u32 m0, s{sMZ}, {base}\ns_nop 0\nbuffer_load_dwordx4 v{vDZ}, {sr(sWS,4)}, s{sOZ} offen lds")
        out.append(f"s_add_u32 m0, s{sMZ}, {base}\ns_nop 0\nbuffer_load_dwordx4 v{vDZ}, {sr(sWS,4)}, s{sOZ} offen offset:1024 lds\ns_add_u32 s{sOZ}, s{sOZ}, 4096")
    return out


def rd_g(slot, ks):
    s, o = so(slot)
    return [f"ds_read_b128 {vr(vGB+4*ks,4)}, v{vAB+4*s+ks} offset:{o}",
            f"ds_read_b128 {vr(vGA+8*ks,4)}, v{vAL+s} offset:{o+O_Z+ks*1024}",
            f"ds_read_b128 {vr(vGA+8*ks+4,4)}, v{vAL+s} offset:{o+O_Z+4096+ks*1024}"]


def mm_g(ks):
    if 'g16' in X:
        m = lambda d, a, b: f"v_mfma_f32_16x16x32_bf16 {vr(d,4)}, {vr(a,4)}, {vr(b,4)}, {vr(d,4)}"
        o = 8 * (ks % 2)
        return [m(vG + o, vGA + 8 * ks, vGB + 4 * ks) + "\n" + m(vG + o + 4, vGA + 8 * ks + 4, vGB + 4 * (ks ^ 1)),
                m(vG + 16 + o, vGA + 8 * ks + 4, vGB + 4 * ks) + "\n" + m(vG + 16 + o + 4, vGA + 8 * ks, vGB + 4 * (ks ^ 1))]
    return [mfma32(vG, vGA + 8 * ks, vGB + 4 * ks, vG), mfma32(vG + 16, vGA + 8 * ks + 4, vGB + 4 * ks, vG + 16)]


def gemm_loop(k, gemm):
    nd = 8 if gemm else 4
    k(f"s_mov_b32 s{sCnt}, {7 if P3F else 8}")
    stamp(k, 1)
    for last in ((False, True) if P3F else (False,)):
        L = k.newlabel("gloop")
        if not last:
            k(".p2align 6")
            k.label(L)
        if 'prof' in X:
            k(f"""
            s_memtime s[84:85]
            s_memrealtime s[86:87]
            s_waitcnt lgkmcnt(0)
            v_mov_b32 v{vT}, s84
            v_mov_b32 v{vT+1}, s86
            s_lshl_b32 s88, s2, 8
            s_lshl_b32 s89, s{sCnt}, 3
            s_add_u32 s88, s88, s89
            s_add_u32 s88, s88, {WS_STAMP + 3*262144}
            v_mov_b32 v{vT+2}, 0
            buffer_store_dwordx2 {vr(vT,2)}, v{vT+2}, {sr(sWS,4)}, s88 offen
            """)
        for jj in range(4):
            slot = (jj + 1) % 4
            n = 4 if 'nogdma' in X else 2 * nd
            dm = dma_group((slot + 3) % 4, gemm)
            if last:
                n = ([16, 24, 23, 14] if gemm else [8, 14, 17, 63])[jj]
                if jj == 0:
                    dm = ["\n".join(k3f.wdma_early())] + dm[1:]
                else:
                    dm = k3f.wdma_slots(*k3f.TAIL[jj])
                    if len(dm) > 7:
                        dm = dm[:6] + ["\n".join(dm[6:])]
            k(f"s_waitcnt vmcnt({n}) lgkmcnt(0)")
            k("s_barrier")
            if gemm:
                r = [rd_g(slot, ks) for ks in range(4)]
                m = [mm_g(ks) for ks in range(4)]
                seq = (r[0] + [m[2][0], dm[0], m[2][1]] + r[1] + [m[3][0], dm[1], m[3][1], dm[2]] + r[2] + [m[0][0], dm[3], m[0][1], dm[4]]
                       + r[3] + [m[1][0], dm[5], m[1][1], dm[6]])
            else:
                seq = list(dm)
            if jj == 0 and not P3F:
                k(f"s_cmp_eq_u32 s{sCnt}, 1\ns_cselect_b32 s{sT}, 0x70000000, 0\ns_add_u32 s{sOK}, s{sOK}, s{sT}")
            for a in seq:
                if 'nogdma' in X and ' lds' in a and 'exec' not in a:
                    continue
                if 'nogmm' in X and 'mfma' in a:
                    continue
                if 'nogrd' in X and 'ds_read' in a:
                    continue
                k(a)
            if jj == 0 and not P3F:
                k(f"s_add_u32 s{sOA}, s{sOA}, s{sT}\ns_add_u32 s{sOZ}, s{sOZ}, s{sT}")
        if not last:
            k(f"s_sub_u32 s{sCnt}, s{sCnt}, 1\ns_cmp_lg_u32 s{sCnt}, 0\ns_cbranch_scc1 {L}")
    stamp(k, 2)
    if gemm:
        for a in mm_g(2) + mm_g(3):
            k(a)


def dep_slots(gemm):
    v, s = vZ1, sT + 10
    zc = f"s{sFB}" if gemm else f"s{s}"
    return f"""
    s_lshr_b32 s{s+2}, s{sHead}, 3
    s_add_u32 s{s}, s{s+2}, 4
    s_add_u32 s{s+1}, s{s+2}, 8
    v_mov_b32 v{v+1}, s{s}
    v_mov_b32 v{v+2}, s{s+1}
    v_cmp_lt_u32 vcc, 15, v{vLane}
    v_cndmask_b32 v{v+1}, v{v+1}, v{v+2}, vcc
    v_mov_b32 v{v+2}, {zc}
    v_cmp_lt_u32 vcc, 31, v{vLane}
    v_cndmask_b32 v{v+1}, v{v+1}, v{v+2}, vcc
    v_and_b32 v{v}, 15, v{vLane}
    v_lshl_add_u32 v{v}, v{v}, 4, v{v+1}
    s_and_b32 s{s}, s{sIdx}, 7
    s_lshl_b32 s{s}, s{s}, 5
    s_add_u32 s{s}, s{s}, s{s+2}
    v_and_b32 v{v+1}, 1, v{vLane}
    v_lshlrev_b32 v{v+1}, 4, v{v+1}
    v_add_u32 v{v+1}, s{s}, v{v+1}
    v_cmp_lt_u32 vcc, 47, v{vLane}
    v_cndmask_b32 v{v}, v{v}, v{v+1}, vcc
    """


def gen_k2(k=None):
    if k is None:
        k = Kernel("k2_kernel")
    t0, t1, t2, t3 = vT, vT + 1, vT + 2, vT + 3
    stamp(k, 0)
    if not FUSED:
        k("s_cmp_ge_u32 s2, 256\ns_cbranch_scc1 k2_end")
    k(f"""
    s_setprio 0
    s_load_dwordx2 {sr(sWS,2)}, s[0:1], {KA_WS}
    s_load_dwordx2 {sr(sWSP,2)}, s[0:1], {KA_WSP}
    s_load_dwordx2 {sr(sBSP,2)}, s[0:1], {KA_BSP}
    v_lshrrev_b32 v{t0}, 6, v0
    v_and_b32 v{vLane}, 63, v0
    v_readfirstlane_b32 s{sW}, v{t0}
    s_and_b32 s{sT}, s2, 7
    s_lshr_b32 s{sIdx}, s2, 3
    s_lshr_b32 s{sT+2}, s{sIdx}, 3
    s_lshl_b32 s{sHead}, s{sT}, 2
    s_add_u32 s{sHead}, s{sHead}, s{sT+2}
    s_lshl_b32 s{sT+3}, s{sHead}, 16             ; head*65536
    s_mov_b32 s{sWS+2}, {WS_SIZE}
    s_mov_b32 s{sWS+3}, 0x00020000
    s_mov_b32 s{sWSP+2}, {2048*2048*2}
    s_mov_b32 s{sWSP+3}, 0x00020000
    s_mov_b32 s{sBSP+2}, 4096
    s_mov_b32 s{sBSP+3}, 0x00020000
    s_mov_b32 s{sVM}, 0x0000ffff
    s_mov_b32 s{sVM+1}, 0x0000ffff
    v_lshlrev_b32 v{vAL}, 4, v{vLane}
    v_add_u32 v{vAL+1}, {2*STAGE}, v{vAL}
    s_and_b32 s{sT+4}, s{sW}, 3
    """)
    if P3F:
        k3f.loader_init(k, sT + 4, vLane, vT)
    k(f"s_cmp_ge_u32 s{sW}, 8\ns_cbranch_scc1 k2_gemm")
    k(f"""
    s_and_b32 s{sQT}, s{sIdx}, 7
    s_lshl_b32 s{sQT}, s{sQT}, 3
    s_add_u32 s{sQT}, s{sQT}, s{sW}
    s_lshl_b32 s{sT+5}, s{sQT}, 10
    s_add_u32 s{sT+5}, s{sT+5}, s{sT+3}
    s_add_u32 s{sT+7}, s{sT+5}, {WS_Q}
    s_add_u32 s{sT+8}, s{sT+3}, {WS_K}
    s_waitcnt lgkmcnt(0)
    """)
    qk = (f"buffer_load_dwordx4 {vr(vQ,4)}, v{vAL}, {sr(sWS,4)}, s{sT+7} offen\n"
          f"buffer_load_dwordx4 {vr(vK0,4)}, v{vAL}, {sr(sWS,4)}, s{sT+8} offen")
    if not FUSED:
        k(qk)
    k(f"""
    v_and_b32 v{t0}, 27, v{vLane}
    v_mov_b32 v{t1}, 0x3f803f80
    v_cmp_eq_u32 vcc, 16, v{t0}
    v_cndmask_b32 v{t1}, 0, v{t1}, vcc
    """)
    for i in range(8):
        k(f"v_mov_b32 v{vV+i}, v{t1}")
    k(f"""
    s_lshr_b32 s{sT+5}, s{sW}, 1
    s_mul_i32 s{sT+5}, s{sT+5}, {STAGE}
    s_and_b32 s{sT+6}, s{sW}, 1
    s_lshl_b32 s{sT+6}, s{sT+6}, 11
    s_add_u32 s{sT+5}, s{sT+5}, s{sT+6}
    v_add_u32 v{t0}, s{sT+5}, v{vAL}
    s_not_b64 exec, {sr(sVM,2)}
    ds_write_b128 v{t0}, {vr(vV,4)} offset:{O_V}
    ds_write_b128 v{t0}, {vr(vV,4)} offset:{O_V+1024}
    s_mov_b64 exec, -1
    """)
    for i in range(16):
        k(f"v_mov_b32 v{vO+i}, 0")
    if FUSED:
        k("s_barrier")
        k(qk)
    attn_loop(k)
    k(f"v_mul_f32 v{t0}, 0, v{vO}")
    for i in range(1, 8):
        k(f"v_fma_f32 v{t0}, v{vO+i}, 0, v{t0}")
    k(f"""
    v_add_f32 v{t0}, v{t0}, v{vO+8}
    v_mov_b32 v{t1}, 0x17800000                  ; 2^-80
    v_mov_b32 v{t2}, 0x67800000                  ; 2^80
    v_cmp_ge_f32 vcc, v{t0}, v{t1}
    v_cmp_le_f32 {sr(sT+10,2)}, v{t0}, v{t2}
    s_and_b64 vcc, vcc, {sr(sT+10,2)}
    s_cmp_eq_u64 vcc, -1
    s_cbranch_scc1 k2_store_o
    """)
    vM = vT
    k(f"""
    s_add_u32 s{sT+10}, s{sT+3}, {WS_K}
    s_add_u32 s{sT+11}, s{sT+3}, {WS_V}
    v_mov_b32 v{vM}, 0xff800000
    s_mov_b32 s{sCnt}, 64
    s_mov_b32 s{sT+12}, s{sT+10}
    k2_slow1:
    buffer_load_dwordx4 {vr(vK0,4)}, v{vAL}, {sr(sWS,4)}, s{sT+12} offen
    {mfma32(vS0, vK0, vQ, None)}
    """)
    for i in range(8):
        k(f"v_max3_f32 v{vM}, v{vS0+2*i}, v{vS0+2*i+1}, v{vM}")
    k(f"""
    s_add_u32 s{sT+12}, s{sT+12}, 1024
    s_sub_u32 s{sCnt}, s{sCnt}, 1
    s_cmp_lg_u32 s{sCnt}, 0
    s_cbranch_scc1 k2_slow1
    v_mov_b32 v{t1}, v{vM}
    v_permlane32_swap_b32 v{vM}, v{t1}
    v_max_f32 v{vM}, v{vM}, v{t1}
    v_sub_f32 v{vM}, 0, v{vM}
    """)
    for i in range(16):
        k(f"v_mov_b32 v{vC+i}, v{vM}")
        k(f"v_mov_b32 v{vO+i}, 0")
    k(f"""
    v_lshrrev_b32 v{t2}, 5, v{vLane}
    v_and_b32 v{t1}, 15, v{vLane}
    v_lshlrev_b32 v{t1}, 4, v{t1}
    v_lshl_add_u32 v{t1}, v{t2}, 8, v{t1}        ; (l/32)*256 + (l%16)*16
    s_mov_b32 s{sCnt}, 64
    k2_slow2:
    buffer_load_dwordx4 {vr(vK0,4)}, v{vAL}, {sr(sWS,4)}, s{sT+10} offen
    s_mov_b64 exec, {sr(sVM,2)}
    buffer_load_dwordx4 {vr(vV,4)}, v{t1}, {sr(sWS,4)}, s{sT+11} offen
    buffer_load_dwordx4 {vr(vV+4,4)}, v{t1}, {sr(sWS,4)}, s{sT+11} offen offset:512
    s_mov_b64 exec, -1
    {mfma32(vS0, vK0, vQ, vC)}
    """)
    for i in range(16):
        k(f"v_exp_f32 v{vS0+i}, v{vS0+i}")
    for i in range(8):
        k(f"v_cvt_pk_bf16_f32 v{vP+i}, v{vS0+2*i}, v{vS0+2*i+1}")
    k(f"""
    {mfma32(vO, vV, vP, vO)}
    {mfma32(vO, vV+4, vP+4, vO)}
    s_add_u32 s{sT+10}, s{sT+10}, 1024
    s_add_u32 s{sT+11}, s{sT+11}, 1024
    s_sub_u32 s{sCnt}, s{sCnt}, 1
    s_cmp_lg_u32 s{sCnt}, 0
    s_cbranch_scc1 k2_slow2
    """)
    k.label("k2_store_o")
    k(f"v_rcp_f32 v{t0}, v{vO+8}")
    for i in range(8):
        k(f"v_mul_f32 v{vO+i}, v{vO+i}, v{t0}")
    for i in range(4):
        k(f"v_cvt_pk_bf16_f32 v{vP+i}, v{vO+2*i}, v{vO+2*i+1}")
    k(f"""
    s_lshl_b32 s{sT+9}, s{sQT}, 5
    s_add_u32 s{sT+9}, s{sT+9}, s{sHead}
    s_lshl_b32 s{sT+9}, s{sT+9}, 10
    s_add_u32 s{sT+9}, s{sT+9}, {WS_O}
    buffer_store_dwordx4 {vr(vP,4)}, v{vAL}, {sr(sWS,4)}, s{sT+9} offen {WT}
    s_branch k2_fin
    """)
    k.label("k2_gemm")
    sG = sT + 4
    k(f"""
    s_setprio 3
    s_sub_u32 s{sG}, s{sW}, 8                    ; g = 0..3
    s_and_b32 s{sTB}, s{sT}, 3
    s_lshl_b32 s{sTB}, s{sTB}, 2
    s_and_b32 s{sT+2}, s{sIdx}, 3
    s_add_u32 s{sTB}, s{sTB}, s{sT+2}
    s_lshr_b32 s{sFB}, s{sT}, 2
    s_mul_i32 s{sFB}, s{sFB}, 7
    s_lshr_b32 s{sT+2}, s{sIdx}, 2
    s_add_u32 s{sFB}, s{sFB}, s{sT+2}
    s_mov_b32 s{sLo}, -1
    s_mov_b32 s{sLo+1}, 0
    s_mov_b32 s{sOA}, 0
    s_mov_b32 s{sOZ}, 0
    s_mov_b32 s{sOK}, 0
    s_lshl_b32 s{sMA}, s{sG}, 12
    s_lshl_b32 s{sMZ}, s{sG}, 11
    s_add_u32 s{sMZ}, s{sMZ}, {O_Z}
    s_lshl_b32 s{sMK}, s{sG}, 9
    s_add_u32 s{sMK}, s{sMK}, {O_K}
    s_lshl_b32 s{sMV}, s{sG}, 10
    s_add_u32 s{sMV}, s{sMV}, {O_V}
    s_lshl_b32 s{sT+5}, s{sG}, 9
    s_add_u32 s{sT+5}, s{sT+5}, s{sT+3}
    s_add_u32 s{sT+6}, s{sT+5}, {WS_K+1024}
    v_add_u32 v{vDK}, s{sT+6}, v{vAL}
    ; V DMA: WS_V + head*65536 + g*512 + (l/32)*256 + (l%16)*16
    v_lshrrev_b32 v{t0}, 5, v{vLane}
    v_and_b32 v{t1}, 15, v{vLane}
    v_lshlrev_b32 v{t1}, 4, v{t1}
    v_lshl_add_u32 v{t1}, v{t0}, 8, v{t1}
    s_add_u32 s{sT+6}, s{sT+5}, {WS_V}
    v_add_u32 v{vDV}, s{sT+6}, v{t1}
    s_waitcnt lgkmcnt(0)
    """)
    k(f"s_cmp_ge_u32 s{sIdx}, 28\ns_cbranch_scc1 k2_loader")
    if not FUSED:
        k(dma_group(0, True)[0])
    k(f"""
    v_lshrrev_b32 v{t0}, 3, v{vLane}
    s_lshl_b32 s{sT+5}, s{sG}, 5
    v_add_u32 v{t0}, s{sT+5}, v{t0}
    v_and_b32 v{t1}, 7, v{vLane}
    s_lshl_b32 s{sT+6}, s{sTB}, 19
    """)
    for p in range(4):
        k(f"""
        v_add_u32 v{t2}, {8*p}, v{t0}
        v_bfe_u32 v{t3}, v{t2}, 1, 3
        v_xor_b32 v{t3}, v{t3}, v{t1}
        v_lshlrev_b32 v{t3}, 4, v{t3}
        v_lshl_add_u32 v{vDA+p}, v{t2}, 12, v{t3}
        v_add_u32 v{vDA+p}, s{sT+6}, v{vDA+p}
        """)
    k(f"""
    s_lshr_b32 s{sT+5}, s{sG}, 1
    s_lshl_b32 s{sT+6}, s{sFB}, 1
    s_add_u32 s{sT+5}, s{sT+5}, s{sT+6}
    s_lshl_b32 s{sT+5}, s{sT+5}, 17
    s_and_b32 s{sT+7}, s{sG}, 1
    s_lshl_b32 s{sT+7}, s{sT+7}, 11
    s_add_u32 s{sT+5}, s{sT+5}, s{sT+7}
    s_add_u32 s{sT+5}, s{sT+5}, {WS_Z2}
    v_add_u32 v{vDZ}, s{sT+5}, v{vAL}
    """)
    if not FUSED:
        for a in dma_group(1, True):
            k(a)
        k("s_waitcnt vmcnt(8)\ns_barrier")
    else:
        for st in range(1, 4):
            for a in dma_group(st, True)[1:5]:
                k(a)
    k(f"""
    s_lshl_b32 s{sT+7}, s{sTB}, 2
    s_add_u32 s{sT+7}, s{sT+7}, s{sG}
    s_mul_i32 s{sT+8}, s{sT+7}, 56
    s_lshl_b32 s{sT+9}, s{sFB}, 2
    s_add_u32 s{sT+8}, s{sT+8}, s{sT+9}
    s_lshl_b32 s{sT+8}, s{sT+8}, 10
    s_lshl_b32 s{sT+7}, s{sT+7}, 6
    s_add_u32 s{sT+9}, s{sT+8}, {WS_Z1}
    v_and_b32 v{t0}, 31, v{vLane}
    v_lshlrev_b32 v{t0}, 1, v{t0}
    """)
    def z1loads():
        k(f"buffer_load_ushort v{vBias}, v{vT+4}, {sr(sBSP,4)}, s{sT+13} offen")
        for i in range(4):
            k(f"buffer_load_dwordx4 {vr(vZ1+4*i,4)}, v{vAL}, {sr(sWS,4)}, s{sT+9} offen offset:{1024*i}")
    k(f"v_mov_b32 v{vT+4}, v{t0}\ns_mov_b32 s{sT+13}, s{sT+7}")
    if not FUSED:
        for st in range(2, 4):
            for a in dma_group(st, True):
                k(a)
        z1loads()
    k(f"""
    v_lshrrev_b32 v{t0}, 5, v{vLane}
    v_and_b32 v{t1}, 31, v{vLane}
    s_lshl_b32 s{sT+7}, s{sG}, 5
    v_add_u32 v{t1}, s{sT+7}, v{t1}
    v_bfe_u32 v{t2}, v{t1}, 1, 3
    v_xor_b32 v{t2}, v{t2}, v{t0}
    v_lshlrev_b32 v{t2}, 4, v{t2}
    v_lshl_add_u32 v{vAB}, v{t1}, 7, v{t2}
    v_xor_b32 v{vAB+1}, 32, v{vAB}
    v_xor_b32 v{vAB+2}, 64, v{vAB}
    v_xor_b32 v{vAB+3}, 96, v{vAB}
    """)
    for i in range(4):
        k(f"v_add_u32 v{vAB+4+i}, {2*STAGE}, v{vAB+i}")
    for i in range(32):
        k(f"v_mov_b32 v{vG+i}, 0")
    for i in range(16):
        k(f"v_mov_b32 v{vGA+16+i}, 0")
    for i in range(8):
        k(f"v_mov_b32 v{vGB+8+i}, 0")
    if FUSED:
        gbar.wait(k, 0, sWS, sW, sT + 10, vZ1, dep_slots(True))
        k("s_barrier")
        k(dma_group(0, True)[0])
        for st in range(1, 4):
            g = dma_group(st, True)
            for a in [g[0]] + g[5:]:
                k(a)
            if st == 1:
                k("s_waitcnt vmcnt(4)\ns_barrier")
        z1loads()
        k("s_waitcnt vmcnt(13)")
    k("s_setprio 0")
    gemm_loop(k, True)
    k(f"s_add_u32 s{sT+9}, s{sT+8}, {WS_U}")
    k(f"v_lshlrev_b32 v{vBias}, 16, v{vBias}")
    for i in range(16):
        a, b = vT + 2 * (i % 4), vT + 2 * (i % 4) + 1
        k(f"""
        v_lshlrev_b32 v{a}, 16, v{vZ1+i}
        v_and_b32 v{b}, 0xffff0000, v{vZ1+i}
        v_add_f32 v{vG+2*i}, v{vG+2*i}, v{vBias}
        v_add_f32 v{vG+2*i+1}, v{vG+2*i+1}, v{vBias}
        v_mul_f32 v{a}, v{a}, v{vG+2*i}
        v_mul_f32 v{b}, v{b}, v{vG+2*i+1}
        v_cvt_pk_bf16_f32 v{vZ1+i}, v{a}, v{b}
        """)
        if i % 4 == 3:
            k(f"buffer_store_dwordx4 {vr(vZ1+i-3,4)}, v{vAL}, {sr(sWS,4)}, s{sT+9} offen offset:{1024*(i//4)} {WT}")
    k("s_branch k2_fin")
    k.label("k2_loader")
    k(f"""
    s_load_dwordx2 {sr(sPA,2)}, s[0:1], {KA_WO}
    s_load_dwordx2 {sr(sPB,2)}, s[0:1], {KA_WOUT}
    s_load_dwordx2 {sr(sPX,2)}, s[0:1], {KA_X}
    s_mov_b32 s{sPA+2}, {512*1024}
    s_mov_b32 s{sPA+3}, 0x00020000
    s_mov_b32 s{sPB+2}, {896*1024}
    s_mov_b32 s{sPB+3}, 0x00020000
    s_mov_b32 s{sPX+2}, {2048*1024}
    s_mov_b32 s{sPX+3}, 0x00020000
    """)
    if FUSED:
        gbar.wait(k, 0, sWS, sW, sT + 10, vZ1, dep_slots(False))
        k("s_barrier")
    k(f"s_cmp_ge_u32 s{sG}, 2\ns_cbranch_scc1 k2_pref")
    k(dma_group(0, False)[0])
    k("s_waitcnt vmcnt(0)\ns_barrier")
    for st in range(1, 4):
        for a in dma_group(st, False):
            k(a)
    gemm_loop(k, False)
    k("s_branch k2_fin")
    k.label("k2_pref")
    k(f"""
    s_sub_u32 s{sT+5}, s{sIdx}, 28
    s_lshl_b32 s{sT+5}, s{sT+5}, 1
    s_add_u32 s{sT+5}, s{sT+5}, s{sG}
    s_sub_u32 s{sT+5}, s{sT+5}, 2                ; 0..7
    s_lshl_b32 s{sPo}, s{sT+5}, 16
    s_mul_i32 s{sPo+1}, s{sT+5}, {112*1024}
    s_lshl_b32 s{sPo+2}, s{sT+5}, 15
    s_and_b32 s{sT+6}, s2, 7
    s_lshl_b32 s{sT+6}, s{sT+6}, 18
    s_add_u32 s{sPo+2}, s{sPo+2}, s{sT+6}
    v_lshlrev_b32 v{vT}, 7, v{vLane}
    s_waitcnt lgkmcnt(0)
    """)
    stamp(k, 1)
    lo = []
    for srd, so, cnt in ((sPX, sPo + 2, 4), (sPB, sPo + 1, 14), (sPA, sPo, 8)):
        for j in range(cnt):
            lo.append(f"buffer_load_dword v{vG+len(lo)}, v{vT}, {sr(srd,4)}, s{so} offen\ns_add_u32 s{so}, s{so}, 8192")
    PF0 = int(os.environ.get('PF0', '16'))
    for it in range(33):
        k("s_barrier")
        if it >= PF0 and 'nopf' not in X:
            for a in lo[2 * (it - PF0): 2 * (it - PF0) + 2]:
                k(a)
        if P3F and it == 29:
            for a in k3f.wdma_early():
                k(a)
        if P3F and it >= 30:
            for a in k3f.wdma_slots(*k3f.TAIL[it - 29]):
                k(a)
    stamp(k, 2)
    k.label("k2_fin")
    if STAMP:
        k("s_waitcnt vmcnt(0)")
    stamp(k, 3)
    stamp_store(k, 4)
    if FUSED:
        return k
    k("""
    k2_end:
    s_endpgm
    """)
    k.finish()
    return k


if __name__ == "__main__":
    import sys
    STAMP = "stamp" in sys.argv
    k = gen_k2()
    print(build_file("; test", [("k2_kernel", 256, 768, LDS_K2)], [k]))
```

```python
import os
from asmlib import *
from layout import *

X = set(os.environ.get('K3X', '').split(','))
NS = 5
STAGE = 32768
LDS_K3 = NS * STAGE
NST = 11

vLane = 1
vL16 = 2
vDW = 3
vAT = 5
vAW = 8
vT = 12
vX = 20
vA1, vA2 = 28, 44
vFA = 60
vFB = 92
vOA = 124

sWS, sWA, sWB, sXS, sOUT = 4, 8, 12, 16, 20
sW, sR, sWq, sTB, sNB = 24, 25, 26, 27, 28
sTA, sTBb, sWbA, sWbB, sM = 29, 30, 31, 32, 33
sT = 36

STAMP = False
FUSED = False
import gbar


def stamp(k, i):
    if STAMP:
        if i == 0:
            k("s_memrealtime s[80:81]")
        if i == 3:
            k("s_memrealtime s[82:83]")
        k(f"s_memtime {sr(60+2*i,2)}\ns_waitcnt lgkmcnt(0)")


def stamp_store(k, n):
    if not STAMP:
        return
    k(f"s_mul_i32 s58, s2, 12\ns_add_u32 s58, s58, s{sW}\ns_lshl_b32 s58, s58, 5\ns_add_u32 s58, s58, {WS_STAMP + 2*262144}")
    for i in range(n):
        k(f"s_sub_u32 s59, s{60+2*i}, s60\nv_mov_b32 v{vT}, s59\nv_mov_b32 v{vT+1}, 0\nbuffer_store_dword v{vT}, v{vT+1}, {sr(sWS,4)}, s58 offen offset:{4*i}")
    for j, r in ((6, 80), (7, 82)):
        k(f"v_mov_b32 v{vT}, s{r}\nv_mov_b32 v{vT+1}, 0\nbuffer_store_dword v{vT}, v{vT+1}, {sr(sWS,4)}, s58 offen offset:{4*j}")


def mfma32(d, a, b, c):
    cs = "0" if c is None else vr(c, 16)
    return f"v_mfma_f32_32x32x16_bf16 {vr(d,16)}, {vr(a,4)}, {vr(b,4)}, {cs}"


def dma_t(k, st):
    base = (st % NS) * STAGE
    tb, j = (sTA, st) if st < 8 else (sTBb, st - 8)
    k(f"s_add_u32 s{sT}, s{tb}, {j*4096}\ns_add_u32 m0, s{sM}, {base}")
    for i in range(4):
        k(f"buffer_load_dwordx4 v{vL16}, {sr(sWS,4)}, s{sT} offen offset:{1024*i} lds", tag=("s3", st))


def dma_w(k, st):
    base = (st % NS) * STAGE
    wb, srd, j = (sWbA, sWA, st) if st < 8 else (sWbB, sWB, st - 8)
    for i in range(4):
        k(f"s_add_u32 s{sT+1}, s{wb}, {j*65536 + i*8192}\ns_add_u32 m0, s{sM}, {base+8192+1024*i}")
        k(f"buffer_load_dwordx4 v{vDW}, {sr(srd,4)}, s{sT+1} offen lds", tag=("s3", st))


def reads(st, ks):
    slot = st % NS
    s, o = slot // 2, (slot % 2) * STAGE
    b = st % 2
    fa, fb = vFA + 16 * b + 4 * ks, vFB + 16 * b + 4 * ks
    return [f"ds_read_b64_tr_b16 {vr(fa,2)}, v{vAW+s} offset:{o+ks*2048}",
            f"ds_read_b64_tr_b16 {vr(fa+2,2)}, v{vAW+s} offset:{o+ks*2048+512}",
            f"ds_read_b128 {vr(fb,4)}, v{vAT+s} offset:{o+ks*1024}"]


def common_setup(k):
    t0 = vT
    k(f"""
    s_load_dwordx2 {sr(sWS,2)}, s[0:1], {KA_WS}
    s_load_dwordx2 {sr(sWA,2)}, s[0:1], {KA_WO}
    s_load_dwordx2 {sr(sWB,2)}, s[0:1], {KA_WOUT}
    s_load_dwordx2 {sr(sXS,2)}, s[0:1], {KA_X}
    s_load_dwordx2 {sr(sOUT,2)}, s[0:1], {KA_OUT}
    v_lshrrev_b32 v{t0}, 6, v0
    v_and_b32 v{vLane}, 63, v0
    v_readfirstlane_b32 s{sW}, v{t0}
    v_lshlrev_b32 v{vL16}, 4, v{vLane}
    s_and_b32 s{sT}, s2, 7
    s_lshr_b32 s{sT+1}, s2, 3
    s_lshl_b32 s{sTB}, s{sT}, 2
    s_lshr_b32 s{sT+2}, s{sT+1}, 3
    s_add_u32 s{sTB}, s{sTB}, s{sT+2}
    s_and_b32 s{sNB}, s{sT+1}, 7
    s_mov_b32 s{sWS+2}, {WS_SIZE}
    s_mov_b32 s{sWS+3}, 0x00020000
    s_mov_b32 s{sWA+2}, {896*1024}
    s_mov_b32 s{sWA+3}, 0x00020000
    s_mov_b32 s{sWB+2}, {896*1024}
    s_mov_b32 s{sWB+3}, 0x00020000
    s_mov_b32 s{sXS+2}, {2048*1024}
    s_mov_b32 s{sXS+3}, 0x00020000
    s_mov_b32 s{sOUT+2}, {2048*1024}
    s_mov_b32 s{sOUT+3}, 0x00020000
    """)


def loader_setup(k):
    t0, t1, t2 = vT, vT + 1, vT + 2
    k(f"""
    s_setprio 3
    s_bfe_u32 s{sR}, s{sW}, 0x10001              ; role = (w-8)/2
    s_and_b32 s{sWq}, s{sW}, 1                   ; half
    s_lshl_b32 s{sT}, s{sTB}, 1
    s_add_u32 s{sT}, s{sT}, s{sWq}               ; tt
    s_lshl_b32 s{sT+2}, s{sT}, 15
    s_add_u32 s{sT+2}, s{sT+2}, {WS_O}           ; X baseA
    s_mul_i32 s{sT+3}, s{sT}, {56*1024}
    s_add_u32 s{sT+3}, s{sT+3}, {WS_U}           ; X baseB
    s_add_u32 s{sT+4}, s{sT+3}, {12*1024}        ; Y baseA
    s_add_u32 s{sT+5}, s{sT+3}, {44*1024}        ; Y baseB
    s_cmp_eq_u32 s{sR}, 0
    s_cselect_b32 s{sTA}, s{sT+2}, s{sT+4}
    s_cselect_b32 s{sTBb}, s{sT+3}, s{sT+5}
    s_cselect_b32 s{sWbA}, 0, {3*65536}
    s_cselect_b32 s{sWbB}, 0, {11*65536}
    s_lshl_b32 s{sM}, s{sR}, 14
    s_lshl_b32 s{sT}, s{sWq}, 12
    s_add_u32 s{sM}, s{sM}, s{sT}
    v_lshrrev_b32 v{t0}, 3, v{vLane}
    v_and_b32 v{t1}, 7, v{vLane}
    v_lshlrev_b32 v{t2}, 1, v{t0}
    v_and_b32 v{t2}, 4, v{t2}
    v_xor_b32 v{t1}, v{t1}, v{t2}
    v_lshlrev_b32 v{t1}, 4, v{t1}
    v_lshl_add_u32 v{t1}, v{t0}, 10, v{t1}
    s_lshl_b32 s{sT}, s{sWq}, 15
    s_lshl_b32 s{sT+1}, s{sNB}, 7
    s_add_u32 s{sT}, s{sT}, s{sT+1}
    v_add_u32 v{vDW}, s{sT}, v{t1}
    s_waitcnt lgkmcnt(0)
    s_cmp_eq_u32 s{sR}, 0
    s_cselect_b32 s{sWA}, s{sWA}, s{sWB}
    s_cselect_b32 s{sWA+1}, s{sWA+1}, s{sWB+1}
    s_cselect_b32 s{sWA+2}, {512*1024}, s{sWB+2}
    """)


def loader_main(k, wfirst):
    if wfirst:
        for st in range(NS):
            dma_t(k, st)
    else:
        for st in range(2):
            dma_t(k, st)
            dma_w(k, st)
    stamp(k, 1)
    for st in range(NST):
        k.wait_tag(("s3", st))
        if 'prof' in X:
            gbar.RT(8 + st)
        k("s_barrier")
        if st == 0 and not wfirst:
            for s2_ in range(2, NS):
                dma_t(k, s2_)
                dma_w(k, s2_)
        if st >= 1 and st + NS - 1 < NST:
            dma_t(k, st + NS - 1)
            dma_w(k, st + NS - 1)
    stamp(k, 2)
    k("s_barrier")


def compute_setup(k):
    t0, t1, t2, t3 = vT, vT + 1, vT + 2, vT + 3
    k(f"""
    s_lshr_b32 s{sR}, s{sW}, 2
    s_and_b32 s{sWq}, s{sW}, 3
    s_lshl_b32 s{sT}, s{sR}, 14
    s_and_b32 s{sT+1}, s{sWq}, 1                 ; tt
    s_lshl_b32 s{sT+2}, s{sT+1}, 12
    s_add_u32 s{sT+2}, s{sT+2}, s{sT}
    v_add_u32 v{vAT}, s{sT+2}, v{vL16}
    s_lshr_b32 s{sT+3}, s{sWq}, 1                ; nt
    v_bfe_u32 v{t0}, v{vLane}, 2, 2
    v_lshrrev_b32 v{t1}, 5, v{vLane}
    v_lshl_add_u32 v{t1}, v{t1}, 3, v{t0}
    v_bfe_u32 v{t2}, v{vLane}, 4, 1
    v_lshlrev_b32 v{t2}, 1, v{t2}
    v_and_b32 v{t3}, 1, v{vLane}
    v_add_u32 v{t2}, v{t2}, v{t3}
    s_lshl_b32 s{sT+4}, s{sT+3}, 2
    v_add_u32 v{t2}, s{sT+4}, v{t2}
    v_lshlrev_b32 v{t0}, 1, v{t0}
    v_and_b32 v{t0}, 4, v{t0}
    v_xor_b32 v{t2}, v{t2}, v{t0}
    v_lshlrev_b32 v{t2}, 4, v{t2}
    v_lshl_add_u32 v{t2}, v{t1}, 7, v{t2}
    v_bfe_u32 v{t3}, v{vLane}, 1, 1
    v_lshl_add_u32 v{t2}, v{t3}, 3, v{t2}
    s_add_u32 s{sT+4}, s{sT}, 8192
    v_add_u32 v{vAW}, s{sT+4}, v{t2}
    v_add_u32 v{vAT+1}, {2*STAGE}, v{vAT}
    v_add_u32 v{vAT+2}, {4*STAGE}, v{vAT}
    v_add_u32 v{vAW+1}, {2*STAGE}, v{vAW}
    v_add_u32 v{vAW+2}, {4*STAGE}, v{vAW}
    ; out / x address: row = tb*64 + tt*32 + l%32 ; col bytes = nb*128 + nt*64 + role*32 + h*16
    v_and_b32 v{t0}, 31, v{vLane}
    v_lshlrev_b32 v{t0}, 10, v{t0}
    v_lshrrev_b32 v{t1}, 5, v{vLane}
    v_lshl_add_u32 v{t0}, v{t1}, 4, v{t0}
    s_lshl_b32 s{sT+4}, s{sTB}, 16
    s_lshl_b32 s{sT+5}, s{sT+1}, 15
    s_add_u32 s{sT+4}, s{sT+4}, s{sT+5}
    s_lshl_b32 s{sT+5}, s{sNB}, 7
    s_add_u32 s{sT+4}, s{sT+4}, s{sT+5}
    s_lshl_b32 s{sT+5}, s{sT+3}, 6
    s_add_u32 s{sT+4}, s{sT+4}, s{sT+5}
    s_lshl_b32 s{sT+5}, s{sR}, 5
    s_add_u32 s{sT+4}, s{sT+4}, s{sT+5}
    v_add_u32 v{vOA}, s{sT+4}, v{t0}
    s_waitcnt lgkmcnt(0)
    buffer_load_dwordx4 {vr(vX,4)}, v{vOA}, {sr(sXS,4)}, 0 offen
    """)


def compute_main(k):
    t0 = vT
    stamp(k, 1)
    for st in range(NST + 1):
        mm = []
        if st > 0:
            p = st - 1
            acc = vA1 if p < 8 else vA2
            b = p % 2
            for ks in range(4):
                first = (p == 0 or p == 8) and ks == 0
                mm.append(mfma32(acc, vFA + 16 * b + 4 * ks, vFB + 16 * b + 4 * ks, None if first else acc))
        if st < NST:
            k("s_waitcnt lgkmcnt(0)\ns_barrier")
            seq = []
            for ks in range(4):
                seq += reads(st, ks)
                if ks < len(mm):
                    seq.append(mm[ks])
            for a in seq:
                k(a)
        else:
            for a in mm:
                k(a)
    stamp(k, 2)
    S, T = vFA, vFA + 8
    k(f"""
    s_mul_i32 s{sT}, s{sWq}, 6144
    s_add_u32 s{sT}, s{sT}, {STAGE}
    v_add_u32 v{t0}, s{sT}, v{vL16}
    s_cmp_eq_u32 s{sR}, 0
    s_cbranch_scc1 k3_x
    """)
    for i in range(0, 16, 2):
        k(f"v_pk_add_f32 {vr(vA1+i,2)}, {vr(vA1+i,2)}, {vr(vA2+i,2)}")
    k(f"""
    ds_write_b128 v{t0}, {vr(vA1,4)} offset:4096
    ds_write_b128 v{t0}, {vr(vA1+4,4)} offset:5120
    s_waitcnt lgkmcnt(0)
    s_barrier
    ds_read_b128 {vr(S,4)}, v{t0}
    ds_read_b128 {vr(S+4,4)}, v{t0} offset:1024
    ds_read_b128 {vr(T,4)}, v{t0} offset:2048
    ds_read_b128 {vr(T+4,4)}, v{t0} offset:3072
    """)
    for i in range(0, 8, 2):
        k(f"v_pk_add_f32 {vr(T+i,2)}, {vr(T+i,2)}, {vr(vA1+8+i,2)}")
    k("s_branch k3_fin1")
    k.label("k3_x")
    k(f"""
    ds_write_b128 v{t0}, {vr(vA1+8,4)}
    ds_write_b128 v{t0}, {vr(vA1+12,4)} offset:1024
    ds_write_b128 v{t0}, {vr(vA2+8,4)} offset:2048
    ds_write_b128 v{t0}, {vr(vA2+12,4)} offset:3072
    s_waitcnt lgkmcnt(0)
    s_barrier
    ds_read_b128 {vr(T,4)}, v{t0} offset:4096
    ds_read_b128 {vr(T+4,4)}, v{t0} offset:5120
    """)
    for i in range(8):
        k(f"v_mov_b32 v{S+i}, v{vA1+i}")
    for i in range(0, 8, 2):
        k(f"v_pk_add_f32 {vr(T+i,2)}, {vr(T+i,2)}, {vr(vA2+i,2)}")
    k.label("k3_fin1")
    E, F = vFB, vFB + 8
    k(f"s_mov_b32 s{sT}, 0xbfb8aa3b")
    for i in range(8):
        k(f"v_mul_f32 v{E+i}, s{sT}, v{T+i}")
    for i in range(8):
        k(f"v_exp_f32 v{E+i}, v{E+i}")
    for i in range(0, 8, 2):
        k(f"v_pk_mul_f32 {vr(T+i,2)}, {vr(T+i,2)}, {vr(S+i,2)}")
    for i in range(8):
        k(f"v_add_f32 v{E+i}, 1.0, v{E+i}")
    for i in range(8):
        k(f"v_rcp_f32 v{E+i}, v{E+i}")
    for i in range(4):
        k(f"v_lshlrev_b32 v{F+2*i}, 16, v{vX+i}\nv_and_b32 v{F+2*i+1}, 0xffff0000, v{vX+i}")
    for i in range(0, 8, 2):
        k(f"v_pk_fma_f32 {vr(F+i,2)}, {vr(T+i,2)}, {vr(E+i,2)}, {vr(F+i,2)}")
    for i in range(4):
        k(f"v_cvt_pk_bf16_f32 v{vX+i}, v{F+2*i}, v{F+2*i+1}")
    k(f"buffer_store_dwordx4 {vr(vX,4)}, v{vOA}, {sr(sOUT,4)}, 0 offen {os.environ.get('OWT', '')}")


def dep_slots():
    v, s = vA1, sT + 10
    return f"""
    s_lshr_b32 s{s}, s{sTB}, 2
    s_lshl_b32 s{s}, s{s}, 3
    v_and_b32 v{v}, 3, v{vLane}
    v_lshlrev_b32 v{v}, 6, v{v}
    v_bfe_u32 v{v+1}, v{vLane}, 2, 3
    v_add3_u32 v{v}, v{v}, v{v+1}, s{s}
    v_subrev_u32 v{v+1}, 32, v{vLane}
    v_min_u32 v{v+1}, 13, v{v+1}
    v_cmp_lt_u32 vcc, 6, v{v+1}
    v_subrev_u32 v{v+2}, 7, v{v+1}
    v_cndmask_b32 v{v+1}, v{v+1}, v{v+2}, vcc
    v_lshlrev_b32 v{v+1}, 5, v{v+1}
    v_cndmask_b32 v{v+2}, 0, 4, vcc
    s_lshr_b32 s{s}, s{sTB}, 1
    s_and_b32 s{s+1}, s{s}, 3
    s_lshl_b32 s{s+1}, s{s+1}, 3
    s_lshr_b32 s{s}, s{s}, 2
    s_add_u32 s{s}, s{s}, s{s+1}
    v_add3_u32 v{v+1}, v{v+1}, v{v+2}, s{s}
    v_cmp_lt_u32 vcc, 31, v{vLane}
    v_cndmask_b32 v{v}, v{v}, v{v+1}, vcc
    """


def gen_k3(k=None):
    if k is None:
        k = Kernel("k3_kernel")
    stamp(k, 0)
    if not FUSED:
        k("s_cmp_ge_u32 s2, 256\ns_cbranch_scc1 k3_end")
    k("s_setprio 0")
    common_setup(k)
    k(f"s_cmp_ge_u32 s{sW}, 8\ns_cbranch_scc1 k3_loader")
    compute_setup(k)
    if FUSED:
        k(f"""
        s_mul_i32 s{sT}, s{sNB}, 3
        s_add_u32 s{sT}, s{sT}, s{sW}
        s_lshl_b32 s{sT+1}, s{sT}, 13
        s_lshl_b32 s{sT+2}, s{sTB}, 16
        s_add_u32 s{sT+2}, s{sT+2}, {WS_O}
        s_mul_i32 s{sT+3}, s{sTB}, {112*1024}
        s_add_u32 s{sT+3}, s{sT+3}, {WS_U - 65536}
        s_cmp_lt_u32 s{sT}, 8
        s_cselect_b32 s{sT+2}, s{sT+2}, s{sT+3}
        s_add_u32 s{sT+1}, s{sT+1}, s{sT+2}
        v_lshlrev_b32 v{vT+4}, 7, v{vLane}
        s_barrier
        """)
        if 'notouch' not in X:
            k(f"""
            s_cmp_ge_u32 s{sW}, 3
            s_cbranch_scc1 k3_notouch
            s_cmp_ge_u32 s{sT}, 22
            s_cbranch_scc1 k3_notouch
            buffer_load_dword v{vT+5}, v{vT+4}, {sr(sWS,4)}, s{sT+1} offen
            k3_notouch:
            """)
    compute_main(k)
    k("s_branch k3_fin")
    k.label("k3_loader")
    loader_setup(k)
    if FUSED:
        for st in range(NS):
            dma_w(k, st)
        gbar.wait(k, 1, sWS, sW, sT + 10, vA1, dep_slots())
        k("s_barrier")
    loader_main(k, FUSED)
    k.label("k3_fin")
    if STAMP:
        k("s_waitcnt vmcnt(0)")
    stamp(k, 3)
    stamp_store(k, 4)
    if FUSED:
        return k
    k("k3_end:\ns_endpgm")
    k.finish()
    return k


if __name__ == "__main__":
    import sys
    STAMP = "stamp" in sys.argv
    k = gen_k3()
    print(build_file("; test", [("k3_kernel", 256, 768, LDS_K3)], [k]))
```

```python
import os
from asmlib import *
from layout import *
import gbar

X = set(os.environ.get('K3X', '').split(','))

sPA, sPB = 68, 72
sLM = 96
sLT = 97
vLW = 126

vLane = 1
vL16 = 2
vAW = 3
vAR = 5
vOA = 7
vT = 8
vX = 16
ACC = 20
FA = 84
FR = 100
FT = 116

sWS, sXS, sOUT = 4, 16, 20
sW, sQ, sTT, sTB, sNB = 24, 25, 26, 27, 28
sB1, sB2 = 29, 30
sT = 36
NT = 12


def mfma32(d, a, b, c):
    cs = "0" if c is None else vr(c, 16)
    return f"v_mfma_f32_32x32x16_bf16 {vr(d,16)}, {vr(a,4)}, {vr(b,4)}, {cs}"


def slot_src(s):
    return 22 * (s // 20) + s % 20


def loader_init(k, sG, vLn, vt):
    k(f"""
    s_load_dwordx2 {sr(sPA,2)}, s[0:1], {KA_WO}
    s_load_dwordx2 {sr(sPB,2)}, s[0:1], {KA_WOUT}
    s_mov_b32 s{sPA+2}, {512*1024}
    s_mov_b32 s{sPA+3}, 0x00020000
    s_mov_b32 s{sPB+2}, {896*1024}
    s_mov_b32 s{sPB+3}, 0x00020000
    s_lshl_b32 s{sLM}, s{sG}, 10
    v_lshrrev_b32 v{vt}, 3, v{vLn}
    v_and_b32 v{vt+1}, 7, v{vLn}
    v_lshlrev_b32 v{vt+2}, 1, v{vt}
    v_and_b32 v{vt+2}, 4, v{vt+2}
    v_xor_b32 v{vt+1}, v{vt+1}, v{vt+2}
    v_lshlrev_b32 v{vt+1}, 4, v{vt+1}
    v_lshl_add_u32 v{vt+1}, v{vt}, 10, v{vt+1}
    s_lshr_b32 s{sLT}, s2, 3
    s_and_b32 s{sLT}, s{sLT}, 7
    s_lshl_b32 s{sLT}, s{sLT}, 7
    v_add_u32 v{vt+1}, s{sLT}, v{vt+1}
    s_lshl_b32 s{sLT}, s{sG}, 13
    v_add_u32 v{vLW}, s{sLT}, v{vt+1}
    s_waitcnt lgkmcnt(0)
    """)


def wdma_pair(lds_slot, g):
    assert (g < 32) == (g + 1 < 32)
    srd, row = (sPA, 16 * g) if g < 32 else (sPB, 16 * (g - 32))
    return (f"s_add_u32 m0, s{sLM}, {lds_slot*2048}\ns_mov_b32 s{sLT}, {row*1024}\n"
            f"buffer_load_dwordx4 v{vLW}, {sr(srd,4)}, s{sLT} offen lds")


def wdma_slots(lo, hi):
    assert lo % 2 == 0 and hi % 2 == 0
    return [wdma_pair(s, slot_src(s)) for s in range(lo, hi, 2)]


def wdma_early():
    return [wdma_pair(60 + 2 * q, 22 * q + 20) for q in range(4)] + wdma_slots(68, 80)


TAIL = {1: (16, 30), 2: (30, 44), 3: (44, 60)}


def dep_slots():
    v, s = ACC, sT + 10
    return f"""
    s_lshr_b32 s{s}, s{sTB}, 2
    s_lshl_b32 s{s}, s{s}, 3
    v_and_b32 v{v}, 3, v{vLane}
    v_lshlrev_b32 v{v}, 6, v{v}
    v_bfe_u32 v{v+1}, v{vLane}, 2, 3
    v_add3_u32 v{v}, v{v}, v{v+1}, s{s}
    v_subrev_u32 v{v+1}, 32, v{vLane}
    v_min_u32 v{v+1}, 13, v{v+1}
    v_cmp_lt_u32 vcc, 6, v{v+1}
    v_subrev_u32 v{v+2}, 7, v{v+1}
    v_cndmask_b32 v{v+1}, v{v+1}, v{v+2}, vcc
    v_lshlrev_b32 v{v+1}, 5, v{v+1}
    v_cndmask_b32 v{v+2}, 0, 4, vcc
    s_lshr_b32 s{s}, s{sTB}, 1
    s_and_b32 s{s+1}, s{s}, 3
    s_lshl_b32 s{s+1}, s{s+1}, 3
    s_lshr_b32 s{s}, s{s}, 2
    s_add_u32 s{s}, s{s}, s{s+1}
    v_add3_u32 v{v+1}, v{v+1}, v{v+2}, s{s}
    v_cmp_lt_u32 vcc, 31, v{vLane}
    v_cndmask_b32 v{v}, v{v}, v{v+1}, vcc
    """


def gen_k3(k):
    t0, t1, t2, t3 = vT, vT + 1, vT + 2, vT + 3
    k(f"""
    s_setprio 0
    s_load_dwordx2 {sr(sXS,2)}, s[0:1], {KA_X}
    s_load_dwordx2 {sr(sOUT,2)}, s[0:1], {KA_OUT}
    v_lshrrev_b32 v{t0}, 6, v0
    v_and_b32 v{vLane}, 63, v0
    v_readfirstlane_b32 s{sW}, v{t0}
    v_lshlrev_b32 v{vL16}, 4, v{vLane}
    s_and_b32 s{sT}, s2, 7
    s_lshr_b32 s{sT+1}, s2, 3
    s_lshl_b32 s{sTB}, s{sT}, 2
    s_lshr_b32 s{sT+2}, s{sT+1}, 3
    s_add_u32 s{sTB}, s{sTB}, s{sT+2}
    s_and_b32 s{sNB}, s{sT+1}, 7
    s_mov_b32 s{sXS+2}, {2048*1024}
    s_mov_b32 s{sXS+3}, 0x00020000
    s_mov_b32 s{sOUT+2}, {2048*1024}
    s_mov_b32 s{sOUT+3}, 0x00020000
    s_cmp_ge_u32 s{sW}, 8
    s_cbranch_scc1 k3_loader
    s_lshr_b32 s{sQ}, s{sW}, 1
    s_and_b32 s{sTT}, s{sW}, 1
    ; tr-read lane address: (8h + r4)*128 + ((mhalf*2 + c%2) ^ (4*(r4>>1)))*16 + (c/2)*8
    v_bfe_u32 v{t0}, v{vLane}, 2, 2
    v_lshrrev_b32 v{t1}, 5, v{vLane}
    v_lshl_add_u32 v{t1}, v{t1}, 3, v{t0}
    v_bfe_u32 v{t2}, v{vLane}, 4, 1
    v_lshlrev_b32 v{t2}, 1, v{t2}
    v_and_b32 v{t3}, 1, v{vLane}
    v_or_b32 v{t2}, v{t2}, v{t3}
    v_lshlrev_b32 v{t0}, 1, v{t0}
    v_and_b32 v{t0}, 4, v{t0}
    v_xor_b32 v{t2}, v{t2}, v{t0}
    v_lshlrev_b32 v{t2}, 4, v{t2}
    v_lshl_add_u32 v{t2}, v{t1}, 7, v{t2}
    v_bfe_u32 v{t3}, v{vLane}, 1, 1
    v_lshl_add_u32 v{t2}, v{t3}, 3, v{t2}
    s_lshl_b32 s{sT}, s{sQ}, 12
    s_add_u32 s{sT}, s{sT}, {60*2048}
    v_add_u32 v{vAR}, s{sT}, v{t2}
    v_xor_b32 v{vAR+1}, 64, v{vAR}
    """)
    for ks in range(2):
        for nt in range(2):
            d = FR + 8 * ks + 4 * nt
            k(f"ds_read_b64_tr_b16 {vr(d,2)}, v{vAR+nt} offset:{ks*2048}\nds_read_b64_tr_b16 {vr(d+2,2)}, v{vAR+nt} offset:{ks*2048+512}")
    k(f"""
    s_mul_i32 s{sT}, s{sQ}, {20*2048}
    v_add_u32 v{vAW}, s{sT}, v{t2}
    v_xor_b32 v{vAW+1}, 64, v{vAW}
    s_lshl_b32 s{sT}, s{sTB}, 1
    s_add_u32 s{sT}, s{sT}, s{sTT}               ; tile32
    s_lshl_b32 s{sT+1}, s{sT}, 15
    s_add_u32 s{sT+1}, s{sT+1}, {WS_O}
    s_mul_i32 s{sT+2}, s{sT}, {56*1024}
    s_add_u32 s{sT+2}, s{sT+2}, {WS_U - 32*1024}
    s_mul_i32 s{sT+3}, s{sQ}, {22*1024}
    s_cmp_lt_u32 s{sQ}, 2
    s_cselect_b32 s{sB1}, s{sT+1}, s{sT+2}
    s_cmp_lt_u32 s{sQ}, 1
    s_cselect_b32 s{sB2}, s{sT+1}, s{sT+2}
    s_add_u32 s{sB1}, s{sB1}, s{sT+3}
    s_add_u32 s{sB2}, s{sB2}, s{sT+3}
    ; out / x address: row = tile32*32 + l%32 ; col bytes = nb*128 + q*32 + h*16
    v_and_b32 v{t0}, 31, v{vLane}
    v_lshlrev_b32 v{t0}, 10, v{t0}
    v_lshrrev_b32 v{t1}, 5, v{vLane}
    v_lshl_add_u32 v{t0}, v{t1}, 4, v{t0}
    s_lshl_b32 s{sT+4}, s{sT}, 15
    s_lshl_b32 s{sT+5}, s{sNB}, 7
    s_add_u32 s{sT+4}, s{sT+4}, s{sT+5}
    s_lshl_b32 s{sT+5}, s{sQ}, 5
    s_add_u32 s{sT+4}, s{sT+4}, s{sT+5}
    v_add_u32 v{vOA}, s{sT+4}, v{t0}
    s_waitcnt lgkmcnt(0)
    buffer_load_dwordx4 {vr(vX,4)}, v{vOA}, {sr(sXS,4)}, 0 offen
    s_barrier
    s_barrier
    """)

    def tload(i):
        b = sB1 if i < 10 else sB2
        e = ""
        if i % 4 == 0 or i == 10:
            e = f"s_add_u32 s{sT}, s{b}, {i*1024}\n"
            tload.base = i
        return e + f"buffer_load_dwordx4 {vr(FT+4*(i%NT),4)}, v{vL16}, {sr(sWS,4)}, s{sT} offen offset:{(i-tload.base)*1024}"

    def areads(i):
        out = []
        for nt in range(2):
            d = FA + 8 * (i % 2) + 4 * nt
            out += [f"ds_read_b64_tr_b16 {vr(d,2)}, v{vAW+nt} offset:{i*2048}", f"ds_read_b64_tr_b16 {vr(d+2,2)}, v{vAW+nt} offset:{i*2048+512}"]
        return out
    for i in range(NT):
        k(tload(i))
    for a in areads(0):
        k(a)
    for i in range(22):
        if i + 1 < 20:
            for a in areads(i + 1):
                k(a)
        acc = ACC if i < 10 else ACC + 32
        for nt in range(2):
            a = FA + 8 * (i % 2) + 4 * nt if i < 20 else FR + 8 * (i - 20) + 4 * nt
            k(mfma32(acc + 16 * nt, a, FT + 4 * (i % NT), None if i in (0, 10) else acc + 16 * nt))
        if i + NT < 22:
            k(tload(i + NT))
    gbar.RT(8)
    k(f"""
    s_barrier
    s_mul_i32 s{sT}, s{sTT}, {5*8192}
    v_lshlrev_b32 v{t0}, 1, v{vL16}              ; lane*32
    v_add_u32 v{t0}, s{sT}, v{t0}
    s_cmp_eq_u32 s{sQ}, 1
    s_cbranch_scc1 k3_q1
    """)
    for i in range(0, 32, 2):
        k(f"v_pk_add_f32 {vr(ACC+i,2)}, {vr(ACC+i,2)}, {vr(ACC+32+i,2)}")
    k(f"""
    s_add_u32 s{sT+1}, s{sQ}, 1
    s_cmp_eq_u32 s{sQ}, 0
    s_cselect_b32 s{sT+1}, 0, s{sT+1}
    s_lshl_b32 s{sT+1}, s{sT+1}, 13
    v_add_u32 v{t1}, s{sT+1}, v{t0}
    """)
    for c in range(4):
        k(f"ds_write_b128 v{t1}, {vr(ACC+8*c,4)} offset:{2048*c}\nds_write_b128 v{t1}, {vr(ACC+8*c+4,4)} offset:{2048*c+16}")
    k("s_branch k3_red")
    k.label("k3_q1")
    for c in range(8):
        k(f"ds_write_b128 v{t0}, {vr(ACC+8*c,4)} offset:{8192+2048*c}\nds_write_b128 v{t0}, {vr(ACC+8*c+4,4)} offset:{8192+2048*c+16}")
    k.label("k3_red")
    P = ACC
    k(f"""
    s_lshl_b32 s{sT+1}, s{sQ}, 11
    v_add_u32 v{t1}, s{sT+1}, v{t0}
    s_waitcnt lgkmcnt(0)
    s_barrier
    """)
    for p in range(5):
        k(f"ds_read_b128 {vr(P+8*p,4)}, v{t1} offset:{8192*p}\nds_read_b128 {vr(P+8*p+4,4)}, v{t1} offset:{8192*p+16}")
    S, T, E, F = P, P + 16, P + 40, P + 48
    for i in range(4):
        k(f"v_lshlrev_b32 v{F+2*i}, 16, v{vX+i}\nv_and_b32 v{F+2*i+1}, 0xffff0000, v{vX+i}")
    k(f"s_mov_b32 s{sT}, 0xbfb8aa3b")
    for i in range(0, 8, 2):
        k(f"v_pk_add_f32 {vr(S+i,2)}, {vr(S+i,2)}, {vr(S+8+i,2)}")
    for i in range(0, 8, 2):
        k(f"v_pk_add_f32 {vr(T+i,2)}, {vr(T+i,2)}, {vr(T+8+i,2)}")
    for i in range(0, 8, 2):
        k(f"v_pk_add_f32 {vr(T+i,2)}, {vr(T+i,2)}, {vr(T+16+i,2)}")
    for i in range(8):
        k(f"v_mul_f32 v{E+i}, s{sT}, v{T+i}")
    for i in range(8):
        k(f"v_exp_f32 v{E+i}, v{E+i}")
    for i in range(0, 8, 2):
        k(f"v_pk_mul_f32 {vr(T+i,2)}, {vr(T+i,2)}, {vr(S+i,2)}")
    for i in range(8):
        k(f"v_add_f32 v{E+i}, 1.0, v{E+i}")
    for i in range(8):
        k(f"v_rcp_f32 v{E+i}, v{E+i}")
    for i in range(0, 8, 2):
        k(f"v_pk_fma_f32 {vr(F+i,2)}, {vr(T+i,2)}, {vr(E+i,2)}, {vr(F+i,2)}")
    for i in range(4):
        k(f"v_cvt_pk_bf16_f32 v{vX+i}, v{F+2*i}, v{F+2*i+1}")
    k(f"buffer_store_dwordx4 {vr(vX,4)}, v{vOA}, {sr(sOUT,4)}, 0 offen")
    k("s_branch k3_fin")
    k.label("k3_loader")
    k("s_setprio 3")
    for a in wdma_slots(0, 16):
        k(a)
    k("s_barrier")
    for a in wdma_slots(60, 68):
        k(a)
    gbar.wait(k, 1, sWS, sW, sT + 10, ACC, dep_slots())
    k("s_waitcnt vmcnt(0) lgkmcnt(0)\ns_barrier\ns_barrier\ns_barrier")
    k.label("k3_fin")
    return k
```

```python
import sys, os
os.environ.setdefault("WT", "sc1")
from asmlib import *
import k1, k2, k3, gbar, k3f
if not os.environ.get('OLDP3'):
    k2.P3F = True
    k3 = k3f
NAME = "recurrent_scan__softmax_full_mha__mixer_gmlp__prompt_kernel"
ref = open("recurrent_scan__softmax_full_mha__mixer_gmlp__prompt.s.ref").read()
hdr = "\n".join(l for l in ref.split("\n") if l.startswith(";") and "@launch" not in l and "Override" not in l and "grid=ceil" not in l)
hdr += """
;
;"""
if os.environ.get('STAMP'):
    k1.STAMP = k2.STAMP = k3.STAMP = True
k1.FUSED = k2.FUSED = k3.FUSED = True
k2.L_TAG1 = k1.L_TAG
k = Kernel("fz_kernel")
DBG = os.environ.get('DBGT')
def rt(i):
    if DBG:
        k(f"s_memrealtime s[92:93]\ns_waitcnt lgkmcnt(0)\nv_writelane_b32 v167, s92, {i}")
gbar.RT = rt
if DBG:
    k("v_mov_b32 v167, 0")
rt(0)
k1.gen_k1(k)
rt(1)
k("s_waitcnt vmcnt(0) lgkmcnt(0)\ns_barrier")
rt(2)
gbar.arrive(k, 0, k1.sWS, k1.sW, k1.sT, k1.vT)
if k1.CLAIM:
    k(f"v_mov_b32 v{k1.vT}, {k1.L_TAG+4}\nds_read_b32 v{k1.vT+1}, v{k1.vT}\nv_readfirstlane_b32 s2, v{k1.vT+1}\ns_and_b32 s2, s2, 255")
k2.gen_k2(k)
rt(4)
k("s_waitcnt vmcnt(0) lgkmcnt(0)\ns_barrier")
rt(5)
gbar.arrive(k, 1, k2.sWS, k2.sW, k2.sT, k2.vT)
k3.gen_k3(k)
rt(7)
if DBG:
    k(f"""
    s_cmp_lg_u32 s2, {DBG}
    s_cbranch_scc1 fz_end
    s_cmp_lg_u32 s{k3.sW}, 8
    s_cbranch_scc1 fz_end
    s_load_dwordx2 s[92:93], s[0:1], 72
    s_mov_b32 s94, 128
    s_mov_b32 s95, 0x00020000
    v_readlane_b32 s91, v167, 0
    v_and_b32 v1, 63, v0
    v_lshlrev_b32 v1, 2, v1
    v_subrev_u32 v167, s91, v167
    s_waitcnt lgkmcnt(0)
    buffer_store_dword v167, v1, s[92:95], 0 offen sc0 sc1
    """)
k("fz_end:\ns_endpgm")
k.finish()
txt = build_file(hdr, [("fz_kernel", 256, 768, 163840)], [k])
out = sys.argv[1] if len(sys.argv) > 1 else "recurrent_scan__softmax_full_mha__mixer_gmlp__prompt.s"
if os.environ.get("PLAIN"):
    txt = txt.replace("; @launch kernel=fz_kernel grid=", "; @launch grid=")
    import re
    txt = re.sub(r"\bfz_kernel\b(?!_)", NAME, txt)
open(out, "w").write(txt)
print("wrote", out, len(txt))
```

```python
import re

TRANS = ("v_exp_", "v_log_", "v_rcp_", "v_rsq_", "v_sqrt_", "v_sin_", "v_cos_")
REG_RE = re.compile(r"^(-|abs\()?([vsa])(\d+|\[(\d+):(\d+)\])\)?$")


def parse_reg(tok):
    tok = tok.strip()
    if tok.startswith("-"):
        tok = tok[1:]
    if tok.startswith("abs(") and tok.endswith(")"):
        tok = tok[4:-1]
    if tok.startswith("|") and tok.endswith("|"):
        tok = tok[1:-1]
    m = re.match(r"^([vsa])(\d+)$", tok)
    if m:
        return [(m.group(1), int(m.group(2)))]
    m = re.match(r"^([vsa])\[(\d+):(\d+)\]$", tok)
    if m:
        return [(m.group(1), i) for i in range(int(m.group(2)), int(m.group(3)) + 1)]
    if tok == "vcc":
        return [("s", 106), ("s", 107)]
    if tok == "vcc_lo":
        return [("s", 106)]
    if tok == "vcc_hi":
        return [("s", 107)]
    if tok == "exec":
        return [("x", 0), ("x", 1)]
    if tok == "exec_lo":
        return [("x", 0)]
    if tok == "exec_hi":
        return [("x", 1)]
    if tok == "m0":
        return [("m", 0)]
    return []


class Ins:
    __slots__ = ("text", "mn", "ops", "mods", "kind", "rd", "wr", "passes", "srcA", "srcB", "srcC", "target",
                 "tag", "want", "dpp", "is_trans", "is_dot", "nopv", "store_data", "lds_dma", "comment", "pre")

    def __init__(self, text, tag=None):
        self.text = text
        self.tag = tag
        self.want = None
        self.pre = []
        t = text.split(";")[0].strip()
        parts = t.split(None, 1)
        self.mn = parts[0]
        rest = parts[1] if len(parts) > 1 else ""
        ops, cur, depth = [], "", 0
        for ch in rest:
            if ch in "[(":
                depth += 1
            if ch in "])":
                depth -= 1
            if ch == "," and depth == 0:
                ops.append(cur.strip())
                cur = ""
            else:
                cur += ch
        if cur.strip():
            ops.append(cur.strip())
        self.mods = ""
        if ops:
            last = ops[-1]
            depth = 0
            for i, ch in enumerate(last):
                if ch in "[(":
                    depth += 1
                if ch in "])":
                    depth -= 1
                if ch == " " and depth == 0:
                    self.mods = last[i + 1:]
                    ops[-1] = last[:i]
                    break
        self.ops = ops
        self.classify()

    def classify(self):
        mn, ops = self.mn, self.ops
        R = [parse_reg(o) for o in ops]
        self.rd, self.wr = set(), set()
        self.passes = 0
        self.srcA = self.srcB = self.srcC = set()
        self.target = None
        self.dpp = "_dpp" in mn or "row_" in self.mods or "quad_perm" in self.mods
        self.is_trans = mn.startswith(TRANS)
        self.is_dot = mn.startswith("v_dot")
        self.nopv = 1
        self.store_data = set()
        self.lds_dma = False
        allr = lambda idxs: set(x for i in idxs if i < len(R) for x in R[i])
        n = len(ops)
        if mn.startswith("v_mfma"):
            self.kind = "mfma"
            self.passes = 8 if "32x32" in mn else (2 if "4x4x4" in mn else 4)
            self.wr = allr([0])
            self.srcA, self.srcB, self.srcC = allr([1]), allr([2]), allr([3])
            self.rd = self.srcA | self.srcB | self.srcC
        elif mn.startswith("v_"):
            self.kind = "valu"
            if mn.startswith("v_cmp"):
                self.wr = allr([0])
                self.rd = allr(range(1, n))
            elif mn.startswith(("v_permlane16_swap", "v_permlane32_swap", "v_swap")):
                self.wr = allr([0, 1])
                self.rd = allr([0, 1])
            elif mn.startswith(("v_add_co", "v_sub_co", "v_addc_co", "v_subb_co", "v_mad_u64", "v_div_scale")):
                self.wr = allr([0, 1])
                self.rd = allr(range(2, n))
            else:
                self.wr = allr([0])
                self.rd = allr(range(1, n))
                if mn.startswith(("v_fmac", "v_dot2c", "v_pk_fmac", "v_writelane", "v_mac")) or self.dpp:
                    self.rd |= allr([0])
                if mn.startswith("v_cndmask") and n == 3:
                    self.rd |= {("s", 106), ("s", 107)}
            if mn == "v_nop":
                self.wr, self.rd = set(), set()
        elif mn.startswith(("buffer_", "global_")):
            self.kind = "vmem"
            mods = self.mods.split()
            if mn in ("buffer_inv", "buffer_wbl2"):
                pass
            elif "lds" in mods or "_lds_" in mn:
                self.lds_dma = True
                self.rd = allr(range(0, n)) | {("m", 0)}
            elif "_load" in mn:
                self.wr = allr([0])
                self.rd = allr(range(1, n))
            elif "_store" in mn:
                self.rd = allr(range(0, n))
                di = 0 if mn.startswith("buffer_") else 1
                if "x3" in mn or "x4" in mn:
                    self.store_data = allr([di])
            elif "_atomic" in mn:
                self.rd = allr(range(0, n))
                if "sc0" in mods:
                    self.wr = allr([0])
            else:
                raise ValueError("unknown vmem " + self.text)
        elif mn.startswith("ds_"):
            self.kind = "ds"
            if mn.startswith(("ds_read", "ds_bpermute", "ds_permute", "ds_swizzle")) or "_rtn" in mn:
                self.wr = allr([0])
                self.rd = allr(range(1, n))
            else:
                self.rd = allr(range(0, n))
        elif mn.startswith(("s_load", "s_buffer_load", "s_memtime", "s_memrealtime")):
            self.kind = "smem"
            self.wr = allr([0])
            self.rd = allr(range(1, n))
        elif mn.startswith(("s_branch", "s_cbranch")):
            self.kind = "branch"
            self.target = ops[0]
            if "vcc" in mn:
                self.rd = {("s", 106), ("s", 107)}
        elif mn == "s_endpgm":
            self.kind = "end"
        elif mn == "s_nop":
            self.kind = "nop"
            self.nopv = int(ops[0], 0) + 1
        elif mn == "s_waitcnt":
            self.kind = "wait"
        elif mn in ("s_barrier", "s_setprio", "s_sleep"):
            self.kind = "misc"
        elif mn.startswith("s_"):
            self.kind = "salu"
            if mn.startswith(("s_cmp", "s_bitcmp")):
                self.rd = allr(range(0, n))
            else:
                self.wr = allr([0])
                self.rd = allr(range(1, n))
                if "saveexec" in mn:
                    self.wr |= {("x", 0), ("x", 1)}
                if mn.startswith(("s_addk", "s_mulk", "s_cmov")):
                    self.rd |= allr([0])
        else:
            raise ValueError("unknown instr " + self.text)


class Label:
    def __init__(self, name):
        self.name = name


class Raw:
    def __init__(self, text):
        self.text = text


def hazard(p, c):
    need = 0
    pv = {r for r in p.wr if r[0] in "va"}
    ps = {r for r in p.wr if r[0] == "s"}
    if p.kind == "valu":
        if c.kind == "mfma" and pv & c.rd:
            need = max(need, 2)
        if c.kind == "valu":
            if p.is_trans and not c.is_trans and pv & c.rd:
                need = max(need, 1)
            if c.mn.startswith(("v_readlane", "v_readfirstlane")) and pv & c.rd:
                need = max(need, 1)
            if (c.dpp or c.mn.startswith("v_permlane")) and pv & c.rd:
                need = max(need, 2)
            if ps & c.rd:
                need = max(need, 4 if c.mn.startswith(("v_readlane", "v_writelane")) else 2)
            if p.is_dot and (pv & (c.rd | c.wr)):
                if not (c.mn == p.mn and not (pv & (set(parse_reg(c.ops[1])) | set(parse_reg(c.ops[2]))))):
                    need = max(need, 3)
            if ("op_sel" in p.mods and not p.mn.startswith("v_pk")) or "sdwa" in p.mn:
                if pv & (c.rd | c.wr):
                    need = max(need, 1)
        if p.is_dot and c.kind in ("mfma", "vmem", "ds") and pv & (c.rd | c.wr):
            need = max(need, 3)
        if c.kind == "vmem" and ps & c.rd:
            need = max(need, 5)
        if c.kind == "branch" and ps & c.rd:
            need = max(need, 5)
        if c.kind in ("salu", "smem") and ps & c.rd:
            need = max(need, 1)
    if p.kind == "mfma":
        big = {8: 12, 4: 8, 2: 5}[p.passes]
        if c.kind == "mfma":
            if pv & (c.srcA | c.srcB):
                need = max(need, big)
            if pv & c.srcC:
                if not (c.srcC == pv and c.mn == p.mn):
                    need = max(need, p.passes + 2)
                elif p.passes == 2:
                    need = max(need, 2)
            elif pv & c.wr:
                need = max(need, p.passes + 2)
        elif c.kind in ("valu", "vmem", "ds"):
            if pv & (c.rd | c.wr):
                need = max(need, big)
        if c.kind == "valu" and p.srcC & c.wr:
            need = max(need, p.passes - 1)
        if c.kind in ("ds", "vmem") and p.srcC & c.wr:
            need = max(need, p.passes - 1)
    if p.kind == "salu":
        if ("m", 0) in p.wr and (c.lds_dma or "addtid" in c.mn):
            need = max(need, 1)
    if p.kind == "vmem" and p.store_data:
        if p.store_data & c.wr:
            need = max(need, 2 if c.kind == "valu" else 1)
    return need


class Kernel:
    def __init__(self, name):
        self.name = name
        self.items = []
        self.uid = 0

    def __call__(self, text, tag=None):
        for line in text.strip().split("\n"):
            line = line.strip()
            if not line or line.startswith(";"):
                continue
            if line.endswith(":") and " " not in line:
                self.items.append(Label(line[:-1]))
            elif line.startswith("."):
                self.items.append(Raw(line))
            else:
                self.items.append(Ins(line, tag))

    def label(self, name):
        self.items.append(Label(name))

    def newlabel(self, base="L"):
        self.uid += 1
        return f"{self.name}_{base}{self.uid}"

    def wait_tag(self, tag, extra=""):
        i = Ins("s_waitcnt vmcnt(0)")
        i.want = ("vmtag", tag)
        self.items.append(i)

    def build_cfg(self):
        ins = [it for it in self.items if isinstance(it, Ins)]
        idx = {}
        lab = {}
        k = 0
        for it in self.items:
            if isinstance(it, Label):
                lab[it.name] = k
            elif isinstance(it, Ins):
                k += 1
        n = len(ins)
        succ = [[] for _ in range(n)]
        pred = [[] for _ in range(n)]
        for i, x in enumerate(ins):
            if x.kind == "end":
                continue
            if x.kind == "branch":
                t = lab[x.target]
                succ[i].append(t)
                if x.mn != "s_branch" and i + 1 < n:
                    succ[i].append(i + 1)
            elif i + 1 < n:
                succ[i].append(i + 1)
        for i in range(n):
            for s in succ[i]:
                if s < n:
                    pred[s].append(i)
        return ins, succ, pred

    def insert_waits(self):
        ins, succ, pred = self.build_cfg()
        n = len(ins)
        CAP = 64
        IN = [None] * n
        IN[0] = ({}, {}, frozenset())
        work = [0]
        need = [None] * n

        def merge(a, b):
            if a is None:
                return b, True
            ch = False
            out = []
            for da, db in zip(a[:2], b[:2]):
                d = dict(da)
                for k, v in db.items():
                    if k not in d or v < d[k]:
                        d[k] = v
                        ch = True
                out.append(d)
            sm = a[2] | b[2]
            if sm != a[2]:
                ch = True
            return (out[0], out[1], sm), ch

        def parse_wait(x):
            vm = lg = None
            m = re.search(r"vmcnt\((\d+)\)", x.text)
            if m:
                vm = int(m.group(1))
            m = re.search(r"lgkmcnt\((\d+)\)", x.text)
            if m:
                lg = int(m.group(1))
            return vm, lg

        iters = 0
        while work:
            iters += 1
            if iters > 2000000:
                raise RuntimeError("waitcnt dataflow does not converge")
            i = work.pop()
            x = ins[i]
            vm, lg, sm = IN[i]
            vm, lg = dict(vm), dict(lg)
            touched = x.rd | x.wr
            nv = nl = None
            if x.want and x.want[0] == "vmtag":
                for k, v in vm.items():
                    if ins[k].tag == x.want[1]:
                        nv = v if nv is None else min(nv, v)
                if nv is None:
                    nv = 63
            elif x.kind == "wait":
                nv, nl = parse_wait(x)
            else:
                for k, v in vm.items():
                    if ins[k].wr & touched:
                        nv = v if nv is None else min(nv, v)
                for k, v in lg.items():
                    if ins[k].wr & touched:
                        nl = v if nl is None else min(nl, v)
                for k in sm:
                    if ins[k].wr & touched:
                        nl = 0
                if nl is not None and sm:
                    nl = 0
            if x.kind != "wait" or x.want:
                if need[i] is not None:
                    ov, ol = need[i]
                    if ov is not None:
                        nv = ov if nv is None else min(nv, ov)
                    if ol is not None:
                        nl = ol if nl is None else min(nl, ol)
                if nv is not None:
                    nv = min(nv, 63)
                if nl is not None:
                    nl = min(nl, 15)
                need[i] = (nv, nl)
            if nv is not None:
                vm = {k: v for k, v in vm.items() if v < nv}
            if nl is not None:
                if nl == 0:
                    lg, sm = {}, frozenset()
                elif not sm:
                    lg = {k: v for k, v in lg.items() if v < nl}
            if x.kind == "vmem" and x.mn not in ("buffer_inv", "buffer_wbl2"):
                vm = {k: min(v + 1, CAP) for k, v in vm.items()}
                vm[i] = 0
            elif x.kind == "ds":
                lg = {k: min(v + 1, CAP) for k, v in lg.items()}
                lg[i] = 0
            elif x.kind == "smem":
                sm = sm | {i}
            out = (vm, lg, sm)
            for s in succ[i]:
                if s >= n:
                    continue
                new, ch = merge(IN[s], out)
                if ch:
                    IN[s] = new
                    work.append(s)
        for i, x in enumerate(ins):
            if need[i] is None:
                continue
            nv, nl = need[i]
            if x.want:
                x.text = f"s_waitcnt vmcnt({nv})"
                continue
            if nl is not None and nl >= 15:
                nl = None
            if nv is not None and nv >= 63:
                nv = None
            if nv is None and nl is None:
                continue
            parts = []
            if nv is not None:
                parts.append(f"vmcnt({nv})")
            if nl is not None:
                parts.append(f"lgkmcnt({nl})")
            x.pre.append(Ins("s_waitcnt " + " ".join(parts)))
        self.flatten()

    def flatten(self):
        out = []
        for it in self.items:
            if isinstance(it, Ins) and it.pre:
                out.extend(it.pre)
                it.pre = []
            out.append(it)
        self.items = out

    def insert_nops(self):
        ins, succ, pred = self.build_cfg()
        n = len(ins)
        extra = [0] * n
        MAXD = 13
        for i in range(n):
            c = ins[i]
            if c.kind in ("nop", "wait", "misc", "end"):
                continue
            worst = 0
            stack = [(p, 0) for p in pred[i]]
            seen = {}
            while stack:
                j, d = stack.pop()
                if d >= MAXD:
                    continue
                if j in seen and seen[j] <= d:
                    continue
                seen[j] = d
                p = ins[j]
                h = hazard(p, c)
                if h > d:
                    worst = max(worst, h - d)
                nd = d + p.nopv + extra[j]
                for q in pred[j]:
                    stack.append((q, nd))
            if worst:
                extra[i] = worst
                w = worst
                while w > 0:
                    k = min(w, 16)
                    c.pre.append(Ins(f"s_nop {k-1}"))
                    w -= k
        self.flatten()

    def finish(self):
        self.insert_waits()
        self.insert_nops()

    def maxregs(self):
        mv = ms = ma = -1
        for it in self.items:
            if isinstance(it, Ins):
                for k, r in it.rd | it.wr:
                    if k == "v":
                        mv = max(mv, r)
                    elif k == "s" and r < 106:
                        ms = max(ms, r)
                    elif k == "a":
                        ma = max(ma, r)
        return mv + 1, ms + 1, ma + 1

    def text(self):
        out = [f".globl {self.name}", ".p2align 8", f".type {self.name},@function", f"{self.name}:"]
        for it in self.items:
            if isinstance(it, Label):
                out.append(f"{it.name}:")
            elif isinstance(it, Raw):
                out.append(it.text)
            else:
                out.append("    " + it.text)
        return "\n".join(out) + "\n"

    def descriptor(self, min_vgpr=0):
        nv, ns, na = self.maxregs()
        nv = max(nv, min_vgpr, 4)
        acc = (nv + 3) // 4 * 4
        tot = acc + na if na else nv
        return f""".p2align 6
.amdhsa_kernel {self.name}
  .amdhsa_next_free_vgpr {tot}
  .amdhsa_next_free_sgpr {max(ns, 16)}
  .amdhsa_accum_offset {acc}
  .amdhsa_group_segment_fixed_size 0
  .amdhsa_kernarg_size 88
  .amdhsa_user_sgpr_count 2
  .amdhsa_user_sgpr_kernarg_segment_ptr 1
  .amdhsa_system_sgpr_workgroup_id_x 1
.end_amdhsa_kernel
"""


def vr(lo, n=1):
    return f"v{lo}" if n == 1 else f"v[{lo}:{lo+n-1}]"


def sr(lo, n=1):
    return f"s{lo}" if n == 1 else f"s[{lo}:{lo+n-1}]"


def interleave(*streams):
    streams = [s for s in streams if s]
    idx = [0] * len(streams)
    out = []
    tot = sum(len(s) for s in streams)
    for _ in range(tot):
        best = min((i for i in range(len(streams)) if idx[i] < len(streams[i])),
                   key=lambda i: (idx[i] + 0.5) / len(streams[i]))
        out.append(streams[best][idx[best]])
        idx[best] += 1
    return out


def build_file(header_comment, launches, kernels):
    out = [header_comment.rstrip()]
    for (k, g, b, lds) in launches:
        out.append(f"; @launch kernel={k} grid=({g},1,1) block=({b},1,1) lds={lds}")
    out.append('.amdgcn_target "amdgcn-amd-amdhsa--gfx950"')
    out.append(".text")
    for k in kernels:
        out.append(k.text())
    out.append('.section .rodata,"a"')
    for k in kernels:
        out.append(k.descriptor(getattr(k, "min_vgpr", 0)))
    return "\n".join(out)
```

```python
import os
import struct
from asmlib import *
from layout import *

X = set(os.environ.get('K1X', '').split(','))
STAGE = 32768
NS = 4
O_W = 16384
L_IMG = NS * STAGE
L_TAG = L_IMG + 16384
L_CSW = L_TAG + 256
L_RS = L_CSW + 4096
LDS_K1 = L_RS + 1024

vLane = 1
vL16 = 2
vDX, vDW = 3, 5
vAX = 9
vAW = 13
vTag = 15
vT = 16
ACC = 32
FX = 96
FW = 108
vGR = 156
vGC = 160
vGA = 164
vK = 0

sWS, sXS, sWW, sWI, sDBG = 4, 8, 12, 16, 20
sW, sRH, sRB, sCG, sUn = 24, 25, 26, 27, 28
sKX, sKW, sKQ = 29, 30, 31
sMX, sMW = 32, 33
sKind, sIdx, sT32, sGU = 34, 35, 36, 37
sCSo = 38
sT = 40
sSpin = 61

C0 = -2.0 * 1.4426950408889634 * 0.7978845608028654
C1 = C0 * 0.044715
QS = 0.25 * 1.4426950408889634
STAMP = False
FUSED = False
sTagS = 99
WT = os.environ.get('WT', '')
BC = "op_sel_hi:[1,0]"


def f32(x):
    return "0x%08x" % struct.unpack("<I", struct.pack("<f", x))[0]


def stamp(k, i):
    if STAMP:
        if i == 0:
            k("s_memrealtime s[80:81]")
        if i == 3:
            k("s_memrealtime s[82:83]")
        k(f"s_memtime {sr(64+2*i,2)}\ns_waitcnt lgkmcnt(0)")


def stamp_store(k, n):
    if not STAMP:
        return
    k(f"s_mul_i32 s62, s2, 12\ns_add_u32 s62, s62, s{sW}\ns_lshl_b32 s62, s62, 5\ns_add_u32 s62, s62, {WS_STAMP}")
    for i in range(n):
        k(f"s_sub_u32 s63, s{64+2*i}, s64\nv_mov_b32 v{vT}, s63\nv_mov_b32 v{vT+1}, 0\nbuffer_store_dword v{vT}, v{vT+1}, {sr(sWS,4)}, s62 offen offset:{4*i}")
    for j, r in ((6, 80), (7, 82)):
        k(f"v_mov_b32 v{vT}, s{r}\nv_mov_b32 v{vT+1}, 0\nbuffer_store_dword v{vT}, v{vT+1}, {sr(sWS,4)}, s62 offen offset:{4*j}")


def mfma32(d, a, b, c):
    cs = "0" if c is None else vr(c, 16)
    return f"v_mfma_f32_32x32x16_bf16 {vr(d,16)}, {vr(a,4)}, {vr(b,4)}, {cs}"


def dma(t):
    base = (t % NS) * STAGE
    out = []
    for j in range(4):
        e = f"s_add_u32 m0, s{sMX}, {base+1024*j}\n"
        if j == 2:
            e += f"s_add_u32 s{sT}, s{sKX}, 16384\n"
        e += f"buffer_load_dwordx4 v{vDX+j%2}, {sr(sXS,4)}, s{sT if j >= 2 else sKX} offen lds"
        out.append(e)
    srd, so, va, pitch = (sWI, sKW, vDW, 3584) if t < 8 else (sWW, sKQ, vDW + 1, 3072)
    for j in range(4):
        e = (f"s_add_u32 m0, s{sMW}, {base+1024*j}\nbuffer_load_dwordx4 v{va}, {sr(srd,4)}, s{so} offen lds\n"
             f"s_add_u32 s{so}, s{so}, {pitch*(8 if j < 3 else 40)}")
        if j == 3:
            e += (f"\ns_add_u32 s{sKX}, s{sKX}, 128\ns_and_b32 s{sKX}, s{sKX}, 1023\n"
                  f"s_cselect_b32 s{sT}, 0, {512*pitch}\ns_sub_u32 s{so}, s{so}, s{sT}")
        out.append(e)
    return out


def loader(k):
    t0, t1, t2, t3 = vT, vT + 1, vT + 2, vT + 3
    k(f"""
    s_setprio 3
    s_lshl_b32 s{sMX}, s{sUn}, 12
    v_lshrrev_b32 v{t0}, 3, v{vLane}
    v_and_b32 v{t1}, 7, v{vLane}
    v_lshrrev_b32 v{t2}, 1, v{t0}
    v_xor_b32 v{t2}, v{t2}, v{t1}
    v_lshlrev_b32 v{t2}, 4, v{t2}
    v_lshl_add_u32 v{t2}, v{t0}, 10, v{t2}
    s_lshl_b32 s{sT+5}, s{sRB}, 17
    s_lshl_b32 s{sT+6}, s{sUn}, 15
    s_add_u32 s{sT+5}, s{sT+5}, s{sT+6}
    v_add_u32 v{vDX}, s{sT+5}, v{t2}
    v_xor_b32 v{t2}, 64, v{t2}
    s_add_u32 s{sT+5}, s{sT+5}, 8192
    v_add_u32 v{vDX+1}, s{sT+5}, v{t2}
    ; W: chunk = (l%8) ^ (4*((row>>1)&1)), row = l/8
    v_lshlrev_b32 v{t2}, 1, v{t0}
    v_and_b32 v{t2}, 4, v{t2}
    v_xor_b32 v{t2}, v{t2}, v{t1}
    v_lshlrev_b32 v{t2}, 4, v{t2}
    v_mul_u32_u24 v{t3}, 3584, v{t0}
    v_add_u32 v{vDW}, v{t3}, v{t2}
    v_mul_u32_u24 v{t3}, 3072, v{t0}
    v_add_u32 v{vDW+1}, v{t3}, v{t2}
    s_lshr_b32 s{sT+1}, s{sUn}, 1
    s_and_b32 s{sT+2}, s{sUn}, 1
    s_lshl_b32 s{sKW}, s{sCG}, 7
    s_cmp_eq_u32 s{sT+1}, 0
    s_cselect_b32 s{sT+3}, 1792, 0
    s_add_u32 s{sKW}, s{sKW}, s{sT+3}
    s_mul_i32 s{sT+3}, s{sT+2}, {32*3584}
    s_add_u32 s{sKW}, s{sKW}, s{sT+3}
    s_lshl_b32 s{sKQ}, s{sCG}, 8
    s_lshl_b32 s{sT+3}, s{sT+1}, 7
    s_add_u32 s{sKQ}, s{sKQ}, s{sT+3}
    s_mul_i32 s{sT+3}, s{sT+2}, {32*3072}
    s_add_u32 s{sKQ}, s{sKQ}, s{sT+3}
    s_add_u32 s{sMW}, s{sMX}, {O_W}
    s_and_b32 s{sT+3}, s2, {7 if 'rot' in X else (6 if 'rot6' in X else 0)}
    s_lshl_b32 s{sKX}, s{sT+3}, 7
    s_mul_i32 s{sT+4}, s{sT+3}, {64*3584}
    s_add_u32 s{sKW}, s{sKW}, s{sT+4}
    s_mul_i32 s{sT+4}, s{sT+3}, {64*3072}
    s_add_u32 s{sKQ}, s{sKQ}, s{sT+4}
    s_waitcnt lgkmcnt(0)
    """)
    for a in dma(0):
        k(a, tag=("st", 0))
    for a in dma(1):
        k(a, tag=("st", 1))
    stamp(k, 1)
    for t in range(16):
        if t == 5:
            k(f"s_cmp_ge_u32 s{sCG}, 12\ns_cbranch_scc1 k1_ltail")
        k.wait_tag(("st", t))
        k("s_waitcnt lgkmcnt(0)\ns_barrier")
        if 'prof' in X:
            k(f"s_memtime s[84:85]\ns_memrealtime s[86:87]\ns_waitcnt lgkmcnt(0)\nv_writelane_b32 v40, s84, {t}\nv_writelane_b32 v41, s86, {t}")
        if t == 0:
            for a in dma(2):
                k(a, tag=("st", 2))
        if t + 3 < 16 and 'nodma' not in X:
            for a in dma(t + 3):
                k(a, tag=("st", t + 3))
    if 'prof' in X:
        k(f"""
        v_writelane_b32 v40, s64, 16
        v_writelane_b32 v41, s80, 16
        s_lshl_b32 s88, s2, 9
        s_add_u32 s88, s88, {WS_STAMP + 3*262144}
        v_lshlrev_b32 v42, 3, v{vLane}
        buffer_store_dwordx2 v[40:41], v42, {sr(sWS,4)}, s88 offen
        """)
    k("s_branch k1_ldone")
    k.label("k1_ltail")
    for t in range(5, 8):
        k.wait_tag(("st", t))
        k("s_barrier")
    if FUSED:
        for t in range(8):
            k("s_barrier")
    k.label("k1_ldone")
    k(f"v_mov_b32 v{t0}, {L_TAG}\nds_read_b32 v{vTag}, v{t0}\nv_readfirstlane_b32 s{sTagS}, v{vTag}")


def reads(ks, buf):
    out = [f"ds_read_b128 {vr(FX+4*buf,4)}, v{vAX+ks}"]
    for c in range(4):
        d = FW + 16 * buf + 4 * c
        o = (c // 2) * 8192 + ks * 2048
        out.append(f"ds_read_b64_tr_b16 {vr(d,2)}, v{vAW+c%2} offset:{o}")
        out.append(f"ds_read_b64_tr_b16 {vr(d+2,2)}, v{vAW+c%2} offset:{o+512}")
    return out


def mms(buf, first):
    return [mfma32(ACC + 16 * c, FW + 16 * buf + 4 * c, FX + 4 * buf, None if first else ACC + 16 * c) for c in range(4)]


def gather_loads():
    e = ""
    if 'lrs' not in X:
        e = f"buffer_load_dwordx4 {vr(vGR,4)}, v{vGA}, {sr(sWS,4)}, 0 offen sc0 sc1\n"
    for un in range(2):
        e += f"buffer_load_dwordx2 {vr(vGC+2*un,2)}, v{vGA+1}, {sr(sWS,4)}, s{sCSo+un} offen sc0 sc1\n"
    return e


def check_tags(k, regs, Lok, tmp):
    k(f"v_xor_b32 v{tmp}, v{regs[0]}, v{vTag}")
    for r in regs[1:]:
        k(f"v_xor_b32 v{tmp+1}, v{r}, v{vTag}\nv_or_b32 v{tmp}, v{tmp}, v{tmp+1}")
    k(f"v_cmp_ne_u32 vcc, 0, v{tmp}\ns_cmp_eq_u64 vcc, 0\ns_cbranch_scc1 {Lok}")


def poll_tag(k, first_issued):
    Lr, Lok, Lc, Ln = k.newlabel("tagpoll"), k.newlabel("tagok"), k.newlabel("tagchk"), k.newlabel("tagno")
    if first_issued:
        k(f"s_branch {Lc}")
    k(f"""
    {Lr}:
    buffer_load_dword v{vTag}, v{vGA+2}, {sr(sDBG,4)}, 0 offen sc0 sc1
    {Lc}:
    v_readfirstlane_b32 s{sT}, v{vTag}
    s_cmp_eq_u32 s{sT}, 0
    s_cbranch_scc1 {Ln}
    s_sub_u32 s{sT+13}, s{sT+14}, s{sT}
    s_add_u32 s{sT+13}, s{sT+13}, 100000
    s_cmp_lt_u32 s{sT+13}, 102000
    s_cbranch_scc1 {Lok}
    s_cmp_lt_u32 s{sSpin}, 197000
    s_cbranch_scc1 {Lok}
    {Ln}:
    s_sleep 2
    s_sub_u32 s{sSpin}, s{sSpin}, 1
    s_cbranch_scc0 {Lr}
    {Lok}:
    """)


def main_loop(k):
    t0 = vT
    LA = 2
    for p in range(8):
        k("s_waitcnt lgkmcnt(0)\ns_barrier")
        if p > 0:
            step = STAGE if p % NS else -(NS - 1) * STAGE
            for r in (vAX, vAX + 1, vAX + 2, vAX + 3, vAW, vAW + 1):
                k(f"v_add_u32 v{r}, {step & 0xffffffff:#x}, v{r}")
        for ks in range(4):
            g = 4 * p + ks
            r = reads(ks, g % 3)
            m = mms((g - LA) % 3, g - LA == 0) if g >= LA else []
            seq = interleave(m, r) if ks < 3 else (m[:1] + r[:5] + m[1:2] + r[5:] + m[2:])
            for a in seq:
                k(a)
            if p == 5 and ks == 0:
                k(f"v_mov_b32 v{t0}, {L_TAG}\nds_read_b32 v{vTag}, v{t0}")
            if p == 6 and ks == 2:
                k(gather_loads())
    for g in range(32 - LA, 32):
        for a in mms(g % 3, False):
            k(a)


def row_stats(k):
    t0, t1, t2, t3 = vT, vT + 1, vT + 2, vT + 3
    S = ACC
    D = ACC + 8
    U = ACC + 40
    for i in range(4):
        k(f"v_mov_b32 v{S+i}, 0")
    if 'rprio' in X:
        k("s_setprio 2")

    def crunch(b):
        for i in range(16):
            u = U + 2 * (i % 4)
            k(f"""
            v_lshlrev_b32 v{u}, 16, v{D+16*b+i}
            v_and_b32 v{u+1}, 0xffff0000, v{D+16*b+i}
            v_add_f32 v{S}, v{S}, v{u}
            v_add_f32 v{S+1}, v{S+1}, v{u+1}
            v_fmac_f32 v{S+2}, v{u}, v{u}
            v_fmac_f32 v{S+3}, v{u+1}, v{u+1}
            """)
    for p in range(8):
        k("s_waitcnt lgkmcnt(0)\ns_barrier")
        o = (p % 2) * STAGE
        if p in (2, 6):
            for r in range(4):
                k(f"v_add_u32 v{vAX+r}, {2*STAGE}, v{vAX+r}")
        if p == 4:
            for r in range(4):
                k(f"v_subrev_u32 v{vAX+r}, {2*STAGE}, v{vAX+r}")
        for ks in range(4):
            k(f"ds_read_b128 {vr(D+16*(p%2)+4*ks,4)}, v{vAX+ks} offset:{o}")
        if 'nocr' not in X:
            crunch(p % 2)
    for r in range(4):
        k(f"v_subrev_u32 v{vAX+r}, {2*STAGE}, v{vAX+r}")
    k(f"""
    v_add_f32 v{S}, v{S}, v{S+1}
    v_add_f32 v{S+2}, v{S+2}, v{S+3}
    v_mov_b32 v{t0}, v{S}
    v_mov_b32 v{t1}, v{S+2}
    v_permlane32_swap_b32 v{S}, v{t0}
    v_permlane32_swap_b32 v{S+2}, v{t1}
    v_add_f32 v{t0}, v{t0}, v{S}
    v_add_f32 v{t1}, v{t1}, v{S+2}
    v_mul_f32 v{t0}, {f32(1.0/512)}, v{t0}
    v_mul_f32 v{t1}, {f32(1.0/512)}, v{t1}
    v_fma_f32 v{t1}, -v{t0}, v{t0}, v{t1}
    v_max_f32 v{t1}, 0, v{t1}
    v_add_f32 v{t1}, {f32(1e-5)}, v{t1}
    v_rsq_f32 v{t1}, v{t1}
    v_mul_f32 v{t0}, v{t0}, v{t1}
    ds_write_b32 v{vGA}, v{t1}
    ds_write_b32 v{vGA}, v{t0} offset:512
    """)


def epi_addr(k):
    t0, t1, t2, t3 = vT, vT + 1, vT + 2, vT + 3
    k(f"""
    s_lshl_b32 s{sT}, s{sW}, 9
    s_add_u32 s{sT}, s{sT}, {L_CSW}
    v_lshlrev_b32 v{t0}, 2, v{vLane}
    v_add_u32 v{vT+4}, s{sT}, v{t0}
    v_lshrrev_b32 v{t2}, 5, v{vLane}             ; h
    v_lshlrev_b32 v{vT+6}, 5, v{t2}
    v_add_u32 v{vT+6}, s{sT}, v{vT+6}
    v_lshlrev_b32 v{vT+5}, 3, v{vLane}
    v_mov_b32 v3, {f32(C0)}
    v_and_b32 v{t0}, 31, v{vLane}
    v_and_b32 v{t1}, 1, v{t0}
    v_bfe_u32 v{t3}, v{t0}, 1, 1
    v_lshl_or_b32 v{t1}, v{t3}, 2, v{t1}
    v_bfe_u32 v{t3}, v{t0}, 2, 1
    v_lshl_or_b32 v{t1}, v{t3}, 1, v{t1}
    v_xor_b32 v{t1}, v{t1}, v{t2}
    v_lshlrev_b32 v{t1}, 4, v{t1}
    v_lshl_add_u32 v{t1}, v{t0}, 7, v{t1}
    v_add_u32 v{vT+8}, s{sT+1}, v{t1}
    v_xor_b32 v{vT+9}, 32, v{vT+8}
    v_xor_b32 v{vT+10}, 64, v{vT+8}
    v_xor_b32 v{vT+11}, 96, v{vT+8}
    v_bfe_u32 v{t0}, v{vLane}, 2, 2
    v_and_b32 v{t1}, 1, v{t0}
    v_lshrrev_b32 v{t3}, 1, v{t0}
    v_lshl_or_b32 v{t1}, v{t3}, 2, v{t1}
    v_bfe_u32 v{t3}, v{vLane}, 4, 1
    v_lshlrev_b32 v{t3}, 1, v{t3}
    v_and_b32 v{vT+7}, 1, v{vLane}
    v_or_b32 v{t3}, v{t3}, v{vT+7}
    v_xor_b32 v{t1}, v{t1}, v{t3}
    v_lshlrev_b32 v{t1}, 4, v{t1}
    v_lshl_add_u32 v{t0}, v{t2}, 3, v{t0}
    v_lshl_add_u32 v{t1}, v{t0}, 7, v{t1}
    v_bfe_u32 v{t3}, v{vLane}, 1, 1
    v_lshl_add_u32 v{t1}, v{t3}, 3, v{t1}
    v_add_u32 v{vT+12}, s{sT+1}, v{t1}
    v_xor_b32 v{vT+13}, 32, v{vT+12}
    v_xor_b32 v{vT+14}, 64, v{vT+12}
    v_xor_b32 v{vT+15}, 96, v{vT+12}
    v_and_b32 v{t0}, 15, v{vLane}
    v_lshlrev_b32 v{t0}, 4, v{t0}
    v_lshl_add_u32 v{t0}, v{t2}, 8, v{t0}
    v_bfe_u32 v{t3}, v{vLane}, 4, 1
    v_lshl_add_u32 v{vT+7}, v{t3}, 16, v{t0}
    """)


def get_stats(k):
    t0 = vT
    tagregs = [vGC + 1, vGC + 3] + ([vGR + 1, vGR + 3] if 'lrs' not in X else [])
    Lr, Lok = k.newlabel("g1"), k.newlabel("g1ok")
    check_tags(k, tagregs, Lok, t0)
    k(f"{Lr}:\ns_sleep 2")
    k(gather_loads())
    check_tags(k, tagregs, Lok, t0)
    k(f"s_sub_u32 s{sSpin}, s{sSpin}, 1\ns_cbranch_scc0 {Lr}\n{Lok}:")
    k(f"ds_write_b32 v{vT+4}, v{vGC}\nds_write_b32 v{vT+4}, v{vGC+2} offset:256")
    if 'lrs' in X:
        k(f"ds_read_b32 v{vGR}, v{vGA}\nds_read_b32 v{vGR+2}, v{vGA} offset:512")
    k("s_waitcnt lgkmcnt(0)")


def cs_reads(un):
    out = []
    for c in range(4):
        out.append(f"ds_read_b128 {vr(FW+8*c,4)}, v{vT+6} offset:{un*256+c*64}")
        out.append(f"ds_read_b128 {vr(FW+8*c+4,4)}, v{vT+6} offset:{un*256+c*64+16}")
    return out


def pack(A):
    return [f"v_cvt_pk_bf16_f32 v{A+8*c+i}, v{A+8*c+2*i}, v{A+8*c+2*i+1}" for c in range(4) for i in range(4)]


def tr_store(k, A, lane_reg, s0, kstride):
    for c in range(4):
        k(f"ds_write_b128 v{vT+8+c}, {vr(A+8*c,4)}")
    k(f"s_add_u32 s{sT+3}, s{s0}, 131072\ns_waitcnt lgkmcnt(0)")
    for ct in range(2):
        for ks in range(2):
            d = A + 8 * ct + 4 * ks
            k(f"ds_read_b64_tr_b16 {vr(d,2)}, v{vT+12+2*ct} offset:{ks*2048}")
            k(f"ds_read_b64_tr_b16 {vr(d+2,2)}, v{vT+13+2*ct} offset:{ks*2048+512}")
    for ct in range(2):
        for ks in range(2):
            k(f"buffer_store_dwordx4 {vr(A+8*ct+4*ks,4)}, v{lane_reg}, {sr(sWS,4)}, s{(s0, sT+3)[ct]} offen offset:{ks*kstride} {WT}")


def z_epilogue(k):
    t0, t1, t2, t3 = vT, vT + 1, vT + 2, vT + 3
    k("s_barrier")
    if 'zprio' in X:
        k("s_setprio 2")
    get_stats(k)
    k(f"s_mov_b32 s{sT+10}, {f32(C1)}")
    if 'zpk' in X:
        k(f"v_mov_b32 v4, v{vGR}\nv_mov_b32 v5, v{vGR+2}\nv_mov_b32 v6, {f32(C0)}\nv_mov_b32 v7, {f32(C1)}")
    S = FX

    def unit_ops(un):
        A = ACC + 32 * un
        ops = list(cs_reads(un))
        if 'zpk' in X:
            P = range(0, 32, 2)
            ops += [f"v_pk_mul_f32 {vr(A+i,2)}, {vr(A+i,2)}, v[4:5] {BC}" for i in P]
            ops += [f"v_pk_fma_f32 {vr(A+i,2)}, {vr(FW+i,2)}, v[4:5], {vr(A+i,2)} op_sel:[0,1,0] op_sel_hi:[1,1,1] neg_lo:[1,0,0] neg_hi:[1,0,0]" for i in P]
            ops += [f"v_pk_mul_f32 {vr(FW+i,2)}, {vr(A+i,2)}, {vr(A+i,2)}" for i in P]
            ops += [f"v_pk_fma_f32 {vr(FW+i,2)}, {vr(FW+i,2)}, v[6:7], v[6:7] op_sel:[0,1,0] op_sel_hi:[1,1,0]" for i in P]
            ops += [f"v_pk_mul_f32 {vr(FW+i,2)}, {vr(FW+i,2)}, {vr(A+i,2)}" for i in P]
            ops += [f"v_exp_f32 v{FW+i}, v{FW+i}" for i in range(32)]
            ops += [f"v_pk_add_f32 {vr(FW+i,2)}, {vr(FW+i,2)}, 1.0 op_sel_hi:[1,0]" for i in P]
            ops += [f"v_rcp_f32 v{FW+i}, v{FW+i}" for i in range(32)]
            ops += [f"v_pk_mul_f32 {vr(A+i,2)}, {vr(A+i,2)}, {vr(FW+i,2)}" for i in P]
            return ops
        for i in range(32):
            ops.append(f"v_mul_f32 v{A+i}, v{A+i}, v{vGR}")
        for i in range(32):
            ops.append(f"v_fma_f32 v{A+i}, -v{vGR+2}, v{FW+i}, v{A+i}")
        for h in range(2):
            R = [A + 16 * h + i for i in range(16)]
            T = [FW + i for i in range(16)]
            ops += [f"v_mul_f32 v{t}, v{r}, v{r}" for r, t in zip(R, T)]
            ops += [f"v_fma_f32 v{t}, v{t}, s{sT+10}, v3" for r, t in zip(R, T)]
            ops += [f"v_mul_f32 v{t}, v{t}, v{r}" for r, t in zip(R, T)]
            ops += [f"v_exp_f32 v{t}, v{t}" for r, t in zip(R, T)]
            ops += [f"v_add_f32 v{t}, 1.0, v{t}" for r, t in zip(R, T)]
            ops += [f"v_rcp_f32 v{t}, v{t}" for r, t in zip(R, T)]
            ops += [f"v_mul_f32 v{r}, v{r}, v{t}" for r, t in zip(R, T)]
        return ops

    ops = unit_ops(0)
    A = ACC
    ops += [f"v_add_f32 v{S}, v{A}, v{A+1}", f"v_mul_f32 v{S+2}, v{A}, v{A}", f"v_add_f32 v{S+1}, v{A+2}, v{A+3}",
            f"v_mul_f32 v{S+3}, v{A+1}, v{A+1}", f"v_fmac_f32 v{S+2}, v{A+2}, v{A+2}", f"v_fmac_f32 v{S+3}, v{A+3}, v{A+3}"]
    for i in range(4, 32):
        ops += [f"v_add_f32 v{S+i%2}, v{S+i%2}, v{A+i}", f"v_fmac_f32 v{S+2+i%2}, v{A+i}, v{A+i}"]
    ops.append(f"""
    v_add_f32 v{S}, v{S}, v{S+1}
    v_add_f32 v{S+2}, v{S+2}, v{S+3}
    v_permlane32_swap_b32 v{S}, v{S+2}
    v_add_f32 v{S}, v{S}, v{S+2}
    v_mov_b32 v{S+1}, v{vTag}
    s_mul_i32 s{sT+4}, s{sT32}, {14*512}
    s_add_u32 s{sT+4}, s{sT+4}, {WS_S2}
    s_lshl_b32 s{sT+1}, s{sCG}, 9
    s_add_u32 s{sT+1}, s{sT+1}, s{sT+4}
    buffer_store_dwordx2 {vr(S,2)}, v{vT+5}, {sr(sWS,4)}, s{sT+1} offen sc0 sc1
    """)
    n0 = len(ops)
    ops += unit_ops(1)
    ops += pack(ACC + 32)
    G = FW

    def g2loads():
        e = ""
        for i in range(7):
            if i % 4 == 0:
                e += f"s_add_u32 s{sT}, s{sT+4}, {1024*i}\n"
            e += f"buffer_load_dwordx4 {vr(G+4*i,4)}, v{vL16}, {sr(sWS,4)}, s{sT} offen offset:{1024*(i%4)} sc0 sc1\n"
        return e
    ops.insert(len(ops) - 16, g2loads())
    e = f"""
    s_mul_i32 s{sT+1}, s{sT32}, {56*1024}
    s_lshl_b32 s{sT+2}, s{sCG}, 12
    s_add_u32 s{sT+1}, s{sT+1}, s{sT+2}
    s_add_u32 s{sT+1}, s{sT+1}, {WS_Z1}
    """
    for c in range(4):
        e += f"buffer_store_dwordx4 {vr(ACC+32+8*c,4)}, v{vL16}, {sr(sWS,4)}, s{sT+1} offen offset:{1024*c} {WT}\n"
    ops.append(e)
    cost = [2 if o.startswith(("v_exp", "v_rcp", "v_pk")) else (3 if o.startswith("ds_") else (25 if "\n" in o else 1)) for o in ops]
    HEAD = int(os.environ.get('ZHEAD', '70'))
    NB1 = int(os.environ.get('ZNB', '5'))
    tot = sum(cost) + HEAD
    acc, nxt, placed = HEAD, 1, 0
    for i, (o, c) in enumerate(zip(ops, cost)):
        if not ('noz' in X and o.startswith('v_')):
            k(o)
        if i == n0 - 1:
            stamp(k, 4)
        acc += c
        if placed < NB1 and acc >= tot * nxt / NB1 - 1e-9:
            k("s_barrier")
            placed += 1
            nxt += 1
    assert placed == NB1
    rest = 7 - NB1
    stamp(k, 5)
    Lr, Lok = k.newlabel("g2"), k.newlabel("g2ok")
    check_tags(k, [G + 2 * j + 1 for j in range(14)], Lok, t0)
    k(f"{Lr}:")
    k(g2loads())
    check_tags(k, [G + 2 * j + 1 for j in range(14)], Lok, t0)
    k(f"s_sleep 1\ns_sub_u32 s{sSpin}, s{sSpin}, 1\ns_cbranch_scc0 {Lr}\n{Lok}:")
    stamp(k, 1)
    for i in range(1, 7):
        k(f"v_add_f32 v{G}, v{G}, v{G+4*i}\nv_add_f32 v{G+2}, v{G+2}, v{G+4*i+2}")
    k(f"""
    v_mov_b32 v{t0}, v{G}
    v_mov_b32 v{t1}, v{G+2}
    v_permlane32_swap_b32 v{G}, v{t0}
    v_permlane32_swap_b32 v{G+2}, v{t1}
    v_add_f32 v{G}, v{G}, v{t0}
    v_add_f32 v{G+1}, v{G+2}, v{t1}
    s_lshl_b32 s{sT}, s{sW}, 9
    s_add_u32 s{sT}, s{sT}, {L_CSW}
    v_and_b32 v{t2}, 31, v{vLane}
    v_lshlrev_b32 v{t3}, 3, v{t2}
    v_add_u32 v{t3}, s{sT}, v{t3}
    ds_write_b64 v{t3}, {vr(G,2)}
    v_lshlrev_b32 v{t3}, 2, v{t2}
    v_add_u32 v{t3}, s{sT}, v{t3}
    s_waitcnt lgkmcnt(0)
    ds_read_b32 v{t0}, v{t3}
    ds_read_b32 v{t1}, v{t3} offset:128
    s_lshl_b32 s{sT}, s{sCG}, 18
    s_lshl_b32 s{sT+1}, s{sT32}, 11
    s_add_u32 s{sT}, s{sT}, s{sT+1}
    s_add_u32 s{sT}, s{sT}, {WS_Z2}
    v_mul_f32 v{t0}, {f32(1.0/896)}, v{t0}
    v_mul_f32 v{t1}, {f32(1.0/896)}, v{t1}
    v_fma_f32 v{t1}, -v{t0}, v{t0}, v{t1}
    v_max_f32 v{t1}, 0, v{t1}
    v_add_f32 v{t1}, {f32(1e-5)}, v{t1}
    v_rsq_f32 v{t1}, v{t1}
    v_mul_f32 v{t0}, v{t0}, v{t1}
    """)
    if rest >= 1:
        k("s_barrier")
    for i in range(32):
        k(f"v_fma_f32 v{A+i}, v{A+i}, v{t1}, -v{t0}")
    for o in pack(A):
        k(o)
    tr_store(k, A, vL16, sT, 1024)
    for i in range(rest - 1):
        k("s_barrier")


def q_epilogue(k):
    get_stats(k)
    k(f"""
    s_cmp_eq_u32 s{sKind}, 0
    s_cselect_b32 s{sT}, {f32(QS)}, 1.0
    v_mul_f32 v4, s{sT}, v{vGR}
    v_mul_f32 v5, s{sT}, v{vGR+2}
    s_lshl_b32 s{sT}, s{sCG}, 19
    s_lshl_b32 s{sT+1}, s{sT32}, 10
    s_add_u32 s{sT}, s{sT}, s{sT+1}
    s_add_u32 s{sT}, s{sT}, {WS_Q}
    """)
    for un in range(2):
        A = ACC + 32 * un
        for o in cs_reads(un):
            k(o)
        for i in range(0, 32, 2):
            k(f"v_pk_mul_f32 {vr(A+i,2)}, {vr(A+i,2)}, v[4:5] {BC}")
        for i in range(0, 32, 2):
            k(f"v_pk_fma_f32 {vr(A+i,2)}, {vr(FW+i,2)}, v[4:5], {vr(A+i,2)} op_sel:[0,1,0] op_sel_hi:[1,1,1] neg_lo:[1,0,0] neg_hi:[1,0,0]")
        for o in pack(A):
            k(o)
        Lv, Ld = k.newlabel("qv"), k.newlabel("qd")
        k(f"s_cmp_eq_u32 s{sKind}, 2\ns_cbranch_scc1 {Lv}")
        for c in range(4):
            k(f"buffer_store_dwordx4 {vr(A+8*c,4)}, v{vL16}, {sr(sWS,4)}, s{sT} offen {WT}\ns_add_u32 s{sT}, s{sT}, 65536")
        k(f"s_branch {Ld}\n{Lv}:")
        tr_store(k, A, vT + 7, sT, 512)
        k(f"s_add_u32 s{sT}, s{sT}, 262144\n{Ld}:")


def wave_allsum(k, regs, tmps):
    for sh in (8, 4, 2, 1):
        for r in regs:
            k(f"v_add_f32_dpp v{r}, v{r}, v{r} row_ror:{sh} row_mask:0xf bank_mask:0xf")
    for sw in ("v_permlane16_swap_b32", "v_permlane32_swap_b32"):
        for r, t in zip(regs, tmps):
            k(f"v_mov_b32 v{t}, v{r}")
        for r, t in zip(regs, tmps):
            k(f"{sw} v{r}, v{t}")
        for r, t in zip(regs, tmps):
            k(f"v_add_f32 v{r}, v{r}, v{t}")


def helper(k):
    t0, t1, t2, t3 = vT, vT + 1, vT + 2, vT + 3
    A = FX
    if 'lrs' not in X:
        D = ACC
        k(f"""
        s_cmp_lt_u32 s{sW}, 8
        s_cbranch_scc1 k1_hcol
        s_setprio 2
        s_lshl_b32 s{sT+6}, s2, 2
        s_add_u32 s{sT+6}, s{sT+6}, s{sW}
        s_sub_u32 s{sT+6}, s{sT+6}, 8
        s_lshl_b32 s{sT+7}, s{sT+6}, 14
        v_lshrrev_b32 v{t0}, 3, v{vLane}
        v_and_b32 v{t1}, 7, v{vLane}
        v_lshlrev_b32 v{t1}, 4, v{t1}
        v_lshl_add_u32 v{t1}, v{t0}, 10, v{t1}
        s_add_u32 s{sT+8}, s{sT+7}, 8192
        v_mov_b32 v3, 0x3f803f80
        """)
        for b in range(2):
            for i in range(8):
                k(f"buffer_load_dwordx4 {vr(D+32*b+4*i,4)}, v{t1}, {sr(sXS,4)}, s{sT+7+b} offen offset:{128*i}")
        k(f"buffer_load_dword v{vTag}, v{vGA+2}, {sr(sDBG,4)}, 0 offen sc0 sc1")
        for j in range(4):
            k(f"v_mov_b32 v{A+j}, 0")
        for b in range(2):
            for i in range(32):
                k(f"v_dot2c_f32_bf16 v{A+2*b}, v{D+32*b+i}, v3\nv_dot2c_f32_bf16 v{A+2*b+1}, v{D+32*b+i}, v{D+32*b+i}")
        for m in ("quad_perm:[1,0,3,2]", "quad_perm:[2,3,0,1]", "row_half_mirror"):
            for j in range(4):
                k(f"v_add_f32_dpp v{A+j}, v{A+j}, v{A+j} {m} row_mask:0xf bank_mask:0xf")
        k(f"""
        v_and_b32 v{t2}, 1, v{vLane}
        v_cmp_eq_u32 vcc, 1, v{t2}
        v_cndmask_b32 v{A}, v{A}, v{A+2}, vcc
        v_cndmask_b32 v{A+1}, v{A+1}, v{A+3}, vcc
        v_mul_f32 v{A}, {f32(1.0/512)}, v{A}
        v_mul_f32 v{A+1}, {f32(1.0/512)}, v{A+1}
        v_fma_f32 v{A+1}, -v{A}, v{A}, v{A+1}
        v_max_f32 v{A+1}, 0, v{A+1}
        v_add_f32 v{A+1}, {f32(1e-5)}, v{A+1}
        v_rsq_f32 v{D}, v{A+1}
        v_mul_f32 v{D+2}, v{D}, v{A}
        v_lshl_add_u32 v{t0}, v{t2}, 3, v{t0}
        v_lshlrev_b32 v{t0}, 4, v{t0}
        """)
        poll_tag(k, True)
        k(f"""
        v_mov_b32 v{D+1}, v{vTag}
        v_mov_b32 v{D+3}, v{vTag}
        s_lshl_b32 s{sT+7}, s{sT+6}, 8
        s_add_u32 s{sT+7}, s{sT+7}, {WS_RS}
        s_mov_b32 exec_lo, 0x03030303
        s_mov_b32 exec_hi, 0x03030303
        buffer_store_dwordx4 {vr(D,4)}, v{t0}, {sr(sWS,4)}, s{sT+7} offen sc0 sc1
        s_mov_b64 exec, -1
        s_setprio 0
        k1_hcol:
        """)
    k(f"""
    s_cmp_ge_u32 s2, 28
    s_cbranch_scc1 k1_hpre
    s_add_u32 s{sGU}, s2, 24
    s_min_u32 s{sT}, s2, 23
    s_lshl_b32 s{sT+1}, s2, 7
    s_lshl_b32 s{sT+2}, s{sT}, 7
    s_lshl_b32 s{sT+4}, s{sW}, 6
    s_sub_u32 s{sT+5}, s{sW}, 8
    s_lshl_b32 s{sT+5}, s{sT+5}, 7
    s_cmp_lt_u32 s{sW}, 8
    s_cselect_b32 s{sGU}, s{sGU}, s{sT}
    s_cselect_b32 s{sT+1}, s{sT+1}, s{sT+2}
    s_cselect_b32 s{sT+4}, s{sT+4}, s{sT+5}
    s_cselect_b32 s{sT+3}, 512, 0
    s_cselect_b32 s{sWW}, s{sWI}, s{sWW}
    s_cselect_b32 s{sWW+1}, s{sWI+1}, s{sWW+1}
    s_cselect_b32 s{sWW+2}, s{sWI+2}, s{sWW+2}
    s_add_u32 s{sT+3}, s{sT+3}, 3072             ; pitch
    v_lshrrev_b32 v{t0}, 3, v{vLane}
    v_add_u32 v{t0}, s{sT+4}, v{t0}
    v_mul_lo_u32 v{t0}, v{t0}, s{sT+3}
    v_and_b32 v{t1}, 7, v{vLane}
    v_lshl_add_u32 v{t0}, v{t1}, 4, v{t0}
    s_lshl_b32 s{sT+3}, s{sT+3}, 3
    """)

    def loads(b):
        for i in range(8):
            k(f"buffer_load_dwordx4 {vr(ACC+32*b+4*i,4)}, v{t0}, {sr(sWW,4)}, s{sT+1} offen")
            k(f"s_add_u32 s{sT+1}, s{sT+1}, s{sT+3}")

    def accum(b):
        for i in range(8):
            for r in range(4):
                src = ACC + 32 * b + 4 * i + r
                if i == 0 and b == 0:
                    k(f"v_lshlrev_b32 v{A+2*r}, 16, v{src}\nv_and_b32 v{A+2*r+1}, 0xffff0000, v{src}")
                else:
                    k(f"v_lshlrev_b32 v{t2}, 16, v{src}\nv_and_b32 v{t3}, 0xffff0000, v{src}\n"
                      f"v_pk_add_f32 {vr(A+2*r,2)}, {vr(A+2*r,2)}, {vr(t2,2)}")

    def reduce_write():
        regs = [A + i for i in range(8)]
        tm = [A + 8 + i for i in range(8)]
        for r in regs:
            k(f"v_add_f32_dpp v{r}, v{r}, v{r} row_ror:8 row_mask:0xf bank_mask:0xf")
        for sw in ("v_permlane16_swap_b32", "v_permlane32_swap_b32"):
            for r, t in zip(regs, tm):
                k(f"v_mov_b32 v{t}, v{r}")
            for r, t in zip(regs, tm):
                k(f"{sw} v{r}, v{t}")
            for r, t in zip(regs, tm):
                k(f"v_add_f32 v{r}, v{r}, v{t}")
        k(f"""
        s_lshl_b32 s{sT}, s{sW}, 8
        v_lshlrev_b32 v{t0}, 5, v{t1}
        v_add_u32 v{t0}, s{sT}, v{t0}
        ds_write_b128 v{t0}, {vr(A,4)}
        ds_write_b128 v{t0}, {vr(A+4,4)} offset:16
        s_waitcnt lgkmcnt(0)
        """)

    def publish(n):
        k(f"s_lshl_b32 s{sT}, s{sW}, 8\nv_lshlrev_b32 v{t0}, 2, v{vLane}\nv_add_u32 v{t0}, s{sT}, v{t0}")
        for i in range(n):
            k(f"ds_read_b32 v{A+i}, v{t0} offset:{256*i}")
        poll_tag(k, True)
        for i in range(1, n):
            k(f"v_add_f32 v{A}, v{A}, v{A+i}")
        k(f"""
        s_lshl_b32 s{sT}, s{sGU}, 9
        s_add_u32 s{sT}, s{sT}, {WS_CS}
        v_lshlrev_b32 v{t0}, 3, v{vLane}
        v_mov_b32 v{A+1}, v{vTag}
        buffer_store_dwordx2 {vr(A,2)}, v{t0}, {sr(sWS,4)}, s{sT} offen sc0 sc1
        """)
    loads(0)
    k(f"s_cmp_ge_u32 s{sW}, 8\ns_cbranch_scc1 k1_hq")
    k(f"s_setprio 2\nbuffer_load_dword v{vT+8}, v{vGA+2}, {sr(sDBG,4)}, 0 offen sc0 sc1")
    accum(0)
    reduce_write()
    k(f"s_barrier\ns_cmp_lg_u32 s{sW}, 0\ns_cbranch_scc1 k1_hz\nv_cmp_eq_u32 vcc, 0, v{vTag}\nv_cndmask_b32 v{vTag}, v{vTag}, v{vT+8}, vcc")
    publish(8)
    k.label("k1_hz")
    if FUSED:
        k("s_barrier")
    k("s_branch k1_hpre")
    k.label("k1_hq")
    loads(1)
    k("s_barrier")
    accum(0)
    accum(1)
    reduce_write()
    k(f"s_barrier\ns_cmp_lg_u32 s{sW}, 8\ns_cbranch_scc1 k1_hpre")
    publish(4)
    k.label("k1_hpre")
    if 'hwsp' in X:
        k(f"""
        s_load_dwordx2 {sr(sWI,2)}, s[0:1], {KA_WSP}
        s_mov_b32 s{sWI+2}, {2048*4096}
        s_lshr_b32 s{sT}, s2, 3
        s_mul_i32 s{sT}, s{sT}, 12
        s_add_u32 s{sT}, s{sT}, s{sW}
        s_min_u32 s{sT}, s{sT}, 42
        s_mul_i32 s{sT}, s{sT}, {6*8192}
        s_and_b32 s{sT+1}, s2, 3
        s_lshl_b32 s{sT+1}, s{sT+1}, 21
        s_add_u32 s{sT}, s{sT}, s{sT+1}
        v_lshlrev_b32 v{t0}, 7, v{vLane}
        s_sleep {os.environ.get('WSPD', '0')}
        s_waitcnt lgkmcnt(0)
        """)
        for i in range(6):
            k(f"buffer_load_dword v{ACC+i}, v{t0}, {sr(sWI,4)}, s{sT} offen\ns_add_u32 s{sT}, s{sT}, 8192")
    if FUSED:
        k(f"s_cmp_lg_u32 s{sW}, 8\ns_cbranch_scc1 k1_fin")
        poll_tag(k, True)
        k(f"s_mov_b32 s{sTagS}, s{sT}")


def gen_k1(k=None):
    if k is None:
        k = Kernel("k1_kernel")
    t0, t1, t2, t3 = vT, vT + 1, vT + 2, vT + 3
    stamp(k, 0)
    if STAMP:
        for i in (1, 2, 4, 5):
            k(f"s_mov_b64 {sr(64+2*i,2)}, s[64:65]")
    k(f"""
    s_cmp_ge_u32 s2, 256
    s_cbranch_scc1 {'fz_end' if FUSED else 'k1_end'}
    s_load_dwordx2 {sr(sXS,2)}, s[0:1], {KA_X}
    s_load_dwordx2 {sr(sWW,2)}, s[0:1], {KA_WQKV}
    s_load_dwordx2 {sr(sWI,2)}, s[0:1], {KA_WIN}
    s_load_dwordx2 {sr(sWS,2)}, s[0:1], {KA_WS}
    s_load_dwordx2 {sr(sDBG,2)}, s[0:1], {KA_DBG}
    s_memrealtime {sr(sT+14,2)}
    v_lshrrev_b32 v{t0}, 6, v0
    v_and_b32 v{vLane}, 63, v0
    v_readfirstlane_b32 s{sW}, v{t0}
    v_lshlrev_b32 v{vL16}, 4, v{vLane}
    s_mov_b32 s{sWS+2}, {WS_SIZE}
    s_mov_b32 s{sWS+3}, 0x00020000
    s_mov_b32 s{sXS+2}, {2048*1024}
    s_mov_b32 s{sXS+3}, 0x00020000
    s_mov_b32 s{sWW+2}, {512*3072}
    s_mov_b32 s{sWW+3}, 0x00020000
    s_mov_b32 s{sWI+2}, {512*3584}
    s_mov_b32 s{sWI+3}, 0x00020000
    s_mov_b32 s{sDBG+2}, 256
    s_mov_b32 s{sDBG+3}, 0x00020000
    s_mov_b32 s{sSpin}, 200000
    s_mov_b32 s{sTagS}, 0
    s_mov_b32 s98, 255
    s_and_b32 s{sT}, s2, 31
    s_lshl_b32 s{sT}, s{sT}, 2
    s_add_u32 s{sT}, s{sT}, 128
    v_mov_b32 v{vGA+2}, s{sT}
    s_cmp_lt_u32 s2, 32
    s_cbranch_scc1 k1_helper
    ; xcd = wg&7, j = (wg>>3) - 4 (0..27): rb = 4(xcd/2) + j/7, cg = 7(xcd%2) + j%7
    s_and_b32 s{sT}, s2, 7
    s_lshr_b32 s{sT+1}, s2, 3
    s_sub_u32 s{sT+1}, s{sT+1}, 4
    s_mul_i32 s{sT+5}, s{sT+1}, 37
    s_lshr_b32 s{sT+5}, s{sT+5}, 8
    s_mul_i32 s{sT+6}, s{sT+5}, 7
    s_sub_u32 s{sCG}, s{sT+1}, s{sT+6}
    s_and_b32 s{sT+2}, s2, 1
    s_mul_i32 s{sT+6}, s{sT+2}, 7
    s_add_u32 s{sCG}, s{sCG}, s{sT+6}
    s_lshr_b32 s{sRB}, s{sT}, 1
    s_lshl_b32 s{sRB}, s{sRB}, 2
    s_add_u32 s{sRB}, s{sRB}, s{sT+5}
    s_lshl_b32 s98, s{sRB}, 4
    s_add_u32 s98, s98, s{sCG}
    s_lshr_b32 s{sRH}, s{sW}, 2
    s_and_b32 s{sUn}, s{sW}, 3
    s_cmp_ge_u32 s{sW}, 8
    s_cbranch_scc1 k1_loader
    s_lshr_b32 s{sKind}, s{sCG}, 2
    s_cmp_eq_u32 s{sRH}, 0
    s_cselect_b32 s{sKind}, 4, s{sKind}
    s_add_u32 s{sT}, s{sCG}, 38
    s_add_u32 s{sT+1}, s{sCG}, 24
    s_lshl_b32 s{sT+2}, s{sCG}, 1
    s_add_u32 s{sT+3}, s{sT+2}, 1
    s_cmp_eq_u32 s{sRH}, 0
    s_cselect_b32 s{sT}, s{sT}, s{sT+2}
    s_cselect_b32 s{sT+1}, s{sT+1}, s{sT+3}
    s_lshl_b32 s{sCSo}, s{sT}, 9
    s_add_u32 s{sCSo}, s{sCSo}, {WS_CS}
    s_lshl_b32 s{sCSo+1}, s{sT+1}, 9
    s_add_u32 s{sCSo+1}, s{sCSo+1}, {WS_CS}
    s_lshl_b32 s{sT32}, s{sRB}, 2
    s_add_u32 s{sT32}, s{sT32}, s{sUn}
    v_and_b32 v{t0}, 31, v{vLane}
    v_and_b32 v{t1}, 0x13, v{t0}
    v_and_b32 v{t2}, 4, v{t0}
    v_lshl_or_b32 v{t1}, v{t2}, 1, v{t1}
    v_and_b32 v{t2}, 8, v{t0}
    v_lshrrev_b32 v{t2}, 1, v{t2}
    v_or_b32 v{t1}, v{t1}, v{t2}
    s_cmp_eq_u32 s{sKind}, 1
    s_cselect_b64 vcc, -1, 0
    v_cndmask_b32 v{t0}, v{t0}, v{t1}, vcc       ; tok
    v_lshrrev_b32 v{t1}, 5, v{vLane}             ; h
    v_bfe_u32 v{t2}, v{t0}, 1, 3
    v_xor_b32 v{t2}, v{t2}, v{t1}
    v_lshlrev_b32 v{t2}, 4, v{t2}
    v_lshl_add_u32 v{t2}, v{t0}, 7, v{t2}
    s_lshl_b32 s{sT}, s{sUn}, 12
    v_add_u32 v{vAX}, s{sT}, v{t2}
    v_xor_b32 v{vAX+1}, 32, v{vAX}
    v_xor_b32 v{vAX+2}, 64, v{vAX}
    v_xor_b32 v{vAX+3}, 96, v{vAX}
    s_lshl_b32 s{sT}, s{sUn if 'lrs' in X else sT32}, {7 if 'lrs' in X else 9}
    s_add_u32 s{sT}, s{sT}, {L_RS if 'lrs' in X else WS_RS}
    v_lshlrev_b32 v{t0}, {2 if 'lrs' in X else 4}, v{t0}
    v_add_u32 v{vGA}, s{sT}, v{t0}
    v_lshlrev_b32 v{vGA+1}, 3, v{vLane}
    v_bfe_u32 v{t0}, v{vLane}, 2, 2
    v_lshl_add_u32 v{t1}, v{t1}, 3, v{t0}
    v_bfe_u32 v{t2}, v{vLane}, 4, 1
    v_lshlrev_b32 v{t2}, 1, v{t2}
    v_and_b32 v{t3}, 1, v{vLane}
    v_or_b32 v{t2}, v{t2}, v{t3}
    v_lshlrev_b32 v{t0}, 1, v{t0}
    v_and_b32 v{t0}, 4, v{t0}
    v_xor_b32 v{t2}, v{t2}, v{t0}
    v_lshlrev_b32 v{t2}, 4, v{t2}
    v_lshl_add_u32 v{t2}, v{t1}, 7, v{t2}
    v_bfe_u32 v{t3}, v{vLane}, 1, 1
    v_lshl_add_u32 v{t2}, v{t3}, 3, v{t2}
    v_add_u32 v{vAW}, {O_W}, v{t2}
    v_xor_b32 v{vAW+1}, 64, v{vAW}
    s_lshl_b32 s{sT+1}, s{sUn}, 12
    s_cmp_eq_u32 s{sRH}, 0
    s_cselect_b32 s{sT+2}, {L_IMG}, 0
    s_add_u32 s{sT+1}, s{sT+1}, s{sT+2}
    """)
    epi_addr(k)
    k(f"""
    s_waitcnt lgkmcnt(0)
    s_cmp_eq_u32 s{sRH}, 0
    s_cbranch_scc1 k1_main
    """)
    if 'lrs' in X:
        row_stats(k)
    else:
        for i in range(8):
            k("s_waitcnt lgkmcnt(0)\ns_barrier")
            if i == 2:
                k(f"buffer_load_dword v{vTag}, v{vGA+2}, {sr(sDBG,4)}, 0 offen sc0 sc1")
            W0 = int(os.environ.get('WSP0', '4'))
            if 'qwsp' in X and i == W0:
                k(f"""
                s_load_dwordx2 {sr(sWI,2)}, s[0:1], {KA_WSP}
                s_mov_b32 s{sWI+2}, {2048*4096}
                s_lshr_b32 s{sT+8}, s2, 3
                s_sub_u32 s{sT+8}, s{sT+8}, 4
                s_lshl_b32 s{sT+8}, s{sT+8}, 2
                s_add_u32 s{sT+8}, s{sT+8}, s{sUn}
                s_min_u32 s{sT+8}, s{sT+8}, 85
                s_mul_i32 s{sT+8}, s{sT+8}, {3*8192}
                s_and_b32 s{sT+9}, s2, 3
                s_lshl_b32 s{sT+9}, s{sT+9}, 21
                s_add_u32 s{sT+8}, s{sT+8}, s{sT+9}
                v_lshlrev_b32 v6, 7, v{vLane}
                s_waitcnt lgkmcnt(0)
                """)
            if 'qwsp' in X and W0 <= i < W0 + 3:
                k(f"buffer_load_dword v{vGR+i-W0}, v6, {sr(sWI,4)}, s{sT+8} offen\ns_add_u32 s{sT+8}, s{sT+8}, 8192")
            if i == 3:
                L = k.newlabel("notag")
                k(f"s_cmp_lg_u32 s{sW}, 4\ns_cbranch_scc1 {L}")
                poll_tag(k, True)
                k(f"v_mov_b32 v{t0}, {L_TAG}\nds_write_b32 v{t0}, v{vTag}\n{L}:")
    k(f"s_cmp_ge_u32 s{sCG}, 12\ns_cbranch_scc1 k1_fin0\ns_setprio {0 if 'zprio' in X else 2}")
    k.label("k1_main")
    main_loop(k)
    stamp(k, 2)
    k(f"s_cmp_eq_u32 s{sRH}, 0\ns_cbranch_scc0 k1_q")
    z_epilogue(k)
    k("s_branch k1_fin")
    k.label("k1_q")
    q_epilogue(k)
    k("s_branch k1_fin")
    k.label("k1_loader")
    loader(k)
    stamp(k, 2)
    k("s_branch k1_fin")
    k.label("k1_helper")
    k(f"""
    s_waitcnt lgkmcnt(0)
    v_mov_b32 v{vTag}, 0
    s_or_b32 s{sT+4}, s2, s{sW}
    s_cmp_lg_u32 s{sT+4}, 0
    s_cbranch_scc1 k1_nonce_done
    s_or_b32 s{sT+14}, s{sT+14}, 1
    v_mov_b32 v{vTag}, s{sT+14}
    v_lshlrev_b32 v{t3}, 2, v{vLane}
    buffer_store_dword v{vTag}, v{t3}, {sr(sDBG,4)}, 0 offen offset:128 sc0 sc1
    k1_nonce_done:
    """)
    if 'sweep' in X:
        k(f"""
        s_mul_i32 s{sT}, s2, 12
        s_add_u32 s{sT}, s{sT}, s{sW}
        s_lshl_b32 s{sT+1}, s{sT}, 13
        v_lshlrev_b32 v{t0}, 7, v{vLane}
        s_sub_u32 s{sT+2}, {383*8192}, s{sT+1}
        buffer_load_dword v{vT+9}, v{t0}, {sr(sXS,4)}, s{sT+2} offen
        """)
    helper(k)
    k("s_branch k1_fin")
    k.label("k1_fin0")
    k("s_waitcnt lgkmcnt(0)\ns_barrier")
    if FUSED:
        for t in range(7):
            k("s_barrier")
    k.label("k1_fin")
    if STAMP:
        k("s_waitcnt vmcnt(0)")
    stamp(k, 3)
    stamp_store(k, 6)
    if FUSED:
        return k
    k("""
    k1_end:
    s_endpgm
    """)
    k.finish()
    return k


if __name__ == "__main__":
    import sys
    STAMP = "stamp" in sys.argv
    k = gen_k1()
    print(build_file("; test", [("k1_kernel", 256, 768, LDS_K1)], [k]))
```

```python
import os
from asmlib import *
from layout import *

X = set(os.environ.get('K2X', '').split(','))
NS = 4
STAGE = 30720
O_Z, O_K, O_V = 16384, 24576, 26624
LDS_K2 = NS * STAGE

vLane = 1
vAL = 2
vT = 4
vQ, vK0, vK1, vV = 12, 16, 20, 24
vS0, vS1, vP, vO = 40, 56, 72, 80
vC = 96
vDA, vDZ, vDK, vDV = 12, 16, 17, 18
vAB = 20
vG = 28
vGA = 60
vGB = 92
vZ1 = 108
vBias = 124
sWS, sWSP, sBSP = 4, 8, 12
sW, sHead, sQT, sTB, sFB, sIdx = 16, 17, 18, 19, 20, 21
sOA, sOZ, sOK, sOV, sCnt = 22, 23, 24, 25, 26
sMA, sMZ, sMK, sMV = 27, 28, 29, 30
sVM, sLo = 32, 34
sT = 36
sPA, sPB, sPX, sPo = 68, 72, 76, 84

STAMP = False
FUSED = False
import gbar
import k3f
P3F = False
PV16 = 'pv16' in X
WT = os.environ.get('WT', '')


def stamp(k, i):
    if STAMP:
        if i == 0:
            k("s_memrealtime s[80:81]")
        if i == 3:
            k("s_memrealtime s[82:83]")
        k(f"s_memtime {sr(60+2*i,2)}\ns_waitcnt lgkmcnt(0)")


def stamp_store(k, n):
    if not STAMP:
        return
    k(f"s_mul_i32 s58, s2, 12\ns_add_u32 s58, s58, s{sW}\ns_lshl_b32 s58, s58, 5\ns_add_u32 s58, s58, {WS_STAMP + 1*262144}")
    for i in range(n):
        k(f"s_sub_u32 s59, s{60+2*i}, s60\nv_mov_b32 v{vT}, s59\nv_mov_b32 v{vT+1}, 0\nbuffer_store_dword v{vT}, v{vT+1}, {sr(sWS,4)}, s58 offen offset:{4*i}")
    for j, r in ((6, 80), (7, 82)):
        k(f"v_mov_b32 v{vT}, s{r}\nv_mov_b32 v{vT+1}, 0\nbuffer_store_dword v{vT}, v{vT+1}, {sr(sWS,4)}, s58 offen offset:{4*j}")


def mfma32(d, a, b, c):
    cs = "0" if c is None else vr(c, 16)
    return f"v_mfma_f32_32x32x16_bf16 {vr(d,16)}, {vr(a,4)}, {vr(b,4)}, {cs}"


def so(slot):
    return slot // 2, (slot % 2) * STAGE


def rd_k(slot, T):
    s, o = so(slot)
    return f"ds_read_b128 {vr(vK0+4*T,4)}, v{vAL+s} offset:{o+O_K+(1-T)*1024}"


def rd_v(slot, T, u):
    s, o = so(slot)
    return f"ds_read_b128 {vr(vV+8*T+4*u,4)}, v{vAL+s} offset:{o+O_V+T*2048+u*1024}"


def phase(k, S, Snext, Knext, Vprev1, Vcur0, extras):
    E = lambda i: f"v_exp_f32 v{S+i}, v{S+i}"
    C = lambda i: f"v_cvt_pk_bf16_f32 v{vP+i}, v{S+2*i}, v{S+2*i+1}"
    PVp = mfma32(vO, Vprev1, vP + 4, vO) if Vprev1 is not None else None
    PVc = mfma32(vO, Vcur0, vP, vO)
    SM = mfma32(Snext, Knext, vQ, None) if Knext is not None else None
    seq = [E(0), E(1), PVp, E(2), E(3), C(0), E(4), E(5), C(1), E(6), SM, E(7), C(2), E(8), C(3), E(9), E(10), E(11), C(4), PVc,
           E(12), E(13), C(5), E(14), E(15), C(6), C(7)]
    for pos, ins in enumerate(seq):
        if ins is not None:
            if 'noattn' in X:
                ins = None
            elif 'nopv' in X and ins in (PVp, PVc):
                ins = None
            elif 'noexp' in X and 'v_exp' in ins:
                ins = None
            elif 'nocvt' in X and 'v_cvt' in ins:
                ins = None
            elif 'mulexp' in X and 'v_exp' in ins:
                r = ins.split()[-1]
                ins = f"v_mul_f32 {r}, {r}, {r}"
            elif 'nosm' in X and ins is SM:
                ins = None
        if ins is not None:
            k(ins)
        for a in extras.get(pos, []):
            if 'noard' in X and a.startswith('ds_read'):
                continue
            if 'nosp' in X and a.startswith('s_setprio'):
                continue
            k(a)


def attn_iter(k, slot, first, last_slot):
    k("s_waitcnt lgkmcnt(0)")
    k("s_barrier")
    ex1 = {0: [rd_k(slot, 1)], 4: [rd_v(slot, 0, 0)], 7: [rd_v(slot, 0, 1)]}
    if first:
        for a in (rd_k(slot, 1), rd_v(slot, 0, 0), rd_v(slot, 0, 1)):
            k(a)
    else:
        if 'nosp' not in X:
            k("s_setprio 3")
        ex1[13] = ["s_setprio 2"]
        ex1[26] = ["s_setprio 1"]
        phase(k, vS1, vS0, vK0, vV + 4, vV + 8, ex1)
    ex2 = {0: [rd_k(slot, 0)], 4: [rd_v(slot, 1, 0)], 7: [rd_v(slot, 1, 1)], 13: ["s_setprio 0"]}
    if last_slot:
        ex2[14] = [f"s_sub_u32 s{sCnt}, s{sCnt}, 1\ns_cmp_lg_u32 s{sCnt}, 0"]
    phase(k, vS0, vS1, vK1, None if first else vV + 12, vV + 0, ex2)


def attn_loop(k):
    L = k.newlabel("aloop")
    k(f"s_mov_b32 s{sCnt}, 7")
    stamp(k, 1)
    k(mfma32(vS0, vK0, vQ, None))
    for slot in range(4):
        attn_iter(k, slot, slot == 0, False)
    k(".p2align 6")
    k.label(L)
    for slot in range(4):
        attn_iter(k, slot, False, slot == 3)
    k(f"s_cbranch_scc1 {L}")
    k("s_waitcnt lgkmcnt(0)\ns_barrier")
    stamp(k, 2)
    phase(k, vS1, None, None, vV + 4, vV + 8, {})
    k(mfma32(vO, vV + 12, vP + 4, vO))


vPB = 32
vOne = 10


def rd_v16(slot, T):
    s, o = so(slot)
    return f"ds_read_b128 {vr(vV+4*T,4)}, v{vAL+s} offset:{o+O_V+T*1024}"


def phase16(k, S, Snext, Knext, P, Pp, Vp, extras, cur=True):
    E = lambda i: f"v_exp_f32 v{S+i}, v{S+i}" if cur else None
    C = lambda i: f"v_cvt_pk_bf16_f32 v{P+i}, v{S+2*i}, v{S+2*i+1}" if cur else None
    W = lambda i: f"v_permlane16_swap_b32 v{P+i}, v{P+4+i}" if cur else None
    hp = Pp is not None
    Wp = f"v_permlane16_swap_b32 v{Pp+3}, v{Pp+7}" if hp else None
    PV = lambda j: f"v_mfma_f32_16x16x32_bf16 {vr(vO+4*j,4)}, {vr(Vp,4)}, {vr(Pp+4*j,4)}, {vr(vO+4*j,4)}" if hp else None
    L = lambda q: f"v_mfma_f32_4x4x4_16b_bf16 {vr(vO+8+4*(q//2),4)}, {vr(vOne,2)}, {vr(Pp+2*q,2)}, {vr(vO+8+4*(q//2),4)}" if hp else None
    SM = mfma32(Snext, Knext, vQ, None) if Knext is not None else None
    seq = [E(0), E(1), Wp, E(8), L(0), E(9), C(0), PV(0), C(4), E(2), E(3), L(2), W(0), E(10), E(11), PV(1), C(1), C(5), E(4), L(1), E(5), W(1),
           SM, E(12), E(13), C(2), L(3), C(6), E(6), E(7), W(2), E(14), E(15), C(3), C(7)]
    for pos, ins in enumerate(seq):
        if ins is not None:
            k(ins)
        for a in extras.get(pos, []):
            k(a)


def attn_iter16(k, slot, first, last_slot):
    k("s_waitcnt lgkmcnt(0)")
    k("s_barrier")
    if first:
        k(rd_k(slot, 1))
        k(rd_v16(slot, 0))
    else:
        k("s_setprio 3")
        ex1 = {0: [rd_k(slot, 1)], 16: [rd_v16(slot, 0)], 17: ["s_setprio 2"], 34: ["s_setprio 1"]}
        phase16(k, vS1, vS0, vK0, vPB, vP, vV, ex1)
    ex2 = {0: [rd_k(slot, 0)], 16: [rd_v16(slot, 1)], 17: ["s_setprio 0"]}
    if last_slot:
        ex2[18] = [f"s_sub_u32 s{sCnt}, s{sCnt}, 1\ns_cmp_lg_u32 s{sCnt}, 0"]
    phase16(k, vS0, vS1, vK1, vP, None if first else vPB, vV + 4, ex2)


def attn_loop16(k):
    L = k.newlabel("aloop")
    k(f"s_mov_b32 s{sCnt}, 7")
    stamp(k, 1)
    k(mfma32(vS0, vK0, vQ, None))
    for slot in range(4):
        attn_iter16(k, slot, slot == 0, False)
    k(".p2align 6")
    k.label(L)
    for slot in range(4):
        attn_iter16(k, slot, False, slot == 3)
    k(f"s_cbranch_scc1 {L}")
    k("s_waitcnt lgkmcnt(0)\ns_barrier")
    stamp(k, 2)
    phase16(k, vS1, None, None, vPB, vP, vV, {})
    phase16(k, None, None, None, None, vPB, vV + 4, {}, cur=False)


def dma_group(slot, gemm):
    base = slot * STAGE
    out = []
    vm = "s_nop 0" if PV16 else f"s_mov_b64 exec, {sr(sVM,2)}"
    if gemm:
        out.append(f"s_add_u32 m0, s{sMK}, {base}\ns_mov_b64 exec, {sr(sLo,2)}\nbuffer_load_dwordx4 v{vDK}, {sr(sWS,4)}, s{sOK} offen lds\n"
                   f"s_add_u32 m0, s{sMV}, {base}\n{vm}\nbuffer_load_dwordx4 v{vDV}, {sr(sWS,4)}, s{sOK} offen lds\n"
                   f"s_mov_b64 exec, -1\ns_add_u32 s{sOK}, s{sOK}, 2048")
    else:
        out.append(f"s_add_u32 m0, s{sMK}, {base}\ns_mov_b64 exec, {sr(sLo,2)}\nbuffer_load_dwordx4 v{vDK}, {sr(sWS,4)}, s{sOK} offen lds\n"
                   f"buffer_load_dwordx4 v{vDK}, {sr(sWS,4)}, s{sOK} offen offset:1024 lds\n"
                   f"s_add_u32 m0, s{sMV}, {base}\n{vm}\nbuffer_load_dwordx4 v{vDV}, {sr(sWS,4)}, s{sOK} offen lds\n"
                   f"s_add_u32 m0, s{sMV}, {base+(0 if PV16 else 1024)}\ns_nop 0\nbuffer_load_dwordx4 v{vDV}, {sr(sWS,4)}, s{sOK} offen offset:1024 lds\n"
                   f"s_mov_b64 exec, -1\ns_add_u32 s{sOK}, s{sOK}, 2048")
    if gemm:
        for p in range(4):
            out.append(f"s_add_u32 m0, s{sMA}, {base+1024*p}\ns_nop 0\nbuffer_load_dwordx4 v{vDA+p}, {sr(sWSP,4)}, s{sOA} offen lds"
                       + (f"\ns_add_u32 s{sOA}, s{sOA}, 128" if p == 3 else ""))
        out.append(f"s_add_u32 m0, s{sMZ}, {base}\ns_nop 0\nbuffer_load_dwordx4 v{vDZ}, {sr(sWS,4)}, s{sOZ} offen lds")
        out.append(f"s_add_u32 m0, s{sMZ}, {base}\ns_nop 0\nbuffer_load_dwordx4 v{vDZ}, {sr(sWS,4)}, s{sOZ} offen offset:1024 lds\ns_add_u32 s{sOZ}, s{sOZ}, 4096")
    return out


def rd_g(slot, ks):
    s, o = so(slot)
    return [f"ds_read_b128 {vr(vGB+4*ks,4)}, v{vAB+4*s+ks} offset:{o}",
            f"ds_read_b128 {vr(vGA+8*ks,4)}, v{vAL+s} offset:{o+O_Z+ks*1024}",
            f"ds_read_b128 {vr(vGA+8*ks+4,4)}, v{vAL+s} offset:{o+O_Z+4096+ks*1024}"]


def mm_g(ks):
    if 'g16' in X:
        m = lambda d, a, b: f"v_mfma_f32_16x16x32_bf16 {vr(d,4)}, {vr(a,4)}, {vr(b,4)}, {vr(d,4)}"
        o = 8 * (ks % 2)
        return [m(vG + o, vGA + 8 * ks, vGB + 4 * ks) + "\n" + m(vG + o + 4, vGA + 8 * ks + 4, vGB + 4 * (ks ^ 1)),
                m(vG + 16 + o, vGA + 8 * ks + 4, vGB + 4 * ks) + "\n" + m(vG + 16 + o + 4, vGA + 8 * ks, vGB + 4 * (ks ^ 1))]
    return [mfma32(vG, vGA + 8 * ks, vGB + 4 * ks, vG), mfma32(vG + 16, vGA + 8 * ks + 4, vGB + 4 * ks, vG + 16)]


def gemm_loop(k, gemm):
    nd = 8 if gemm else 4
    k(f"s_mov_b32 s{sCnt}, {7 if P3F else 8}")
    stamp(k, 1)
    for last in ((False, True) if P3F else (False,)):
        L = k.newlabel("gloop")
        if not last:
            k(".p2align 6")
            k.label(L)
        if 'prof' in X:
            k(f"""
            s_memtime s[84:85]
            s_memrealtime s[86:87]
            s_waitcnt lgkmcnt(0)
            v_mov_b32 v{vT}, s84
            v_mov_b32 v{vT+1}, s86
            s_lshl_b32 s88, s2, 8
            s_lshl_b32 s89, s{sCnt}, 3
            s_add_u32 s88, s88, s89
            s_add_u32 s88, s88, {WS_STAMP + 3*262144}
            v_mov_b32 v{vT+2}, 0
            buffer_store_dwordx2 {vr(vT,2)}, v{vT+2}, {sr(sWS,4)}, s88 offen
            """)
        for jj in range(4):
            slot = (jj + 1) % 4
            n = 4 if 'nogdma' in X else 2 * nd
            dm = dma_group((slot + 3) % 4, gemm)
            if last:
                n = ([16, 24, 23, 14] if gemm else [8, 14, 17, 63])[jj]
                if jj == 0:
                    dm = ["\n".join(k3f.wdma_early())] + dm[1:]
                else:
                    dm = k3f.wdma_slots(*k3f.TAIL[jj])
                    if len(dm) > 7:
                        dm = dm[:6] + ["\n".join(dm[6:])]
            k(f"s_waitcnt vmcnt({n}) lgkmcnt(0)")
            k("s_barrier")
            if gemm:
                r = [rd_g(slot, ks) for ks in range(4)]
                m = [mm_g(ks) for ks in range(4)]
                seq = (r[0] + [m[2][0], dm[0], m[2][1]] + r[1] + [m[3][0], dm[1], m[3][1], dm[2]] + r[2] + [m[0][0], dm[3], m[0][1], dm[4]]
                       + r[3] + [m[1][0], dm[5], m[1][1], dm[6]])
            else:
                seq = list(dm)
            if jj == 0 and not P3F:
                k(f"s_cmp_eq_u32 s{sCnt}, 1\ns_cselect_b32 s{sT}, 0x70000000, 0\ns_add_u32 s{sOK}, s{sOK}, s{sT}")
            for a in seq:
                if 'nogdma' in X and ' lds' in a and 'exec' not in a:
                    continue
                if 'nogmm' in X and 'mfma' in a:
                    continue
                if 'nogrd' in X and 'ds_read' in a:
                    continue
                k(a)
            if jj == 0 and not P3F:
                k(f"s_add_u32 s{sOA}, s{sOA}, s{sT}\ns_add_u32 s{sOZ}, s{sOZ}, s{sT}")
        if not last:
            k(f"s_sub_u32 s{sCnt}, s{sCnt}, 1\ns_cmp_lg_u32 s{sCnt}, 0\ns_cbranch_scc1 {L}")
    stamp(k, 2)
    if gemm:
        for a in mm_g(2) + mm_g(3):
            k(a)


def dep_slots(gemm):
    v, s = vZ1, sT + 10
    zc = f"s{sFB}" if gemm else f"s{s}"
    return f"""
    s_lshr_b32 s{s+2}, s{sHead}, 3
    s_add_u32 s{s}, s{s+2}, 4
    s_add_u32 s{s+1}, s{s+2}, 8
    v_mov_b32 v{v+1}, s{s}
    v_mov_b32 v{v+2}, s{s+1}
    v_cmp_lt_u32 vcc, 15, v{vLane}
    v_cndmask_b32 v{v+1}, v{v+1}, v{v+2}, vcc
    v_mov_b32 v{v+2}, {zc}
    v_cmp_lt_u32 vcc, 31, v{vLane}
    v_cndmask_b32 v{v+1}, v{v+1}, v{v+2}, vcc
    v_and_b32 v{v}, 15, v{vLane}
    v_lshl_add_u32 v{v}, v{v}, 4, v{v+1}
    s_and_b32 s{s}, s{sIdx}, 7
    s_lshl_b32 s{s}, s{s}, 5
    s_add_u32 s{s}, s{s}, s{s+2}
    v_and_b32 v{v+1}, 1, v{vLane}
    v_lshlrev_b32 v{v+1}, 4, v{v+1}
    v_add_u32 v{v+1}, s{s}, v{v+1}
    v_cmp_lt_u32 vcc, 47, v{vLane}
    v_cndmask_b32 v{v}, v{v}, v{v+1}, vcc
    """


def gen_k2(k=None):
    if k is None:
        k = Kernel("k2_kernel")
    t0, t1, t2, t3 = vT, vT + 1, vT + 2, vT + 3
    stamp(k, 0)
    if not FUSED:
        k("s_cmp_ge_u32 s2, 256\ns_cbranch_scc1 k2_end")
    k(f"""
    s_setprio 0
    s_load_dwordx2 {sr(sWS,2)}, s[0:1], {KA_WS}
    s_load_dwordx2 {sr(sWSP,2)}, s[0:1], {KA_WSP}
    s_load_dwordx2 {sr(sBSP,2)}, s[0:1], {KA_BSP}
    v_lshrrev_b32 v{t0}, 6, v0
    v_and_b32 v{vLane}, 63, v0
    v_readfirstlane_b32 s{sW}, v{t0}
    s_and_b32 s{sT}, s2, 7
    s_lshr_b32 s{sIdx}, s2, 3
    s_lshr_b32 s{sT+2}, s{sIdx}, 3
    s_lshl_b32 s{sHead}, s{sT}, 2
    s_add_u32 s{sHead}, s{sHead}, s{sT+2}
    s_lshl_b32 s{sT+3}, s{sHead}, 16             ; head*65536
    s_mov_b32 s{sWS+2}, {WS_SIZE}
    s_mov_b32 s{sWS+3}, 0x00020000
    s_mov_b32 s{sWSP+2}, {2048*2048*2}
    s_mov_b32 s{sWSP+3}, 0x00020000
    s_mov_b32 s{sBSP+2}, 4096
    s_mov_b32 s{sBSP+3}, 0x00020000
    s_mov_b32 s{sVM}, 0x0000ffff
    s_mov_b32 s{sVM+1}, 0x0000ffff
    v_lshlrev_b32 v{vAL}, 4, v{vLane}
    v_add_u32 v{vAL+1}, {2*STAGE}, v{vAL}
    s_and_b32 s{sT+4}, s{sW}, 3
    """)
    if P3F:
        k3f.loader_init(k, sT + 4, vLane, vT)
    k(f"s_cmp_ge_u32 s{sW}, 8\ns_cbranch_scc1 k2_gemm")
    k(f"""
    s_and_b32 s{sQT}, s{sIdx}, 7
    s_lshl_b32 s{sQT}, s{sQT}, 3
    s_add_u32 s{sQT}, s{sQT}, s{sW}
    s_lshl_b32 s{sT+5}, s{sQT}, 10
    s_add_u32 s{sT+5}, s{sT+5}, s{sT+3}
    s_add_u32 s{sT+7}, s{sT+5}, {WS_Q}
    s_add_u32 s{sT+8}, s{sT+3}, {WS_K}
    s_waitcnt lgkmcnt(0)
    """)
    qk = (f"buffer_load_dwordx4 {vr(vQ,4)}, v{vAL}, {sr(sWS,4)}, s{sT+7} offen\n"
          f"buffer_load_dwordx4 {vr(vK0,4)}, v{vAL}, {sr(sWS,4)}, s{sT+8} offen")
    if not FUSED:
        k(qk)
    if not PV16:
        k(f"""
        v_and_b32 v{t0}, 27, v{vLane}
        v_mov_b32 v{t1}, 0x3f803f80
        v_cmp_eq_u32 vcc, 16, v{t0}
        v_cndmask_b32 v{t1}, 0, v{t1}, vcc
        """)
        for i in range(8):
            k(f"v_mov_b32 v{vV+i}, v{t1}")
        k(f"""
        s_lshr_b32 s{sT+5}, s{sW}, 1
        s_mul_i32 s{sT+5}, s{sT+5}, {STAGE}
        s_and_b32 s{sT+6}, s{sW}, 1
        s_lshl_b32 s{sT+6}, s{sT+6}, 11
        s_add_u32 s{sT+5}, s{sT+5}, s{sT+6}
        v_add_u32 v{t0}, s{sT+5}, v{vAL}
        s_not_b64 exec, {sr(sVM,2)}
        ds_write_b128 v{t0}, {vr(vV,4)} offset:{O_V}
        ds_write_b128 v{t0}, {vr(vV,4)} offset:{O_V+1024}
        s_mov_b64 exec, -1
        """)
    else:
        k(f"v_mov_b32 v{vOne}, 0x3f803f80\nv_mov_b32 v{vOne+1}, 0x3f803f80")
    for i in range(16):
        k(f"v_mov_b32 v{vO+i}, 0")
    k(f"""
    s_lshl_b32 s{sT+9}, s{sQT}, 5
    s_add_u32 s{sT+9}, s{sT+9}, s{sHead}
    s_lshl_b32 s{sT+9}, s{sT+9}, 10
    s_add_u32 s{sT+9}, s{sT+9}, {WS_O}
    """)
    if FUSED:
        k("s_barrier")
        k(qk)
    if PV16:
        attn_loop16(k)
        l0, l1 = vO + 8, vO + 12
        for sw in ("v_permlane16_swap_b32", "v_permlane32_swap_b32"):
            k(f"""
            v_mov_b32 v{t0}, v{l0}
            v_mov_b32 v{t1}, v{l1}
            {sw} v{l0}, v{t0}
            {sw} v{l1}, v{t1}
            v_add_f32 v{l0}, v{l0}, v{t0}
            v_add_f32 v{l1}, v{l1}, v{t1}
            """)
    else:
        attn_loop(k)
    k(f"v_mul_f32 v{t0}, 0, v{vO}")
    for i in range(1, 8):
        k(f"v_fma_f32 v{t0}, v{vO+i}, 0, v{t0}")
    k(f"""
    v_add_f32 v{t3}, v{t0}, v{vO+(12 if PV16 else 8)}
    v_add_f32 v{t0}, v{t0}, v{vO+8}
    v_mov_b32 v{t1}, 0x17800000                  ; 2^-80
    v_mov_b32 v{t2}, 0x67800000                  ; 2^80
    v_cmp_ge_f32 vcc, v{t0}, v{t1}
    v_cmp_le_f32 {sr(sT+10,2)}, v{t0}, v{t2}
    s_and_b64 vcc, vcc, {sr(sT+10,2)}
    v_cmp_ge_f32 {sr(sT+10,2)}, v{t3}, v{t1}
    s_and_b64 vcc, vcc, {sr(sT+10,2)}
    v_cmp_le_f32 {sr(sT+10,2)}, v{t3}, v{t2}
    s_and_b64 vcc, vcc, {sr(sT+10,2)}
    s_cmp_eq_u64 vcc, -1
    """)
    if PV16:
        k(f"""
        s_cbranch_scc0 k2_slow
        v_rcp_f32 v{t0}, v{vO+8}
        v_rcp_f32 v{t1}, v{vO+12}
        v_and_b32 v{t2}, 15, v{vLane}
        v_lshlrev_b32 v{t2}, 4, v{t2}
        v_bfe_u32 v{t3}, v{vLane}, 4, 1
        v_lshl_add_u32 v{t2}, v{t3}, 9, v{t2}
        v_lshrrev_b32 v{t3}, 5, v{vLane}
        v_lshl_add_u32 v{t2}, v{t3}, 3, v{t2}
        """)
        for i in range(8):
            k(f"v_mul_f32 v{vO+i}, v{vO+i}, v{(t0, t1)[i//4]}")
        for i in range(4):
            k(f"v_cvt_pk_bf16_f32 v{vP+i}, v{vO+2*i}, v{vO+2*i+1}")
        k(f"""
        buffer_store_dwordx2 {vr(vP,2)}, v{t2}, {sr(sWS,4)}, s{sT+9} offen {WT}
        buffer_store_dwordx2 {vr(vP+2,2)}, v{t2}, {sr(sWS,4)}, s{sT+9} offen offset:256 {WT}
        s_branch k2_fin
        k2_slow:
        v_and_b32 v{t0}, 27, v{vLane}
        v_mov_b32 v{t1}, 0x3f803f80
        v_cmp_eq_u32 vcc, 16, v{t0}
        v_cndmask_b32 v{t1}, 0, v{t1}, vcc
        """)
        for i in range(8):
            k(f"v_mov_b32 v{vV+i}, v{t1}")
    else:
        k("s_cbranch_scc1 k2_store_o")
    vM = vT
    k(f"""
    s_add_u32 s{sT+10}, s{sT+3}, {WS_K}
    s_add_u32 s{sT+11}, s{sT+3}, {WS_V}
    v_mov_b32 v{vM}, 0xff800000
    s_mov_b32 s{sCnt}, 64
    s_mov_b32 s{sT+12}, s{sT+10}
    k2_slow1:
    buffer_load_dwordx4 {vr(vK0,4)}, v{vAL}, {sr(sWS,4)}, s{sT+12} offen
    {mfma32(vS0, vK0, vQ, None)}
    """)
    for i in range(8):
        k(f"v_max3_f32 v{vM}, v{vS0+2*i}, v{vS0+2*i+1}, v{vM}")
    k(f"""
    s_add_u32 s{sT+12}, s{sT+12}, 1024
    s_sub_u32 s{sCnt}, s{sCnt}, 1
    s_cmp_lg_u32 s{sCnt}, 0
    s_cbranch_scc1 k2_slow1
    v_mov_b32 v{t1}, v{vM}
    v_permlane32_swap_b32 v{vM}, v{t1}
    v_max_f32 v{vM}, v{vM}, v{t1}
    v_sub_f32 v{vM}, 0, v{vM}
    """)
    for i in range(16):
        k(f"v_mov_b32 v{vC+i}, v{vM}")
        k(f"v_mov_b32 v{vO+i}, 0")
    k(f"""
    v_lshrrev_b32 v{t2}, 5, v{vLane}
    v_and_b32 v{t1}, 15, v{vLane}
    v_lshlrev_b32 v{t1}, 4, v{t1}
    v_lshl_add_u32 v{t1}, v{t2}, 8, v{t1}        ; (l/32)*256 + (l%16)*16
    s_mov_b32 s{sCnt}, 64
    k2_slow2:
    buffer_load_dwordx4 {vr(vK0,4)}, v{vAL}, {sr(sWS,4)}, s{sT+10} offen
    s_mov_b64 exec, {sr(sVM,2)}
    buffer_load_dwordx4 {vr(vV,4)}, v{t1}, {sr(sWS,4)}, s{sT+11} offen
    buffer_load_dwordx4 {vr(vV+4,4)}, v{t1}, {sr(sWS,4)}, s{sT+11} offen offset:512
    s_mov_b64 exec, -1
    {mfma32(vS0, vK0, vQ, vC)}
    """)
    for i in range(16):
        k(f"v_exp_f32 v{vS0+i}, v{vS0+i}")
    for i in range(8):
        k(f"v_cvt_pk_bf16_f32 v{vP+i}, v{vS0+2*i}, v{vS0+2*i+1}")
    k(f"""
    {mfma32(vO, vV, vP, vO)}
    {mfma32(vO, vV+4, vP+4, vO)}
    s_add_u32 s{sT+10}, s{sT+10}, 1024
    s_add_u32 s{sT+11}, s{sT+11}, 1024
    s_sub_u32 s{sCnt}, s{sCnt}, 1
    s_cmp_lg_u32 s{sCnt}, 0
    s_cbranch_scc1 k2_slow2
    """)
    k.label("k2_store_o")
    k(f"v_rcp_f32 v{t0}, v{vO+8}")
    for i in range(8):
        k(f"v_mul_f32 v{vO+i}, v{vO+i}, v{t0}")
    for i in range(4):
        k(f"v_cvt_pk_bf16_f32 v{vP+i}, v{vO+2*i}, v{vO+2*i+1}")
    k(f"""
    buffer_store_dwordx4 {vr(vP,4)}, v{vAL}, {sr(sWS,4)}, s{sT+9} offen {WT}
    s_branch k2_fin
    """)
    k.label("k2_gemm")
    sG = sT + 4
    k(f"""
    s_setprio 3
    s_sub_u32 s{sG}, s{sW}, 8                    ; g = 0..3
    s_and_b32 s{sTB}, s{sT}, 3
    s_lshl_b32 s{sTB}, s{sTB}, 2
    s_and_b32 s{sT+2}, s{sIdx}, 3
    s_add_u32 s{sTB}, s{sTB}, s{sT+2}
    s_lshr_b32 s{sFB}, s{sT}, 2
    s_mul_i32 s{sFB}, s{sFB}, 7
    s_lshr_b32 s{sT+2}, s{sIdx}, 2
    s_add_u32 s{sFB}, s{sFB}, s{sT+2}
    s_mov_b32 s{sLo}, -1
    s_mov_b32 s{sLo+1}, 0
    s_mov_b32 s{sOA}, 0
    s_mov_b32 s{sOZ}, 0
    s_mov_b32 s{sOK}, 0
    s_lshl_b32 s{sMA}, s{sG}, 12
    s_lshl_b32 s{sMZ}, s{sG}, 11
    s_add_u32 s{sMZ}, s{sMZ}, {O_Z}
    s_lshl_b32 s{sMK}, s{sG}, 9
    s_add_u32 s{sMK}, s{sMK}, {O_K}
    s_lshl_b32 s{sMV}, s{sG}, {9 if PV16 else 10}
    s_add_u32 s{sMV}, s{sMV}, {O_V}
    s_lshl_b32 s{sT+5}, s{sG}, 9
    s_add_u32 s{sT+5}, s{sT+5}, s{sT+3}
    s_add_u32 s{sT+6}, s{sT+5}, {WS_K+1024}
    v_add_u32 v{vDK}, s{sT+6}, v{vAL}
    """)
    if PV16:
        k(f"""
        ; V DMA (lanes 0..31): WS_V + head*65536 + (g/2)*1024 + (g%2)*256 + (l/16)*512 + (l%16)*16
        v_bfe_u32 v{t0}, v{vLane}, 4, 1
        v_and_b32 v{t1}, 15, v{vLane}
        v_lshlrev_b32 v{t1}, 4, v{t1}
        v_lshl_add_u32 v{t1}, v{t0}, 9, v{t1}
        s_lshr_b32 s{sT+5}, s{sG}, 1
        s_lshl_b32 s{sT+5}, s{sT+5}, 10
        s_and_b32 s{sT+6}, s{sG}, 1
        s_lshl_b32 s{sT+6}, s{sT+6}, 8
        s_add_u32 s{sT+5}, s{sT+5}, s{sT+6}
        s_add_u32 s{sT+5}, s{sT+5}, s{sT+3}
        s_add_u32 s{sT+6}, s{sT+5}, {WS_V}
        v_add_u32 v{vDV}, s{sT+6}, v{t1}
        """)
    else:
        k(f"""
        v_lshrrev_b32 v{t0}, 5, v{vLane}
        v_and_b32 v{t1}, 15, v{vLane}
        v_lshlrev_b32 v{t1}, 4, v{t1}
        v_lshl_add_u32 v{t1}, v{t0}, 8, v{t1}
        s_add_u32 s{sT+6}, s{sT+5}, {WS_V}
        v_add_u32 v{vDV}, s{sT+6}, v{t1}
        """)
    k(f"""
    s_waitcnt lgkmcnt(0)
    """)
    k(f"s_cmp_ge_u32 s{sIdx}, 28\ns_cbranch_scc1 k2_loader")
    if not FUSED:
        k(dma_group(0, True)[0])
    k(f"""
    v_lshrrev_b32 v{t0}, 3, v{vLane}
    s_lshl_b32 s{sT+5}, s{sG}, 5
    v_add_u32 v{t0}, s{sT+5}, v{t0}
    v_and_b32 v{t1}, 7, v{vLane}
    s_lshl_b32 s{sT+6}, s{sTB}, 19
    """)
    for p in range(4):
        k(f"""
        v_add_u32 v{t2}, {8*p}, v{t0}
        v_bfe_u32 v{t3}, v{t2}, 1, 3
        v_xor_b32 v{t3}, v{t3}, v{t1}
        v_lshlrev_b32 v{t3}, 4, v{t3}
        v_lshl_add_u32 v{vDA+p}, v{t2}, 12, v{t3}
        v_add_u32 v{vDA+p}, s{sT+6}, v{vDA+p}
        """)
    k(f"""
    s_lshr_b32 s{sT+5}, s{sG}, 1
    s_lshl_b32 s{sT+6}, s{sFB}, 1
    s_add_u32 s{sT+5}, s{sT+5}, s{sT+6}
    s_lshl_b32 s{sT+5}, s{sT+5}, 17
    s_and_b32 s{sT+7}, s{sG}, 1
    s_lshl_b32 s{sT+7}, s{sT+7}, 11
    s_add_u32 s{sT+5}, s{sT+5}, s{sT+7}
    s_add_u32 s{sT+5}, s{sT+5}, {WS_Z2}
    v_add_u32 v{vDZ}, s{sT+5}, v{vAL}
    """)
    if not FUSED:
        for a in dma_group(1, True):
            k(a)
        k("s_waitcnt vmcnt(8)\ns_barrier")
    else:
        for st in range(1, 4):
            for a in dma_group(st, True)[1:5]:
                k(a)
    k(f"""
    s_lshl_b32 s{sT+7}, s{sTB}, 2
    s_add_u32 s{sT+7}, s{sT+7}, s{sG}
    s_mul_i32 s{sT+8}, s{sT+7}, 56
    s_lshl_b32 s{sT+9}, s{sFB}, 2
    s_add_u32 s{sT+8}, s{sT+8}, s{sT+9}
    s_lshl_b32 s{sT+8}, s{sT+8}, 10
    s_lshl_b32 s{sT+7}, s{sT+7}, 6
    s_add_u32 s{sT+9}, s{sT+8}, {WS_Z1}
    v_and_b32 v{t0}, 31, v{vLane}
    v_lshlrev_b32 v{t0}, 1, v{t0}
    """)
    def z1loads():
        k(f"buffer_load_ushort v{vBias}, v{vT+4}, {sr(sBSP,4)}, s{sT+13} offen")
        for i in range(4):
            k(f"buffer_load_dwordx4 {vr(vZ1+4*i,4)}, v{vAL}, {sr(sWS,4)}, s{sT+9} offen offset:{1024*i}")
    k(f"v_mov_b32 v{vT+4}, v{t0}\ns_mov_b32 s{sT+13}, s{sT+7}")
    if not FUSED:
        for st in range(2, 4):
            for a in dma_group(st, True):
                k(a)
        z1loads()
    k(f"""
    v_lshrrev_b32 v{t0}, 5, v{vLane}
    v_and_b32 v{t1}, 31, v{vLane}
    s_lshl_b32 s{sT+7}, s{sG}, 5
    v_add_u32 v{t1}, s{sT+7}, v{t1}
    v_bfe_u32 v{t2}, v{t1}, 1, 3
    v_xor_b32 v{t2}, v{t2}, v{t0}
    v_lshlrev_b32 v{t2}, 4, v{t2}
    v_lshl_add_u32 v{vAB}, v{t1}, 7, v{t2}
    v_xor_b32 v{vAB+1}, 32, v{vAB}
    v_xor_b32 v{vAB+2}, 64, v{vAB}
    v_xor_b32 v{vAB+3}, 96, v{vAB}
    """)
    for i in range(4):
        k(f"v_add_u32 v{vAB+4+i}, {2*STAGE}, v{vAB+i}")
    for i in range(32):
        k(f"v_mov_b32 v{vG+i}, 0")
    for i in range(16):
        k(f"v_mov_b32 v{vGA+16+i}, 0")
    for i in range(8):
        k(f"v_mov_b32 v{vGB+8+i}, 0")
    if FUSED:
        gbar.wait(k, 0, sWS, sW, sT + 10, vZ1, dep_slots(True))
        k("s_barrier")
        k(dma_group(0, True)[0])
        for st in range(1, 4):
            g = dma_group(st, True)
            for a in [g[0]] + g[5:]:
                k(a)
            if st == 1:
                k("s_waitcnt vmcnt(4)\ns_barrier")
        z1loads()
        k("s_waitcnt vmcnt(13)")
    k("s_setprio 0")
    gemm_loop(k, True)
    k(f"s_add_u32 s{sT+9}, s{sT+8}, {WS_U}")
    k(f"v_lshlrev_b32 v{vBias}, 16, v{vBias}")
    for i in range(16):
        a, b = vT + 2 * (i % 4), vT + 2 * (i % 4) + 1
        k(f"""
        v_lshlrev_b32 v{a}, 16, v{vZ1+i}
        v_and_b32 v{b}, 0xffff0000, v{vZ1+i}
        v_add_f32 v{vG+2*i}, v{vG+2*i}, v{vBias}
        v_add_f32 v{vG+2*i+1}, v{vG+2*i+1}, v{vBias}
        v_mul_f32 v{a}, v{a}, v{vG+2*i}
        v_mul_f32 v{b}, v{b}, v{vG+2*i+1}
        v_cvt_pk_bf16_f32 v{vZ1+i}, v{a}, v{b}
        """)
        if i % 4 == 3:
            k(f"buffer_store_dwordx4 {vr(vZ1+i-3,4)}, v{vAL}, {sr(sWS,4)}, s{sT+9} offen offset:{1024*(i//4)} {WT}")
    k("s_branch k2_fin")
    k.label("k2_loader")
    k(f"""
    s_load_dwordx2 {sr(sPA,2)}, s[0:1], {KA_WO}
    s_load_dwordx2 {sr(sPB,2)}, s[0:1], {KA_WOUT}
    s_load_dwordx2 {sr(sPX,2)}, s[0:1], {KA_X}
    s_mov_b32 s{sPA+2}, {512*1024}
    s_mov_b32 s{sPA+3}, 0x00020000
    s_mov_b32 s{sPB+2}, {896*1024}
    s_mov_b32 s{sPB+3}, 0x00020000
    s_mov_b32 s{sPX+2}, {2048*1024}
    s_mov_b32 s{sPX+3}, 0x00020000
    """)
    if FUSED:
        gbar.wait(k, 0, sWS, sW, sT + 10, vZ1, dep_slots(False))
        k("s_barrier")
    k(f"s_cmp_ge_u32 s{sG}, 2\ns_cbranch_scc1 k2_pref")
    k(dma_group(0, False)[0])
    k("s_waitcnt vmcnt(0)\ns_barrier")
    for st in range(1, 4):
        for a in dma_group(st, False):
            k(a)
    gemm_loop(k, False)
    k("s_branch k2_fin")
    k.label("k2_pref")
    k(f"""
    s_sub_u32 s{sT+5}, s{sIdx}, 28
    s_lshl_b32 s{sT+5}, s{sT+5}, 1
    s_add_u32 s{sT+5}, s{sT+5}, s{sG}
    s_sub_u32 s{sT+5}, s{sT+5}, 2                ; 0..7
    s_lshl_b32 s{sPo}, s{sT+5}, 16
    s_mul_i32 s{sPo+1}, s{sT+5}, {112*1024}
    s_lshl_b32 s{sPo+2}, s{sT+5}, 15
    s_and_b32 s{sT+6}, s2, 7
    s_lshl_b32 s{sT+6}, s{sT+6}, 18
    s_add_u32 s{sPo+2}, s{sPo+2}, s{sT+6}
    v_lshlrev_b32 v{vT}, 7, v{vLane}
    s_waitcnt lgkmcnt(0)
    """)
    stamp(k, 1)
    lo = []
    for srd, so, cnt in ((sPX, sPo + 2, 4), (sPB, sPo + 1, 14), (sPA, sPo, 8)):
        for j in range(cnt):
            lo.append(f"buffer_load_dword v{vG+len(lo)}, v{vT}, {sr(srd,4)}, s{so} offen\ns_add_u32 s{so}, s{so}, 8192")
    PF0 = int(os.environ.get('PF0', '16'))
    for it in range(33):
        k("s_barrier")
        if it >= PF0 and 'nopf' not in X:
            for a in lo[2 * (it - PF0): 2 * (it - PF0) + 2]:
                k(a)
        if P3F and it == 29:
            for a in k3f.wdma_early():
                k(a)
        if P3F and it >= 30:
            for a in k3f.wdma_slots(*k3f.TAIL[it - 29]):
                k(a)
    stamp(k, 2)
    k.label("k2_fin")
    if STAMP:
        k("s_waitcnt vmcnt(0)")
    stamp(k, 3)
    stamp_store(k, 4)
    if FUSED:
        return k
    k("""
    k2_end:
    s_endpgm
    """)
    k.finish()
    return k


if __name__ == "__main__":
    import sys
    STAMP = "stamp" in sys.argv
    k = gen_k2()
    print(build_file("; test", [("k2_kernel", 256, 768, LDS_K2)], [k]))
```

```python
import os
import struct
from asmlib import *
from layout import *

X = set(os.environ.get('K1X', '').split(','))
STAGE = 32768
NS = 4
O_W = 16384
L_IMG = NS * STAGE
L_TAG = L_IMG + 16384
L_CSW = L_TAG + 256
L_RS = L_CSW + 4096
LDS_K1 = L_RS + 1024

vLane = 1
vL16 = 2
vDX, vDW = 3, 5
vAX = 9
vAW = 13
vTag = 15
vT = 16
ACC = 32
FX = 96
FW = 108
vGR = 156
vGC = 160
vGA = 164
vK = 0

sWS, sXS, sWW, sWI, sDBG = 4, 8, 12, 16, 20
sW, sRH, sRB, sCG, sUn = 24, 25, 26, 27, 28
sKX, sKW, sKQ = 29, 30, 31
sMX, sMW = 32, 33
sKind, sIdx, sT32, sGU = 34, 35, 36, 37
sCSo = 38
sT = 40
sSpin = 61

C0 = -2.0 * 1.4426950408889634 * 0.7978845608028654
C1 = C0 * 0.044715
QS = 0.25 * 1.4426950408889634
STAMP = False
FUSED = False
CLAIM = 'noclaim' not in X
sTagS = 99
WT = os.environ.get('WT', '')
BC = "op_sel_hi:[1,0]"


def f32(x):
    return "0x%08x" % struct.unpack("<I", struct.pack("<f", x))[0]


def stamp(k, i):
    if STAMP:
        if i == 0:
            k("s_memrealtime s[80:81]")
        if i == 3:
            k("s_memrealtime s[82:83]")
        k(f"s_memtime {sr(64+2*i,2)}\ns_waitcnt lgkmcnt(0)")


def stamp_store(k, n):
    if not STAMP:
        return
    k(f"s_mul_i32 s62, s2, 12\ns_add_u32 s62, s62, s{sW}\ns_lshl_b32 s62, s62, 5\ns_add_u32 s62, s62, {WS_STAMP}")
    for i in range(n):
        k(f"s_sub_u32 s63, s{64+2*i}, s64\nv_mov_b32 v{vT}, s63\nv_mov_b32 v{vT+1}, 0\nbuffer_store_dword v{vT}, v{vT+1}, {sr(sWS,4)}, s62 offen offset:{4*i}")
    for j, r in ((6, 80), (7, 82)):
        k(f"v_mov_b32 v{vT}, s{r}\nv_mov_b32 v{vT+1}, 0\nbuffer_store_dword v{vT}, v{vT+1}, {sr(sWS,4)}, s62 offen offset:{4*j}")


def mfma32(d, a, b, c):
    cs = "0" if c is None else vr(c, 16)
    return f"v_mfma_f32_32x32x16_bf16 {vr(d,16)}, {vr(a,4)}, {vr(b,4)}, {cs}"


def dma(t):
    base = (t % NS) * STAGE
    out = []
    for j in range(4):
        e = f"s_add_u32 m0, s{sMX}, {base+1024*j}\n"
        if j == 2:
            e += f"s_add_u32 s{sT}, s{sKX}, 16384\n"
        e += f"buffer_load_dwordx4 v{vDX+j%2}, {sr(sXS,4)}, s{sT if j >= 2 else sKX} offen lds"
        out.append(e)
    srd, so, va, pitch = (sWI, sKW, vDW, 3584) if t < 8 else (sWW, sKQ, vDW + 1, 3072)
    for j in range(4):
        e = (f"s_add_u32 m0, s{sMW}, {base+1024*j}\nbuffer_load_dwordx4 v{va}, {sr(srd,4)}, s{so} offen lds\n"
             f"s_add_u32 s{so}, s{so}, {pitch*(8 if j < 3 else 40)}")
        if j == 3:
            e += (f"\ns_add_u32 s{sKX}, s{sKX}, 128\ns_and_b32 s{sKX}, s{sKX}, 1023\n"
                  f"s_cselect_b32 s{sT}, 0, {512*pitch}\ns_sub_u32 s{so}, s{so}, s{sT}")
        out.append(e)
    return out


def loader(k):
    t0, t1, t2, t3 = vT, vT + 1, vT + 2, vT + 3
    k(f"""
    s_setprio 3
    s_lshl_b32 s{sMX}, s{sUn}, 12
    v_lshrrev_b32 v{t0}, 3, v{vLane}
    v_and_b32 v{t1}, 7, v{vLane}
    v_lshrrev_b32 v{t2}, 1, v{t0}
    v_xor_b32 v{t2}, v{t2}, v{t1}
    v_lshlrev_b32 v{t2}, 4, v{t2}
    v_lshl_add_u32 v{t2}, v{t0}, 10, v{t2}
    s_lshl_b32 s{sT+5}, s{sRB}, 17
    s_lshl_b32 s{sT+6}, s{sUn}, 15
    s_add_u32 s{sT+5}, s{sT+5}, s{sT+6}
    v_add_u32 v{vDX}, s{sT+5}, v{t2}
    v_xor_b32 v{t2}, 64, v{t2}
    s_add_u32 s{sT+5}, s{sT+5}, 8192
    v_add_u32 v{vDX+1}, s{sT+5}, v{t2}
    ; W: chunk = (l%8) ^ (4*((row>>1)&1)), row = l/8
    v_lshlrev_b32 v{t2}, 1, v{t0}
    v_and_b32 v{t2}, 4, v{t2}
    v_xor_b32 v{t2}, v{t2}, v{t1}
    v_lshlrev_b32 v{t2}, 4, v{t2}
    v_mul_u32_u24 v{t3}, 3584, v{t0}
    v_add_u32 v{vDW}, v{t3}, v{t2}
    v_mul_u32_u24 v{t3}, 3072, v{t0}
    v_add_u32 v{vDW+1}, v{t3}, v{t2}
    s_lshr_b32 s{sT+1}, s{sUn}, 1
    s_and_b32 s{sT+2}, s{sUn}, 1
    s_lshl_b32 s{sKW}, s{sCG}, 7
    s_cmp_eq_u32 s{sT+1}, 0
    s_cselect_b32 s{sT+3}, 1792, 0
    s_add_u32 s{sKW}, s{sKW}, s{sT+3}
    s_mul_i32 s{sT+3}, s{sT+2}, {32*3584}
    s_add_u32 s{sKW}, s{sKW}, s{sT+3}
    s_lshl_b32 s{sKQ}, s{sCG}, 8
    s_lshl_b32 s{sT+3}, s{sT+1}, 7
    s_add_u32 s{sKQ}, s{sKQ}, s{sT+3}
    s_mul_i32 s{sT+3}, s{sT+2}, {32*3072}
    s_add_u32 s{sKQ}, s{sKQ}, s{sT+3}
    s_add_u32 s{sMW}, s{sMX}, {O_W}
    s_and_b32 s{sT+3}, s2, {7 if 'rot' in X else (6 if 'rot6' in X else 0)}
    s_lshl_b32 s{sKX}, s{sT+3}, 7
    s_mul_i32 s{sT+4}, s{sT+3}, {64*3584}
    s_add_u32 s{sKW}, s{sKW}, s{sT+4}
    s_mul_i32 s{sT+4}, s{sT+3}, {64*3072}
    s_add_u32 s{sKQ}, s{sKQ}, s{sT+4}
    s_waitcnt lgkmcnt(0)
    """)
    for a in dma(0):
        k(a, tag=("st", 0))
    for a in dma(1):
        k(a, tag=("st", 1))
    stamp(k, 1)
    for t in range(16):
        if t == 5:
            k(f"s_cmp_ge_u32 s{sCG}, 12\ns_cbranch_scc1 k1_ltail")
        k.wait_tag(("st", t))
        k("s_waitcnt lgkmcnt(0)\ns_barrier")
        if 'prof' in X:
            k(f"s_memtime s[84:85]\ns_memrealtime s[86:87]\ns_waitcnt lgkmcnt(0)\nv_writelane_b32 v40, s84, {t}\nv_writelane_b32 v41, s86, {t}")
        if t == 0:
            for a in dma(2):
                k(a, tag=("st", 2))
        if t + 3 < 16 and 'nodma' not in X:
            for a in dma(t + 3):
                k(a, tag=("st", t + 3))
    if 'prof' in X:
        k(f"""
        v_writelane_b32 v40, s64, 16
        v_writelane_b32 v41, s80, 16
        s_lshl_b32 s88, s2, 9
        s_add_u32 s88, s88, {WS_STAMP + 3*262144}
        v_lshlrev_b32 v42, 3, v{vLane}
        buffer_store_dwordx2 v[40:41], v42, {sr(sWS,4)}, s88 offen
        """)
    k("s_branch k1_ldone")
    k.label("k1_ltail")
    for t in range(5, 8):
        k.wait_tag(("st", t))
        k("s_barrier")
    if FUSED:
        for t in range(8):
            k("s_barrier")
    k.label("k1_ldone")
    k(f"v_mov_b32 v{t0}, {L_TAG}\nds_read_b32 v{vTag}, v{t0}\nv_readfirstlane_b32 s{sTagS}, v{vTag}")


def reads(ks, buf):
    out = [f"ds_read_b128 {vr(FX+4*buf,4)}, v{vAX+ks}"]
    for c in range(4):
        d = FW + 16 * buf + 4 * c
        o = (c // 2) * 8192 + ks * 2048
        out.append(f"ds_read_b64_tr_b16 {vr(d,2)}, v{vAW+c%2} offset:{o}")
        out.append(f"ds_read_b64_tr_b16 {vr(d+2,2)}, v{vAW+c%2} offset:{o+512}")
    return out


def mms(buf, first):
    return [mfma32(ACC + 16 * c, FW + 16 * buf + 4 * c, FX + 4 * buf, None if first else ACC + 16 * c) for c in range(4)]


def gather_loads():
    e = ""
    if 'lrs' not in X:
        e = f"buffer_load_dwordx4 {vr(vGR,4)}, v{vGA}, {sr(sWS,4)}, 0 offen sc0 sc1\n"
    for un in range(2):
        e += f"buffer_load_dwordx2 {vr(vGC+2*un,2)}, v{vGA+1}, {sr(sWS,4)}, s{sCSo+un} offen sc0 sc1\n"
    return e


def check_tags(k, regs, Lok, tmp):
    k(f"v_xor_b32 v{tmp}, v{regs[0]}, v{vTag}")
    for r in regs[1:]:
        k(f"v_xor_b32 v{tmp+1}, v{r}, v{vTag}\nv_or_b32 v{tmp}, v{tmp}, v{tmp+1}")
    k(f"v_cmp_ne_u32 vcc, 0, v{tmp}\ns_cmp_eq_u64 vcc, 0\ns_cbranch_scc1 {Lok}")


def poll_tag(k, first_issued):
    Lr, Lok, Lc, Ln = k.newlabel("tagpoll"), k.newlabel("tagok"), k.newlabel("tagchk"), k.newlabel("tagno")
    if first_issued:
        k(f"s_branch {Lc}")
    k(f"""
    {Lr}:
    buffer_load_dword v{vTag}, v{vGA+2}, {sr(sDBG,4)}, 0 offen sc0 sc1
    {Lc}:
    v_readfirstlane_b32 s{sT}, v{vTag}
    s_cmp_eq_u32 s{sT}, 0
    s_cbranch_scc1 {Ln}
    s_sub_u32 s{sT+13}, s{sT+14}, s{sT}
    s_add_u32 s{sT+13}, s{sT+13}, 100000
    s_cmp_lt_u32 s{sT+13}, 102000
    s_cbranch_scc1 {Lok}
    s_cmp_lt_u32 s{sSpin}, 197000
    s_cbranch_scc1 {Lok}
    {Ln}:
    s_sleep 2
    s_sub_u32 s{sSpin}, s{sSpin}, 1
    s_cbranch_scc0 {Lr}
    {Lok}:
    """)


def claim_id(k, part="ab"):
    t0, t1 = 6, 7
    issue = f"""
    s_and_b32 s{sT+8}, s{sT+8}, 7
    s_lshl_b32 s{sT+10}, s{sT+8}, 4
    v_mov_b32 v{t0}, s{sT+10}
    v_mov_b32 v{t1}, 1
    s_mov_b64 exec, 1
    buffer_atomic_add v{t1}, v{t0}, {sr(sDBG,4)}, 0 offen sc0 sc1
    s_mov_b64 exec, -1
    """
    if "a" in part:
        k(f"s_getreg_b32 s{sT+8}, hwreg(HW_REG_XCC_ID)\ns_mov_b32 s{sT+9}, 8")
        k(issue)
    if "b" in part:
        Lr, Lok, Ld = k.newlabel("clm"), k.newlabel("clmok"), k.newlabel("clmd")
        k(f"""
        {Lr}:
        v_readfirstlane_b32 s{sT+10}, v{t1}
        s_cmp_lt_u32 s{sT+10}, 32
        s_cbranch_scc1 {Lok}
        s_mov_b32 s{sT+10}, s2
        s_sub_u32 s{sT+9}, s{sT+9}, 1
        s_cmp_eq_u32 s{sT+9}, 0
        s_cbranch_scc1 {Ld}
        s_add_u32 s{sT+8}, s{sT+8}, 1
        """)
        k(issue)
        k(f"""
        s_branch {Lr}
        {Lok}:
        s_lshl_b32 s{sT+10}, s{sT+10}, 3
        s_add_u32 s{sT+10}, s{sT+10}, s{sT+8}
        {Ld}:
        v_mov_b32 v{t0}, {L_TAG+4}
        v_mov_b32 v{t1}, s{sT+10}
        ds_write_b32 v{t0}, v{t1}
        """)


def main_loop(k):
    t0 = vT
    LA = 2
    for p in range(8):
        k("s_waitcnt lgkmcnt(0)\ns_barrier")
        if p > 0:
            step = STAGE if p % NS else -(NS - 1) * STAGE
            for r in (vAX, vAX + 1, vAX + 2, vAX + 3, vAW, vAW + 1):
                k(f"v_add_u32 v{r}, {step & 0xffffffff:#x}, v{r}")
        for ks in range(4):
            g = 4 * p + ks
            r = reads(ks, g % 3)
            m = mms((g - LA) % 3, g - LA == 0) if g >= LA else []
            seq = interleave(m, r) if ks < 3 else (m[:1] + r[:5] + m[1:2] + r[5:] + m[2:])
            for a in seq:
                k(a)
            if p == 5 and ks == 0:
                k(f"v_mov_b32 v{t0}, {L_TAG}\nds_read_b32 v{vTag}, v{t0}")
            if p == 6 and ks == 2:
                k(gather_loads())
    for g in range(32 - LA, 32):
        for a in mms(g % 3, False):
            k(a)


def row_stats(k):
    t0, t1, t2, t3 = vT, vT + 1, vT + 2, vT + 3
    S = ACC
    D = ACC + 8
    U = ACC + 40
    for i in range(4):
        k(f"v_mov_b32 v{S+i}, 0")
    if 'rprio' in X:
        k("s_setprio 2")

    def crunch(b):
        for i in range(16):
            u = U + 2 * (i % 4)
            k(f"""
            v_lshlrev_b32 v{u}, 16, v{D+16*b+i}
            v_and_b32 v{u+1}, 0xffff0000, v{D+16*b+i}
            v_add_f32 v{S}, v{S}, v{u}
            v_add_f32 v{S+1}, v{S+1}, v{u+1}
            v_fmac_f32 v{S+2}, v{u}, v{u}
            v_fmac_f32 v{S+3}, v{u+1}, v{u+1}
            """)
    for p in range(8):
        k("s_waitcnt lgkmcnt(0)\ns_barrier")
        o = (p % 2) * STAGE
        if p in (2, 6):
            for r in range(4):
                k(f"v_add_u32 v{vAX+r}, {2*STAGE}, v{vAX+r}")
        if p == 4:
            for r in range(4):
                k(f"v_subrev_u32 v{vAX+r}, {2*STAGE}, v{vAX+r}")
        for ks in range(4):
            k(f"ds_read_b128 {vr(D+16*(p%2)+4*ks,4)}, v{vAX+ks} offset:{o}")
        if 'nocr' not in X:
            crunch(p % 2)
    for r in range(4):
        k(f"v_subrev_u32 v{vAX+r}, {2*STAGE}, v{vAX+r}")
    k(f"""
    v_add_f32 v{S}, v{S}, v{S+1}
    v_add_f32 v{S+2}, v{S+2}, v{S+3}
    v_mov_b32 v{t0}, v{S}
    v_mov_b32 v{t1}, v{S+2}
    v_permlane32_swap_b32 v{S}, v{t0}
    v_permlane32_swap_b32 v{S+2}, v{t1}
    v_add_f32 v{t0}, v{t0}, v{S}
    v_add_f32 v{t1}, v{t1}, v{S+2}
    v_mul_f32 v{t0}, {f32(1.0/512)}, v{t0}
    v_mul_f32 v{t1}, {f32(1.0/512)}, v{t1}
    v_fma_f32 v{t1}, -v{t0}, v{t0}, v{t1}
    v_max_f32 v{t1}, 0, v{t1}
    v_add_f32 v{t1}, {f32(1e-5)}, v{t1}
    v_rsq_f32 v{t1}, v{t1}
    v_mul_f32 v{t0}, v{t0}, v{t1}
    ds_write_b32 v{vGA}, v{t1}
    ds_write_b32 v{vGA}, v{t0} offset:512
    """)


def epi_addr(k):
    t0, t1, t2, t3 = vT, vT + 1, vT + 2, vT + 3
    k(f"""
    s_lshl_b32 s{sT}, s{sW}, 9
    s_add_u32 s{sT}, s{sT}, {L_CSW}
    v_lshlrev_b32 v{t0}, 2, v{vLane}
    v_add_u32 v{vT+4}, s{sT}, v{t0}
    v_lshrrev_b32 v{t2}, 5, v{vLane}             ; h
    v_lshlrev_b32 v{vT+6}, 5, v{t2}
    v_add_u32 v{vT+6}, s{sT}, v{vT+6}
    v_lshlrev_b32 v{vT+5}, 3, v{vLane}
    v_mov_b32 v3, {f32(C0)}
    v_and_b32 v{t0}, 31, v{vLane}
    v_and_b32 v{t1}, 1, v{t0}
    v_bfe_u32 v{t3}, v{t0}, 1, 1
    v_lshl_or_b32 v{t1}, v{t3}, 2, v{t1}
    v_bfe_u32 v{t3}, v{t0}, 2, 1
    v_lshl_or_b32 v{t1}, v{t3}, 1, v{t1}
    v_xor_b32 v{t1}, v{t1}, v{t2}
    v_lshlrev_b32 v{t1}, 4, v{t1}
    v_lshl_add_u32 v{t1}, v{t0}, 7, v{t1}
    v_add_u32 v{vT+8}, s{sT+1}, v{t1}
    v_xor_b32 v{vT+9}, 32, v{vT+8}
    v_xor_b32 v{vT+10}, 64, v{vT+8}
    v_xor_b32 v{vT+11}, 96, v{vT+8}
    v_bfe_u32 v{t0}, v{vLane}, 2, 2
    v_and_b32 v{t1}, 1, v{t0}
    v_lshrrev_b32 v{t3}, 1, v{t0}
    v_lshl_or_b32 v{t1}, v{t3}, 2, v{t1}
    v_bfe_u32 v{t3}, v{vLane}, 4, 1
    v_lshlrev_b32 v{t3}, 1, v{t3}
    v_and_b32 v{vT+7}, 1, v{vLane}
    v_or_b32 v{t3}, v{t3}, v{vT+7}
    v_xor_b32 v{t1}, v{t1}, v{t3}
    v_lshlrev_b32 v{t1}, 4, v{t1}
    v_lshl_add_u32 v{t0}, v{t2}, 3, v{t0}
    v_lshl_add_u32 v{t1}, v{t0}, 7, v{t1}
    v_bfe_u32 v{t3}, v{vLane}, 1, 1
    v_lshl_add_u32 v{t1}, v{t3}, 3, v{t1}
    v_add_u32 v{vT+12}, s{sT+1}, v{t1}
    v_xor_b32 v{vT+13}, 32, v{vT+12}
    v_xor_b32 v{vT+14}, 64, v{vT+12}
    v_xor_b32 v{vT+15}, 96, v{vT+12}
    v_and_b32 v{t0}, 15, v{vLane}
    v_lshlrev_b32 v{t0}, 4, v{t0}
    v_lshl_add_u32 v{t0}, v{t2}, 8, v{t0}
    v_bfe_u32 v{t3}, v{vLane}, 4, 1
    v_lshl_add_u32 v{vT+7}, v{t3}, 16, v{t0}
    """)


def get_stats(k):
    t0 = vT
    tagregs = [vGC + 1, vGC + 3] + ([vGR + 1, vGR + 3] if 'lrs' not in X else [])
    Lr, Lok = k.newlabel("g1"), k.newlabel("g1ok")
    check_tags(k, tagregs, Lok, t0)
    k(f"{Lr}:\ns_sleep 2")
    k(gather_loads())
    check_tags(k, tagregs, Lok, t0)
    k(f"s_sub_u32 s{sSpin}, s{sSpin}, 1\ns_cbranch_scc0 {Lr}\n{Lok}:")
    k(f"ds_write_b32 v{vT+4}, v{vGC}\nds_write_b32 v{vT+4}, v{vGC+2} offset:256")
    if 'lrs' in X:
        k(f"ds_read_b32 v{vGR}, v{vGA}\nds_read_b32 v{vGR+2}, v{vGA} offset:512")
    k("s_waitcnt lgkmcnt(0)")


def cs_reads(un):
    out = []
    for c in range(4):
        out.append(f"ds_read_b128 {vr(FW+8*c,4)}, v{vT+6} offset:{un*256+c*64}")
        out.append(f"ds_read_b128 {vr(FW+8*c+4,4)}, v{vT+6} offset:{un*256+c*64+16}")
    return out


def pack(A):
    return [f"v_cvt_pk_bf16_f32 v{A+8*c+i}, v{A+8*c+2*i}, v{A+8*c+2*i+1}" for c in range(4) for i in range(4)]


def tr_store(k, A, lane_reg, s0, kstride):
    for c in range(4):
        k(f"ds_write_b128 v{vT+8+c}, {vr(A+8*c,4)}")
    k(f"s_add_u32 s{sT+3}, s{s0}, 131072\ns_waitcnt lgkmcnt(0)")
    for ct in range(2):
        for ks in range(2):
            d = A + 8 * ct + 4 * ks
            k(f"ds_read_b64_tr_b16 {vr(d,2)}, v{vT+12+2*ct} offset:{ks*2048}")
            k(f"ds_read_b64_tr_b16 {vr(d+2,2)}, v{vT+13+2*ct} offset:{ks*2048+512}")
    for ct in range(2):
        for ks in range(2):
            k(f"buffer_store_dwordx4 {vr(A+8*ct+4*ks,4)}, v{lane_reg}, {sr(sWS,4)}, s{(s0, sT+3)[ct]} offen offset:{ks*kstride} {WT}")


def z_epilogue(k):
    t0, t1, t2, t3 = vT, vT + 1, vT + 2, vT + 3
    k("s_barrier")
    if 'zprio' in X:
        k("s_setprio 2")
    get_stats(k)
    k(f"s_mov_b32 s{sT+10}, {f32(C1)}")
    if 'zpk' in X:
        k(f"v_mov_b32 v4, v{vGR}\nv_mov_b32 v5, v{vGR+2}\nv_mov_b32 v6, {f32(C0)}\nv_mov_b32 v7, {f32(C1)}")
    S = FX

    def unit_ops(un):
        A = ACC + 32 * un
        ops = list(cs_reads(un))
        if 'zpk' in X:
            P = range(0, 32, 2)
            ops += [f"v_pk_mul_f32 {vr(A+i,2)}, {vr(A+i,2)}, v[4:5] {BC}" for i in P]
            ops += [f"v_pk_fma_f32 {vr(A+i,2)}, {vr(FW+i,2)}, v[4:5], {vr(A+i,2)} op_sel:[0,1,0] op_sel_hi:[1,1,1] neg_lo:[1,0,0] neg_hi:[1,0,0]" for i in P]
            ops += [f"v_pk_mul_f32 {vr(FW+i,2)}, {vr(A+i,2)}, {vr(A+i,2)}" for i in P]
            ops += [f"v_pk_fma_f32 {vr(FW+i,2)}, {vr(FW+i,2)}, v[6:7], v[6:7] op_sel:[0,1,0] op_sel_hi:[1,1,0]" for i in P]
            ops += [f"v_pk_mul_f32 {vr(FW+i,2)}, {vr(FW+i,2)}, {vr(A+i,2)}" for i in P]
            ops += [f"v_exp_f32 v{FW+i}, v{FW+i}" for i in range(32)]
            ops += [f"v_pk_add_f32 {vr(FW+i,2)}, {vr(FW+i,2)}, 1.0 op_sel_hi:[1,0]" for i in P]
            ops += [f"v_rcp_f32 v{FW+i}, v{FW+i}" for i in range(32)]
            ops += [f"v_pk_mul_f32 {vr(A+i,2)}, {vr(A+i,2)}, {vr(FW+i,2)}" for i in P]
            return ops
        for i in range(32):
            ops.append(f"v_mul_f32 v{A+i}, v{A+i}, v{vGR}")
        for i in range(32):
            ops.append(f"v_fma_f32 v{A+i}, -v{vGR+2}, v{FW+i}, v{A+i}")
        for h in range(2):
            R = [A + 16 * h + i for i in range(16)]
            T = [FW + i for i in range(16)]
            ops += [f"v_mul_f32 v{t}, v{r}, v{r}" for r, t in zip(R, T)]
            ops += [f"v_fma_f32 v{t}, v{t}, s{sT+10}, v3" for r, t in zip(R, T)]
            ops += [f"v_mul_f32 v{t}, v{t}, v{r}" for r, t in zip(R, T)]
            ops += [f"v_exp_f32 v{t}, v{t}" for r, t in zip(R, T)]
            ops += [f"v_add_f32 v{t}, 1.0, v{t}" for r, t in zip(R, T)]
            ops += [f"v_rcp_f32 v{t}, v{t}" for r, t in zip(R, T)]
            ops += [f"v_mul_f32 v{r}, v{r}, v{t}" for r, t in zip(R, T)]
        return ops

    ops = unit_ops(0)
    A = ACC
    ops += [f"v_add_f32 v{S}, v{A}, v{A+1}", f"v_mul_f32 v{S+2}, v{A}, v{A}", f"v_add_f32 v{S+1}, v{A+2}, v{A+3}",
            f"v_mul_f32 v{S+3}, v{A+1}, v{A+1}", f"v_fmac_f32 v{S+2}, v{A+2}, v{A+2}", f"v_fmac_f32 v{S+3}, v{A+3}, v{A+3}"]
    for i in range(4, 32):
        ops += [f"v_add_f32 v{S+i%2}, v{S+i%2}, v{A+i}", f"v_fmac_f32 v{S+2+i%2}, v{A+i}, v{A+i}"]
    ops.append(f"""
    v_add_f32 v{S}, v{S}, v{S+1}
    v_add_f32 v{S+2}, v{S+2}, v{S+3}
    v_permlane32_swap_b32 v{S}, v{S+2}
    v_add_f32 v{S}, v{S}, v{S+2}
    v_mov_b32 v{S+1}, v{vTag}
    s_mul_i32 s{sT+4}, s{sT32}, {14*512}
    s_add_u32 s{sT+4}, s{sT+4}, {WS_S2}
    s_lshl_b32 s{sT+1}, s{sCG}, 9
    s_add_u32 s{sT+1}, s{sT+1}, s{sT+4}
    buffer_store_dwordx2 {vr(S,2)}, v{vT+5}, {sr(sWS,4)}, s{sT+1} offen sc0 sc1
    """)
    n0 = len(ops)
    ops += unit_ops(1)
    ops += pack(ACC + 32)
    G = FW

    def g2loads():
        e = ""
        for i in range(7):
            if i % 4 == 0:
                e += f"s_add_u32 s{sT}, s{sT+4}, {1024*i}\n"
            e += f"buffer_load_dwordx4 {vr(G+4*i,4)}, v{vL16}, {sr(sWS,4)}, s{sT} offen offset:{1024*(i%4)} sc0 sc1\n"
        return e
    ops.insert(len(ops) - 16, g2loads())
    e = f"""
    s_mul_i32 s{sT+1}, s{sT32}, {56*1024}
    s_lshl_b32 s{sT+2}, s{sCG}, 12
    s_add_u32 s{sT+1}, s{sT+1}, s{sT+2}
    s_add_u32 s{sT+1}, s{sT+1}, {WS_Z1}
    """
    for c in range(4):
        e += f"buffer_store_dwordx4 {vr(ACC+32+8*c,4)}, v{vL16}, {sr(sWS,4)}, s{sT+1} offen offset:{1024*c} {WT}\n"
    ops.append(e)
    cost = [2 if o.startswith(("v_exp", "v_rcp", "v_pk")) else (3 if o.startswith("ds_") else (25 if "\n" in o else 1)) for o in ops]
    HEAD = int(os.environ.get('ZHEAD', '70'))
    NB1 = int(os.environ.get('ZNB', '5'))
    tot = sum(cost) + HEAD
    acc, nxt, placed = HEAD, 1, 0
    for i, (o, c) in enumerate(zip(ops, cost)):
        if not ('noz' in X and o.startswith('v_')):
            k(o)
        if i == n0 - 1:
            stamp(k, 4)
        acc += c
        if placed < NB1 and acc >= tot * nxt / NB1 - 1e-9:
            k("s_barrier")
            placed += 1
            nxt += 1
    assert placed == NB1
    rest = 7 - NB1
    stamp(k, 5)
    Lr, Lok = k.newlabel("g2"), k.newlabel("g2ok")
    check_tags(k, [G + 2 * j + 1 for j in range(14)], Lok, t0)
    k(f"{Lr}:")
    k(g2loads())
    check_tags(k, [G + 2 * j + 1 for j in range(14)], Lok, t0)
    k(f"s_sleep 1\ns_sub_u32 s{sSpin}, s{sSpin}, 1\ns_cbranch_scc0 {Lr}\n{Lok}:")
    stamp(k, 1)
    for i in range(1, 7):
        k(f"v_add_f32 v{G}, v{G}, v{G+4*i}\nv_add_f32 v{G+2}, v{G+2}, v{G+4*i+2}")
    k(f"""
    v_mov_b32 v{t0}, v{G}
    v_mov_b32 v{t1}, v{G+2}
    v_permlane32_swap_b32 v{G}, v{t0}
    v_permlane32_swap_b32 v{G+2}, v{t1}
    v_add_f32 v{G}, v{G}, v{t0}
    v_add_f32 v{G+1}, v{G+2}, v{t1}
    s_lshl_b32 s{sT}, s{sW}, 9
    s_add_u32 s{sT}, s{sT}, {L_CSW}
    v_and_b32 v{t2}, 31, v{vLane}
    v_lshlrev_b32 v{t3}, 3, v{t2}
    v_add_u32 v{t3}, s{sT}, v{t3}
    ds_write_b64 v{t3}, {vr(G,2)}
    v_lshlrev_b32 v{t3}, 2, v{t2}
    v_add_u32 v{t3}, s{sT}, v{t3}
    s_waitcnt lgkmcnt(0)
    ds_read_b32 v{t0}, v{t3}
    ds_read_b32 v{t1}, v{t3} offset:128
    s_lshl_b32 s{sT}, s{sCG}, 18
    s_lshl_b32 s{sT+1}, s{sT32}, 11
    s_add_u32 s{sT}, s{sT}, s{sT+1}
    s_add_u32 s{sT}, s{sT}, {WS_Z2}
    v_mul_f32 v{t0}, {f32(1.0/896)}, v{t0}
    v_mul_f32 v{t1}, {f32(1.0/896)}, v{t1}
    v_fma_f32 v{t1}, -v{t0}, v{t0}, v{t1}
    v_max_f32 v{t1}, 0, v{t1}
    v_add_f32 v{t1}, {f32(1e-5)}, v{t1}
    v_rsq_f32 v{t1}, v{t1}
    v_mul_f32 v{t0}, v{t0}, v{t1}
    """)
    if rest >= 1:
        k("s_barrier")
    for i in range(32):
        k(f"v_fma_f32 v{A+i}, v{A+i}, v{t1}, -v{t0}")
    for o in pack(A):
        k(o)
    tr_store(k, A, vL16, sT, 1024)
    for i in range(rest - 1):
        k("s_barrier")


def q_epilogue(k):
    get_stats(k)
    k(f"""
    s_cmp_eq_u32 s{sKind}, 0
    s_cselect_b32 s{sT}, {f32(QS)}, 1.0
    v_mul_f32 v4, s{sT}, v{vGR}
    v_mul_f32 v5, s{sT}, v{vGR+2}
    s_lshl_b32 s{sT}, s{sCG}, 19
    s_lshl_b32 s{sT+1}, s{sT32}, 10
    s_add_u32 s{sT}, s{sT}, s{sT+1}
    s_add_u32 s{sT}, s{sT}, {WS_Q}
    """)
    for un in range(2):
        A = ACC + 32 * un
        for o in cs_reads(un):
            k(o)
        for i in range(0, 32, 2):
            k(f"v_pk_mul_f32 {vr(A+i,2)}, {vr(A+i,2)}, v[4:5] {BC}")
        for i in range(0, 32, 2):
            k(f"v_pk_fma_f32 {vr(A+i,2)}, {vr(FW+i,2)}, v[4:5], {vr(A+i,2)} op_sel:[0,1,0] op_sel_hi:[1,1,1] neg_lo:[1,0,0] neg_hi:[1,0,0]")
        for o in pack(A):
            k(o)
        Lv, Ld = k.newlabel("qv"), k.newlabel("qd")
        k(f"s_cmp_eq_u32 s{sKind}, 2\ns_cbranch_scc1 {Lv}")
        for c in range(4):
            k(f"buffer_store_dwordx4 {vr(A+8*c,4)}, v{vL16}, {sr(sWS,4)}, s{sT} offen {WT}\ns_add_u32 s{sT}, s{sT}, 65536")
        k(f"s_branch {Ld}\n{Lv}:")
        tr_store(k, A, vT + 7, sT, 512)
        k(f"s_add_u32 s{sT}, s{sT}, 262144\n{Ld}:")


def wave_allsum(k, regs, tmps):
    for sh in (8, 4, 2, 1):
        for r in regs:
            k(f"v_add_f32_dpp v{r}, v{r}, v{r} row_ror:{sh} row_mask:0xf bank_mask:0xf")
    for sw in ("v_permlane16_swap_b32", "v_permlane32_swap_b32"):
        for r, t in zip(regs, tmps):
            k(f"v_mov_b32 v{t}, v{r}")
        for r, t in zip(regs, tmps):
            k(f"{sw} v{r}, v{t}")
        for r, t in zip(regs, tmps):
            k(f"v_add_f32 v{r}, v{r}, v{t}")


def helper(k):
    t0, t1, t2, t3 = vT, vT + 1, vT + 2, vT + 3
    A = FX
    if 'lrs' not in X:
        D = ACC
        k(f"""
        s_cmp_lt_u32 s{sW}, 8
        s_cbranch_scc1 k1_hcol
        s_setprio 2
        s_lshl_b32 s{sT+6}, s2, 2
        s_add_u32 s{sT+6}, s{sT+6}, s{sW}
        s_sub_u32 s{sT+6}, s{sT+6}, 8
        s_lshl_b32 s{sT+7}, s{sT+6}, 14
        v_lshrrev_b32 v{t0}, 3, v{vLane}
        v_and_b32 v{t1}, 7, v{vLane}
        v_lshlrev_b32 v{t1}, 4, v{t1}
        v_lshl_add_u32 v{t1}, v{t0}, 10, v{t1}
        s_add_u32 s{sT+8}, s{sT+7}, 8192
        v_mov_b32 v3, 0x3f803f80
        """)
        for b in range(2):
            for i in range(8):
                k(f"buffer_load_dwordx4 {vr(D+32*b+4*i,4)}, v{t1}, {sr(sXS,4)}, s{sT+7+b} offen offset:{128*i}")
        k(f"buffer_load_dword v{vTag}, v{vGA+2}, {sr(sDBG,4)}, 0 offen sc0 sc1")
        for j in range(4):
            k(f"v_mov_b32 v{A+j}, 0")
        for b in range(2):
            for i in range(32):
                k(f"v_dot2c_f32_bf16 v{A+2*b}, v{D+32*b+i}, v3\nv_dot2c_f32_bf16 v{A+2*b+1}, v{D+32*b+i}, v{D+32*b+i}")
        for m in ("quad_perm:[1,0,3,2]", "quad_perm:[2,3,0,1]", "row_half_mirror"):
            for j in range(4):
                k(f"v_add_f32_dpp v{A+j}, v{A+j}, v{A+j} {m} row_mask:0xf bank_mask:0xf")
        k(f"""
        v_and_b32 v{t2}, 1, v{vLane}
        v_cmp_eq_u32 vcc, 1, v{t2}
        v_cndmask_b32 v{A}, v{A}, v{A+2}, vcc
        v_cndmask_b32 v{A+1}, v{A+1}, v{A+3}, vcc
        v_mul_f32 v{A}, {f32(1.0/512)}, v{A}
        v_mul_f32 v{A+1}, {f32(1.0/512)}, v{A+1}
        v_fma_f32 v{A+1}, -v{A}, v{A}, v{A+1}
        v_max_f32 v{A+1}, 0, v{A+1}
        v_add_f32 v{A+1}, {f32(1e-5)}, v{A+1}
        v_rsq_f32 v{D}, v{A+1}
        v_mul_f32 v{D+2}, v{D}, v{A}
        v_lshl_add_u32 v{t0}, v{t2}, 3, v{t0}
        v_lshlrev_b32 v{t0}, 4, v{t0}
        """)
        poll_tag(k, True)
        k(f"""
        v_mov_b32 v{D+1}, v{vTag}
        v_mov_b32 v{D+3}, v{vTag}
        s_lshl_b32 s{sT+7}, s{sT+6}, 8
        s_add_u32 s{sT+7}, s{sT+7}, {WS_RS}
        s_mov_b32 exec_lo, 0x03030303
        s_mov_b32 exec_hi, 0x03030303
        buffer_store_dwordx4 {vr(D,4)}, v{t0}, {sr(sWS,4)}, s{sT+7} offen sc0 sc1
        s_mov_b64 exec, -1
        s_setprio 0
        k1_hcol:
        """)
    k(f"""
    s_cmp_ge_u32 s2, 28
    s_cbranch_scc1 k1_hpre
    s_add_u32 s{sGU}, s2, 24
    s_min_u32 s{sT}, s2, 23
    s_lshl_b32 s{sT+1}, s2, 7
    s_lshl_b32 s{sT+2}, s{sT}, 7
    s_lshl_b32 s{sT+4}, s{sW}, 6
    s_sub_u32 s{sT+5}, s{sW}, 8
    s_lshl_b32 s{sT+5}, s{sT+5}, 7
    s_cmp_lt_u32 s{sW}, 8
    s_cselect_b32 s{sGU}, s{sGU}, s{sT}
    s_cselect_b32 s{sT+1}, s{sT+1}, s{sT+2}
    s_cselect_b32 s{sT+4}, s{sT+4}, s{sT+5}
    s_cselect_b32 s{sT+3}, 512, 0
    s_cselect_b32 s{sWW}, s{sWI}, s{sWW}
    s_cselect_b32 s{sWW+1}, s{sWI+1}, s{sWW+1}
    s_cselect_b32 s{sWW+2}, s{sWI+2}, s{sWW+2}
    s_add_u32 s{sT+3}, s{sT+3}, 3072             ; pitch
    v_lshrrev_b32 v{t0}, 3, v{vLane}
    v_add_u32 v{t0}, s{sT+4}, v{t0}
    v_mul_lo_u32 v{t0}, v{t0}, s{sT+3}
    v_and_b32 v{t1}, 7, v{vLane}
    v_lshl_add_u32 v{t0}, v{t1}, 4, v{t0}
    s_lshl_b32 s{sT+3}, s{sT+3}, 3
    """)

    def loads(b):
        for i in range(8):
            k(f"buffer_load_dwordx4 {vr(ACC+32*b+4*i,4)}, v{t0}, {sr(sWW,4)}, s{sT+1} offen")
            k(f"s_add_u32 s{sT+1}, s{sT+1}, s{sT+3}")

    def accum(b):
        for i in range(8):
            for r in range(4):
                src = ACC + 32 * b + 4 * i + r
                if i == 0 and b == 0:
                    k(f"v_lshlrev_b32 v{A+2*r}, 16, v{src}\nv_and_b32 v{A+2*r+1}, 0xffff0000, v{src}")
                else:
                    k(f"v_lshlrev_b32 v{t2}, 16, v{src}\nv_and_b32 v{t3}, 0xffff0000, v{src}\n"
                      f"v_pk_add_f32 {vr(A+2*r,2)}, {vr(A+2*r,2)}, {vr(t2,2)}")

    def reduce_write():
        regs = [A + i for i in range(8)]
        tm = [A + 8 + i for i in range(8)]
        for r in regs:
            k(f"v_add_f32_dpp v{r}, v{r}, v{r} row_ror:8 row_mask:0xf bank_mask:0xf")
        for sw in ("v_permlane16_swap_b32", "v_permlane32_swap_b32"):
            for r, t in zip(regs, tm):
                k(f"v_mov_b32 v{t}, v{r}")
            for r, t in zip(regs, tm):
                k(f"{sw} v{r}, v{t}")
            for r, t in zip(regs, tm):
                k(f"v_add_f32 v{r}, v{r}, v{t}")
        k(f"""
        s_lshl_b32 s{sT}, s{sW}, 8
        v_lshlrev_b32 v{t0}, 5, v{t1}
        v_add_u32 v{t0}, s{sT}, v{t0}
        ds_write_b128 v{t0}, {vr(A,4)}
        ds_write_b128 v{t0}, {vr(A+4,4)} offset:16
        s_waitcnt lgkmcnt(0)
        """)

    def publish(n):
        k(f"s_lshl_b32 s{sT}, s{sW}, 8\nv_lshlrev_b32 v{t0}, 2, v{vLane}\nv_add_u32 v{t0}, s{sT}, v{t0}")
        for i in range(n):
            k(f"ds_read_b32 v{A+i}, v{t0} offset:{256*i}")
        poll_tag(k, True)
        for i in range(1, n):
            k(f"v_add_f32 v{A}, v{A}, v{A+i}")
        k(f"""
        s_lshl_b32 s{sT}, s{sGU}, 9
        s_add_u32 s{sT}, s{sT}, {WS_CS}
        v_lshlrev_b32 v{t0}, 3, v{vLane}
        v_mov_b32 v{A+1}, v{vTag}
        buffer_store_dwordx2 {vr(A,2)}, v{t0}, {sr(sWS,4)}, s{sT} offen sc0 sc1
        """)
    loads(0)
    k(f"s_cmp_ge_u32 s{sW}, 8\ns_cbranch_scc1 k1_hq")
    k(f"s_setprio 2\nbuffer_load_dword v{vT+8}, v{vGA+2}, {sr(sDBG,4)}, 0 offen sc0 sc1")
    accum(0)
    reduce_write()
    k(f"s_barrier\ns_cmp_lg_u32 s{sW}, 0\ns_cbranch_scc1 k1_hz\nv_cmp_eq_u32 vcc, 0, v{vTag}\nv_cndmask_b32 v{vTag}, v{vTag}, v{vT+8}, vcc")
    publish(8)
    k.label("k1_hz")
    if FUSED:
        k("s_barrier")
    k("s_branch k1_hpre")
    k.label("k1_hq")
    loads(1)
    k("s_barrier")
    accum(0)
    accum(1)
    reduce_write()
    k(f"s_barrier\ns_cmp_lg_u32 s{sW}, 8\ns_cbranch_scc1 k1_hpre")
    publish(4)
    k.label("k1_hpre")
    if 'hwsp' in X:
        k(f"""
        s_load_dwordx2 {sr(sWI,2)}, s[0:1], {KA_WSP}
        s_mov_b32 s{sWI+2}, {2048*4096}
        s_lshr_b32 s{sT}, s2, 3
        s_mul_i32 s{sT}, s{sT}, 12
        s_add_u32 s{sT}, s{sT}, s{sW}
        s_min_u32 s{sT}, s{sT}, 42
        s_mul_i32 s{sT}, s{sT}, {6*8192}
        s_and_b32 s{sT+1}, s2, 3
        s_lshl_b32 s{sT+1}, s{sT+1}, 21
        s_add_u32 s{sT}, s{sT}, s{sT+1}
        v_lshlrev_b32 v{t0}, 7, v{vLane}
        s_sleep {os.environ.get('WSPD', '0')}
        s_waitcnt lgkmcnt(0)
        """)
        for i in range(6):
            k(f"buffer_load_dword v{ACC+i}, v{t0}, {sr(sWI,4)}, s{sT} offen\ns_add_u32 s{sT}, s{sT}, 8192")
    if FUSED:
        k(f"s_cmp_lg_u32 s{sW}, 8\ns_cbranch_scc1 k1_fin")
        poll_tag(k, True)
        k(f"s_mov_b32 s{sTagS}, s{sT}")
        if CLAIM:
            claim_id(k)


def gen_k1(k=None):
    if k is None:
        k = Kernel("k1_kernel")
    t0, t1, t2, t3 = vT, vT + 1, vT + 2, vT + 3
    stamp(k, 0)
    if STAMP:
        for i in (1, 2, 4, 5):
            k(f"s_mov_b64 {sr(64+2*i,2)}, s[64:65]")
    k(f"""
    s_cmp_ge_u32 s2, 256
    s_cbranch_scc1 {'fz_end' if FUSED else 'k1_end'}
    s_load_dwordx2 {sr(sXS,2)}, s[0:1], {KA_X}
    s_load_dwordx2 {sr(sWW,2)}, s[0:1], {KA_WQKV}
    s_load_dwordx2 {sr(sWI,2)}, s[0:1], {KA_WIN}
    s_load_dwordx2 {sr(sWS,2)}, s[0:1], {KA_WS}
    s_load_dwordx2 {sr(sDBG,2)}, s[0:1], {KA_DBG}
    s_memrealtime {sr(sT+14,2)}
    v_lshrrev_b32 v{t0}, 6, v0
    v_and_b32 v{vLane}, 63, v0
    v_readfirstlane_b32 s{sW}, v{t0}
    v_lshlrev_b32 v{vL16}, 4, v{vLane}
    s_mov_b32 s{sWS+2}, {WS_SIZE}
    s_mov_b32 s{sWS+3}, 0x00020000
    s_mov_b32 s{sXS+2}, {2048*1024}
    s_mov_b32 s{sXS+3}, 0x00020000
    s_mov_b32 s{sWW+2}, {512*3072}
    s_mov_b32 s{sWW+3}, 0x00020000
    s_mov_b32 s{sWI+2}, {512*3584}
    s_mov_b32 s{sWI+3}, 0x00020000
    s_mov_b32 s{sDBG+2}, 256
    s_mov_b32 s{sDBG+3}, 0x00020000
    s_mov_b32 s{sSpin}, 200000
    s_mov_b32 s{sTagS}, 0
    s_mov_b32 s98, 255
    s_and_b32 s{sT}, s2, 31
    s_lshl_b32 s{sT}, s{sT}, 2
    s_add_u32 s{sT}, s{sT}, 128
    v_mov_b32 v{vGA+2}, s{sT}
    s_cmp_lt_u32 s2, 32
    s_cbranch_scc1 k1_helper
    ; xcd = wg&7, j = (wg>>3) - 4 (0..27): rb = 4(xcd/2) + j/7, cg = 7(xcd%2) + j%7
    s_and_b32 s{sT}, s2, 7
    s_lshr_b32 s{sT+1}, s2, 3
    s_sub_u32 s{sT+1}, s{sT+1}, 4
    s_mul_i32 s{sT+5}, s{sT+1}, 37
    s_lshr_b32 s{sT+5}, s{sT+5}, 8
    s_mul_i32 s{sT+6}, s{sT+5}, 7
    s_sub_u32 s{sCG}, s{sT+1}, s{sT+6}
    s_and_b32 s{sT+2}, s2, 1
    s_mul_i32 s{sT+6}, s{sT+2}, 7
    s_add_u32 s{sCG}, s{sCG}, s{sT+6}
    s_lshr_b32 s{sRB}, s{sT}, 1
    s_lshl_b32 s{sRB}, s{sRB}, 2
    s_add_u32 s{sRB}, s{sRB}, s{sT+5}
    s_lshl_b32 s98, s{sRB}, 4
    s_add_u32 s98, s98, s{sCG}
    s_lshr_b32 s{sRH}, s{sW}, 2
    s_and_b32 s{sUn}, s{sW}, 3
    s_cmp_ge_u32 s{sW}, 8
    s_cbranch_scc1 k1_loader
    s_lshr_b32 s{sKind}, s{sCG}, 2
    s_cmp_eq_u32 s{sRH}, 0
    s_cselect_b32 s{sKind}, 4, s{sKind}
    s_add_u32 s{sT}, s{sCG}, 38
    s_add_u32 s{sT+1}, s{sCG}, 24
    s_lshl_b32 s{sT+2}, s{sCG}, 1
    s_add_u32 s{sT+3}, s{sT+2}, 1
    s_cmp_eq_u32 s{sRH}, 0
    s_cselect_b32 s{sT}, s{sT}, s{sT+2}
    s_cselect_b32 s{sT+1}, s{sT+1}, s{sT+3}
    s_lshl_b32 s{sCSo}, s{sT}, 9
    s_add_u32 s{sCSo}, s{sCSo}, {WS_CS}
    s_lshl_b32 s{sCSo+1}, s{sT+1}, 9
    s_add_u32 s{sCSo+1}, s{sCSo+1}, {WS_CS}
    s_lshl_b32 s{sT32}, s{sRB}, 2
    s_add_u32 s{sT32}, s{sT32}, s{sUn}
    v_and_b32 v{t0}, 31, v{vLane}
    v_and_b32 v{t1}, 0x13, v{t0}
    v_and_b32 v{t2}, 4, v{t0}
    v_lshl_or_b32 v{t1}, v{t2}, 1, v{t1}
    v_and_b32 v{t2}, 8, v{t0}
    v_lshrrev_b32 v{t2}, 1, v{t2}
    v_or_b32 v{t1}, v{t1}, v{t2}
    s_cmp_eq_u32 s{sKind}, 1
    s_cselect_b64 vcc, -1, 0
    v_cndmask_b32 v{t0}, v{t0}, v{t1}, vcc       ; tok
    v_lshrrev_b32 v{t1}, 5, v{vLane}             ; h
    v_bfe_u32 v{t2}, v{t0}, 1, 3
    v_xor_b32 v{t2}, v{t2}, v{t1}
    v_lshlrev_b32 v{t2}, 4, v{t2}
    v_lshl_add_u32 v{t2}, v{t0}, 7, v{t2}
    s_lshl_b32 s{sT}, s{sUn}, 12
    v_add_u32 v{vAX}, s{sT}, v{t2}
    v_xor_b32 v{vAX+1}, 32, v{vAX}
    v_xor_b32 v{vAX+2}, 64, v{vAX}
    v_xor_b32 v{vAX+3}, 96, v{vAX}
    s_lshl_b32 s{sT}, s{sUn if 'lrs' in X else sT32}, {7 if 'lrs' in X else 9}
    s_add_u32 s{sT}, s{sT}, {L_RS if 'lrs' in X else WS_RS}
    v_lshlrev_b32 v{t0}, {2 if 'lrs' in X else 4}, v{t0}
    v_add_u32 v{vGA}, s{sT}, v{t0}
    v_lshlrev_b32 v{vGA+1}, 3, v{vLane}
    v_bfe_u32 v{t0}, v{vLane}, 2, 2
    v_lshl_add_u32 v{t1}, v{t1}, 3, v{t0}
    v_bfe_u32 v{t2}, v{vLane}, 4, 1
    v_lshlrev_b32 v{t2}, 1, v{t2}
    v_and_b32 v{t3}, 1, v{vLane}
    v_or_b32 v{t2}, v{t2}, v{t3}
    v_lshlrev_b32 v{t0}, 1, v{t0}
    v_and_b32 v{t0}, 4, v{t0}
    v_xor_b32 v{t2}, v{t2}, v{t0}
    v_lshlrev_b32 v{t2}, 4, v{t2}
    v_lshl_add_u32 v{t2}, v{t1}, 7, v{t2}
    v_bfe_u32 v{t3}, v{vLane}, 1, 1
    v_lshl_add_u32 v{t2}, v{t3}, 3, v{t2}
    v_add_u32 v{vAW}, {O_W}, v{t2}
    v_xor_b32 v{vAW+1}, 64, v{vAW}
    s_lshl_b32 s{sT+1}, s{sUn}, 12
    s_cmp_eq_u32 s{sRH}, 0
    s_cselect_b32 s{sT+2}, {L_IMG}, 0
    s_add_u32 s{sT+1}, s{sT+1}, s{sT+2}
    """)
    epi_addr(k)
    k(f"""
    s_waitcnt lgkmcnt(0)
    s_cmp_eq_u32 s{sRH}, 0
    s_cbranch_scc1 k1_main
    """)
    if 'lrs' in X:
        row_stats(k)
    else:
        for i in range(8):
            k("s_waitcnt lgkmcnt(0)\ns_barrier")
            CA = int(os.environ.get('CLA', '1'))
            if i == CA and FUSED and CLAIM:
                k(f"s_cmp_lg_u32 s{sW}, 5\ns_cbranch_scc1 k1_noclaim")
                claim_id(k, "a")
                k.label("k1_noclaim")
            if i == 2:
                k(f"buffer_load_dword v{vTag}, v{vGA+2}, {sr(sDBG,4)}, 0 offen sc0 sc1")
            W0 = int(os.environ.get('WSP0', '4'))
            if 'qwsp' in X and i == W0:
                k(f"""
                s_load_dwordx2 {sr(sWI,2)}, s[0:1], {KA_WSP}
                s_mov_b32 s{sWI+2}, {2048*4096}
                s_lshr_b32 s{sT+8}, s2, 3
                s_sub_u32 s{sT+8}, s{sT+8}, 4
                s_lshl_b32 s{sT+8}, s{sT+8}, 2
                s_add_u32 s{sT+8}, s{sT+8}, s{sUn}
                s_min_u32 s{sT+8}, s{sT+8}, 85
                s_mul_i32 s{sT+8}, s{sT+8}, {3*8192}
                s_and_b32 s{sT+9}, s2, 3
                s_lshl_b32 s{sT+9}, s{sT+9}, 21
                s_add_u32 s{sT+8}, s{sT+8}, s{sT+9}
                v_lshlrev_b32 v6, 7, v{vLane}
                s_waitcnt lgkmcnt(0)
                """)
            if 'qwsp' in X and W0 <= i < W0 + 3:
                k(f"buffer_load_dword v{vGR+i-W0}, v6, {sr(sWI,4)}, s{sT+8} offen\ns_add_u32 s{sT+8}, s{sT+8}, 8192")
            if i == 3:
                L = k.newlabel("notag")
                k(f"s_cmp_lg_u32 s{sW}, 4\ns_cbranch_scc1 {L}")
                poll_tag(k, True)
                k(f"v_mov_b32 v{t0}, {L_TAG}\nds_write_b32 v{t0}, v{vTag}\n{L}:")
    k(f"s_cmp_ge_u32 s{sCG}, 12\ns_cbranch_scc1 k1_fin0\ns_setprio {0 if 'zprio' in X else 2}")
    k.label("k1_main")
    main_loop(k)
    stamp(k, 2)
    k(f"s_cmp_eq_u32 s{sRH}, 0\ns_cbranch_scc0 k1_q")
    z_epilogue(k)
    k("s_branch k1_fin")
    k.label("k1_q")
    q_epilogue(k)
    k("s_branch k1_clb")
    k.label("k1_loader")
    loader(k)
    stamp(k, 2)
    k("s_branch k1_fin")
    k.label("k1_helper")
    k(f"""
    s_waitcnt lgkmcnt(0)
    v_mov_b32 v{vTag}, 0
    s_or_b32 s{sT+4}, s2, s{sW}
    s_cmp_lg_u32 s{sT+4}, 0
    s_cbranch_scc1 k1_nonce_done
    s_or_b32 s{sT+14}, s{sT+14}, 1
    v_mov_b32 v{vTag}, s{sT+14}
    v_lshlrev_b32 v{t3}, 2, v{vLane}
    buffer_store_dword v{vTag}, v{t3}, {sr(sDBG,4)}, 0 offen offset:128 sc0 sc1
    k1_nonce_done:
    """)
    if 'sweep' in X:
        k(f"""
        s_mul_i32 s{sT}, s2, 12
        s_add_u32 s{sT}, s{sT}, s{sW}
        s_lshl_b32 s{sT+1}, s{sT}, 13
        v_lshlrev_b32 v{t0}, 7, v{vLane}
        s_sub_u32 s{sT+2}, {383*8192}, s{sT+1}
        buffer_load_dword v{vT+9}, v{t0}, {sr(sXS,4)}, s{sT+2} offen
        """)
    helper(k)
    k("s_branch k1_fin")
    k.label("k1_fin0")
    k("s_waitcnt lgkmcnt(0)\ns_barrier")
    if FUSED:
        for t in range(7):
            k("s_barrier")
    k.label("k1_clb")
    if FUSED and CLAIM:
        k(f"s_cmp_lg_u32 s{sW}, 5\ns_cbranch_scc1 k1_fin")
        claim_id(k, "b")
    k.label("k1_fin")
    if STAMP:
        k("s_waitcnt vmcnt(0)")
    stamp(k, 3)
    stamp_store(k, 6)
    if FUSED:
        return k
    k("""
    k1_end:
    s_endpgm
    """)
    k.finish()
    return k


if __name__ == "__main__":
    import sys
    STAMP = "stamp" in sys.argv
    k = gen_k1()
    print(build_file("; test", [("k1_kernel", 256, 768, LDS_K1)], [k]))
```

```python
import os
import struct
from asmlib import *
from layout import *

X = set(os.environ.get('K1X', '').split(','))
STAGE = 32768
NS = 4
O_W = 16384
L_IMG = NS * STAGE
L_TAG = L_IMG + 16384
L_CSW = L_TAG + 256
L_RS = L_CSW + 4096
LDS_K1 = L_RS + 1024

vLane = 1
vL16 = 2
vDX, vDW = 3, 5
vAX = 9
vAW = 13
vTag = 15
vT = 16
ACC = 32
FX = 96
FW = 108
vGR = 156
vGC = 160
vGA = 164
vK = 0

sWS, sXS, sWW, sWI, sDBG = 4, 8, 12, 16, 20
sW, sRH, sRB, sCG, sUn = 24, 25, 26, 27, 28
sKX, sKW, sKQ = 29, 30, 31
sMX, sMW = 32, 33
sKind, sIdx, sT32, sGU = 34, 35, 36, 37
sCSo = 38
sT = 40
sSpin = 61

C0 = -2.0 * 1.4426950408889634 * 0.7978845608028654
C1 = C0 * 0.044715
QS = 0.25 * 1.4426950408889634
STAMP = False
FUSED = False
CLAIM = 'claim' in X
sTagS = 99
WT = os.environ.get('WT', '')
BC = "op_sel_hi:[1,0]"


def f32(x):
    return "0x%08x" % struct.unpack("<I", struct.pack("<f", x))[0]


def stamp(k, i):
    if STAMP:
        if i == 0:
            k("s_memrealtime s[80:81]")
        if i == 3:
            k("s_memrealtime s[82:83]")
        k(f"s_memtime {sr(64+2*i,2)}\ns_waitcnt lgkmcnt(0)")


def stamp_store(k, n):
    if not STAMP:
        return
    k(f"s_mul_i32 s62, s2, 12\ns_add_u32 s62, s62, s{sW}\ns_lshl_b32 s62, s62, 5\ns_add_u32 s62, s62, {WS_STAMP}")
    for i in range(n):
        k(f"s_sub_u32 s63, s{64+2*i}, s64\nv_mov_b32 v{vT}, s63\nv_mov_b32 v{vT+1}, 0\nbuffer_store_dword v{vT}, v{vT+1}, {sr(sWS,4)}, s62 offen offset:{4*i}")
    for j, r in ((6, 80), (7, 82)):
        k(f"v_mov_b32 v{vT}, s{r}\nv_mov_b32 v{vT+1}, 0\nbuffer_store_dword v{vT}, v{vT+1}, {sr(sWS,4)}, s62 offen offset:{4*j}")


def mfma32(d, a, b, c):
    cs = "0" if c is None else vr(c, 16)
    return f"v_mfma_f32_32x32x16_bf16 {vr(d,16)}, {vr(a,4)}, {vr(b,4)}, {cs}"


def dma(t):
    base = (t % NS) * STAGE
    out = []
    for j in range(4):
        e = f"s_add_u32 m0, s{sMX}, {base+1024*j}\n"
        if j == 2:
            e += f"s_add_u32 s{sT}, s{sKX}, 16384\n"
        e += f"buffer_load_dwordx4 v{vDX+j%2}, {sr(sXS,4)}, s{sT if j >= 2 else sKX} offen lds"
        out.append(e)
    srd, so, va, pitch = (sWI, sKW, vDW, 3584) if t < 8 else (sWW, sKQ, vDW + 1, 3072)
    for j in range(4):
        e = (f"s_add_u32 m0, s{sMW}, {base+1024*j}\nbuffer_load_dwordx4 v{va}, {sr(srd,4)}, s{so} offen lds\n"
             f"s_add_u32 s{so}, s{so}, {pitch*(8 if j < 3 else 40)}")
        if j == 3:
            e += (f"\ns_add_u32 s{sKX}, s{sKX}, 128\ns_and_b32 s{sKX}, s{sKX}, 1023\n"
                  f"s_cselect_b32 s{sT}, 0, {512*pitch}\ns_sub_u32 s{so}, s{so}, s{sT}")
        out.append(e)
    return out


def loader(k):
    t0, t1, t2, t3 = vT, vT + 1, vT + 2, vT + 3
    k(f"""
    s_setprio 3
    s_lshl_b32 s{sMX}, s{sUn}, 12
    v_lshrrev_b32 v{t0}, 3, v{vLane}
    v_and_b32 v{t1}, 7, v{vLane}
    v_lshrrev_b32 v{t2}, 1, v{t0}
    v_xor_b32 v{t2}, v{t2}, v{t1}
    v_lshlrev_b32 v{t2}, 4, v{t2}
    v_lshl_add_u32 v{t2}, v{t0}, 10, v{t2}
    s_lshl_b32 s{sT+5}, s{sRB}, 17
    s_lshl_b32 s{sT+6}, s{sUn}, 15
    s_add_u32 s{sT+5}, s{sT+5}, s{sT+6}
    v_add_u32 v{vDX}, s{sT+5}, v{t2}
    v_xor_b32 v{t2}, 64, v{t2}
    s_add_u32 s{sT+5}, s{sT+5}, 8192
    v_add_u32 v{vDX+1}, s{sT+5}, v{t2}
    ; W: chunk = (l%8) ^ (4*((row>>1)&1)), row = l/8
    v_lshlrev_b32 v{t2}, 1, v{t0}
    v_and_b32 v{t2}, 4, v{t2}
    v_xor_b32 v{t2}, v{t2}, v{t1}
    v_lshlrev_b32 v{t2}, 4, v{t2}
    v_mul_u32_u24 v{t3}, 3584, v{t0}
    v_add_u32 v{vDW}, v{t3}, v{t2}
    v_mul_u32_u24 v{t3}, 3072, v{t0}
    v_add_u32 v{vDW+1}, v{t3}, v{t2}
    s_lshr_b32 s{sT+1}, s{sUn}, 1
    s_and_b32 s{sT+2}, s{sUn}, 1
    s_lshl_b32 s{sKW}, s{sCG}, 7
    s_cmp_eq_u32 s{sT+1}, 0
    s_cselect_b32 s{sT+3}, 1792, 0
    s_add_u32 s{sKW}, s{sKW}, s{sT+3}
    s_mul_i32 s{sT+3}, s{sT+2}, {32*3584}
    s_add_u32 s{sKW}, s{sKW}, s{sT+3}
    s_lshl_b32 s{sKQ}, s{sCG}, 8
    s_lshl_b32 s{sT+3}, s{sT+1}, 7
    s_add_u32 s{sKQ}, s{sKQ}, s{sT+3}
    s_mul_i32 s{sT+3}, s{sT+2}, {32*3072}
    s_add_u32 s{sKQ}, s{sKQ}, s{sT+3}
    s_add_u32 s{sMW}, s{sMX}, {O_W}
    s_and_b32 s{sT+3}, s2, {7 if 'rot' in X else (6 if 'rot6' in X else 0)}
    s_lshl_b32 s{sKX}, s{sT+3}, 7
    s_mul_i32 s{sT+4}, s{sT+3}, {64*3584}
    s_add_u32 s{sKW}, s{sKW}, s{sT+4}
    s_mul_i32 s{sT+4}, s{sT+3}, {64*3072}
    s_add_u32 s{sKQ}, s{sKQ}, s{sT+4}
    s_waitcnt lgkmcnt(0)
    """)
    for a in dma(0):
        k(a, tag=("st", 0))
    for a in dma(1):
        k(a, tag=("st", 1))
    stamp(k, 1)
    for t in range(16):
        if t == 5:
            k(f"s_cmp_ge_u32 s{sCG}, 12\ns_cbranch_scc1 k1_ltail")
        k.wait_tag(("st", t))
        k("s_waitcnt lgkmcnt(0)\ns_barrier")
        if 'prof' in X:
            k(f"s_memtime s[84:85]\ns_memrealtime s[86:87]\ns_waitcnt lgkmcnt(0)\nv_writelane_b32 v40, s84, {t}\nv_writelane_b32 v41, s86, {t}")
        if t == 0:
            for a in dma(2):
                k(a, tag=("st", 2))
        if t + 3 < 16 and 'nodma' not in X:
            for a in dma(t + 3):
                k(a, tag=("st", t + 3))
    if 'prof' in X:
        k(f"""
        v_writelane_b32 v40, s64, 16
        v_writelane_b32 v41, s80, 16
        s_lshl_b32 s88, s2, 9
        s_add_u32 s88, s88, {WS_STAMP + 3*262144}
        v_lshlrev_b32 v42, 3, v{vLane}
        buffer_store_dwordx2 v[40:41], v42, {sr(sWS,4)}, s88 offen
        """)
    k("s_branch k1_ldone")
    k.label("k1_ltail")
    for t in range(5, 8):
        k.wait_tag(("st", t))
        k("s_barrier")
    if FUSED:
        for t in range(8):
            k("s_barrier")
    k.label("k1_ldone")
    k(f"v_mov_b32 v{t0}, {L_TAG}\nds_read_b32 v{vTag}, v{t0}\nv_readfirstlane_b32 s{sTagS}, v{vTag}")


def reads(ks, buf):
    out = [f"ds_read_b128 {vr(FX+4*buf,4)}, v{vAX+ks}"]
    for c in range(4):
        d = FW + 16 * buf + 4 * c
        o = (c // 2) * 8192 + ks * 2048
        out.append(f"ds_read_b64_tr_b16 {vr(d,2)}, v{vAW+c%2} offset:{o}")
        out.append(f"ds_read_b64_tr_b16 {vr(d+2,2)}, v{vAW+c%2} offset:{o+512}")
    return out


def mms(buf, first):
    return [mfma32(ACC + 16 * c, FW + 16 * buf + 4 * c, FX + 4 * buf, None if first else ACC + 16 * c) for c in range(4)]


def gather_loads():
    e = ""
    if 'lrs' not in X:
        e = f"buffer_load_dwordx4 {vr(vGR,4)}, v{vGA}, {sr(sWS,4)}, 0 offen sc0 sc1\n"
    for un in range(2):
        e += f"buffer_load_dwordx2 {vr(vGC+2*un,2)}, v{vGA+1}, {sr(sWS,4)}, s{sCSo+un} offen sc0 sc1\n"
    return e


def check_tags(k, regs, Lok, tmp):
    k(f"v_xor_b32 v{tmp}, v{regs[0]}, v{vTag}")
    for r in regs[1:]:
        k(f"v_xor_b32 v{tmp+1}, v{r}, v{vTag}\nv_or_b32 v{tmp}, v{tmp}, v{tmp+1}")
    k(f"v_cmp_ne_u32 vcc, 0, v{tmp}\ns_cmp_eq_u64 vcc, 0\ns_cbranch_scc1 {Lok}")


def poll_tag(k, first_issued):
    Lr, Lok, Lc, Ln = k.newlabel("tagpoll"), k.newlabel("tagok"), k.newlabel("tagchk"), k.newlabel("tagno")
    if first_issued:
        k(f"s_branch {Lc}")
    k(f"""
    {Lr}:
    buffer_load_dword v{vTag}, v{vGA+2}, {sr(sDBG,4)}, 0 offen sc0 sc1
    {Lc}:
    v_readfirstlane_b32 s{sT}, v{vTag}
    s_cmp_eq_u32 s{sT}, 0
    s_cbranch_scc1 {Ln}
    s_sub_u32 s{sT+13}, s{sT+14}, s{sT}
    s_add_u32 s{sT+13}, s{sT+13}, 100000
    s_cmp_lt_u32 s{sT+13}, 102000
    s_cbranch_scc1 {Lok}
    s_cmp_lt_u32 s{sSpin}, 197000
    s_cbranch_scc1 {Lok}
    {Ln}:
    s_sleep 2
    s_sub_u32 s{sSpin}, s{sSpin}, 1
    s_cbranch_scc0 {Lr}
    {Lok}:
    """)


def claim_id(k, part="ab"):
    t0, t1 = 6, 7
    issue = f"""
    s_and_b32 s{sT+8}, s{sT+8}, 7
    s_lshl_b32 s{sT+10}, s{sT+8}, 4
    v_mov_b32 v{t0}, s{sT+10}
    v_mov_b32 v{t1}, 1
    s_mov_b64 exec, 1
    buffer_atomic_add v{t1}, v{t0}, {sr(sDBG,4)}, 0 offen sc0 sc1
    s_mov_b64 exec, -1
    """
    if "a" in part:
        k(f"s_getreg_b32 s{sT+8}, hwreg(HW_REG_XCC_ID)\ns_mov_b32 s{sT+9}, 8")
        k(issue)
    if "b" in part:
        Lr, Lok, Ld = k.newlabel("clm"), k.newlabel("clmok"), k.newlabel("clmd")
        k(f"""
        {Lr}:
        v_readfirstlane_b32 s{sT+10}, v{t1}
        s_cmp_lt_u32 s{sT+10}, 32
        s_cbranch_scc1 {Lok}
        s_mov_b32 s{sT+10}, s2
        s_sub_u32 s{sT+9}, s{sT+9}, 1
        s_cmp_eq_u32 s{sT+9}, 0
        s_cbranch_scc1 {Ld}
        s_add_u32 s{sT+8}, s{sT+8}, 1
        """)
        k(issue)
        k(f"""
        s_branch {Lr}
        {Lok}:
        s_lshl_b32 s{sT+10}, s{sT+10}, 3
        s_add_u32 s{sT+10}, s{sT+10}, s{sT+8}
        {Ld}:
        v_mov_b32 v{t0}, {L_TAG+4}
        v_mov_b32 v{t1}, s{sT+10}
        ds_write_b32 v{t0}, v{t1}
        """)


def main_loop(k):
    t0 = vT
    LA = 2
    for p in range(8):
        k("s_waitcnt lgkmcnt(0)\ns_barrier")
        if p > 0:
            step = STAGE if p % NS else -(NS - 1) * STAGE
            for r in (vAX, vAX + 1, vAX + 2, vAX + 3, vAW, vAW + 1):
                k(f"v_add_u32 v{r}, {step & 0xffffffff:#x}, v{r}")
        for ks in range(4):
            g = 4 * p + ks
            r = reads(ks, g % 3)
            m = mms((g - LA) % 3, g - LA == 0) if g >= LA else []
            seq = interleave(m, r) if ks < 3 else (m[:1] + r[:5] + m[1:2] + r[5:] + m[2:])
            for a in seq:
                k(a)
            if p == 5 and ks == 0:
                k(f"v_mov_b32 v{t0}, {L_TAG}\nds_read_b32 v{vTag}, v{t0}")
            if p == 6 and ks == 2:
                k(gather_loads())
    for g in range(32 - LA, 32):
        for a in mms(g % 3, False):
            k(a)


def row_stats(k):
    t0, t1, t2, t3 = vT, vT + 1, vT + 2, vT + 3
    S = ACC
    D = ACC + 8
    U = ACC + 40
    for i in range(4):
        k(f"v_mov_b32 v{S+i}, 0")
    if 'rprio' in X:
        k("s_setprio 2")

    def crunch(b):
        for i in range(16):
            u = U + 2 * (i % 4)
            k(f"""
            v_lshlrev_b32 v{u}, 16, v{D+16*b+i}
            v_and_b32 v{u+1}, 0xffff0000, v{D+16*b+i}
            v_add_f32 v{S}, v{S}, v{u}
            v_add_f32 v{S+1}, v{S+1}, v{u+1}
            v_fmac_f32 v{S+2}, v{u}, v{u}
            v_fmac_f32 v{S+3}, v{u+1}, v{u+1}
            """)
    for p in range(8):
        k("s_waitcnt lgkmcnt(0)\ns_barrier")
        o = (p % 2) * STAGE
        if p in (2, 6):
            for r in range(4):
                k(f"v_add_u32 v{vAX+r}, {2*STAGE}, v{vAX+r}")
        if p == 4:
            for r in range(4):
                k(f"v_subrev_u32 v{vAX+r}, {2*STAGE}, v{vAX+r}")
        for ks in range(4):
            k(f"ds_read_b128 {vr(D+16*(p%2)+4*ks,4)}, v{vAX+ks} offset:{o}")
        if 'nocr' not in X:
            crunch(p % 2)
    for r in range(4):
        k(f"v_subrev_u32 v{vAX+r}, {2*STAGE}, v{vAX+r}")
    k(f"""
    v_add_f32 v{S}, v{S}, v{S+1}
    v_add_f32 v{S+2}, v{S+2}, v{S+3}
    v_mov_b32 v{t0}, v{S}
    v_mov_b32 v{t1}, v{S+2}
    v_permlane32_swap_b32 v{S}, v{t0}
    v_permlane32_swap_b32 v{S+2}, v{t1}
    v_add_f32 v{t0}, v{t0}, v{S}
    v_add_f32 v{t1}, v{t1}, v{S+2}
    v_mul_f32 v{t0}, {f32(1.0/512)}, v{t0}
    v_mul_f32 v{t1}, {f32(1.0/512)}, v{t1}
    v_fma_f32 v{t1}, -v{t0}, v{t0}, v{t1}
    v_max_f32 v{t1}, 0, v{t1}
    v_add_f32 v{t1}, {f32(1e-5)}, v{t1}
    v_rsq_f32 v{t1}, v{t1}
    v_mul_f32 v{t0}, v{t0}, v{t1}
    ds_write_b32 v{vGA}, v{t1}
    ds_write_b32 v{vGA}, v{t0} offset:512
    """)


def epi_addr(k):
    t0, t1, t2, t3 = vT, vT + 1, vT + 2, vT + 3
    k(f"""
    s_lshl_b32 s{sT}, s{sW}, 9
    s_add_u32 s{sT}, s{sT}, {L_CSW}
    v_lshlrev_b32 v{t0}, 2, v{vLane}
    v_add_u32 v{vT+4}, s{sT}, v{t0}
    v_lshrrev_b32 v{t2}, 5, v{vLane}             ; h
    v_lshlrev_b32 v{vT+6}, 5, v{t2}
    v_add_u32 v{vT+6}, s{sT}, v{vT+6}
    v_lshlrev_b32 v{vT+5}, 3, v{vLane}
    v_mov_b32 v3, {f32(C0)}
    v_and_b32 v{t0}, 31, v{vLane}
    v_and_b32 v{t1}, 1, v{t0}
    v_bfe_u32 v{t3}, v{t0}, 1, 1
    v_lshl_or_b32 v{t1}, v{t3}, 2, v{t1}
    v_bfe_u32 v{t3}, v{t0}, 2, 1
    v_lshl_or_b32 v{t1}, v{t3}, 1, v{t1}
    v_xor_b32 v{t1}, v{t1}, v{t2}
    v_lshlrev_b32 v{t1}, 4, v{t1}
    v_lshl_add_u32 v{t1}, v{t0}, 7, v{t1}
    v_add_u32 v{vT+8}, s{sT+1}, v{t1}
    v_xor_b32 v{vT+9}, 32, v{vT+8}
    v_xor_b32 v{vT+10}, 64, v{vT+8}
    v_xor_b32 v{vT+11}, 96, v{vT+8}
    v_bfe_u32 v{t0}, v{vLane}, 2, 2
    v_and_b32 v{t1}, 1, v{t0}
    v_lshrrev_b32 v{t3}, 1, v{t0}
    v_lshl_or_b32 v{t1}, v{t3}, 2, v{t1}
    v_bfe_u32 v{t3}, v{vLane}, 4, 1
    v_lshlrev_b32 v{t3}, 1, v{t3}
    v_and_b32 v{vT+7}, 1, v{vLane}
    v_or_b32 v{t3}, v{t3}, v{vT+7}
    v_xor_b32 v{t1}, v{t1}, v{t3}
    v_lshlrev_b32 v{t1}, 4, v{t1}
    v_lshl_add_u32 v{t0}, v{t2}, 3, v{t0}
    v_lshl_add_u32 v{t1}, v{t0}, 7, v{t1}
    v_bfe_u32 v{t3}, v{vLane}, 1, 1
    v_lshl_add_u32 v{t1}, v{t3}, 3, v{t1}
    v_add_u32 v{vT+12}, s{sT+1}, v{t1}
    v_xor_b32 v{vT+13}, 32, v{vT+12}
    v_xor_b32 v{vT+14}, 64, v{vT+12}
    v_xor_b32 v{vT+15}, 96, v{vT+12}
    v_and_b32 v{t0}, 15, v{vLane}
    v_lshlrev_b32 v{t0}, 4, v{t0}
    v_lshl_add_u32 v{t0}, v{t2}, 8, v{t0}
    v_bfe_u32 v{t3}, v{vLane}, 4, 1
    v_lshl_add_u32 v{vT+7}, v{t3}, 16, v{t0}
    """)


def get_stats(k):
    t0 = vT
    tagregs = [vGC + 1, vGC + 3] + ([vGR + 1, vGR + 3] if 'lrs' not in X else [])
    Lr, Lok = k.newlabel("g1"), k.newlabel("g1ok")
    check_tags(k, tagregs, Lok, t0)
    k(f"{Lr}:\ns_sleep 2")
    k(gather_loads())
    check_tags(k, tagregs, Lok, t0)
    k(f"s_sub_u32 s{sSpin}, s{sSpin}, 1\ns_cbranch_scc0 {Lr}\n{Lok}:")
    k(f"ds_write_b32 v{vT+4}, v{vGC}\nds_write_b32 v{vT+4}, v{vGC+2} offset:256")
    if 'lrs' in X:
        k(f"ds_read_b32 v{vGR}, v{vGA}\nds_read_b32 v{vGR+2}, v{vGA} offset:512")
    k("s_waitcnt lgkmcnt(0)")


def cs_reads(un):
    out = []
    for c in range(4):
        out.append(f"ds_read_b128 {vr(FW+8*c,4)}, v{vT+6} offset:{un*256+c*64}")
        out.append(f"ds_read_b128 {vr(FW+8*c+4,4)}, v{vT+6} offset:{un*256+c*64+16}")
    return out


def pack(A):
    return [f"v_cvt_pk_bf16_f32 v{A+8*c+i}, v{A+8*c+2*i}, v{A+8*c+2*i+1}" for c in range(4) for i in range(4)]


def tr_store(k, A, lane_reg, s0, kstride):
    for c in range(4):
        k(f"ds_write_b128 v{vT+8+c}, {vr(A+8*c,4)}")
    k(f"s_add_u32 s{sT+3}, s{s0}, 131072\ns_waitcnt lgkmcnt(0)")
    for ct in range(2):
        for ks in range(2):
            d = A + 8 * ct + 4 * ks
            k(f"ds_read_b64_tr_b16 {vr(d,2)}, v{vT+12+2*ct} offset:{ks*2048}")
            k(f"ds_read_b64_tr_b16 {vr(d+2,2)}, v{vT+13+2*ct} offset:{ks*2048+512}")
    for ct in range(2):
        for ks in range(2):
            k(f"buffer_store_dwordx4 {vr(A+8*ct+4*ks,4)}, v{lane_reg}, {sr(sWS,4)}, s{(s0, sT+3)[ct]} offen offset:{ks*kstride} {WT}")


def z_epilogue(k):
    t0, t1, t2, t3 = vT, vT + 1, vT + 2, vT + 3
    k("s_barrier")
    if 'zprio' in X:
        k("s_setprio 2")
    get_stats(k)
    k(f"s_mov_b32 s{sT+10}, {f32(C1)}")
    if 'zpk' in X:
        k(f"v_mov_b32 v4, v{vGR}\nv_mov_b32 v5, v{vGR+2}\nv_mov_b32 v6, {f32(C0)}\nv_mov_b32 v7, {f32(C1)}")
    S = FX

    def unit_ops(un):
        A = ACC + 32 * un
        ops = list(cs_reads(un))
        if 'zpk' in X:
            P = range(0, 32, 2)
            ops += [f"v_pk_mul_f32 {vr(A+i,2)}, {vr(A+i,2)}, v[4:5] {BC}" for i in P]
            ops += [f"v_pk_fma_f32 {vr(A+i,2)}, {vr(FW+i,2)}, v[4:5], {vr(A+i,2)} op_sel:[0,1,0] op_sel_hi:[1,1,1] neg_lo:[1,0,0] neg_hi:[1,0,0]" for i in P]
            ops += [f"v_pk_mul_f32 {vr(FW+i,2)}, {vr(A+i,2)}, {vr(A+i,2)}" for i in P]
            ops += [f"v_pk_fma_f32 {vr(FW+i,2)}, {vr(FW+i,2)}, v[6:7], v[6:7] op_sel:[0,1,0] op_sel_hi:[1,1,0]" for i in P]
            ops += [f"v_pk_mul_f32 {vr(FW+i,2)}, {vr(FW+i,2)}, {vr(A+i,2)}" for i in P]
            ops += [f"v_exp_f32 v{FW+i}, v{FW+i}" for i in range(32)]
            ops += [f"v_pk_add_f32 {vr(FW+i,2)}, {vr(FW+i,2)}, 1.0 op_sel_hi:[1,0]" for i in P]
            ops += [f"v_rcp_f32 v{FW+i}, v{FW+i}" for i in range(32)]
            ops += [f"v_pk_mul_f32 {vr(A+i,2)}, {vr(A+i,2)}, {vr(FW+i,2)}" for i in P]
            return ops
        for i in range(32):
            ops.append(f"v_mul_f32 v{A+i}, v{A+i}, v{vGR}")
        for i in range(32):
            ops.append(f"v_fma_f32 v{A+i}, -v{vGR+2}, v{FW+i}, v{A+i}")
        for h in range(2):
            R = [A + 16 * h + i for i in range(16)]
            T = [FW + i for i in range(16)]
            ops += [f"v_mul_f32 v{t}, v{r}, v{r}" for r, t in zip(R, T)]
            ops += [f"v_fma_f32 v{t}, v{t}, s{sT+10}, v3" for r, t in zip(R, T)]
            ops += [f"v_mul_f32 v{t}, v{t}, v{r}" for r, t in zip(R, T)]
            ops += [f"v_exp_f32 v{t}, v{t}" for r, t in zip(R, T)]
            ops += [f"v_add_f32 v{t}, 1.0, v{t}" for r, t in zip(R, T)]
            ops += [f"v_rcp_f32 v{t}, v{t}" for r, t in zip(R, T)]
            ops += [f"v_mul_f32 v{r}, v{r}, v{t}" for r, t in zip(R, T)]
        return ops

    ops = unit_ops(0)
    A = ACC
    ops += [f"v_add_f32 v{S}, v{A}, v{A+1}", f"v_mul_f32 v{S+2}, v{A}, v{A}", f"v_add_f32 v{S+1}, v{A+2}, v{A+3}",
            f"v_mul_f32 v{S+3}, v{A+1}, v{A+1}", f"v_fmac_f32 v{S+2}, v{A+2}, v{A+2}", f"v_fmac_f32 v{S+3}, v{A+3}, v{A+3}"]
    for i in range(4, 32):
        ops += [f"v_add_f32 v{S+i%2}, v{S+i%2}, v{A+i}", f"v_fmac_f32 v{S+2+i%2}, v{A+i}, v{A+i}"]
    ops.append(f"""
    v_add_f32 v{S}, v{S}, v{S+1}
    v_add_f32 v{S+2}, v{S+2}, v{S+3}
    v_permlane32_swap_b32 v{S}, v{S+2}
    v_add_f32 v{S}, v{S}, v{S+2}
    v_mov_b32 v{S+1}, v{vTag}
    s_mul_i32 s{sT+4}, s{sT32}, {14*512}
    s_add_u32 s{sT+4}, s{sT+4}, {WS_S2}
    s_lshl_b32 s{sT+1}, s{sCG}, 9
    s_add_u32 s{sT+1}, s{sT+1}, s{sT+4}
    buffer_store_dwordx2 {vr(S,2)}, v{vT+5}, {sr(sWS,4)}, s{sT+1} offen sc0 sc1
    """)
    n0 = len(ops)
    ops += unit_ops(1)
    ops += pack(ACC + 32)
    G = FW

    def g2loads():
        e = ""
        for i in range(7):
            if i % 4 == 0:
                e += f"s_add_u32 s{sT}, s{sT+4}, {1024*i}\n"
            e += f"buffer_load_dwordx4 {vr(G+4*i,4)}, v{vL16}, {sr(sWS,4)}, s{sT} offen offset:{1024*(i%4)} sc0 sc1\n"
        return e
    ops.insert(len(ops) - 16, g2loads())
    e = f"""
    s_mul_i32 s{sT+1}, s{sT32}, {56*1024}
    s_lshl_b32 s{sT+2}, s{sCG}, 12
    s_add_u32 s{sT+1}, s{sT+1}, s{sT+2}
    s_add_u32 s{sT+1}, s{sT+1}, {WS_Z1}
    """
    for c in range(4):
        e += f"buffer_store_dwordx4 {vr(ACC+32+8*c,4)}, v{vL16}, {sr(sWS,4)}, s{sT+1} offen offset:{1024*c} {WT}\n"
    ops.append(e)
    cost = [2 if o.startswith(("v_exp", "v_rcp", "v_pk")) else (3 if o.startswith("ds_") else (25 if "\n" in o else 1)) for o in ops]
    HEAD = int(os.environ.get('ZHEAD', '70'))
    NB1 = int(os.environ.get('ZNB', '5'))
    tot = sum(cost) + HEAD
    acc, nxt, placed = HEAD, 1, 0
    for i, (o, c) in enumerate(zip(ops, cost)):
        if not ('noz' in X and o.startswith('v_')):
            k(o)
        if i == n0 - 1:
            stamp(k, 4)
        acc += c
        if placed < NB1 and acc >= tot * nxt / NB1 - 1e-9:
            k("s_barrier")
            placed += 1
            nxt += 1
    assert placed == NB1
    rest = 7 - NB1
    stamp(k, 5)
    Lr, Lok = k.newlabel("g2"), k.newlabel("g2ok")
    check_tags(k, [G + 2 * j + 1 for j in range(14)], Lok, t0)
    k(f"{Lr}:")
    k(g2loads())
    check_tags(k, [G + 2 * j + 1 for j in range(14)], Lok, t0)
    k(f"s_sleep 1\ns_sub_u32 s{sSpin}, s{sSpin}, 1\ns_cbranch_scc0 {Lr}\n{Lok}:")
    stamp(k, 1)
    for i in range(1, 7):
        k(f"v_add_f32 v{G}, v{G}, v{G+4*i}\nv_add_f32 v{G+2}, v{G+2}, v{G+4*i+2}")
    k(f"""
    v_mov_b32 v{t0}, v{G}
    v_mov_b32 v{t1}, v{G+2}
    v_permlane32_swap_b32 v{G}, v{t0}
    v_permlane32_swap_b32 v{G+2}, v{t1}
    v_add_f32 v{G}, v{G}, v{t0}
    v_add_f32 v{G+1}, v{G+2}, v{t1}
    s_lshl_b32 s{sT}, s{sW}, 9
    s_add_u32 s{sT}, s{sT}, {L_CSW}
    v_and_b32 v{t2}, 31, v{vLane}
    v_lshlrev_b32 v{t3}, 3, v{t2}
    v_add_u32 v{t3}, s{sT}, v{t3}
    ds_write_b64 v{t3}, {vr(G,2)}
    v_lshlrev_b32 v{t3}, 2, v{t2}
    v_add_u32 v{t3}, s{sT}, v{t3}
    s_waitcnt lgkmcnt(0)
    ds_read_b32 v{t0}, v{t3}
    ds_read_b32 v{t1}, v{t3} offset:128
    s_lshl_b32 s{sT}, s{sCG}, 18
    s_lshl_b32 s{sT+1}, s{sT32}, 11
    s_add_u32 s{sT}, s{sT}, s{sT+1}
    s_add_u32 s{sT}, s{sT}, {WS_Z2}
    v_mul_f32 v{t0}, {f32(1.0/896)}, v{t0}
    v_mul_f32 v{t1}, {f32(1.0/896)}, v{t1}
    v_fma_f32 v{t1}, -v{t0}, v{t0}, v{t1}
    v_max_f32 v{t1}, 0, v{t1}
    v_add_f32 v{t1}, {f32(1e-5)}, v{t1}
    v_rsq_f32 v{t1}, v{t1}
    v_mul_f32 v{t0}, v{t0}, v{t1}
    """)
    if rest >= 1:
        k("s_barrier")
    for i in range(32):
        k(f"v_fma_f32 v{A+i}, v{A+i}, v{t1}, -v{t0}")
    for o in pack(A):
        k(o)
    tr_store(k, A, vL16, sT, 1024)
    for i in range(rest - 1):
        k("s_barrier")


def q_epilogue(k):
    get_stats(k)
    k(f"""
    s_cmp_eq_u32 s{sKind}, 0
    s_cselect_b32 s{sT}, {f32(QS)}, 1.0
    v_mul_f32 v4, s{sT}, v{vGR}
    v_mul_f32 v5, s{sT}, v{vGR+2}
    s_lshl_b32 s{sT}, s{sCG}, 19
    s_lshl_b32 s{sT+1}, s{sT32}, 10
    s_add_u32 s{sT}, s{sT}, s{sT+1}
    s_add_u32 s{sT}, s{sT}, {WS_Q}
    """)
    for un in range(2):
        A = ACC + 32 * un
        for o in cs_reads(un):
            k(o)
        for i in range(0, 32, 2):
            k(f"v_pk_mul_f32 {vr(A+i,2)}, {vr(A+i,2)}, v[4:5] {BC}")
        for i in range(0, 32, 2):
            k(f"v_pk_fma_f32 {vr(A+i,2)}, {vr(FW+i,2)}, v[4:5], {vr(A+i,2)} op_sel:[0,1,0] op_sel_hi:[1,1,1] neg_lo:[1,0,0] neg_hi:[1,0,0]")
        for o in pack(A):
            k(o)
        Lv, Ld = k.newlabel("qv"), k.newlabel("qd")
        k(f"s_cmp_eq_u32 s{sKind}, 2\ns_cbranch_scc1 {Lv}")
        for c in range(4):
            k(f"buffer_store_dwordx4 {vr(A+8*c,4)}, v{vL16}, {sr(sWS,4)}, s{sT} offen {WT}\ns_add_u32 s{sT}, s{sT}, 65536")
        k(f"s_branch {Ld}\n{Lv}:")
        tr_store(k, A, vT + 7, sT, 512)
        k(f"s_add_u32 s{sT}, s{sT}, 262144\n{Ld}:")


def wave_allsum(k, regs, tmps):
    for sh in (8, 4, 2, 1):
        for r in regs:
            k(f"v_add_f32_dpp v{r}, v{r}, v{r} row_ror:{sh} row_mask:0xf bank_mask:0xf")
    for sw in ("v_permlane16_swap_b32", "v_permlane32_swap_b32"):
        for r, t in zip(regs, tmps):
            k(f"v_mov_b32 v{t}, v{r}")
        for r, t in zip(regs, tmps):
            k(f"{sw} v{r}, v{t}")
        for r, t in zip(regs, tmps):
            k(f"v_add_f32 v{r}, v{r}, v{t}")


def helper(k):
    t0, t1, t2, t3 = vT, vT + 1, vT + 2, vT + 3
    A = FX
    if 'lrs' not in X:
        D = ACC
        k(f"""
        s_cmp_lt_u32 s{sW}, 8
        s_cbranch_scc1 k1_hcol
        s_setprio 2
        s_lshl_b32 s{sT+6}, s2, 2
        s_add_u32 s{sT+6}, s{sT+6}, s{sW}
        s_sub_u32 s{sT+6}, s{sT+6}, 8
        s_lshl_b32 s{sT+7}, s{sT+6}, 14
        v_lshrrev_b32 v{t0}, 3, v{vLane}
        v_and_b32 v{t1}, 7, v{vLane}
        v_lshlrev_b32 v{t1}, 4, v{t1}
        v_lshl_add_u32 v{t1}, v{t0}, 10, v{t1}
        s_add_u32 s{sT+8}, s{sT+7}, 8192
        v_mov_b32 v3, 0x3f803f80
        """)
        for b in range(2):
            for i in range(8):
                k(f"buffer_load_dwordx4 {vr(D+32*b+4*i,4)}, v{t1}, {sr(sXS,4)}, s{sT+7+b} offen offset:{128*i}")
        k(f"buffer_load_dword v{vTag}, v{vGA+2}, {sr(sDBG,4)}, 0 offen sc0 sc1")
        for j in range(4):
            k(f"v_mov_b32 v{A+j}, 0")
        for b in range(2):
            for i in range(32):
                k(f"v_dot2c_f32_bf16 v{A+2*b}, v{D+32*b+i}, v3\nv_dot2c_f32_bf16 v{A+2*b+1}, v{D+32*b+i}, v{D+32*b+i}")
        for m in ("quad_perm:[1,0,3,2]", "quad_perm:[2,3,0,1]", "row_half_mirror"):
            for j in range(4):
                k(f"v_add_f32_dpp v{A+j}, v{A+j}, v{A+j} {m} row_mask:0xf bank_mask:0xf")
        k(f"""
        v_and_b32 v{t2}, 1, v{vLane}
        v_cmp_eq_u32 vcc, 1, v{t2}
        v_cndmask_b32 v{A}, v{A}, v{A+2}, vcc
        v_cndmask_b32 v{A+1}, v{A+1}, v{A+3}, vcc
        v_mul_f32 v{A}, {f32(1.0/512)}, v{A}
        v_mul_f32 v{A+1}, {f32(1.0/512)}, v{A+1}
        v_fma_f32 v{A+1}, -v{A}, v{A}, v{A+1}
        v_max_f32 v{A+1}, 0, v{A+1}
        v_add_f32 v{A+1}, {f32(1e-5)}, v{A+1}
        v_rsq_f32 v{D}, v{A+1}
        v_mul_f32 v{D+2}, v{D}, v{A}
        v_lshl_add_u32 v{t0}, v{t2}, 3, v{t0}
        v_lshlrev_b32 v{t0}, 4, v{t0}
        """)
        poll_tag(k, True)
        k(f"""
        v_mov_b32 v{D+1}, v{vTag}
        v_mov_b32 v{D+3}, v{vTag}
        s_lshl_b32 s{sT+7}, s{sT+6}, 8
        s_add_u32 s{sT+7}, s{sT+7}, {WS_RS}
        s_mov_b32 exec_lo, 0x03030303
        s_mov_b32 exec_hi, 0x03030303
        buffer_store_dwordx4 {vr(D,4)}, v{t0}, {sr(sWS,4)}, s{sT+7} offen sc0 sc1
        s_mov_b64 exec, -1
        s_setprio 0
        k1_hcol:
        """)
    k(f"""
    s_cmp_ge_u32 s2, 28
    s_cbranch_scc1 k1_hpre
    s_add_u32 s{sGU}, s2, 24
    s_min_u32 s{sT}, s2, 23
    s_lshl_b32 s{sT+1}, s2, 7
    s_lshl_b32 s{sT+2}, s{sT}, 7
    s_lshl_b32 s{sT+4}, s{sW}, 6
    s_sub_u32 s{sT+5}, s{sW}, 8
    s_lshl_b32 s{sT+5}, s{sT+5}, 7
    s_cmp_lt_u32 s{sW}, 8
    s_cselect_b32 s{sGU}, s{sGU}, s{sT}
    s_cselect_b32 s{sT+1}, s{sT+1}, s{sT+2}
    s_cselect_b32 s{sT+4}, s{sT+4}, s{sT+5}
    s_cselect_b32 s{sT+3}, 512, 0
    s_cselect_b32 s{sWW}, s{sWI}, s{sWW}
    s_cselect_b32 s{sWW+1}, s{sWI+1}, s{sWW+1}
    s_cselect_b32 s{sWW+2}, s{sWI+2}, s{sWW+2}
    s_add_u32 s{sT+3}, s{sT+3}, 3072             ; pitch
    v_lshrrev_b32 v{t0}, 3, v{vLane}
    v_add_u32 v{t0}, s{sT+4}, v{t0}
    v_mul_lo_u32 v{t0}, v{t0}, s{sT+3}
    v_and_b32 v{t1}, 7, v{vLane}
    v_lshl_add_u32 v{t0}, v{t1}, 4, v{t0}
    s_lshl_b32 s{sT+3}, s{sT+3}, 3
    """)

    def loads(b):
        for i in range(8):
            k(f"buffer_load_dwordx4 {vr(ACC+32*b+4*i,4)}, v{t0}, {sr(sWW,4)}, s{sT+1} offen")
            k(f"s_add_u32 s{sT+1}, s{sT+1}, s{sT+3}")

    def accum(b):
        for i in range(8):
            for r in range(4):
                src = ACC + 32 * b + 4 * i + r
                if i == 0 and b == 0:
                    k(f"v_lshlrev_b32 v{A+2*r}, 16, v{src}\nv_and_b32 v{A+2*r+1}, 0xffff0000, v{src}")
                else:
                    k(f"v_lshlrev_b32 v{t2}, 16, v{src}\nv_and_b32 v{t3}, 0xffff0000, v{src}\n"
                      f"v_pk_add_f32 {vr(A+2*r,2)}, {vr(A+2*r,2)}, {vr(t2,2)}")

    def reduce_write():
        regs = [A + i for i in range(8)]
        tm = [A + 8 + i for i in range(8)]
        for r in regs:
            k(f"v_add_f32_dpp v{r}, v{r}, v{r} row_ror:8 row_mask:0xf bank_mask:0xf")
        for sw in ("v_permlane16_swap_b32", "v_permlane32_swap_b32"):
            for r, t in zip(regs, tm):
                k(f"v_mov_b32 v{t}, v{r}")
            for r, t in zip(regs, tm):
                k(f"{sw} v{r}, v{t}")
            for r, t in zip(regs, tm):
                k(f"v_add_f32 v{r}, v{r}, v{t}")
        k(f"""
        s_lshl_b32 s{sT}, s{sW}, 8
        v_lshlrev_b32 v{t0}, 5, v{t1}
        v_add_u32 v{t0}, s{sT}, v{t0}
        ds_write_b128 v{t0}, {vr(A,4)}
        ds_write_b128 v{t0}, {vr(A+4,4)} offset:16
        s_waitcnt lgkmcnt(0)
        """)

    def publish(n):
        k(f"s_lshl_b32 s{sT}, s{sW}, 8\nv_lshlrev_b32 v{t0}, 2, v{vLane}\nv_add_u32 v{t0}, s{sT}, v{t0}")
        for i in range(n):
            k(f"ds_read_b32 v{A+i}, v{t0} offset:{256*i}")
        poll_tag(k, True)
        for i in range(1, n):
            k(f"v_add_f32 v{A}, v{A}, v{A+i}")
        k(f"""
        s_lshl_b32 s{sT}, s{sGU}, 9
        s_add_u32 s{sT}, s{sT}, {WS_CS}
        v_lshlrev_b32 v{t0}, 3, v{vLane}
        v_mov_b32 v{A+1}, v{vTag}
        buffer_store_dwordx2 {vr(A,2)}, v{t0}, {sr(sWS,4)}, s{sT} offen sc0 sc1
        """)
    loads(0)
    k(f"s_cmp_ge_u32 s{sW}, 8\ns_cbranch_scc1 k1_hq")
    k(f"s_setprio 2\nbuffer_load_dword v{vT+8}, v{vGA+2}, {sr(sDBG,4)}, 0 offen sc0 sc1")
    accum(0)
    reduce_write()
    k(f"s_barrier\ns_cmp_lg_u32 s{sW}, 0\ns_cbranch_scc1 k1_hz\nv_cmp_eq_u32 vcc, 0, v{vTag}\nv_cndmask_b32 v{vTag}, v{vTag}, v{vT+8}, vcc")
    publish(8)
    k.label("k1_hz")
    if FUSED:
        k("s_barrier")
    k("s_branch k1_hpre")
    k.label("k1_hq")
    loads(1)
    k("s_barrier")
    accum(0)
    accum(1)
    reduce_write()
    k(f"s_barrier\ns_cmp_lg_u32 s{sW}, 8\ns_cbranch_scc1 k1_hpre")
    publish(4)
    k.label("k1_hpre")
    if 'hwsp' in X:
        k(f"""
        s_load_dwordx2 {sr(sWI,2)}, s[0:1], {KA_WSP}
        s_mov_b32 s{sWI+2}, {2048*4096}
        s_lshr_b32 s{sT}, s2, 3
        s_mul_i32 s{sT}, s{sT}, 12
        s_add_u32 s{sT}, s{sT}, s{sW}
        s_min_u32 s{sT}, s{sT}, 42
        s_mul_i32 s{sT}, s{sT}, {6*8192}
        s_and_b32 s{sT+1}, s2, 3
        s_lshl_b32 s{sT+1}, s{sT+1}, 21
        s_add_u32 s{sT}, s{sT}, s{sT+1}
        v_lshlrev_b32 v{t0}, 7, v{vLane}
        s_sleep {os.environ.get('WSPD', '0')}
        s_waitcnt lgkmcnt(0)
        """)
        for i in range(6):
            k(f"buffer_load_dword v{ACC+i}, v{t0}, {sr(sWI,4)}, s{sT} offen\ns_add_u32 s{sT}, s{sT}, 8192")
    if FUSED:
        k(f"s_cmp_lg_u32 s{sW}, 8\ns_cbranch_scc1 k1_fin")
        poll_tag(k, True)
        k(f"s_mov_b32 s{sTagS}, s{sT}")
        if CLAIM:
            claim_id(k)


def gen_k1(k=None):
    if k is None:
        k = Kernel("k1_kernel")
    t0, t1, t2, t3 = vT, vT + 1, vT + 2, vT + 3
    stamp(k, 0)
    if STAMP:
        for i in (1, 2, 4, 5):
            k(f"s_mov_b64 {sr(64+2*i,2)}, s[64:65]")
    k(f"""
    s_cmp_ge_u32 s2, 256
    s_cbranch_scc1 {'fz_end' if FUSED else 'k1_end'}
    s_load_dwordx2 {sr(sXS,2)}, s[0:1], {KA_X}
    s_load_dwordx2 {sr(sWW,2)}, s[0:1], {KA_WQKV}
    s_load_dwordx2 {sr(sWI,2)}, s[0:1], {KA_WIN}
    s_load_dwordx2 {sr(sWS,2)}, s[0:1], {KA_WS}
    s_load_dwordx2 {sr(sDBG,2)}, s[0:1], {KA_DBG}
    s_memrealtime {sr(sT+14,2)}
    v_lshrrev_b32 v{t0}, 6, v0
    v_and_b32 v{vLane}, 63, v0
    v_readfirstlane_b32 s{sW}, v{t0}
    v_lshlrev_b32 v{vL16}, 4, v{vLane}
    s_mov_b32 s{sWS+2}, {WS_SIZE}
    s_mov_b32 s{sWS+3}, 0x00020000
    s_mov_b32 s{sXS+2}, {2048*1024}
    s_mov_b32 s{sXS+3}, 0x00020000
    s_mov_b32 s{sWW+2}, {512*3072}
    s_mov_b32 s{sWW+3}, 0x00020000
    s_mov_b32 s{sWI+2}, {512*3584}
    s_mov_b32 s{sWI+3}, 0x00020000
    s_mov_b32 s{sDBG+2}, 256
    s_mov_b32 s{sDBG+3}, 0x00020000
    s_mov_b32 s{sSpin}, 200000
    s_mov_b32 s{sTagS}, 0
    s_mov_b32 s98, 255
    s_and_b32 s{sT}, s2, 31
    s_lshl_b32 s{sT}, s{sT}, 2
    s_add_u32 s{sT}, s{sT}, 128
    v_mov_b32 v{vGA+2}, s{sT}
    s_cmp_lt_u32 s2, 32
    s_cbranch_scc1 k1_helper
    ; xcd = wg&7, j = (wg>>3) - 4 (0..27): rb = 4(xcd/2) + j/7, cg = 7(xcd%2) + j%7
    s_and_b32 s{sT}, s2, 7
    s_lshr_b32 s{sT+1}, s2, 3
    s_sub_u32 s{sT+1}, s{sT+1}, 4
    s_mul_i32 s{sT+5}, s{sT+1}, 37
    s_lshr_b32 s{sT+5}, s{sT+5}, 8
    s_mul_i32 s{sT+6}, s{sT+5}, 7
    s_sub_u32 s{sCG}, s{sT+1}, s{sT+6}
    s_and_b32 s{sT+2}, s2, 1
    s_mul_i32 s{sT+6}, s{sT+2}, 7
    s_add_u32 s{sCG}, s{sCG}, s{sT+6}
    s_lshr_b32 s{sRB}, s{sT}, 1
    s_lshl_b32 s{sRB}, s{sRB}, 2
    s_add_u32 s{sRB}, s{sRB}, s{sT+5}
    s_lshl_b32 s98, s{sRB}, 4
    s_add_u32 s98, s98, s{sCG}
    s_lshr_b32 s{sRH}, s{sW}, 2
    s_and_b32 s{sUn}, s{sW}, 3
    s_cmp_ge_u32 s{sW}, 8
    s_cbranch_scc1 k1_loader
    s_lshr_b32 s{sKind}, s{sCG}, 2
    s_cmp_eq_u32 s{sRH}, 0
    s_cselect_b32 s{sKind}, 4, s{sKind}
    s_add_u32 s{sT}, s{sCG}, 38
    s_add_u32 s{sT+1}, s{sCG}, 24
    s_lshl_b32 s{sT+2}, s{sCG}, 1
    s_add_u32 s{sT+3}, s{sT+2}, 1
    s_cmp_eq_u32 s{sRH}, 0
    s_cselect_b32 s{sT}, s{sT}, s{sT+2}
    s_cselect_b32 s{sT+1}, s{sT+1}, s{sT+3}
    s_lshl_b32 s{sCSo}, s{sT}, 9
    s_add_u32 s{sCSo}, s{sCSo}, {WS_CS}
    s_lshl_b32 s{sCSo+1}, s{sT+1}, 9
    s_add_u32 s{sCSo+1}, s{sCSo+1}, {WS_CS}
    s_lshl_b32 s{sT32}, s{sRB}, 2
    s_add_u32 s{sT32}, s{sT32}, s{sUn}
    v_and_b32 v{t0}, 31, v{vLane}
    v_and_b32 v{t1}, 0x13, v{t0}
    v_and_b32 v{t2}, 4, v{t0}
    v_lshl_or_b32 v{t1}, v{t2}, 1, v{t1}
    v_and_b32 v{t2}, 8, v{t0}
    v_lshrrev_b32 v{t2}, 1, v{t2}
    v_or_b32 v{t1}, v{t1}, v{t2}
    s_cmp_eq_u32 s{sKind}, 1
    s_cselect_b64 vcc, -1, 0
    v_cndmask_b32 v{t0}, v{t0}, v{t1}, vcc       ; tok
    v_lshrrev_b32 v{t1}, 5, v{vLane}             ; h
    v_bfe_u32 v{t2}, v{t0}, 1, 3
    v_xor_b32 v{t2}, v{t2}, v{t1}
    v_lshlrev_b32 v{t2}, 4, v{t2}
    v_lshl_add_u32 v{t2}, v{t0}, 7, v{t2}
    s_lshl_b32 s{sT}, s{sUn}, 12
    v_add_u32 v{vAX}, s{sT}, v{t2}
    v_xor_b32 v{vAX+1}, 32, v{vAX}
    v_xor_b32 v{vAX+2}, 64, v{vAX}
    v_xor_b32 v{vAX+3}, 96, v{vAX}
    s_lshl_b32 s{sT}, s{sUn if 'lrs' in X else sT32}, {7 if 'lrs' in X else 9}
    s_add_u32 s{sT}, s{sT}, {L_RS if 'lrs' in X else WS_RS}
    v_lshlrev_b32 v{t0}, {2 if 'lrs' in X else 4}, v{t0}
    v_add_u32 v{vGA}, s{sT}, v{t0}
    v_lshlrev_b32 v{vGA+1}, 3, v{vLane}
    v_bfe_u32 v{t0}, v{vLane}, 2, 2
    v_lshl_add_u32 v{t1}, v{t1}, 3, v{t0}
    v_bfe_u32 v{t2}, v{vLane}, 4, 1
    v_lshlrev_b32 v{t2}, 1, v{t2}
    v_and_b32 v{t3}, 1, v{vLane}
    v_or_b32 v{t2}, v{t2}, v{t3}
    v_lshlrev_b32 v{t0}, 1, v{t0}
    v_and_b32 v{t0}, 4, v{t0}
    v_xor_b32 v{t2}, v{t2}, v{t0}
    v_lshlrev_b32 v{t2}, 4, v{t2}
    v_lshl_add_u32 v{t2}, v{t1}, 7, v{t2}
    v_bfe_u32 v{t3}, v{vLane}, 1, 1
    v_lshl_add_u32 v{t2}, v{t3}, 3, v{t2}
    v_add_u32 v{vAW}, {O_W}, v{t2}
    v_xor_b32 v{vAW+1}, 64, v{vAW}
    s_lshl_b32 s{sT+1}, s{sUn}, 12
    s_cmp_eq_u32 s{sRH}, 0
    s_cselect_b32 s{sT+2}, {L_IMG}, 0
    s_add_u32 s{sT+1}, s{sT+1}, s{sT+2}
    """)
    epi_addr(k)
    k(f"""
    s_waitcnt lgkmcnt(0)
    s_cmp_eq_u32 s{sRH}, 0
    s_cbranch_scc1 k1_main
    """)
    if 'lrs' in X:
        row_stats(k)
    else:
        for i in range(8):
            k("s_waitcnt lgkmcnt(0)\ns_barrier")
            CA = int(os.environ.get('CLA', '1'))
            if i == CA and FUSED and CLAIM:
                k(f"s_cmp_lg_u32 s{sW}, 5\ns_cbranch_scc1 k1_noclaim")
                claim_id(k, "a")
                k.label("k1_noclaim")
            if i == 2:
                k(f"buffer_load_dword v{vTag}, v{vGA+2}, {sr(sDBG,4)}, 0 offen sc0 sc1")
            W0 = int(os.environ.get('WSP0', '4'))
            if 'qwsp' in X and i == W0:
                k(f"""
                s_load_dwordx2 {sr(sWI,2)}, s[0:1], {KA_WSP}
                s_mov_b32 s{sWI+2}, {2048*4096}
                s_lshr_b32 s{sT+8}, s2, 3
                s_sub_u32 s{sT+8}, s{sT+8}, 4
                s_lshl_b32 s{sT+8}, s{sT+8}, 2
                s_add_u32 s{sT+8}, s{sT+8}, s{sUn}
                s_min_u32 s{sT+8}, s{sT+8}, 85
                s_mul_i32 s{sT+8}, s{sT+8}, {3*8192}
                s_and_b32 s{sT+9}, s2, 3
                s_lshl_b32 s{sT+9}, s{sT+9}, 21
                s_add_u32 s{sT+8}, s{sT+8}, s{sT+9}
                v_lshlrev_b32 v6, 7, v{vLane}
                s_waitcnt lgkmcnt(0)
                """)
            if 'qwsp' in X and W0 <= i < W0 + 3:
                k(f"buffer_load_dword v{vGR+i-W0}, v6, {sr(sWI,4)}, s{sT+8} offen\ns_add_u32 s{sT+8}, s{sT+8}, 8192")
            if i == 3:
                L = k.newlabel("notag")
                k(f"s_cmp_lg_u32 s{sW}, 4\ns_cbranch_scc1 {L}")
                poll_tag(k, True)
                k(f"v_mov_b32 v{t0}, {L_TAG}\nds_write_b32 v{t0}, v{vTag}\n{L}:")
    k(f"s_cmp_ge_u32 s{sCG}, 12\ns_cbranch_scc1 k1_fin0\ns_setprio {0 if 'zprio' in X else 2}")
    k.label("k1_main")
    main_loop(k)
    stamp(k, 2)
    k(f"s_cmp_eq_u32 s{sRH}, 0\ns_cbranch_scc0 k1_q")
    z_epilogue(k)
    k("s_branch k1_fin")
    k.label("k1_q")
    q_epilogue(k)
    k("s_branch k1_clb")
    k.label("k1_loader")
    loader(k)
    stamp(k, 2)
    k("s_branch k1_fin")
    k.label("k1_helper")
    if FUSED and 'nocp' not in X:
        k(f"""
        s_getpc_b64 {sr(sT+10,2)}
        k1_pc:
        s_sub_u32 s{sT+10}, s{sT+10}, k1_pc-fz_kernel
        s_subb_u32 s{sT+11}, s{sT+11}, 0
        s_lshr_b32 s{sT+4}, s2, 3
        s_mul_i32 s{sT+4}, s{sT+4}, 12
        s_add_u32 s{sT+4}, s{sT+4}, s{sW}
        s_cmp_ge_u32 s{sT+4}, (fz_end-fz_kernel+1023)/1024
        s_cbranch_scc1 k1_nocp
        s_lshl_b32 s{sT+4}, s{sT+4}, 10
        v_lshlrev_b32 v{t0}, 4, v{vLane}
        v_add_u32 v{t0}, s{sT+4}, v{t0}
        v_min_u32 v{t0}, fz_end-fz_kernel, v{t0}
        global_load_dword v166, v{t0}, {sr(sT+10,2)}
        k1_nocp:
        """)
    k(f"""
    s_waitcnt lgkmcnt(0)
    v_mov_b32 v{vTag}, 0
    s_or_b32 s{sT+4}, s2, s{sW}
    s_cmp_lg_u32 s{sT+4}, 0
    s_cbranch_scc1 k1_nonce_done
    s_or_b32 s{sT+14}, s{sT+14}, 1
    v_mov_b32 v{vTag}, s{sT+14}
    v_lshlrev_b32 v{t3}, 2, v{vLane}
    buffer_store_dword v{vTag}, v{t3}, {sr(sDBG,4)}, 0 offen offset:128 sc0 sc1
    k1_nonce_done:
    """)
    if 'sweep' in X:
        k(f"""
        s_mul_i32 s{sT}, s2, 12
        s_add_u32 s{sT}, s{sT}, s{sW}
        s_lshl_b32 s{sT+1}, s{sT}, 13
        v_lshlrev_b32 v{t0}, 7, v{vLane}
        s_sub_u32 s{sT+2}, {383*8192}, s{sT+1}
        buffer_load_dword v{vT+9}, v{t0}, {sr(sXS,4)}, s{sT+2} offen
        """)
    helper(k)
    k("s_branch k1_fin")
    k.label("k1_fin0")
    k("s_waitcnt lgkmcnt(0)\ns_barrier")
    if FUSED:
        for t in range(7):
            k("s_barrier")
    k.label("k1_clb")
    if FUSED and CLAIM:
        k(f"s_cmp_lg_u32 s{sW}, 5\ns_cbranch_scc1 k1_fin")
        claim_id(k, "b")
    k.label("k1_fin")
    if STAMP:
        k("s_waitcnt vmcnt(0)")
    stamp(k, 3)
    stamp_store(k, 6)
    if FUSED:
        return k
    k("""
    k1_end:
    s_endpgm
    """)
    k.finish()
    return k


if __name__ == "__main__":
    import sys
    STAMP = "stamp" in sys.argv
    k = gen_k1()
    print(build_file("; test", [("k1_kernel", 256, 768, LDS_K1)], [k]))
```

```python
import os
import struct
from asmlib import *
from layout import *

X = set(os.environ.get('K1X', '').split(','))
STAGE = 32768
NS = 4
O_W = 16384
L_IMG = NS * STAGE
L_TAG = L_IMG + 16384
L_CSW = L_TAG + 256
L_RS = L_CSW + 4096
LDS_K1 = L_RS + 1024

vLane = 1
vL16 = 2
vDX, vDW = 3, 5
vAX = 9
vAW = 13
vTag = 15
vT = 16
ACC = 32
FX = 96
FW = 108
vGR = 156
vGC = 160
vGA = 164
vK = 0

sWS, sXS, sWW, sWI, sDBG = 4, 8, 12, 16, 20
sW, sRH, sRB, sCG, sUn = 24, 25, 26, 27, 28
sKX, sKW, sKQ = 29, 30, 31
sMX, sMW = 32, 33
sKind, sIdx, sT32, sGU = 34, 35, 36, 37
sCSo = 38
sT = 40
sSpin = 61

C0 = -2.0 * 1.4426950408889634 * 0.7978845608028654
C1 = C0 * 0.044715
QS = 0.25 * 1.4426950408889634
STAMP = False
FUSED = False
CLAIM = 'claim' in X
sTagS = 99
WT = os.environ.get('WT', '')
BC = "op_sel_hi:[1,0]"


def f32(x):
    return "0x%08x" % struct.unpack("<I", struct.pack("<f", x))[0]


def stamp(k, i):
    if STAMP:
        if i == 0:
            k("s_memrealtime s[80:81]")
        if i == 3:
            k("s_memrealtime s[82:83]")
        k(f"s_memtime {sr(64+2*i,2)}\ns_waitcnt lgkmcnt(0)")


def stamp_store(k, n):
    if not STAMP:
        return
    k(f"s_mul_i32 s62, s2, 12\ns_add_u32 s62, s62, s{sW}\ns_lshl_b32 s62, s62, 5\ns_add_u32 s62, s62, {WS_STAMP}")
    for i in range(n):
        k(f"s_sub_u32 s63, s{64+2*i}, s64\nv_mov_b32 v{vT}, s63\nv_mov_b32 v{vT+1}, 0\nbuffer_store_dword v{vT}, v{vT+1}, {sr(sWS,4)}, s62 offen offset:{4*i}")
    for j, r in ((6, 80), (7, 82)):
        k(f"v_mov_b32 v{vT}, s{r}\nv_mov_b32 v{vT+1}, 0\nbuffer_store_dword v{vT}, v{vT+1}, {sr(sWS,4)}, s62 offen offset:{4*j}")


def mfma32(d, a, b, c):
    cs = "0" if c is None else vr(c, 16)
    return f"v_mfma_f32_32x32x16_bf16 {vr(d,16)}, {vr(a,4)}, {vr(b,4)}, {cs}"


def dma(t):
    base = (t % NS) * STAGE
    out = []
    for j in range(4):
        e = f"s_add_u32 m0, s{sMX}, {base+1024*j}\n"
        if j == 2:
            e += f"s_add_u32 s{sT}, s{sKX}, 16384\n"
        e += f"buffer_load_dwordx4 v{vDX+j%2}, {sr(sXS,4)}, s{sT if j >= 2 else sKX} offen lds"
        out.append(e)
    srd, so, va, pitch = (sWI, sKW, vDW, 3584) if t < 8 else (sWW, sKQ, vDW + 1, 3072)
    for j in range(4):
        e = (f"s_add_u32 m0, s{sMW}, {base+1024*j}\nbuffer_load_dwordx4 v{va}, {sr(srd,4)}, s{so} offen lds\n"
             f"s_add_u32 s{so}, s{so}, {pitch*(8 if j < 3 else 40)}")
        if j == 3:
            e += (f"\ns_add_u32 s{sKX}, s{sKX}, 128\ns_and_b32 s{sKX}, s{sKX}, 1023\n"
                  f"s_cselect_b32 s{sT}, 0, {512*pitch}\ns_sub_u32 s{so}, s{so}, s{sT}")
        out.append(e)
    return out


def loader(k):
    t0, t1, t2, t3 = vT, vT + 1, vT + 2, vT + 3
    k(f"""
    s_setprio 3
    s_lshl_b32 s{sMX}, s{sUn}, 12
    v_lshrrev_b32 v{t0}, 3, v{vLane}
    v_and_b32 v{t1}, 7, v{vLane}
    v_lshrrev_b32 v{t2}, 1, v{t0}
    v_xor_b32 v{t2}, v{t2}, v{t1}
    v_lshlrev_b32 v{t2}, 4, v{t2}
    v_lshl_add_u32 v{t2}, v{t0}, 10, v{t2}
    s_lshl_b32 s{sT+5}, s{sRB}, 17
    s_lshl_b32 s{sT+6}, s{sUn}, 15
    s_add_u32 s{sT+5}, s{sT+5}, s{sT+6}
    v_add_u32 v{vDX}, s{sT+5}, v{t2}
    v_xor_b32 v{t2}, 64, v{t2}
    s_add_u32 s{sT+5}, s{sT+5}, 8192
    v_add_u32 v{vDX+1}, s{sT+5}, v{t2}
    ; W: chunk = (l%8) ^ (4*((row>>1)&1)), row = l/8
    v_lshlrev_b32 v{t2}, 1, v{t0}
    v_and_b32 v{t2}, 4, v{t2}
    v_xor_b32 v{t2}, v{t2}, v{t1}
    v_lshlrev_b32 v{t2}, 4, v{t2}
    v_mul_u32_u24 v{t3}, 3584, v{t0}
    v_add_u32 v{vDW}, v{t3}, v{t2}
    v_mul_u32_u24 v{t3}, 3072, v{t0}
    v_add_u32 v{vDW+1}, v{t3}, v{t2}
    s_lshr_b32 s{sT+1}, s{sUn}, 1
    s_and_b32 s{sT+2}, s{sUn}, 1
    s_lshl_b32 s{sKW}, s{sCG}, 7
    s_cmp_eq_u32 s{sT+1}, 0
    s_cselect_b32 s{sT+3}, 1792, 0
    s_add_u32 s{sKW}, s{sKW}, s{sT+3}
    s_mul_i32 s{sT+3}, s{sT+2}, {32*3584}
    s_add_u32 s{sKW}, s{sKW}, s{sT+3}
    s_lshl_b32 s{sKQ}, s{sCG}, 8
    s_lshl_b32 s{sT+3}, s{sT+1}, 7
    s_add_u32 s{sKQ}, s{sKQ}, s{sT+3}
    s_mul_i32 s{sT+3}, s{sT+2}, {32*3072}
    s_add_u32 s{sKQ}, s{sKQ}, s{sT+3}
    s_add_u32 s{sMW}, s{sMX}, {O_W}
    s_and_b32 s{sT+3}, s2, {7 if 'rot' in X else (6 if 'rot6' in X else 0)}
    s_lshl_b32 s{sKX}, s{sT+3}, 7
    s_mul_i32 s{sT+4}, s{sT+3}, {64*3584}
    s_add_u32 s{sKW}, s{sKW}, s{sT+4}
    s_mul_i32 s{sT+4}, s{sT+3}, {64*3072}
    s_add_u32 s{sKQ}, s{sKQ}, s{sT+4}
    s_waitcnt lgkmcnt(0)
    """)
    for a in dma(0):
        k(a, tag=("st", 0))
    for a in dma(1):
        k(a, tag=("st", 1))
    stamp(k, 1)
    for t in range(16):
        if t == 5:
            k(f"s_cmp_ge_u32 s{sCG}, 12\ns_cbranch_scc1 k1_ltail")
        k.wait_tag(("st", t))
        k("s_waitcnt lgkmcnt(0)\ns_barrier")
        if 'prof' in X:
            k(f"s_memtime s[84:85]\ns_memrealtime s[86:87]\ns_waitcnt lgkmcnt(0)\nv_writelane_b32 v40, s84, {t}\nv_writelane_b32 v41, s86, {t}")
        if t == 0:
            for a in dma(2):
                k(a, tag=("st", 2))
        if t + 3 < 16 and 'nodma' not in X:
            for a in dma(t + 3):
                k(a, tag=("st", t + 3))
    if 'prof' in X:
        k(f"""
        v_writelane_b32 v40, s64, 16
        v_writelane_b32 v41, s80, 16
        s_lshl_b32 s88, s2, 9
        s_add_u32 s88, s88, {WS_STAMP + 3*262144}
        v_lshlrev_b32 v42, 3, v{vLane}
        buffer_store_dwordx2 v[40:41], v42, {sr(sWS,4)}, s88 offen
        """)
    k("s_branch k1_ldone")
    k.label("k1_ltail")
    for t in range(5, 8):
        k.wait_tag(("st", t))
        k("s_barrier")
    if FUSED:
        for t in range(8):
            k("s_barrier")
    k.label("k1_ldone")
    k(f"v_mov_b32 v{t0}, {L_TAG}\nds_read_b32 v{vTag}, v{t0}\nv_readfirstlane_b32 s{sTagS}, v{vTag}")


def reads(ks, buf):
    out = [f"ds_read_b128 {vr(FX+4*buf,4)}, v{vAX+ks}"]
    for c in range(4):
        d = FW + 16 * buf + 4 * c
        o = (c // 2) * 8192 + ks * 2048
        out.append(f"ds_read_b64_tr_b16 {vr(d,2)}, v{vAW+c%2} offset:{o}")
        out.append(f"ds_read_b64_tr_b16 {vr(d+2,2)}, v{vAW+c%2} offset:{o+512}")
    return out


def mms(buf, first):
    return [mfma32(ACC + 16 * c, FW + 16 * buf + 4 * c, FX + 4 * buf, None if first else ACC + 16 * c) for c in range(4)]


def gather_loads():
    e = ""
    if 'lrs' not in X:
        e = f"buffer_load_dwordx4 {vr(vGR,4)}, v{vGA}, {sr(sWS,4)}, 0 offen sc0 sc1\n"
    for un in range(2):
        e += f"buffer_load_dwordx2 {vr(vGC+2*un,2)}, v{vGA+1}, {sr(sWS,4)}, s{sCSo+un} offen sc0 sc1\n"
    return e


def check_tags(k, regs, Lok, tmp):
    k(f"v_xor_b32 v{tmp}, v{regs[0]}, v{vTag}")
    for r in regs[1:]:
        k(f"v_xor_b32 v{tmp+1}, v{r}, v{vTag}\nv_or_b32 v{tmp}, v{tmp}, v{tmp+1}")
    k(f"v_cmp_ne_u32 vcc, 0, v{tmp}\ns_cmp_eq_u64 vcc, 0\ns_cbranch_scc1 {Lok}")


def poll_tag(k, first_issued):
    Lr, Lok, Lc, Ln = k.newlabel("tagpoll"), k.newlabel("tagok"), k.newlabel("tagchk"), k.newlabel("tagno")
    if first_issued:
        k(f"s_branch {Lc}")
    k(f"""
    {Lr}:
    buffer_load_dword v{vTag}, v{vGA+2}, {sr(sDBG,4)}, 0 offen sc0 sc1
    {Lc}:
    v_readfirstlane_b32 s{sT}, v{vTag}
    s_cmp_eq_u32 s{sT}, 0
    s_cbranch_scc1 {Ln}
    s_sub_u32 s{sT+13}, s{sT+14}, s{sT}
    s_add_u32 s{sT+13}, s{sT+13}, 100000
    s_cmp_lt_u32 s{sT+13}, 102000
    s_cbranch_scc1 {Lok}
    s_cmp_lt_u32 s{sSpin}, 197000
    s_cbranch_scc1 {Lok}
    {Ln}:
    s_sleep 2
    s_sub_u32 s{sSpin}, s{sSpin}, 1
    s_cbranch_scc0 {Lr}
    s_mov_b32 s{sSpin}, 0
    {Lok}:
    """)


def claim_id(k, part="ab"):
    t0, t1 = 6, 7
    issue = f"""
    s_and_b32 s{sT+8}, s{sT+8}, 7
    s_lshl_b32 s{sT+10}, s{sT+8}, 4
    v_mov_b32 v{t0}, s{sT+10}
    v_mov_b32 v{t1}, 1
    s_mov_b64 exec, 1
    buffer_atomic_add v{t1}, v{t0}, {sr(sDBG,4)}, 0 offen sc0 sc1
    s_mov_b64 exec, -1
    """
    if "a" in part:
        k(f"s_getreg_b32 s{sT+8}, hwreg(HW_REG_XCC_ID)\ns_mov_b32 s{sT+9}, 8")
        k(issue)
    if "b" in part:
        Lr, Lok, Ld = k.newlabel("clm"), k.newlabel("clmok"), k.newlabel("clmd")
        k(f"""
        {Lr}:
        v_readfirstlane_b32 s{sT+10}, v{t1}
        s_cmp_lt_u32 s{sT+10}, 32
        s_cbranch_scc1 {Lok}
        s_mov_b32 s{sT+10}, s2
        s_sub_u32 s{sT+9}, s{sT+9}, 1
        s_cmp_eq_u32 s{sT+9}, 0
        s_cbranch_scc1 {Ld}
        s_add_u32 s{sT+8}, s{sT+8}, 1
        """)
        k(issue)
        k(f"""
        s_branch {Lr}
        {Lok}:
        s_lshl_b32 s{sT+10}, s{sT+10}, 3
        s_add_u32 s{sT+10}, s{sT+10}, s{sT+8}
        {Ld}:
        v_mov_b32 v{t0}, {L_TAG+4}
        v_mov_b32 v{t1}, s{sT+10}
        ds_write_b32 v{t0}, v{t1}
        """)


def main_loop(k):
    t0 = vT
    LA = 2
    for p in range(8):
        k("s_waitcnt lgkmcnt(0)\ns_barrier")
        if p > 0:
            step = STAGE if p % NS else -(NS - 1) * STAGE
            for r in (vAX, vAX + 1, vAX + 2, vAX + 3, vAW, vAW + 1):
                k(f"v_add_u32 v{r}, {step & 0xffffffff:#x}, v{r}")
        for ks in range(4):
            g = 4 * p + ks
            r = reads(ks, g % 3)
            m = mms((g - LA) % 3, g - LA == 0) if g >= LA else []
            seq = interleave(m, r) if ks < 3 else (m[:1] + r[:5] + m[1:2] + r[5:] + m[2:])
            for a in seq:
                k(a)
            if p == 5 and ks == 0:
                k(f"v_mov_b32 v{t0}, {L_TAG}\nds_read_b32 v{vTag}, v{t0}")
            if p == 6 and ks == 2:
                k(gather_loads())
    for g in range(32 - LA, 32):
        for a in mms(g % 3, False):
            k(a)


def row_stats(k):
    t0, t1, t2, t3 = vT, vT + 1, vT + 2, vT + 3
    S = ACC
    D = ACC + 8
    U = ACC + 40
    for i in range(4):
        k(f"v_mov_b32 v{S+i}, 0")
    if 'rprio' in X:
        k("s_setprio 2")

    def crunch(b):
        for i in range(16):
            u = U + 2 * (i % 4)
            k(f"""
            v_lshlrev_b32 v{u}, 16, v{D+16*b+i}
            v_and_b32 v{u+1}, 0xffff0000, v{D+16*b+i}
            v_add_f32 v{S}, v{S}, v{u}
            v_add_f32 v{S+1}, v{S+1}, v{u+1}
            v_fmac_f32 v{S+2}, v{u}, v{u}
            v_fmac_f32 v{S+3}, v{u+1}, v{u+1}
            """)
    for p in range(8):
        k("s_waitcnt lgkmcnt(0)\ns_barrier")
        o = (p % 2) * STAGE
        if p in (2, 6):
            for r in range(4):
                k(f"v_add_u32 v{vAX+r}, {2*STAGE}, v{vAX+r}")
        if p == 4:
            for r in range(4):
                k(f"v_subrev_u32 v{vAX+r}, {2*STAGE}, v{vAX+r}")
        for ks in range(4):
            k(f"ds_read_b128 {vr(D+16*(p%2)+4*ks,4)}, v{vAX+ks} offset:{o}")
        if 'nocr' not in X:
            crunch(p % 2)
    for r in range(4):
        k(f"v_subrev_u32 v{vAX+r}, {2*STAGE}, v{vAX+r}")
    k(f"""
    v_add_f32 v{S}, v{S}, v{S+1}
    v_add_f32 v{S+2}, v{S+2}, v{S+3}
    v_mov_b32 v{t0}, v{S}
    v_mov_b32 v{t1}, v{S+2}
    v_permlane32_swap_b32 v{S}, v{t0}
    v_permlane32_swap_b32 v{S+2}, v{t1}
    v_add_f32 v{t0}, v{t0}, v{S}
    v_add_f32 v{t1}, v{t1}, v{S+2}
    v_mul_f32 v{t0}, {f32(1.0/512)}, v{t0}
    v_mul_f32 v{t1}, {f32(1.0/512)}, v{t1}
    v_fma_f32 v{t1}, -v{t0}, v{t0}, v{t1}
    v_max_f32 v{t1}, 0, v{t1}
    v_add_f32 v{t1}, {f32(1e-5)}, v{t1}
    v_rsq_f32 v{t1}, v{t1}
    v_mul_f32 v{t0}, v{t0}, v{t1}
    ds_write_b32 v{vGA}, v{t1}
    ds_write_b32 v{vGA}, v{t0} offset:512
    """)


def epi_addr(k):
    t0, t1, t2, t3 = vT, vT + 1, vT + 2, vT + 3
    k(f"""
    s_lshl_b32 s{sT}, s{sW}, 9
    s_add_u32 s{sT}, s{sT}, {L_CSW}
    v_lshlrev_b32 v{t0}, 2, v{vLane}
    v_add_u32 v{vT+4}, s{sT}, v{t0}
    v_lshrrev_b32 v{t2}, 5, v{vLane}             ; h
    v_lshlrev_b32 v{vT+6}, 5, v{t2}
    v_add_u32 v{vT+6}, s{sT}, v{vT+6}
    v_lshlrev_b32 v{vT+5}, 3, v{vLane}
    v_mov_b32 v3, {f32(C0)}
    v_and_b32 v{t0}, 31, v{vLane}
    v_and_b32 v{t1}, 1, v{t0}
    v_bfe_u32 v{t3}, v{t0}, 1, 1
    v_lshl_or_b32 v{t1}, v{t3}, 2, v{t1}
    v_bfe_u32 v{t3}, v{t0}, 2, 1
    v_lshl_or_b32 v{t1}, v{t3}, 1, v{t1}
    v_xor_b32 v{t1}, v{t1}, v{t2}
    v_lshlrev_b32 v{t1}, 4, v{t1}
    v_lshl_add_u32 v{t1}, v{t0}, 7, v{t1}
    v_add_u32 v{vT+8}, s{sT+1}, v{t1}
    v_xor_b32 v{vT+9}, 32, v{vT+8}
    v_xor_b32 v{vT+10}, 64, v{vT+8}
    v_xor_b32 v{vT+11}, 96, v{vT+8}
    v_bfe_u32 v{t0}, v{vLane}, 2, 2
    v_and_b32 v{t1}, 1, v{t0}
    v_lshrrev_b32 v{t3}, 1, v{t0}
    v_lshl_or_b32 v{t1}, v{t3}, 2, v{t1}
    v_bfe_u32 v{t3}, v{vLane}, 4, 1
    v_lshlrev_b32 v{t3}, 1, v{t3}
    v_and_b32 v{vT+7}, 1, v{vLane}
    v_or_b32 v{t3}, v{t3}, v{vT+7}
    v_xor_b32 v{t1}, v{t1}, v{t3}
    v_lshlrev_b32 v{t1}, 4, v{t1}
    v_lshl_add_u32 v{t0}, v{t2}, 3, v{t0}
    v_lshl_add_u32 v{t1}, v{t0}, 7, v{t1}
    v_bfe_u32 v{t3}, v{vLane}, 1, 1
    v_lshl_add_u32 v{t1}, v{t3}, 3, v{t1}
    v_add_u32 v{vT+12}, s{sT+1}, v{t1}
    v_xor_b32 v{vT+13}, 32, v{vT+12}
    v_xor_b32 v{vT+14}, 64, v{vT+12}
    v_xor_b32 v{vT+15}, 96, v{vT+12}
    v_and_b32 v{t0}, 15, v{vLane}
    v_lshlrev_b32 v{t0}, 4, v{t0}
    v_lshl_add_u32 v{t0}, v{t2}, 8, v{t0}
    v_bfe_u32 v{t3}, v{vLane}, 4, 1
    v_lshl_add_u32 v{vT+7}, v{t3}, 16, v{t0}
    """)


def get_stats(k):
    t0 = vT
    tagregs = [vGC + 1, vGC + 3] + ([vGR + 1, vGR + 3] if 'lrs' not in X else [])
    Lr, Lok = k.newlabel("g1"), k.newlabel("g1ok")
    check_tags(k, tagregs, Lok, t0)
    k(f"{Lr}:\ns_sleep 2")
    k(gather_loads())
    check_tags(k, tagregs, Lok, t0)
    k(f"s_sub_u32 s{sSpin}, s{sSpin}, 1\ns_cbranch_scc0 {Lr}\ns_mov_b32 s{sSpin}, 0\n{Lok}:")
    k(f"ds_write_b32 v{vT+4}, v{vGC}\nds_write_b32 v{vT+4}, v{vGC+2} offset:256")
    if 'lrs' in X:
        k(f"ds_read_b32 v{vGR}, v{vGA}\nds_read_b32 v{vGR+2}, v{vGA} offset:512")
    k("s_waitcnt lgkmcnt(0)")


def cs_reads(un):
    out = []
    for c in range(4):
        out.append(f"ds_read_b128 {vr(FW+8*c,4)}, v{vT+6} offset:{un*256+c*64}")
        out.append(f"ds_read_b128 {vr(FW+8*c+4,4)}, v{vT+6} offset:{un*256+c*64+16}")
    return out


def pack(A):
    return [f"v_cvt_pk_bf16_f32 v{A+8*c+i}, v{A+8*c+2*i}, v{A+8*c+2*i+1}" for c in range(4) for i in range(4)]


def tr_store(k, A, lane_reg, s0, kstride):
    for c in range(4):
        k(f"ds_write_b128 v{vT+8+c}, {vr(A+8*c,4)}")
    k(f"s_add_u32 s{sT+3}, s{s0}, 131072\ns_waitcnt lgkmcnt(0)")
    for ct in range(2):
        for ks in range(2):
            d = A + 8 * ct + 4 * ks
            k(f"ds_read_b64_tr_b16 {vr(d,2)}, v{vT+12+2*ct} offset:{ks*2048}")
            k(f"ds_read_b64_tr_b16 {vr(d+2,2)}, v{vT+13+2*ct} offset:{ks*2048+512}")
    for ct in range(2):
        for ks in range(2):
            k(f"buffer_store_dwordx4 {vr(A+8*ct+4*ks,4)}, v{lane_reg}, {sr(sWS,4)}, s{(s0, sT+3)[ct]} offen offset:{ks*kstride} {WT}")


def z_epilogue(k):
    t0, t1, t2, t3 = vT, vT + 1, vT + 2, vT + 3
    k("s_barrier")
    if 'zprio' in X:
        k("s_setprio 2")
    get_stats(k)
    k(f"s_mov_b32 s{sT+10}, {f32(C1)}")
    if 'zpk' in X:
        k(f"v_mov_b32 v4, v{vGR}\nv_mov_b32 v5, v{vGR+2}\nv_mov_b32 v6, {f32(C0)}\nv_mov_b32 v7, {f32(C1)}")
    S = FX

    def unit_ops(un):
        A = ACC + 32 * un
        ops = list(cs_reads(un))
        if 'zpk' in X:
            P = range(0, 32, 2)
            ops += [f"v_pk_mul_f32 {vr(A+i,2)}, {vr(A+i,2)}, v[4:5] {BC}" for i in P]
            ops += [f"v_pk_fma_f32 {vr(A+i,2)}, {vr(FW+i,2)}, v[4:5], {vr(A+i,2)} op_sel:[0,1,0] op_sel_hi:[1,1,1] neg_lo:[1,0,0] neg_hi:[1,0,0]" for i in P]
            ops += [f"v_pk_mul_f32 {vr(FW+i,2)}, {vr(A+i,2)}, {vr(A+i,2)}" for i in P]
            ops += [f"v_pk_fma_f32 {vr(FW+i,2)}, {vr(FW+i,2)}, v[6:7], v[6:7] op_sel:[0,1,0] op_sel_hi:[1,1,0]" for i in P]
            ops += [f"v_pk_mul_f32 {vr(FW+i,2)}, {vr(FW+i,2)}, {vr(A+i,2)}" for i in P]
            ops += [f"v_exp_f32 v{FW+i}, v{FW+i}" for i in range(32)]
            ops += [f"v_pk_add_f32 {vr(FW+i,2)}, {vr(FW+i,2)}, 1.0 op_sel_hi:[1,0]" for i in P]
            ops += [f"v_rcp_f32 v{FW+i}, v{FW+i}" for i in range(32)]
            ops += [f"v_pk_mul_f32 {vr(A+i,2)}, {vr(A+i,2)}, {vr(FW+i,2)}" for i in P]
            return ops
        for i in range(32):
            ops.append(f"v_mul_f32 v{A+i}, v{A+i}, v{vGR}")
        for i in range(32):
            ops.append(f"v_fma_f32 v{A+i}, -v{vGR+2}, v{FW+i}, v{A+i}")
        for h in range(2):
            R = [A + 16 * h + i for i in range(16)]
            T = [FW + i for i in range(16)]
            ops += [f"v_mul_f32 v{t}, v{r}, v{r}" for r, t in zip(R, T)]
            ops += [f"v_fma_f32 v{t}, v{t}, s{sT+10}, v3" for r, t in zip(R, T)]
            ops += [f"v_mul_f32 v{t}, v{t}, v{r}" for r, t in zip(R, T)]
            ops += [f"v_exp_f32 v{t}, v{t}" for r, t in zip(R, T)]
            ops += [f"v_add_f32 v{t}, 1.0, v{t}" for r, t in zip(R, T)]
            ops += [f"v_rcp_f32 v{t}, v{t}" for r, t in zip(R, T)]
            ops += [f"v_mul_f32 v{r}, v{r}, v{t}" for r, t in zip(R, T)]
        return ops

    ops = unit_ops(0)
    A = ACC
    ops += [f"v_add_f32 v{S}, v{A}, v{A+1}", f"v_mul_f32 v{S+2}, v{A}, v{A}", f"v_add_f32 v{S+1}, v{A+2}, v{A+3}",
            f"v_mul_f32 v{S+3}, v{A+1}, v{A+1}", f"v_fmac_f32 v{S+2}, v{A+2}, v{A+2}", f"v_fmac_f32 v{S+3}, v{A+3}, v{A+3}"]
    for i in range(4, 32):
        ops += [f"v_add_f32 v{S+i%2}, v{S+i%2}, v{A+i}", f"v_fmac_f32 v{S+2+i%2}, v{A+i}, v{A+i}"]
    ops.append(f"""
    v_add_f32 v{S}, v{S}, v{S+1}
    v_add_f32 v{S+2}, v{S+2}, v{S+3}
    v_permlane32_swap_b32 v{S}, v{S+2}
    v_add_f32 v{S}, v{S}, v{S+2}
    v_mov_b32 v{S+1}, v{vTag}
    s_mul_i32 s{sT+4}, s{sT32}, {14*512}
    s_add_u32 s{sT+4}, s{sT+4}, {WS_S2}
    s_lshl_b32 s{sT+1}, s{sCG}, 9
    s_add_u32 s{sT+1}, s{sT+1}, s{sT+4}
    buffer_store_dwordx2 {vr(S,2)}, v{vT+5}, {sr(sWS,4)}, s{sT+1} offen sc0 sc1
    """)
    n0 = len(ops)
    ops += unit_ops(1)
    ops += pack(ACC + 32)
    G = FW

    def g2loads():
        e = ""
        for i in range(7):
            if i % 4 == 0:
                e += f"s_add_u32 s{sT}, s{sT+4}, {1024*i}\n"
            e += f"buffer_load_dwordx4 {vr(G+4*i,4)}, v{vL16}, {sr(sWS,4)}, s{sT} offen offset:{1024*(i%4)} sc0 sc1\n"
        return e
    ops.insert(len(ops) - 16, g2loads())
    e = f"""
    s_mul_i32 s{sT+1}, s{sT32}, {56*1024}
    s_lshl_b32 s{sT+2}, s{sCG}, 12
    s_add_u32 s{sT+1}, s{sT+1}, s{sT+2}
    s_add_u32 s{sT+1}, s{sT+1}, {WS_Z1}
    """
    for c in range(4):
        e += f"buffer_store_dwordx4 {vr(ACC+32+8*c,4)}, v{vL16}, {sr(sWS,4)}, s{sT+1} offen offset:{1024*c} {WT}\n"
    ops.append(e)
    cost = [2 if o.startswith(("v_exp", "v_rcp", "v_pk")) else (3 if o.startswith("ds_") else (25 if "\n" in o else 1)) for o in ops]
    HEAD = int(os.environ.get('ZHEAD', '70'))
    NB1 = int(os.environ.get('ZNB', '5'))
    tot = sum(cost) + HEAD
    acc, nxt, placed = HEAD, 1, 0
    for i, (o, c) in enumerate(zip(ops, cost)):
        if not ('noz' in X and o.startswith('v_')):
            k(o)
        if i == n0 - 1:
            stamp(k, 4)
        acc += c
        if placed < NB1 and acc >= tot * nxt / NB1 - 1e-9:
            k("s_barrier")
            placed += 1
            nxt += 1
    assert placed == NB1
    rest = 7 - NB1
    stamp(k, 5)
    Lr, Lok = k.newlabel("g2"), k.newlabel("g2ok")
    check_tags(k, [G + 2 * j + 1 for j in range(14)], Lok, t0)
    k(f"{Lr}:")
    k(g2loads())
    check_tags(k, [G + 2 * j + 1 for j in range(14)], Lok, t0)
    k(f"s_sleep 1\ns_sub_u32 s{sSpin}, s{sSpin}, 1\ns_cbranch_scc0 {Lr}\ns_mov_b32 s{sSpin}, 0\n{Lok}:")
    stamp(k, 1)
    for i in range(1, 7):
        k(f"v_add_f32 v{G}, v{G}, v{G+4*i}\nv_add_f32 v{G+2}, v{G+2}, v{G+4*i+2}")
    k(f"""
    v_mov_b32 v{t0}, v{G}
    v_mov_b32 v{t1}, v{G+2}
    v_permlane32_swap_b32 v{G}, v{t0}
    v_permlane32_swap_b32 v{G+2}, v{t1}
    v_add_f32 v{G}, v{G}, v{t0}
    v_add_f32 v{G+1}, v{G+2}, v{t1}
    s_lshl_b32 s{sT}, s{sW}, 9
    s_add_u32 s{sT}, s{sT}, {L_CSW}
    v_and_b32 v{t2}, 31, v{vLane}
    v_lshlrev_b32 v{t3}, 3, v{t2}
    v_add_u32 v{t3}, s{sT}, v{t3}
    ds_write_b64 v{t3}, {vr(G,2)}
    v_lshlrev_b32 v{t3}, 2, v{t2}
    v_add_u32 v{t3}, s{sT}, v{t3}
    s_waitcnt lgkmcnt(0)
    ds_read_b32 v{t0}, v{t3}
    ds_read_b32 v{t1}, v{t3} offset:128
    s_lshl_b32 s{sT}, s{sCG}, 18
    s_lshl_b32 s{sT+1}, s{sT32}, 11
    s_add_u32 s{sT}, s{sT}, s{sT+1}
    s_add_u32 s{sT}, s{sT}, {WS_Z2}
    v_mul_f32 v{t0}, {f32(1.0/896)}, v{t0}
    v_mul_f32 v{t1}, {f32(1.0/896)}, v{t1}
    v_fma_f32 v{t1}, -v{t0}, v{t0}, v{t1}
    v_max_f32 v{t1}, 0, v{t1}
    v_add_f32 v{t1}, {f32(1e-5)}, v{t1}
    v_rsq_f32 v{t1}, v{t1}
    v_mul_f32 v{t0}, v{t0}, v{t1}
    """)
    if rest >= 1:
        k("s_barrier")
    for i in range(32):
        k(f"v_fma_f32 v{A+i}, v{A+i}, v{t1}, -v{t0}")
    for o in pack(A):
        k(o)
    tr_store(k, A, vL16, sT, 1024)
    for i in range(rest - 1):
        k("s_barrier")


def q_epilogue(k):
    get_stats(k)
    k(f"""
    s_cmp_eq_u32 s{sKind}, 0
    s_cselect_b32 s{sT}, {f32(QS)}, 1.0
    v_mul_f32 v4, s{sT}, v{vGR}
    v_mul_f32 v5, s{sT}, v{vGR+2}
    s_lshl_b32 s{sT}, s{sCG}, 19
    s_lshl_b32 s{sT+1}, s{sT32}, 10
    s_add_u32 s{sT}, s{sT}, s{sT+1}
    s_add_u32 s{sT}, s{sT}, {WS_Q}
    """)
    for un in range(2):
        A = ACC + 32 * un
        for o in cs_reads(un):
            k(o)
        for i in range(0, 32, 2):
            k(f"v_pk_mul_f32 {vr(A+i,2)}, {vr(A+i,2)}, v[4:5] {BC}")
        for i in range(0, 32, 2):
            k(f"v_pk_fma_f32 {vr(A+i,2)}, {vr(FW+i,2)}, v[4:5], {vr(A+i,2)} op_sel:[0,1,0] op_sel_hi:[1,1,1] neg_lo:[1,0,0] neg_hi:[1,0,0]")
        for o in pack(A):
            k(o)
        Lv, Ld = k.newlabel("qv"), k.newlabel("qd")
        k(f"s_cmp_eq_u32 s{sKind}, 2\ns_cbranch_scc1 {Lv}")
        for c in range(4):
            k(f"buffer_store_dwordx4 {vr(A+8*c,4)}, v{vL16}, {sr(sWS,4)}, s{sT} offen {WT}\ns_add_u32 s{sT}, s{sT}, 65536")
        k(f"s_branch {Ld}\n{Lv}:")
        tr_store(k, A, vT + 7, sT, 512)
        k(f"s_add_u32 s{sT}, s{sT}, 262144\n{Ld}:")


def wave_allsum(k, regs, tmps):
    for sh in (8, 4, 2, 1):
        for r in regs:
            k(f"v_add_f32_dpp v{r}, v{r}, v{r} row_ror:{sh} row_mask:0xf bank_mask:0xf")
    for sw in ("v_permlane16_swap_b32", "v_permlane32_swap_b32"):
        for r, t in zip(regs, tmps):
            k(f"v_mov_b32 v{t}, v{r}")
        for r, t in zip(regs, tmps):
            k(f"{sw} v{r}, v{t}")
        for r, t in zip(regs, tmps):
            k(f"v_add_f32 v{r}, v{r}, v{t}")


def helper(k):
    t0, t1, t2, t3 = vT, vT + 1, vT + 2, vT + 3
    A = FX
    if 'lrs' not in X:
        D = ACC
        k(f"""
        s_cmp_lt_u32 s{sW}, 8
        s_cbranch_scc1 k1_hcol
        s_setprio 2
        s_lshl_b32 s{sT+6}, s2, 2
        s_add_u32 s{sT+6}, s{sT+6}, s{sW}
        s_sub_u32 s{sT+6}, s{sT+6}, 8
        s_lshl_b32 s{sT+7}, s{sT+6}, 14
        v_lshrrev_b32 v{t0}, 3, v{vLane}
        v_and_b32 v{t1}, 7, v{vLane}
        v_lshlrev_b32 v{t1}, 4, v{t1}
        v_lshl_add_u32 v{t1}, v{t0}, 10, v{t1}
        s_add_u32 s{sT+8}, s{sT+7}, 8192
        v_mov_b32 v3, 0x3f803f80
        """)
        for b in range(2):
            for i in range(8):
                k(f"buffer_load_dwordx4 {vr(D+32*b+4*i,4)}, v{t1}, {sr(sXS,4)}, s{sT+7+b} offen offset:{128*i}")
        k(f"buffer_load_dword v{vTag}, v{vGA+2}, {sr(sDBG,4)}, 0 offen sc0 sc1")
        for j in range(4):
            k(f"v_mov_b32 v{A+j}, 0")
        for b in range(2):
            for i in range(32):
                k(f"v_dot2c_f32_bf16 v{A+2*b}, v{D+32*b+i}, v3\nv_dot2c_f32_bf16 v{A+2*b+1}, v{D+32*b+i}, v{D+32*b+i}")
        for m in ("quad_perm:[1,0,3,2]", "quad_perm:[2,3,0,1]", "row_half_mirror"):
            for j in range(4):
                k(f"v_add_f32_dpp v{A+j}, v{A+j}, v{A+j} {m} row_mask:0xf bank_mask:0xf")
        k(f"""
        v_and_b32 v{t2}, 1, v{vLane}
        v_cmp_eq_u32 vcc, 1, v{t2}
        v_cndmask_b32 v{A}, v{A}, v{A+2}, vcc
        v_cndmask_b32 v{A+1}, v{A+1}, v{A+3}, vcc
        v_mul_f32 v{A}, {f32(1.0/512)}, v{A}
        v_mul_f32 v{A+1}, {f32(1.0/512)}, v{A+1}
        v_fma_f32 v{A+1}, -v{A}, v{A}, v{A+1}
        v_max_f32 v{A+1}, 0, v{A+1}
        v_add_f32 v{A+1}, {f32(1e-5)}, v{A+1}
        v_rsq_f32 v{D}, v{A+1}
        v_mul_f32 v{D+2}, v{D}, v{A}
        v_lshl_add_u32 v{t0}, v{t2}, 3, v{t0}
        v_lshlrev_b32 v{t0}, 4, v{t0}
        """)
        poll_tag(k, True)
        k(f"""
        v_mov_b32 v{D+1}, v{vTag}
        v_mov_b32 v{D+3}, v{vTag}
        s_lshl_b32 s{sT+7}, s{sT+6}, 8
        s_add_u32 s{sT+7}, s{sT+7}, {WS_RS}
        s_mov_b32 exec_lo, 0x03030303
        s_mov_b32 exec_hi, 0x03030303
        buffer_store_dwordx4 {vr(D,4)}, v{t0}, {sr(sWS,4)}, s{sT+7} offen sc0 sc1
        s_mov_b64 exec, -1
        s_setprio 0
        k1_hcol:
        """)
    k(f"""
    s_cmp_ge_u32 s2, 28
    s_cbranch_scc1 k1_hpre
    s_add_u32 s{sGU}, s2, 24
    s_min_u32 s{sT}, s2, 23
    s_lshl_b32 s{sT+1}, s2, 7
    s_lshl_b32 s{sT+2}, s{sT}, 7
    s_lshl_b32 s{sT+4}, s{sW}, 6
    s_sub_u32 s{sT+5}, s{sW}, 8
    s_lshl_b32 s{sT+5}, s{sT+5}, 7
    s_cmp_lt_u32 s{sW}, 8
    s_cselect_b32 s{sGU}, s{sGU}, s{sT}
    s_cselect_b32 s{sT+1}, s{sT+1}, s{sT+2}
    s_cselect_b32 s{sT+4}, s{sT+4}, s{sT+5}
    s_cselect_b32 s{sT+3}, 512, 0
    s_cselect_b32 s{sWW}, s{sWI}, s{sWW}
    s_cselect_b32 s{sWW+1}, s{sWI+1}, s{sWW+1}
    s_cselect_b32 s{sWW+2}, s{sWI+2}, s{sWW+2}
    s_add_u32 s{sT+3}, s{sT+3}, 3072             ; pitch
    v_lshrrev_b32 v{t0}, 3, v{vLane}
    v_add_u32 v{t0}, s{sT+4}, v{t0}
    v_mul_lo_u32 v{t0}, v{t0}, s{sT+3}
    v_and_b32 v{t1}, 7, v{vLane}
    v_lshl_add_u32 v{t0}, v{t1}, 4, v{t0}
    s_lshl_b32 s{sT+3}, s{sT+3}, 3
    """)

    def loads(b):
        for i in range(8):
            k(f"buffer_load_dwordx4 {vr(ACC+32*b+4*i,4)}, v{t0}, {sr(sWW,4)}, s{sT+1} offen")
            k(f"s_add_u32 s{sT+1}, s{sT+1}, s{sT+3}")

    def accum(b):
        for i in range(8):
            for r in range(4):
                src = ACC + 32 * b + 4 * i + r
                if i == 0 and b == 0:
                    k(f"v_lshlrev_b32 v{A+2*r}, 16, v{src}\nv_and_b32 v{A+2*r+1}, 0xffff0000, v{src}")
                else:
                    k(f"v_lshlrev_b32 v{t2}, 16, v{src}\nv_and_b32 v{t3}, 0xffff0000, v{src}\n"
                      f"v_pk_add_f32 {vr(A+2*r,2)}, {vr(A+2*r,2)}, {vr(t2,2)}")

    def reduce_write():
        regs = [A + i for i in range(8)]
        tm = [A + 8 + i for i in range(8)]
        for r in regs:
            k(f"v_add_f32_dpp v{r}, v{r}, v{r} row_ror:8 row_mask:0xf bank_mask:0xf")
        for sw in ("v_permlane16_swap_b32", "v_permlane32_swap_b32"):
            for r, t in zip(regs, tm):
                k(f"v_mov_b32 v{t}, v{r}")
            for r, t in zip(regs, tm):
                k(f"{sw} v{r}, v{t}")
            for r, t in zip(regs, tm):
                k(f"v_add_f32 v{r}, v{r}, v{t}")
        k(f"""
        s_lshl_b32 s{sT}, s{sW}, 8
        v_lshlrev_b32 v{t0}, 5, v{t1}
        v_add_u32 v{t0}, s{sT}, v{t0}
        ds_write_b128 v{t0}, {vr(A,4)}
        ds_write_b128 v{t0}, {vr(A+4,4)} offset:16
        s_waitcnt lgkmcnt(0)
        """)

    def publish(n):
        k(f"s_lshl_b32 s{sT}, s{sW}, 8\nv_lshlrev_b32 v{t0}, 2, v{vLane}\nv_add_u32 v{t0}, s{sT}, v{t0}")
        for i in range(n):
            k(f"ds_read_b32 v{A+i}, v{t0} offset:{256*i}")
        poll_tag(k, True)
        for i in range(1, n):
            k(f"v_add_f32 v{A}, v{A}, v{A+i}")
        k(f"""
        s_lshl_b32 s{sT}, s{sGU}, 9
        s_add_u32 s{sT}, s{sT}, {WS_CS}
        v_lshlrev_b32 v{t0}, 3, v{vLane}
        v_mov_b32 v{A+1}, v{vTag}
        buffer_store_dwordx2 {vr(A,2)}, v{t0}, {sr(sWS,4)}, s{sT} offen sc0 sc1
        """)
    loads(0)
    k(f"s_cmp_ge_u32 s{sW}, 8\ns_cbranch_scc1 k1_hq")
    k(f"s_setprio 2\nbuffer_load_dword v{vT+8}, v{vGA+2}, {sr(sDBG,4)}, 0 offen sc0 sc1")
    accum(0)
    reduce_write()
    k(f"s_barrier\ns_cmp_lg_u32 s{sW}, 0\ns_cbranch_scc1 k1_hz\nv_cmp_eq_u32 vcc, 0, v{vTag}\nv_cndmask_b32 v{vTag}, v{vTag}, v{vT+8}, vcc")
    publish(8)
    k.label("k1_hz")
    if FUSED:
        k("s_barrier")
    k("s_branch k1_hpre")
    k.label("k1_hq")
    loads(1)
    k("s_barrier")
    accum(0)
    accum(1)
    reduce_write()
    k(f"s_barrier\ns_cmp_lg_u32 s{sW}, 8\ns_cbranch_scc1 k1_hpre")
    publish(4)
    k.label("k1_hpre")
    if 'hwsp' in X:
        k(f"""
        s_load_dwordx2 {sr(sWI,2)}, s[0:1], {KA_WSP}
        s_mov_b32 s{sWI+2}, {2048*4096}
        s_lshr_b32 s{sT}, s2, 3
        s_mul_i32 s{sT}, s{sT}, 12
        s_add_u32 s{sT}, s{sT}, s{sW}
        s_min_u32 s{sT}, s{sT}, 42
        s_mul_i32 s{sT}, s{sT}, {6*8192}
        s_and_b32 s{sT+1}, s2, 3
        s_lshl_b32 s{sT+1}, s{sT+1}, 21
        s_add_u32 s{sT}, s{sT}, s{sT+1}
        v_lshlrev_b32 v{t0}, 7, v{vLane}
        s_sleep {os.environ.get('WSPD', '0')}
        s_waitcnt lgkmcnt(0)
        """)
        for i in range(6):
            k(f"buffer_load_dword v{ACC+i}, v{t0}, {sr(sWI,4)}, s{sT} offen\ns_add_u32 s{sT}, s{sT}, 8192")
    if FUSED:
        k(f"s_cmp_lg_u32 s{sW}, 8\ns_cbranch_scc1 k1_fin")
        poll_tag(k, True)
        k(f"s_mov_b32 s{sTagS}, s{sT}")
        if CLAIM:
            claim_id(k)


def gen_k1(k=None):
    if k is None:
        k = Kernel("k1_kernel")
    t0, t1, t2, t3 = vT, vT + 1, vT + 2, vT + 3
    stamp(k, 0)
    if STAMP:
        for i in (1, 2, 4, 5):
            k(f"s_mov_b64 {sr(64+2*i,2)}, s[64:65]")
    k(f"""
    s_cmp_ge_u32 s2, 256
    s_cbranch_scc1 {'fz_end' if FUSED else 'k1_end'}
    s_load_dwordx2 {sr(sXS,2)}, s[0:1], {KA_X}
    s_load_dwordx2 {sr(sWW,2)}, s[0:1], {KA_WQKV}
    s_load_dwordx2 {sr(sWI,2)}, s[0:1], {KA_WIN}
    s_load_dwordx2 {sr(sWS,2)}, s[0:1], {KA_WS}
    s_load_dwordx2 {sr(sDBG,2)}, s[0:1], {KA_DBG}
    s_memrealtime {sr(sT+14,2)}
    v_lshrrev_b32 v{t0}, 6, v0
    v_and_b32 v{vLane}, 63, v0
    v_readfirstlane_b32 s{sW}, v{t0}
    v_lshlrev_b32 v{vL16}, 4, v{vLane}
    s_mov_b32 s{sWS+2}, {WS_SIZE}
    s_mov_b32 s{sWS+3}, 0x00020000
    s_mov_b32 s{sXS+2}, {2048*1024}
    s_mov_b32 s{sXS+3}, 0x00020000
    s_mov_b32 s{sWW+2}, {512*3072}
    s_mov_b32 s{sWW+3}, 0x00020000
    s_mov_b32 s{sWI+2}, {512*3584}
    s_mov_b32 s{sWI+3}, 0x00020000
    s_mov_b32 s{sDBG+2}, 256
    s_mov_b32 s{sDBG+3}, 0x00020000
    s_mov_b32 s{sSpin}, 200000
    s_mov_b32 s{sTagS}, 0
    s_mov_b32 s98, 255
    s_and_b32 s{sT}, s2, 31
    s_lshl_b32 s{sT}, s{sT}, 2
    s_add_u32 s{sT}, s{sT}, 128
    v_mov_b32 v{vGA+2}, s{sT}
    s_cmp_lt_u32 s2, 32
    s_cbranch_scc1 k1_helper
    ; xcd = wg&7, j = (wg>>3) - 4 (0..27): rb = 4(xcd/2) + j/7, cg = 7(xcd%2) + j%7
    s_and_b32 s{sT}, s2, 7
    s_lshr_b32 s{sT+1}, s2, 3
    s_sub_u32 s{sT+1}, s{sT+1}, 4
    s_mul_i32 s{sT+5}, s{sT+1}, 37
    s_lshr_b32 s{sT+5}, s{sT+5}, 8
    s_mul_i32 s{sT+6}, s{sT+5}, 7
    s_sub_u32 s{sCG}, s{sT+1}, s{sT+6}
    s_and_b32 s{sT+2}, s2, 1
    s_mul_i32 s{sT+6}, s{sT+2}, 7
    s_add_u32 s{sCG}, s{sCG}, s{sT+6}
    s_lshr_b32 s{sRB}, s{sT}, 1
    s_lshl_b32 s{sRB}, s{sRB}, 2
    s_add_u32 s{sRB}, s{sRB}, s{sT+5}
    s_lshl_b32 s98, s{sRB}, 4
    s_add_u32 s98, s98, s{sCG}
    s_lshr_b32 s{sRH}, s{sW}, 2
    s_and_b32 s{sUn}, s{sW}, 3
    s_cmp_ge_u32 s{sW}, 8
    s_cbranch_scc1 k1_loader
    s_lshr_b32 s{sKind}, s{sCG}, 2
    s_cmp_eq_u32 s{sRH}, 0
    s_cselect_b32 s{sKind}, 4, s{sKind}
    s_add_u32 s{sT}, s{sCG}, 38
    s_add_u32 s{sT+1}, s{sCG}, 24
    s_lshl_b32 s{sT+2}, s{sCG}, 1
    s_add_u32 s{sT+3}, s{sT+2}, 1
    s_cmp_eq_u32 s{sRH}, 0
    s_cselect_b32 s{sT}, s{sT}, s{sT+2}
    s_cselect_b32 s{sT+1}, s{sT+1}, s{sT+3}
    s_lshl_b32 s{sCSo}, s{sT}, 9
    s_add_u32 s{sCSo}, s{sCSo}, {WS_CS}
    s_lshl_b32 s{sCSo+1}, s{sT+1}, 9
    s_add_u32 s{sCSo+1}, s{sCSo+1}, {WS_CS}
    s_lshl_b32 s{sT32}, s{sRB}, 2
    s_add_u32 s{sT32}, s{sT32}, s{sUn}
    v_and_b32 v{t0}, 31, v{vLane}
    v_and_b32 v{t1}, 0x13, v{t0}
    v_and_b32 v{t2}, 4, v{t0}
    v_lshl_or_b32 v{t1}, v{t2}, 1, v{t1}
    v_and_b32 v{t2}, 8, v{t0}
    v_lshrrev_b32 v{t2}, 1, v{t2}
    v_or_b32 v{t1}, v{t1}, v{t2}
    s_cmp_eq_u32 s{sKind}, 1
    s_cselect_b64 vcc, -1, 0
    v_cndmask_b32 v{t0}, v{t0}, v{t1}, vcc       ; tok
    v_lshrrev_b32 v{t1}, 5, v{vLane}             ; h
    v_bfe_u32 v{t2}, v{t0}, 1, 3
    v_xor_b32 v{t2}, v{t2}, v{t1}
    v_lshlrev_b32 v{t2}, 4, v{t2}
    v_lshl_add_u32 v{t2}, v{t0}, 7, v{t2}
    s_lshl_b32 s{sT}, s{sUn}, 12
    v_add_u32 v{vAX}, s{sT}, v{t2}
    v_xor_b32 v{vAX+1}, 32, v{vAX}
    v_xor_b32 v{vAX+2}, 64, v{vAX}
    v_xor_b32 v{vAX+3}, 96, v{vAX}
    s_lshl_b32 s{sT}, s{sUn if 'lrs' in X else sT32}, {7 if 'lrs' in X else 9}
    s_add_u32 s{sT}, s{sT}, {L_RS if 'lrs' in X else WS_RS}
    v_lshlrev_b32 v{t0}, {2 if 'lrs' in X else 4}, v{t0}
    v_add_u32 v{vGA}, s{sT}, v{t0}
    v_lshlrev_b32 v{vGA+1}, 3, v{vLane}
    v_bfe_u32 v{t0}, v{vLane}, 2, 2
    v_lshl_add_u32 v{t1}, v{t1}, 3, v{t0}
    v_bfe_u32 v{t2}, v{vLane}, 4, 1
    v_lshlrev_b32 v{t2}, 1, v{t2}
    v_and_b32 v{t3}, 1, v{vLane}
    v_or_b32 v{t2}, v{t2}, v{t3}
    v_lshlrev_b32 v{t0}, 1, v{t0}
    v_and_b32 v{t0}, 4, v{t0}
    v_xor_b32 v{t2}, v{t2}, v{t0}
    v_lshlrev_b32 v{t2}, 4, v{t2}
    v_lshl_add_u32 v{t2}, v{t1}, 7, v{t2}
    v_bfe_u32 v{t3}, v{vLane}, 1, 1
    v_lshl_add_u32 v{t2}, v{t3}, 3, v{t2}
    v_add_u32 v{vAW}, {O_W}, v{t2}
    v_xor_b32 v{vAW+1}, 64, v{vAW}
    s_lshl_b32 s{sT+1}, s{sUn}, 12
    s_cmp_eq_u32 s{sRH}, 0
    s_cselect_b32 s{sT+2}, {L_IMG}, 0
    s_add_u32 s{sT+1}, s{sT+1}, s{sT+2}
    """)
    epi_addr(k)
    k(f"""
    s_waitcnt lgkmcnt(0)
    s_cmp_eq_u32 s{sRH}, 0
    s_cbranch_scc1 k1_main
    """)
    if 'lrs' in X:
        row_stats(k)
    else:
        for i in range(8):
            k("s_waitcnt lgkmcnt(0)\ns_barrier")
            CA = int(os.environ.get('CLA', '1'))
            if i == CA and FUSED and CLAIM:
                k(f"s_cmp_lg_u32 s{sW}, 5\ns_cbranch_scc1 k1_noclaim")
                claim_id(k, "a")
                k.label("k1_noclaim")
            if i == 2:
                k(f"buffer_load_dword v{vTag}, v{vGA+2}, {sr(sDBG,4)}, 0 offen sc0 sc1")
            W0 = int(os.environ.get('WSP0', '4'))
            if 'qwsp' in X and i == W0:
                k(f"""
                s_load_dwordx2 {sr(sWI,2)}, s[0:1], {KA_WSP}
                s_mov_b32 s{sWI+2}, {2048*4096}
                s_lshr_b32 s{sT+8}, s2, 3
                s_sub_u32 s{sT+8}, s{sT+8}, 4
                s_lshl_b32 s{sT+8}, s{sT+8}, 2
                s_add_u32 s{sT+8}, s{sT+8}, s{sUn}
                s_min_u32 s{sT+8}, s{sT+8}, 85
                s_mul_i32 s{sT+8}, s{sT+8}, {3*8192}
                s_and_b32 s{sT+9}, s2, 3
                s_lshl_b32 s{sT+9}, s{sT+9}, 21
                s_add_u32 s{sT+8}, s{sT+8}, s{sT+9}
                v_lshlrev_b32 v6, 7, v{vLane}
                s_waitcnt lgkmcnt(0)
                """)
            if 'qwsp' in X and W0 <= i < W0 + 3:
                k(f"buffer_load_dword v{vGR+i-W0}, v6, {sr(sWI,4)}, s{sT+8} offen\ns_add_u32 s{sT+8}, s{sT+8}, 8192")
            if i == 3:
                L = k.newlabel("notag")
                k(f"s_cmp_lg_u32 s{sW}, 4\ns_cbranch_scc1 {L}")
                poll_tag(k, True)
                k(f"v_mov_b32 v{t0}, {L_TAG}\nds_write_b32 v{t0}, v{vTag}\n{L}:")
    k(f"s_cmp_ge_u32 s{sCG}, 12\ns_cbranch_scc1 k1_fin0\ns_setprio {0 if 'zprio' in X else 2}")
    k.label("k1_main")
    main_loop(k)
    stamp(k, 2)
    k(f"s_cmp_eq_u32 s{sRH}, 0\ns_cbranch_scc0 k1_q")
    z_epilogue(k)
    k("s_branch k1_fin")
    k.label("k1_q")
    q_epilogue(k)
    k("s_branch k1_clb")
    k.label("k1_loader")
    loader(k)
    stamp(k, 2)
    k("s_branch k1_fin")
    k.label("k1_helper")
    if FUSED and 'nocp' not in X:
        k(f"""
        s_getpc_b64 {sr(sT+10,2)}
        k1_pc:
        s_sub_u32 s{sT+10}, s{sT+10}, k1_pc-fz_kernel
        s_subb_u32 s{sT+11}, s{sT+11}, 0
        s_lshr_b32 s{sT+4}, s2, 3
        s_mul_i32 s{sT+4}, s{sT+4}, 12
        s_add_u32 s{sT+4}, s{sT+4}, s{sW}
        s_cmp_ge_u32 s{sT+4}, (fz_end-fz_kernel+1023)/1024
        s_cbranch_scc1 k1_nocp
        s_lshl_b32 s{sT+4}, s{sT+4}, 10
        v_lshlrev_b32 v{t0}, 4, v{vLane}
        v_add_u32 v{t0}, s{sT+4}, v{t0}
        v_min_u32 v{t0}, fz_end-fz_kernel, v{t0}
        global_load_dword v{vGA+1}, v{t0}, {sr(sT+10,2)}
        k1_nocp:
        """)
    k(f"""
    s_waitcnt lgkmcnt(0)
    v_mov_b32 v{vTag}, 0
    s_or_b32 s{sT+4}, s2, s{sW}
    s_cmp_lg_u32 s{sT+4}, 0
    s_cbranch_scc1 k1_nonce_done
    s_or_b32 s{sT+14}, s{sT+14}, 1
    v_mov_b32 v{vTag}, s{sT+14}
    v_lshlrev_b32 v{t3}, 2, v{vLane}
    buffer_store_dword v{vTag}, v{t3}, {sr(sDBG,4)}, 0 offen offset:128 sc0 sc1
    k1_nonce_done:
    """)
    if 'sweep' in X:
        k(f"""
        s_mul_i32 s{sT}, s2, 12
        s_add_u32 s{sT}, s{sT}, s{sW}
        s_lshl_b32 s{sT+1}, s{sT}, 13
        v_lshlrev_b32 v{t0}, 7, v{vLane}
        s_sub_u32 s{sT+2}, {383*8192}, s{sT+1}
        buffer_load_dword v{vT+9}, v{t0}, {sr(sXS,4)}, s{sT+2} offen
        """)
    helper(k)
    k("s_branch k1_fin")
    k.label("k1_fin0")
    k("s_waitcnt lgkmcnt(0)\ns_barrier")
    if FUSED:
        for t in range(7):
            k("s_barrier")
    k.label("k1_clb")
    if FUSED and CLAIM:
        k(f"s_cmp_lg_u32 s{sW}, 5\ns_cbranch_scc1 k1_fin")
        claim_id(k, "b")
    k.label("k1_fin")
    if STAMP:
        k("s_waitcnt vmcnt(0)")
    stamp(k, 3)
    stamp_store(k, 6)
    if FUSED:
        return k
    k("""
    k1_end:
    s_endpgm
    """)
    k.finish()
    return k


if __name__ == "__main__":
    import sys
    STAMP = "stamp" in sys.argv
    k = gen_k1()
    print(build_file("; test", [("k1_kernel", 256, 768, LDS_K1)], [k]))
```

```python
import os
import struct
from asmlib import *
from layout import *

X = set(os.environ.get('K1X', '').split(','))
STAGE = 32768
NS = 4
O_W = 16384
L_IMG = NS * STAGE
L_TAG = L_IMG + 16384
L_CSW = L_TAG + 256
L_RS = L_CSW + 4096
LDS_K1 = L_RS + 1024

vLane = 1
vL16 = 2
vDX, vDW = 3, 5
vAX = 9
vAW = 13
vTag = 15
vT = 16
ACC = 32
FX = 96
FW = 108
vGR = 156
vGC = 160
vGA = 164
vK = 0

sWS, sXS, sWW, sWI, sDBG = 4, 8, 12, 16, 20
sW, sRH, sRB, sCG, sUn = 24, 25, 26, 27, 28
sKX, sKW, sKQ = 29, 30, 31
sMX, sMW = 32, 33
sKind, sIdx, sT32, sGU = 34, 35, 36, 37
sCSo = 38
sT = 40
sSpin = 61

C0 = -2.0 * 1.4426950408889634 * 0.7978845608028654
C1 = C0 * 0.044715
QS = 0.25 * 1.4426950408889634
STAMP = False
FUSED = False
CLAIM = 'claim' in X
sTagS = 99
WT = os.environ.get('WT', '')
BC = "op_sel_hi:[1,0]"


def f32(x):
    return "0x%08x" % struct.unpack("<I", struct.pack("<f", x))[0]


def stamp(k, i):
    if STAMP:
        if i == 0:
            k("s_memrealtime s[80:81]")
        if i == 3:
            k("s_memrealtime s[82:83]")
        k(f"s_memtime {sr(64+2*i,2)}\ns_waitcnt lgkmcnt(0)")


def stamp_store(k, n):
    if not STAMP:
        return
    k(f"s_mul_i32 s62, s2, 12\ns_add_u32 s62, s62, s{sW}\ns_lshl_b32 s62, s62, 5\ns_add_u32 s62, s62, {WS_STAMP}")
    for i in range(n):
        k(f"s_sub_u32 s63, s{64+2*i}, s64\nv_mov_b32 v{vT}, s63\nv_mov_b32 v{vT+1}, 0\nbuffer_store_dword v{vT}, v{vT+1}, {sr(sWS,4)}, s62 offen offset:{4*i}")
    for j, r in ((6, 80), (7, 82)):
        k(f"v_mov_b32 v{vT}, s{r}\nv_mov_b32 v{vT+1}, 0\nbuffer_store_dword v{vT}, v{vT+1}, {sr(sWS,4)}, s62 offen offset:{4*j}")


def mfma32(d, a, b, c):
    cs = "0" if c is None else vr(c, 16)
    return f"v_mfma_f32_32x32x16_bf16 {vr(d,16)}, {vr(a,4)}, {vr(b,4)}, {cs}"


def dma(t):
    base = (t % NS) * STAGE
    out = []
    for j in range(4):
        e = f"s_add_u32 m0, s{sMX}, {base+1024*j}\n"
        if j == 2:
            e += f"s_add_u32 s{sT}, s{sKX}, 16384\n"
        e += f"buffer_load_dwordx4 v{vDX+j%2}, {sr(sXS,4)}, s{sT if j >= 2 else sKX} offen lds"
        out.append(e)
    srd, so, va, pitch = (sWI, sKW, vDW, 3584) if t < 8 else (sWW, sKQ, vDW + 1, 3072)
    for j in range(4):
        e = (f"s_add_u32 m0, s{sMW}, {base+1024*j}\nbuffer_load_dwordx4 v{va}, {sr(srd,4)}, s{so} offen lds\n"
             f"s_add_u32 s{so}, s{so}, {pitch*(8 if j < 3 else 40)}")
        if j == 3:
            e += (f"\ns_add_u32 s{sKX}, s{sKX}, 128\ns_and_b32 s{sKX}, s{sKX}, 1023\n"
                  f"s_cselect_b32 s{sT}, 0, {512*pitch}\ns_sub_u32 s{so}, s{so}, s{sT}")
        out.append(e)
    return out


def loader(k):
    t0, t1, t2, t3 = vT, vT + 1, vT + 2, vT + 3
    k(f"""
    s_setprio 3
    s_lshl_b32 s{sMX}, s{sUn}, 12
    v_lshrrev_b32 v{t0}, 3, v{vLane}
    v_and_b32 v{t1}, 7, v{vLane}
    v_lshrrev_b32 v{t2}, 1, v{t0}
    v_xor_b32 v{t2}, v{t2}, v{t1}
    v_lshlrev_b32 v{t2}, 4, v{t2}
    v_lshl_add_u32 v{t2}, v{t0}, 10, v{t2}
    s_lshl_b32 s{sT+5}, s{sRB}, 17
    s_lshl_b32 s{sT+6}, s{sUn}, 15
    s_add_u32 s{sT+5}, s{sT+5}, s{sT+6}
    v_add_u32 v{vDX}, s{sT+5}, v{t2}
    v_xor_b32 v{t2}, 64, v{t2}
    s_add_u32 s{sT+5}, s{sT+5}, 8192
    v_add_u32 v{vDX+1}, s{sT+5}, v{t2}
    ; W: chunk = (l%8) ^ (4*((row>>1)&1)), row = l/8
    v_lshlrev_b32 v{t2}, 1, v{t0}
    v_and_b32 v{t2}, 4, v{t2}
    v_xor_b32 v{t2}, v{t2}, v{t1}
    v_lshlrev_b32 v{t2}, 4, v{t2}
    v_mul_u32_u24 v{t3}, 3584, v{t0}
    v_add_u32 v{vDW}, v{t3}, v{t2}
    v_mul_u32_u24 v{t3}, 3072, v{t0}
    v_add_u32 v{vDW+1}, v{t3}, v{t2}
    s_lshr_b32 s{sT+1}, s{sUn}, 1
    s_and_b32 s{sT+2}, s{sUn}, 1
    s_lshl_b32 s{sKW}, s{sCG}, 7
    s_cmp_eq_u32 s{sT+1}, 0
    s_cselect_b32 s{sT+3}, 1792, 0
    s_add_u32 s{sKW}, s{sKW}, s{sT+3}
    s_mul_i32 s{sT+3}, s{sT+2}, {32*3584}
    s_add_u32 s{sKW}, s{sKW}, s{sT+3}
    s_lshl_b32 s{sKQ}, s{sCG}, 8
    s_lshl_b32 s{sT+3}, s{sT+1}, 7
    s_add_u32 s{sKQ}, s{sKQ}, s{sT+3}
    s_mul_i32 s{sT+3}, s{sT+2}, {32*3072}
    s_add_u32 s{sKQ}, s{sKQ}, s{sT+3}
    s_add_u32 s{sMW}, s{sMX}, {O_W}
    s_and_b32 s{sT+3}, s2, {7 if 'rot' in X else (6 if 'rot6' in X else 0)}
    s_lshl_b32 s{sKX}, s{sT+3}, 7
    s_mul_i32 s{sT+4}, s{sT+3}, {64*3584}
    s_add_u32 s{sKW}, s{sKW}, s{sT+4}
    s_mul_i32 s{sT+4}, s{sT+3}, {64*3072}
    s_add_u32 s{sKQ}, s{sKQ}, s{sT+4}
    s_waitcnt lgkmcnt(0)
    """)
    for a in dma(0):
        k(a, tag=("st", 0))
    for a in dma(1):
        k(a, tag=("st", 1))
    stamp(k, 1)
    for t in range(16):
        if t == 5:
            k(f"s_cmp_ge_u32 s{sCG}, 12\ns_cbranch_scc1 k1_ltail")
        k.wait_tag(("st", t))
        k("s_waitcnt lgkmcnt(0)\ns_barrier")
        if 'prof' in X:
            k(f"s_memtime s[84:85]\ns_memrealtime s[86:87]\ns_waitcnt lgkmcnt(0)\nv_writelane_b32 v40, s84, {t}\nv_writelane_b32 v41, s86, {t}")
        if t == 0:
            for a in dma(2):
                k(a, tag=("st", 2))
        if t + 3 < 16 and 'nodma' not in X:
            for a in dma(t + 3):
                k(a, tag=("st", t + 3))
    if 'prof' in X:
        k(f"""
        v_writelane_b32 v40, s64, 16
        v_writelane_b32 v41, s80, 16
        s_lshl_b32 s88, s2, 9
        s_add_u32 s88, s88, {WS_STAMP + 3*262144}
        v_lshlrev_b32 v42, 3, v{vLane}
        buffer_store_dwordx2 v[40:41], v42, {sr(sWS,4)}, s88 offen
        """)
    k("s_branch k1_ldone")
    k.label("k1_ltail")
    for t in range(5, 8):
        k.wait_tag(("st", t))
        k("s_barrier")
    if FUSED:
        for t in range(8):
            k("s_barrier")
    k.label("k1_ldone")
    k(f"v_mov_b32 v{t0}, {L_TAG}\nds_read_b32 v{vTag}, v{t0}\nv_readfirstlane_b32 s{sTagS}, v{vTag}")


def reads(ks, buf):
    out = [f"ds_read_b128 {vr(FX+4*buf,4)}, v{vAX+ks}"]
    for c in range(4):
        d = FW + 16 * buf + 4 * c
        o = (c // 2) * 8192 + ks * 2048
        out.append(f"ds_read_b64_tr_b16 {vr(d,2)}, v{vAW+c%2} offset:{o}")
        out.append(f"ds_read_b64_tr_b16 {vr(d+2,2)}, v{vAW+c%2} offset:{o+512}")
    return out


def mms(buf, first):
    return [mfma32(ACC + 16 * c, FW + 16 * buf + 4 * c, FX + 4 * buf, None if first else ACC + 16 * c) for c in range(4)]


def gather_loads():
    e = ""
    if 'lrs' not in X:
        e = f"buffer_load_dwordx4 {vr(vGR,4)}, v{vGA}, {sr(sWS,4)}, 0 offen sc0 sc1\n"
    for un in range(2):
        e += f"buffer_load_dwordx2 {vr(vGC+2*un,2)}, v{vGA+1}, {sr(sWS,4)}, s{sCSo+un} offen sc0 sc1\n"
    return e


def check_tags(k, regs, Lok, tmp):
    k(f"v_xor_b32 v{tmp}, v{regs[0]}, v{vTag}")
    for r in regs[1:]:
        k(f"v_xor_b32 v{tmp+1}, v{r}, v{vTag}\nv_or_b32 v{tmp}, v{tmp}, v{tmp+1}")
    k(f"v_cmp_ne_u32 vcc, 0, v{tmp}\ns_cmp_eq_u64 vcc, 0\ns_cbranch_scc1 {Lok}")


def poll_tag(k, first_issued):
    Lr, Lok, Lc, Ln = k.newlabel("tagpoll"), k.newlabel("tagok"), k.newlabel("tagchk"), k.newlabel("tagno")
    if first_issued:
        k(f"s_branch {Lc}")
    k(f"""
    {Lr}:
    buffer_load_dword v{vTag}, v{vGA+2}, {sr(sDBG,4)}, 0 offen sc0 sc1
    {Lc}:
    v_readfirstlane_b32 s{sT}, v{vTag}
    s_cmp_eq_u32 s{sT}, 0
    s_cbranch_scc1 {Ln}
    s_sub_u32 s{sT+13}, s{sT+14}, s{sT}
    s_add_u32 s{sT+13}, s{sT+13}, 100000
    s_cmp_lt_u32 s{sT+13}, 102000
    s_cbranch_scc1 {Lok}
    s_cmp_lt_u32 s{sSpin}, 197000
    s_cbranch_scc1 {Lok}
    {Ln}:
    s_sleep 2
    s_sub_u32 s{sSpin}, s{sSpin}, 1
    s_cbranch_scc0 {Lr}
    s_mov_b32 s{sSpin}, 0
    {Lok}:
    """)


def claim_id(k, part="ab"):
    t0, t1 = 6, 7
    issue = f"""
    s_and_b32 s{sT+8}, s{sT+8}, 7
    s_lshl_b32 s{sT+10}, s{sT+8}, 4
    v_mov_b32 v{t0}, s{sT+10}
    v_mov_b32 v{t1}, 1
    s_mov_b64 exec, 1
    buffer_atomic_add v{t1}, v{t0}, {sr(sDBG,4)}, 0 offen sc0 sc1
    s_mov_b64 exec, -1
    """
    if "a" in part:
        k(f"s_getreg_b32 s{sT+8}, hwreg(HW_REG_XCC_ID)\ns_mov_b32 s{sT+9}, 8")
        k(issue)
    if "b" in part:
        Lr, Lok, Ld = k.newlabel("clm"), k.newlabel("clmok"), k.newlabel("clmd")
        k(f"""
        {Lr}:
        v_readfirstlane_b32 s{sT+10}, v{t1}
        s_cmp_lt_u32 s{sT+10}, 32
        s_cbranch_scc1 {Lok}
        s_mov_b32 s{sT+10}, s2
        s_sub_u32 s{sT+9}, s{sT+9}, 1
        s_cmp_eq_u32 s{sT+9}, 0
        s_cbranch_scc1 {Ld}
        s_add_u32 s{sT+8}, s{sT+8}, 1
        """)
        k(issue)
        k(f"""
        s_branch {Lr}
        {Lok}:
        s_lshl_b32 s{sT+10}, s{sT+10}, 3
        s_add_u32 s{sT+10}, s{sT+10}, s{sT+8}
        {Ld}:
        v_mov_b32 v{t0}, {L_TAG+4}
        v_mov_b32 v{t1}, s{sT+10}
        ds_write_b32 v{t0}, v{t1}
        """)


def main_loop(k, half=False):
    t0 = vT
    LA = 2
    for p in range(8):
        k("s_waitcnt lgkmcnt(0)\ns_barrier")
        if p > 0:
            step = STAGE if p % NS else -(NS - 1) * STAGE
            for r in (vAX, vAX + 1, vAX + 2, vAX + 3, vAW, vAW + 1):
                k(f"v_add_u32 v{r}, {step & 0xffffffff:#x}, v{r}")
        for ks in range(4):
            g = 4 * p + ks
            r = reads(ks, g % 3)
            m = mms((g - LA) % 3, g - LA == 0) if g >= LA else []
            if half:
                r, m = r[:5], m[:2]
            seq = interleave(m, r) if ks < 3 else (m[:1] + r[:5] + m[1:2] + r[5:] + m[2:])
            for a in seq:
                k(a)
            if p == 5 and ks == 0:
                k(f"v_mov_b32 v{t0}, {L_TAG}\nds_read_b32 v{vTag}, v{t0}")
            if p == 6 and ks == 2:
                k(gather_loads())
    for g in range(32 - LA, 32):
        for a in mms(g % 3, False)[:2 if half else 4]:
            k(a)


def row_stats(k):
    t0, t1, t2, t3 = vT, vT + 1, vT + 2, vT + 3
    S = ACC
    D = ACC + 8
    U = ACC + 40
    for i in range(4):
        k(f"v_mov_b32 v{S+i}, 0")
    if 'rprio' in X:
        k("s_setprio 2")

    def crunch(b):
        for i in range(16):
            u = U + 2 * (i % 4)
            k(f"""
            v_lshlrev_b32 v{u}, 16, v{D+16*b+i}
            v_and_b32 v{u+1}, 0xffff0000, v{D+16*b+i}
            v_add_f32 v{S}, v{S}, v{u}
            v_add_f32 v{S+1}, v{S+1}, v{u+1}
            v_fmac_f32 v{S+2}, v{u}, v{u}
            v_fmac_f32 v{S+3}, v{u+1}, v{u+1}
            """)
    for p in range(8):
        k("s_waitcnt lgkmcnt(0)\ns_barrier")
        o = (p % 2) * STAGE
        if p in (2, 6):
            for r in range(4):
                k(f"v_add_u32 v{vAX+r}, {2*STAGE}, v{vAX+r}")
        if p == 4:
            for r in range(4):
                k(f"v_subrev_u32 v{vAX+r}, {2*STAGE}, v{vAX+r}")
        for ks in range(4):
            k(f"ds_read_b128 {vr(D+16*(p%2)+4*ks,4)}, v{vAX+ks} offset:{o}")
        if 'nocr' not in X:
            crunch(p % 2)
    for r in range(4):
        k(f"v_subrev_u32 v{vAX+r}, {2*STAGE}, v{vAX+r}")
    k(f"""
    v_add_f32 v{S}, v{S}, v{S+1}
    v_add_f32 v{S+2}, v{S+2}, v{S+3}
    v_mov_b32 v{t0}, v{S}
    v_mov_b32 v{t1}, v{S+2}
    v_permlane32_swap_b32 v{S}, v{t0}
    v_permlane32_swap_b32 v{S+2}, v{t1}
    v_add_f32 v{t0}, v{t0}, v{S}
    v_add_f32 v{t1}, v{t1}, v{S+2}
    v_mul_f32 v{t0}, {f32(1.0/512)}, v{t0}
    v_mul_f32 v{t1}, {f32(1.0/512)}, v{t1}
    v_fma_f32 v{t1}, -v{t0}, v{t0}, v{t1}
    v_max_f32 v{t1}, 0, v{t1}
    v_add_f32 v{t1}, {f32(1e-5)}, v{t1}
    v_rsq_f32 v{t1}, v{t1}
    v_mul_f32 v{t0}, v{t0}, v{t1}
    ds_write_b32 v{vGA}, v{t1}
    ds_write_b32 v{vGA}, v{t0} offset:512
    """)


def epi_addr(k):
    t0, t1, t2, t3 = vT, vT + 1, vT + 2, vT + 3
    k(f"""
    s_lshl_b32 s{sT}, s{sW}, 9
    s_add_u32 s{sT}, s{sT}, {L_CSW}
    v_lshlrev_b32 v{t0}, 2, v{vLane}
    v_add_u32 v{vT+4}, s{sT}, v{t0}
    v_lshrrev_b32 v{t2}, 5, v{vLane}             ; h
    v_lshlrev_b32 v{vT+6}, 5, v{t2}
    v_add_u32 v{vT+6}, s{sT}, v{vT+6}
    v_lshlrev_b32 v{vT+5}, 3, v{vLane}
    v_mov_b32 v3, {f32(C0)}
    v_and_b32 v{t0}, 31, v{vLane}
    v_and_b32 v{t1}, 1, v{t0}
    v_bfe_u32 v{t3}, v{t0}, 1, 1
    v_lshl_or_b32 v{t1}, v{t3}, 2, v{t1}
    v_bfe_u32 v{t3}, v{t0}, 2, 1
    v_lshl_or_b32 v{t1}, v{t3}, 1, v{t1}
    v_xor_b32 v{t1}, v{t1}, v{t2}
    v_lshlrev_b32 v{t1}, 4, v{t1}
    v_lshl_add_u32 v{t1}, v{t0}, 7, v{t1}
    v_add_u32 v{vT+8}, s{sT+1}, v{t1}
    v_xor_b32 v{vT+9}, 32, v{vT+8}
    v_xor_b32 v{vT+10}, 64, v{vT+8}
    v_xor_b32 v{vT+11}, 96, v{vT+8}
    v_bfe_u32 v{t0}, v{vLane}, 2, 2
    v_and_b32 v{t1}, 1, v{t0}
    v_lshrrev_b32 v{t3}, 1, v{t0}
    v_lshl_or_b32 v{t1}, v{t3}, 2, v{t1}
    v_bfe_u32 v{t3}, v{vLane}, 4, 1
    v_lshlrev_b32 v{t3}, 1, v{t3}
    v_and_b32 v{vT+7}, 1, v{vLane}
    v_or_b32 v{t3}, v{t3}, v{vT+7}
    v_xor_b32 v{t1}, v{t1}, v{t3}
    v_lshlrev_b32 v{t1}, 4, v{t1}
    v_lshl_add_u32 v{t0}, v{t2}, 3, v{t0}
    v_lshl_add_u32 v{t1}, v{t0}, 7, v{t1}
    v_bfe_u32 v{t3}, v{vLane}, 1, 1
    v_lshl_add_u32 v{t1}, v{t3}, 3, v{t1}
    v_add_u32 v{vT+12}, s{sT+1}, v{t1}
    v_xor_b32 v{vT+13}, 32, v{vT+12}
    v_xor_b32 v{vT+14}, 64, v{vT+12}
    v_xor_b32 v{vT+15}, 96, v{vT+12}
    v_and_b32 v{t0}, 15, v{vLane}
    v_lshlrev_b32 v{t0}, 4, v{t0}
    v_lshl_add_u32 v{t0}, v{t2}, 8, v{t0}
    v_bfe_u32 v{t3}, v{vLane}, 4, 1
    v_lshl_add_u32 v{vT+7}, v{t3}, 16, v{t0}
    """)


def get_stats(k):
    t0 = vT
    tagregs = [vGC + 1, vGC + 3] + ([vGR + 1, vGR + 3] if 'lrs' not in X else [])
    Lr, Lok = k.newlabel("g1"), k.newlabel("g1ok")
    check_tags(k, tagregs, Lok, t0)
    k(f"{Lr}:\ns_sleep 2")
    k(gather_loads())
    check_tags(k, tagregs, Lok, t0)
    k(f"s_sub_u32 s{sSpin}, s{sSpin}, 1\ns_cbranch_scc0 {Lr}\ns_mov_b32 s{sSpin}, 0\n{Lok}:")
    k(f"ds_write_b32 v{vT+4}, v{vGC}\nds_write_b32 v{vT+4}, v{vGC+2} offset:256")
    if 'lrs' in X:
        k(f"ds_read_b32 v{vGR}, v{vGA}\nds_read_b32 v{vGR+2}, v{vGA} offset:512")
    k("s_waitcnt lgkmcnt(0)")


def cs_reads(un):
    out = []
    for c in range(4):
        out.append(f"ds_read_b128 {vr(FW+8*c,4)}, v{vT+6} offset:{un*256+c*64}")
        out.append(f"ds_read_b128 {vr(FW+8*c+4,4)}, v{vT+6} offset:{un*256+c*64+16}")
    return out


def pack(A):
    return [f"v_cvt_pk_bf16_f32 v{A+8*c+i}, v{A+8*c+2*i}, v{A+8*c+2*i+1}" for c in range(4) for i in range(4)]


def tr_store(k, A, lane_reg, s0, kstride):
    for c in range(4):
        k(f"ds_write_b128 v{vT+8+c}, {vr(A+8*c,4)}")
    k(f"s_add_u32 s{sT+3}, s{s0}, 131072\ns_waitcnt lgkmcnt(0)")
    for ct in range(2):
        for ks in range(2):
            d = A + 8 * ct + 4 * ks
            k(f"ds_read_b64_tr_b16 {vr(d,2)}, v{vT+12+2*ct} offset:{ks*2048}")
            k(f"ds_read_b64_tr_b16 {vr(d+2,2)}, v{vT+13+2*ct} offset:{ks*2048+512}")
    for ct in range(2):
        for ks in range(2):
            k(f"buffer_store_dwordx4 {vr(A+8*ct+4*ks,4)}, v{lane_reg}, {sr(sWS,4)}, s{(s0, sT+3)[ct]} offen offset:{ks*kstride} {WT}")


def z_epilogue(k):
    t0, t1, t2, t3 = vT, vT + 1, vT + 2, vT + 3
    k("s_barrier")
    if 'zprio' in X:
        k("s_setprio 2")
    get_stats(k)
    k(f"s_mov_b32 s{sT+10}, {f32(C1)}")
    if 'zpk' in X:
        k(f"v_mov_b32 v4, v{vGR}\nv_mov_b32 v5, v{vGR+2}\nv_mov_b32 v6, {f32(C0)}\nv_mov_b32 v7, {f32(C1)}")
    S = FX

    def unit_ops(un):
        A = ACC + 32 * un
        ops = list(cs_reads(un))
        if 'zpk' in X:
            P = range(0, 32, 2)
            ops += [f"v_pk_mul_f32 {vr(A+i,2)}, {vr(A+i,2)}, v[4:5] {BC}" for i in P]
            ops += [f"v_pk_fma_f32 {vr(A+i,2)}, {vr(FW+i,2)}, v[4:5], {vr(A+i,2)} op_sel:[0,1,0] op_sel_hi:[1,1,1] neg_lo:[1,0,0] neg_hi:[1,0,0]" for i in P]
            ops += [f"v_pk_mul_f32 {vr(FW+i,2)}, {vr(A+i,2)}, {vr(A+i,2)}" for i in P]
            ops += [f"v_pk_fma_f32 {vr(FW+i,2)}, {vr(FW+i,2)}, v[6:7], v[6:7] op_sel:[0,1,0] op_sel_hi:[1,1,0]" for i in P]
            ops += [f"v_pk_mul_f32 {vr(FW+i,2)}, {vr(FW+i,2)}, {vr(A+i,2)}" for i in P]
            ops += [f"v_exp_f32 v{FW+i}, v{FW+i}" for i in range(32)]
            ops += [f"v_pk_add_f32 {vr(FW+i,2)}, {vr(FW+i,2)}, 1.0 op_sel_hi:[1,0]" for i in P]
            ops += [f"v_rcp_f32 v{FW+i}, v{FW+i}" for i in range(32)]
            ops += [f"v_pk_mul_f32 {vr(A+i,2)}, {vr(A+i,2)}, {vr(FW+i,2)}" for i in P]
            return ops
        for i in range(32):
            ops.append(f"v_mul_f32 v{A+i}, v{A+i}, v{vGR}")
        for i in range(32):
            ops.append(f"v_fma_f32 v{A+i}, -v{vGR+2}, v{FW+i}, v{A+i}")
        for h in range(2):
            R = [A + 16 * h + i for i in range(16)]
            T = [FW + i for i in range(16)]
            ops += [f"v_mul_f32 v{t}, v{r}, v{r}" for r, t in zip(R, T)]
            ops += [f"v_fma_f32 v{t}, v{t}, s{sT+10}, v3" for r, t in zip(R, T)]
            ops += [f"v_mul_f32 v{t}, v{t}, v{r}" for r, t in zip(R, T)]
            ops += [f"v_exp_f32 v{t}, v{t}" for r, t in zip(R, T)]
            ops += [f"v_add_f32 v{t}, 1.0, v{t}" for r, t in zip(R, T)]
            ops += [f"v_rcp_f32 v{t}, v{t}" for r, t in zip(R, T)]
            ops += [f"v_mul_f32 v{r}, v{r}, v{t}" for r, t in zip(R, T)]
        return ops

    ops = unit_ops(0)
    A = ACC
    ops += [f"v_add_f32 v{S}, v{A}, v{A+1}", f"v_mul_f32 v{S+2}, v{A}, v{A}", f"v_add_f32 v{S+1}, v{A+2}, v{A+3}",
            f"v_mul_f32 v{S+3}, v{A+1}, v{A+1}", f"v_fmac_f32 v{S+2}, v{A+2}, v{A+2}", f"v_fmac_f32 v{S+3}, v{A+3}, v{A+3}"]
    for i in range(4, 32):
        ops += [f"v_add_f32 v{S+i%2}, v{S+i%2}, v{A+i}", f"v_fmac_f32 v{S+2+i%2}, v{A+i}, v{A+i}"]
    ops.append(f"""
    v_add_f32 v{S}, v{S}, v{S+1}
    v_add_f32 v{S+2}, v{S+2}, v{S+3}
    v_permlane32_swap_b32 v{S}, v{S+2}
    v_add_f32 v{S}, v{S}, v{S+2}
    v_mov_b32 v{S+1}, v{vTag}
    s_mul_i32 s{sT+4}, s{sT32}, {14*512}
    s_add_u32 s{sT+4}, s{sT+4}, {WS_S2}
    s_lshl_b32 s{sT+1}, s{sCG}, 9
    s_add_u32 s{sT+1}, s{sT+1}, s{sT+4}
    buffer_store_dwordx2 {vr(S,2)}, v{vT+5}, {sr(sWS,4)}, s{sT+1} offen sc0 sc1
    """)
    n0 = len(ops)
    if 'noz1' not in X:
        ops += unit_ops(1)
    ops += pack(ACC + 32)
    G = FW

    def g2loads():
        e = ""
        for i in range(7):
            if i % 4 == 0:
                e += f"s_add_u32 s{sT}, s{sT+4}, {1024*i}\n"
            e += f"buffer_load_dwordx4 {vr(G+4*i,4)}, v{vL16}, {sr(sWS,4)}, s{sT} offen offset:{1024*(i%4)} sc0 sc1\n"
        return e
    ops.insert(len(ops) - 16, g2loads())
    e = f"""
    s_mul_i32 s{sT+1}, s{sT32}, {56*1024}
    s_lshl_b32 s{sT+2}, s{sCG}, 12
    s_add_u32 s{sT+1}, s{sT+1}, s{sT+2}
    s_add_u32 s{sT+1}, s{sT+1}, {WS_Z1}
    """
    for c in range(4):
        e += f"buffer_store_dwordx4 {vr(ACC+32+8*c,4)}, v{vL16}, {sr(sWS,4)}, s{sT+1} offen offset:{1024*c} {WT}\n"
    ops.append(e)
    cost = [2 if o.startswith(("v_exp", "v_rcp", "v_pk")) else (3 if o.startswith("ds_") else (25 if "\n" in o else 1)) for o in ops]
    HEAD = int(os.environ.get('ZHEAD', '70'))
    NB1 = int(os.environ.get('ZNB', '5'))
    tot = sum(cost) + HEAD
    acc, nxt, placed = HEAD, 1, 0
    for i, (o, c) in enumerate(zip(ops, cost)):
        if not ('noz' in X and o.startswith('v_')):
            k(o)
        if i == n0 - 1:
            stamp(k, 4)
        acc += c
        if placed < NB1 and acc >= tot * nxt / NB1 - 1e-9:
            k("s_barrier")
            placed += 1
            nxt += 1
    assert placed == NB1
    rest = 7 - NB1
    stamp(k, 5)
    Lr, Lok = k.newlabel("g2"), k.newlabel("g2ok")
    check_tags(k, [G + 2 * j + 1 for j in range(14)], Lok, t0)
    k(f"{Lr}:")
    k(g2loads())
    check_tags(k, [G + 2 * j + 1 for j in range(14)], Lok, t0)
    k(f"s_sleep 1\ns_sub_u32 s{sSpin}, s{sSpin}, 1\ns_cbranch_scc0 {Lr}\ns_mov_b32 s{sSpin}, 0\n{Lok}:")
    stamp(k, 1)
    for i in range(1, 7):
        k(f"v_add_f32 v{G}, v{G}, v{G+4*i}\nv_add_f32 v{G+2}, v{G+2}, v{G+4*i+2}")
    k(f"""
    v_mov_b32 v{t0}, v{G}
    v_mov_b32 v{t1}, v{G+2}
    v_permlane32_swap_b32 v{G}, v{t0}
    v_permlane32_swap_b32 v{G+2}, v{t1}
    v_add_f32 v{G}, v{G}, v{t0}
    v_add_f32 v{G+1}, v{G+2}, v{t1}
    s_lshl_b32 s{sT}, s{sW}, 9
    s_add_u32 s{sT}, s{sT}, {L_CSW}
    v_and_b32 v{t2}, 31, v{vLane}
    v_lshlrev_b32 v{t3}, 3, v{t2}
    v_add_u32 v{t3}, s{sT}, v{t3}
    ds_write_b64 v{t3}, {vr(G,2)}
    v_lshlrev_b32 v{t3}, 2, v{t2}
    v_add_u32 v{t3}, s{sT}, v{t3}
    s_waitcnt lgkmcnt(0)
    ds_read_b32 v{t0}, v{t3}
    ds_read_b32 v{t1}, v{t3} offset:128
    s_lshl_b32 s{sT}, s{sCG}, 18
    s_lshl_b32 s{sT+1}, s{sT32}, 11
    s_add_u32 s{sT}, s{sT}, s{sT+1}
    s_add_u32 s{sT}, s{sT}, {WS_Z2}
    v_mul_f32 v{t0}, {f32(1.0/896)}, v{t0}
    v_mul_f32 v{t1}, {f32(1.0/896)}, v{t1}
    v_fma_f32 v{t1}, -v{t0}, v{t0}, v{t1}
    v_max_f32 v{t1}, 0, v{t1}
    v_add_f32 v{t1}, {f32(1e-5)}, v{t1}
    v_rsq_f32 v{t1}, v{t1}
    v_mul_f32 v{t0}, v{t0}, v{t1}
    """)
    if rest >= 1:
        k("s_barrier")
    for i in range(32):
        k(f"v_fma_f32 v{A+i}, v{A+i}, v{t1}, -v{t0}")
    for o in pack(A):
        k(o)
    tr_store(k, A, vL16, sT, 1024)
    for i in range(rest - 1):
        k("s_barrier")


def q_epilogue(k):
    get_stats(k)
    k(f"""
    s_cmp_eq_u32 s{sKind}, 0
    s_cselect_b32 s{sT}, {f32(QS)}, 1.0
    v_mul_f32 v4, s{sT}, v{vGR}
    v_mul_f32 v5, s{sT}, v{vGR+2}
    s_lshl_b32 s{sT}, s{sCG}, 19
    s_lshl_b32 s{sT+1}, s{sT32}, 10
    s_add_u32 s{sT}, s{sT}, s{sT+1}
    s_add_u32 s{sT}, s{sT}, {WS_Q}
    """)
    for un in range(2):
        A = ACC + 32 * un
        for o in cs_reads(un):
            k(o)
        for i in range(0, 32, 2):
            k(f"v_pk_mul_f32 {vr(A+i,2)}, {vr(A+i,2)}, v[4:5] {BC}")
        for i in range(0, 32, 2):
            k(f"v_pk_fma_f32 {vr(A+i,2)}, {vr(FW+i,2)}, v[4:5], {vr(A+i,2)} op_sel:[0,1,0] op_sel_hi:[1,1,1] neg_lo:[1,0,0] neg_hi:[1,0,0]")
        for o in pack(A):
            k(o)
        Lv, Ld = k.newlabel("qv"), k.newlabel("qd")
        k(f"s_cmp_eq_u32 s{sKind}, 2\ns_cbranch_scc1 {Lv}")
        for c in range(4):
            k(f"buffer_store_dwordx4 {vr(A+8*c,4)}, v{vL16}, {sr(sWS,4)}, s{sT} offen {WT}\ns_add_u32 s{sT}, s{sT}, 65536")
        k(f"s_branch {Ld}\n{Lv}:")
        tr_store(k, A, vT + 7, sT, 512)
        k(f"s_add_u32 s{sT}, s{sT}, 262144\n{Ld}:")


def wave_allsum(k, regs, tmps):
    for sh in (8, 4, 2, 1):
        for r in regs:
            k(f"v_add_f32_dpp v{r}, v{r}, v{r} row_ror:{sh} row_mask:0xf bank_mask:0xf")
    for sw in ("v_permlane16_swap_b32", "v_permlane32_swap_b32"):
        for r, t in zip(regs, tmps):
            k(f"v_mov_b32 v{t}, v{r}")
        for r, t in zip(regs, tmps):
            k(f"{sw} v{r}, v{t}")
        for r, t in zip(regs, tmps):
            k(f"v_add_f32 v{r}, v{r}, v{t}")


def helper(k):
    t0, t1, t2, t3 = vT, vT + 1, vT + 2, vT + 3
    A = FX
    if 'lrs' not in X:
        D = ACC
        k(f"""
        s_cmp_lt_u32 s{sW}, 8
        s_cbranch_scc1 k1_hcol
        s_setprio 2
        s_and_b32 s{sT+6}, s2, 7
        s_lshl_b32 s{sT+6}, s{sT+6}, 2
        s_lshr_b32 s{sT+7}, s2, 3
        s_add_u32 s{sT+6}, s{sT+6}, s{sT+7}
        s_lshl_b32 s{sT+6}, s{sT+6}, 2
        s_add_u32 s{sT+6}, s{sT+6}, s{sW}
        s_sub_u32 s{sT+6}, s{sT+6}, 8
        s_lshl_b32 s{sT+7}, s{sT+6}, 14
        v_lshrrev_b32 v{t0}, 3, v{vLane}
        v_and_b32 v{t1}, 7, v{vLane}
        v_lshlrev_b32 v{t1}, 4, v{t1}
        v_lshl_add_u32 v{t1}, v{t0}, 10, v{t1}
        s_add_u32 s{sT+8}, s{sT+7}, 8192
        v_mov_b32 v3, 0x3f803f80
        """)
        for b in range(2):
            for i in range(8):
                k(f"buffer_load_dwordx4 {vr(D+32*b+4*i,4)}, v{t1}, {sr(sXS,4)}, s{sT+7+b} offen offset:{128*i}")
        k(f"buffer_load_dword v{vTag}, v{vGA+2}, {sr(sDBG,4)}, 0 offen sc0 sc1")
        for j in range(4):
            k(f"v_mov_b32 v{A+j}, 0")
        for b in range(2):
            for i in range(32):
                k(f"v_dot2c_f32_bf16 v{A+2*b}, v{D+32*b+i}, v3\nv_dot2c_f32_bf16 v{A+2*b+1}, v{D+32*b+i}, v{D+32*b+i}")
        for m in ("quad_perm:[1,0,3,2]", "quad_perm:[2,3,0,1]", "row_half_mirror"):
            for j in range(4):
                k(f"v_add_f32_dpp v{A+j}, v{A+j}, v{A+j} {m} row_mask:0xf bank_mask:0xf")
        k(f"""
        v_and_b32 v{t2}, 1, v{vLane}
        v_cmp_eq_u32 vcc, 1, v{t2}
        v_cndmask_b32 v{A}, v{A}, v{A+2}, vcc
        v_cndmask_b32 v{A+1}, v{A+1}, v{A+3}, vcc
        v_mul_f32 v{A}, {f32(1.0/512)}, v{A}
        v_mul_f32 v{A+1}, {f32(1.0/512)}, v{A+1}
        v_fma_f32 v{A+1}, -v{A}, v{A}, v{A+1}
        v_max_f32 v{A+1}, 0, v{A+1}
        v_add_f32 v{A+1}, {f32(1e-5)}, v{A+1}
        v_rsq_f32 v{D}, v{A+1}
        v_mul_f32 v{D+2}, v{D}, v{A}
        v_lshl_add_u32 v{t0}, v{t2}, 3, v{t0}
        v_lshlrev_b32 v{t0}, 4, v{t0}
        """)
        poll_tag(k, True)
        k(f"""
        v_mov_b32 v{D+1}, v{vTag}
        v_mov_b32 v{D+3}, v{vTag}
        s_lshl_b32 s{sT+7}, s{sT+6}, 8
        s_add_u32 s{sT+7}, s{sT+7}, {WS_RS}
        s_mov_b32 exec_lo, 0x03030303
        s_mov_b32 exec_hi, 0x03030303
        buffer_store_dwordx4 {vr(D,4)}, v{t0}, {sr(sWS,4)}, s{sT+7} offen sc0 sc1
        s_mov_b64 exec, -1
        s_setprio 0
        k1_hcol:
        """)
    k(f"""
    ; e = (xcd/2)*4 + i, p = xcd%2: z unit index (0..27) = (e<7 ? 14 : -7) + e + 7p ; qkv unit = min(14p + e, 23)
    s_bfe_u32 s{sT+5}, s2, 0x20001
    s_lshl_b32 s{sT+5}, s{sT+5}, 2
    s_lshr_b32 s{sT+4}, s2, 3
    s_add_u32 s{sT+5}, s{sT+5}, s{sT+4}
    s_cmp_ge_u32 s{sT+5}, 14
    s_cbranch_scc1 k1_hpre
    s_and_b32 s{sT+4}, s2, 1
    s_mul_i32 s{sT+3}, s{sT+4}, 7
    s_add_u32 s{sT+1}, s{sT+5}, s{sT+3}
    s_add_u32 s{sT}, s{sT+1}, s{sT+3}
    s_min_u32 s{sT}, s{sT}, 23
    s_cmp_lt_u32 s{sT+5}, 7
    s_cselect_b32 s{sT+2}, 14, -7
    s_add_u32 s{sT+1}, s{sT+1}, s{sT+2}
    s_add_u32 s{sGU}, s{sT+1}, 24
    s_lshl_b32 s{sT+1}, s{sT+1}, 7
    s_lshl_b32 s{sT+2}, s{sT}, 7
    s_lshl_b32 s{sT+4}, s{sW}, 6
    s_sub_u32 s{sT+5}, s{sW}, 8
    s_lshl_b32 s{sT+5}, s{sT+5}, 7
    s_cmp_lt_u32 s{sW}, 8
    s_cselect_b32 s{sGU}, s{sGU}, s{sT}
    s_cselect_b32 s{sT+1}, s{sT+1}, s{sT+2}
    s_cselect_b32 s{sT+4}, s{sT+4}, s{sT+5}
    s_cselect_b32 s{sT+3}, 512, 0
    s_cselect_b32 s{sWW}, s{sWI}, s{sWW}
    s_cselect_b32 s{sWW+1}, s{sWI+1}, s{sWW+1}
    s_cselect_b32 s{sWW+2}, s{sWI+2}, s{sWW+2}
    s_add_u32 s{sT+3}, s{sT+3}, 3072             ; pitch
    v_lshrrev_b32 v{t0}, 3, v{vLane}
    v_add_u32 v{t0}, s{sT+4}, v{t0}
    v_mul_lo_u32 v{t0}, v{t0}, s{sT+3}
    v_and_b32 v{t1}, 7, v{vLane}
    v_lshl_add_u32 v{t0}, v{t1}, 4, v{t0}
    s_lshl_b32 s{sT+3}, s{sT+3}, 3
    """)

    def loads(b):
        for i in range(8):
            k(f"buffer_load_dwordx4 {vr(ACC+32*b+4*i,4)}, v{t0}, {sr(sWW,4)}, s{sT+1} offen")
            k(f"s_add_u32 s{sT+1}, s{sT+1}, s{sT+3}")

    def accum(b):
        for i in range(8):
            for r in range(4):
                src = ACC + 32 * b + 4 * i + r
                if i == 0 and b == 0:
                    k(f"v_lshlrev_b32 v{A+2*r}, 16, v{src}\nv_and_b32 v{A+2*r+1}, 0xffff0000, v{src}")
                else:
                    k(f"v_lshlrev_b32 v{t2}, 16, v{src}\nv_and_b32 v{t3}, 0xffff0000, v{src}\n"
                      f"v_pk_add_f32 {vr(A+2*r,2)}, {vr(A+2*r,2)}, {vr(t2,2)}")

    def reduce_write():
        regs = [A + i for i in range(8)]
        tm = [A + 8 + i for i in range(8)]
        for r in regs:
            k(f"v_add_f32_dpp v{r}, v{r}, v{r} row_ror:8 row_mask:0xf bank_mask:0xf")
        for sw in ("v_permlane16_swap_b32", "v_permlane32_swap_b32"):
            for r, t in zip(regs, tm):
                k(f"v_mov_b32 v{t}, v{r}")
            for r, t in zip(regs, tm):
                k(f"{sw} v{r}, v{t}")
            for r, t in zip(regs, tm):
                k(f"v_add_f32 v{r}, v{r}, v{t}")
        k(f"""
        s_lshl_b32 s{sT}, s{sW}, 8
        v_lshlrev_b32 v{t0}, 5, v{t1}
        v_add_u32 v{t0}, s{sT}, v{t0}
        ds_write_b128 v{t0}, {vr(A,4)}
        ds_write_b128 v{t0}, {vr(A+4,4)} offset:16
        s_waitcnt lgkmcnt(0)
        """)

    def publish(n):
        k(f"s_lshl_b32 s{sT}, s{sW}, 8\nv_lshlrev_b32 v{t0}, 2, v{vLane}\nv_add_u32 v{t0}, s{sT}, v{t0}")
        for i in range(n):
            k(f"ds_read_b32 v{A+i}, v{t0} offset:{256*i}")
        poll_tag(k, True)
        for i in range(1, n):
            k(f"v_add_f32 v{A}, v{A}, v{A+i}")
        k(f"""
        s_lshl_b32 s{sT}, s{sGU}, 9
        s_add_u32 s{sT}, s{sT}, {WS_CS}
        v_lshlrev_b32 v{t0}, 3, v{vLane}
        v_mov_b32 v{A+1}, v{vTag}
        buffer_store_dwordx2 {vr(A,2)}, v{t0}, {sr(sWS,4)}, s{sT} offen sc0 sc1
        """)
    loads(0)
    k(f"s_cmp_ge_u32 s{sW}, 8\ns_cbranch_scc1 k1_hq")
    k(f"s_setprio 2\nbuffer_load_dword v{vT+8}, v{vGA+2}, {sr(sDBG,4)}, 0 offen sc0 sc1")
    accum(0)
    reduce_write()
    k(f"s_barrier\ns_cmp_lg_u32 s{sW}, 0\ns_cbranch_scc1 k1_hz\nv_cmp_eq_u32 vcc, 0, v{vTag}\nv_cndmask_b32 v{vTag}, v{vTag}, v{vT+8}, vcc")
    publish(8)
    k.label("k1_hz")
    if FUSED:
        k("s_barrier")
    k("s_branch k1_hpre")
    k.label("k1_hq")
    loads(1)
    k("s_barrier")
    accum(0)
    accum(1)
    reduce_write()
    k(f"s_barrier\ns_cmp_lg_u32 s{sW}, 8\ns_cbranch_scc1 k1_hpre")
    publish(4)
    k.label("k1_hpre")
    if 'hwsp' in X:
        k(f"""
        s_load_dwordx2 {sr(sWI,2)}, s[0:1], {KA_WSP}
        s_mov_b32 s{sWI+2}, {2048*4096}
        s_lshr_b32 s{sT}, s2, 3
        s_mul_i32 s{sT}, s{sT}, 12
        s_add_u32 s{sT}, s{sT}, s{sW}
        s_min_u32 s{sT}, s{sT}, 42
        s_mul_i32 s{sT}, s{sT}, {6*8192}
        s_and_b32 s{sT+1}, s2, 3
        s_lshl_b32 s{sT+1}, s{sT+1}, 21
        s_add_u32 s{sT}, s{sT}, s{sT+1}
        v_lshlrev_b32 v{t0}, 7, v{vLane}
        s_sleep {os.environ.get('WSPD', '0')}
        s_waitcnt lgkmcnt(0)
        """)
        for i in range(6):
            k(f"buffer_load_dword v{ACC+i}, v{t0}, {sr(sWI,4)}, s{sT} offen\ns_add_u32 s{sT}, s{sT}, 8192")
    if FUSED:
        k(f"s_cmp_lg_u32 s{sW}, 8\ns_cbranch_scc1 k1_fin")
        poll_tag(k, True)
        k(f"s_mov_b32 s{sTagS}, s{sT}\nv_mov_b32 v{t0}, {L_TAG}\nds_write_b32 v{t0}, v{vTag}")
        if CLAIM:
            claim_id(k)


def gen_k1(k=None):
    if k is None:
        k = Kernel("k1_kernel")
    t0, t1, t2, t3 = vT, vT + 1, vT + 2, vT + 3
    stamp(k, 0)
    if STAMP:
        for i in (1, 2, 4, 5):
            k(f"s_mov_b64 {sr(64+2*i,2)}, s[64:65]")
    k(f"""
    s_cmp_ge_u32 s2, 256
    s_cbranch_scc1 {'fz_end' if FUSED else 'k1_end'}
    s_load_dwordx2 {sr(sXS,2)}, s[0:1], {KA_X}
    s_load_dwordx2 {sr(sWW,2)}, s[0:1], {KA_WQKV}
    s_load_dwordx2 {sr(sWI,2)}, s[0:1], {KA_WIN}
    s_load_dwordx2 {sr(sWS,2)}, s[0:1], {KA_WS}
    s_load_dwordx2 {sr(sDBG,2)}, s[0:1], {KA_DBG}
    s_memrealtime {sr(sT+14,2)}
    v_lshrrev_b32 v{t0}, 6, v0
    v_and_b32 v{vLane}, 63, v0
    v_readfirstlane_b32 s{sW}, v{t0}
    v_lshlrev_b32 v{vL16}, 4, v{vLane}
    s_mov_b32 s{sWS+2}, {WS_SIZE}
    s_mov_b32 s{sWS+3}, 0x00020000
    s_mov_b32 s{sXS+2}, {2048*1024}
    s_mov_b32 s{sXS+3}, 0x00020000
    s_mov_b32 s{sWW+2}, {512*3072}
    s_mov_b32 s{sWW+3}, 0x00020000
    s_mov_b32 s{sWI+2}, {512*3584}
    s_mov_b32 s{sWI+3}, 0x00020000
    s_mov_b32 s{sDBG+2}, 256
    s_mov_b32 s{sDBG+3}, 0x00020000
    s_mov_b32 s{sSpin}, 200000
    s_mov_b32 s{sTagS}, 0
    s_mov_b32 s98, 255
    s_and_b32 s{sT}, s2, 31
    s_lshl_b32 s{sT}, s{sT}, 2
    s_add_u32 s{sT}, s{sT}, 128
    v_mov_b32 v{vGA+2}, s{sT}
    s_cmp_lt_u32 s2, 32
    s_cbranch_scc1 k1_helper
    ; xcd = wg&7, j = (wg>>3) - 4 (0..27): rb = 4(xcd/2) + j/7, cg = 7(xcd%2) + j%7
    s_and_b32 s{sT}, s2, 7
    s_lshr_b32 s{sT+1}, s2, 3
    s_sub_u32 s{sT+1}, s{sT+1}, 4
    s_mul_i32 s{sT+5}, s{sT+1}, 37
    s_lshr_b32 s{sT+5}, s{sT+5}, 8
    s_mul_i32 s{sT+6}, s{sT+5}, 7
    s_sub_u32 s{sCG}, s{sT+1}, s{sT+6}
    s_and_b32 s{sT+2}, s2, 1
    s_mul_i32 s{sT+6}, s{sT+2}, 7
    s_add_u32 s{sCG}, s{sCG}, s{sT+6}
    s_lshr_b32 s{sRB}, s{sT}, 1
    s_lshl_b32 s{sRB}, s{sRB}, 2
    s_add_u32 s{sRB}, s{sRB}, s{sT+5}
    s_lshl_b32 s98, s{sRB}, 4
    s_add_u32 s98, s98, s{sCG}
    s_lshr_b32 s{sRH}, s{sW}, 2
    s_and_b32 s{sUn}, s{sW}, 3
    s_cmp_ge_u32 s{sW}, 8
    s_cbranch_scc1 k1_loader
    s_lshr_b32 s{sKind}, s{sCG}, 2
    s_cmp_eq_u32 s{sRH}, 0
    s_cselect_b32 s{sKind}, 4, s{sKind}
    s_add_u32 s{sT}, s{sCG}, 38
    s_add_u32 s{sT+1}, s{sCG}, 24
    s_lshl_b32 s{sT+2}, s{sCG}, 1
    s_add_u32 s{sT+3}, s{sT+2}, 1
    s_cmp_eq_u32 s{sRH}, 0
    s_cselect_b32 s{sT}, s{sT}, s{sT+2}
    s_cselect_b32 s{sT+1}, s{sT+1}, s{sT+3}
    s_lshl_b32 s{sCSo}, s{sT}, 9
    s_add_u32 s{sCSo}, s{sCSo}, {WS_CS}
    s_lshl_b32 s{sCSo+1}, s{sT+1}, 9
    s_add_u32 s{sCSo+1}, s{sCSo+1}, {WS_CS}
    s_lshl_b32 s{sT32}, s{sRB}, 2
    s_add_u32 s{sT32}, s{sT32}, s{sUn}
    v_and_b32 v{t0}, 31, v{vLane}
    v_and_b32 v{t1}, 0x13, v{t0}
    v_and_b32 v{t2}, 4, v{t0}
    v_lshl_or_b32 v{t1}, v{t2}, 1, v{t1}
    v_and_b32 v{t2}, 8, v{t0}
    v_lshrrev_b32 v{t2}, 1, v{t2}
    v_or_b32 v{t1}, v{t1}, v{t2}
    s_cmp_eq_u32 s{sKind}, 1
    s_cselect_b64 vcc, -1, 0
    v_cndmask_b32 v{t0}, v{t0}, v{t1}, vcc       ; tok
    v_lshrrev_b32 v{t1}, 5, v{vLane}             ; h
    v_bfe_u32 v{t2}, v{t0}, 1, 3
    v_xor_b32 v{t2}, v{t2}, v{t1}
    v_lshlrev_b32 v{t2}, 4, v{t2}
    v_lshl_add_u32 v{t2}, v{t0}, 7, v{t2}
    s_lshl_b32 s{sT}, s{sUn}, 12
    v_add_u32 v{vAX}, s{sT}, v{t2}
    v_xor_b32 v{vAX+1}, 32, v{vAX}
    v_xor_b32 v{vAX+2}, 64, v{vAX}
    v_xor_b32 v{vAX+3}, 96, v{vAX}
    s_lshl_b32 s{sT}, s{sUn if 'lrs' in X else sT32}, {7 if 'lrs' in X else 9}
    s_add_u32 s{sT}, s{sT}, {L_RS if 'lrs' in X else WS_RS}
    v_lshlrev_b32 v{t0}, {2 if 'lrs' in X else 4}, v{t0}
    v_add_u32 v{vGA}, s{sT}, v{t0}
    v_lshlrev_b32 v{vGA+1}, 3, v{vLane}
    v_bfe_u32 v{t0}, v{vLane}, 2, 2
    v_lshl_add_u32 v{t1}, v{t1}, 3, v{t0}
    v_bfe_u32 v{t2}, v{vLane}, 4, 1
    v_lshlrev_b32 v{t2}, 1, v{t2}
    v_and_b32 v{t3}, 1, v{vLane}
    v_or_b32 v{t2}, v{t2}, v{t3}
    v_lshlrev_b32 v{t0}, 1, v{t0}
    v_and_b32 v{t0}, 4, v{t0}
    v_xor_b32 v{t2}, v{t2}, v{t0}
    v_lshlrev_b32 v{t2}, 4, v{t2}
    v_lshl_add_u32 v{t2}, v{t1}, 7, v{t2}
    v_bfe_u32 v{t3}, v{vLane}, 1, 1
    v_lshl_add_u32 v{t2}, v{t3}, 3, v{t2}
    v_add_u32 v{vAW}, {O_W}, v{t2}
    v_xor_b32 v{vAW+1}, 64, v{vAW}
    s_lshl_b32 s{sT+1}, s{sUn}, 12
    s_cmp_eq_u32 s{sRH}, 0
    s_cselect_b32 s{sT+2}, {L_IMG}, 0
    s_add_u32 s{sT+1}, s{sT+1}, s{sT+2}
    """)
    epi_addr(k)
    k(f"""
    s_waitcnt lgkmcnt(0)
    s_cmp_eq_u32 s{sRH}, 0
    s_cbranch_scc1 k1_main
    """)
    if 'lrs' in X:
        row_stats(k)
    else:
        for i in range(8):
            k("s_waitcnt lgkmcnt(0)\ns_barrier")
            CA = int(os.environ.get('CLA', '1'))
            if i == CA and FUSED and CLAIM:
                k(f"s_cmp_lg_u32 s{sW}, 5\ns_cbranch_scc1 k1_noclaim")
                claim_id(k, "a")
                k.label("k1_noclaim")
            if i == 2:
                k(f"buffer_load_dword v{vTag}, v{vGA+2}, {sr(sDBG,4)}, 0 offen sc0 sc1")
            W0 = int(os.environ.get('WSP0', '4'))
            if 'qwsp' in X and i == W0:
                k(f"""
                s_load_dwordx2 {sr(sWI,2)}, s[0:1], {KA_WSP}
                s_mov_b32 s{sWI+2}, {2048*4096}
                s_lshr_b32 s{sT+8}, s2, 3
                s_sub_u32 s{sT+8}, s{sT+8}, 4
                s_lshl_b32 s{sT+8}, s{sT+8}, 2
                s_add_u32 s{sT+8}, s{sT+8}, s{sUn}
                s_min_u32 s{sT+8}, s{sT+8}, 85
                s_mul_i32 s{sT+8}, s{sT+8}, {3*8192}
                s_and_b32 s{sT+9}, s2, 3
                s_lshl_b32 s{sT+9}, s{sT+9}, 21
                s_add_u32 s{sT+8}, s{sT+8}, s{sT+9}
                v_lshlrev_b32 v6, 7, v{vLane}
                s_waitcnt lgkmcnt(0)
                """)
            if 'qwsp' in X and W0 <= i < W0 + 3:
                k(f"buffer_load_dword v{vGR+i-W0}, v6, {sr(sWI,4)}, s{sT+8} offen\ns_add_u32 s{sT+8}, s{sT+8}, 8192")
            if i == 3:
                L = k.newlabel("notag")
                k(f"s_cmp_lg_u32 s{sW}, 4\ns_cbranch_scc1 {L}")
                poll_tag(k, True)
                k(f"v_mov_b32 v{t0}, {L_TAG}\nds_write_b32 v{t0}, v{vTag}\n{L}:")
    k(f"s_cmp_ge_u32 s{sCG}, 12\ns_cbranch_scc1 k1_fin0\ns_setprio {0 if 'zprio' in X else 2}")
    if 'noz1' in X:
        main_loop(k)
        k("s_branch k1_q")
        k.label("k1_main")
        main_loop(k, True)
    else:
        k.label("k1_main")
        main_loop(k)
        stamp(k, 2)
        k(f"s_cmp_eq_u32 s{sRH}, 0\ns_cbranch_scc0 k1_q")
    z_epilogue(k)
    k("s_branch k1_fin")
    k.label("k1_q")
    q_epilogue(k)
    k("s_branch k1_clb")
    k.label("k1_loader")
    loader(k)
    stamp(k, 2)
    k("s_branch k1_fin")
    k.label("k1_helper")
    if FUSED and 'cp' in X:
        k(f"""
        s_getpc_b64 {sr(sT+10,2)}
        k1_pc:
        s_sub_u32 s{sT+10}, s{sT+10}, k1_pc-fz_kernel
        s_subb_u32 s{sT+11}, s{sT+11}, 0
        s_lshr_b32 s{sT+4}, s2, 3
        s_mul_i32 s{sT+4}, s{sT+4}, 12
        s_add_u32 s{sT+4}, s{sT+4}, s{sW}
        s_cmp_ge_u32 s{sT+4}, (fz_end-fz_kernel+1023)/1024
        s_cbranch_scc1 k1_nocp
        s_lshl_b32 s{sT+4}, s{sT+4}, 10
        v_lshlrev_b32 v{t0}, 4, v{vLane}
        v_add_u32 v{t0}, s{sT+4}, v{t0}
        v_min_u32 v{t0}, fz_end-fz_kernel, v{t0}
        global_load_dword v{vGA+1}, v{t0}, {sr(sT+10,2)}
        k1_nocp:
        """)
    k(f"""
    s_waitcnt lgkmcnt(0)
    v_mov_b32 v{vTag}, 0
    s_or_b32 s{sT+4}, s2, s{sW}
    s_cmp_lg_u32 s{sT+4}, 0
    s_cbranch_scc1 k1_nonce_done
    s_or_b32 s{sT+14}, s{sT+14}, 1
    v_mov_b32 v{vTag}, s{sT+14}
    v_lshlrev_b32 v{t3}, 2, v{vLane}
    buffer_store_dword v{vTag}, v{t3}, {sr(sDBG,4)}, 0 offen offset:128 sc0 sc1
    k1_nonce_done:
    """)
    if 'sweep' in X:
        k(f"""
        s_mul_i32 s{sT}, s2, 12
        s_add_u32 s{sT}, s{sT}, s{sW}
        s_lshl_b32 s{sT+1}, s{sT}, 13
        v_lshlrev_b32 v{t0}, 7, v{vLane}
        s_sub_u32 s{sT+2}, {383*8192}, s{sT+1}
        buffer_load_dword v{vT+9}, v{t0}, {sr(sXS,4)}, s{sT+2} offen
        """)
    helper(k)
    k("s_branch k1_fin")
    k.label("k1_fin0")
    k("s_waitcnt lgkmcnt(0)\ns_barrier")
    if FUSED:
        for t in range(7):
            k("s_barrier")
    k.label("k1_clb")
    if FUSED and CLAIM:
        k(f"s_cmp_lg_u32 s{sW}, 5\ns_cbranch_scc1 k1_fin")
        claim_id(k, "b")
    k.label("k1_fin")
    if STAMP:
        k("s_waitcnt vmcnt(0)")
    stamp(k, 3)
    stamp_store(k, 6)
    if FUSED:
        return k
    k("""
    k1_end:
    s_endpgm
    """)
    k.finish()
    return k


if __name__ == "__main__":
    import sys
    STAMP = "stamp" in sys.argv
    k = gen_k1()
    print(build_file("; test", [("k1_kernel", 256, 768, LDS_K1)], [k]))
```

```python
import os
from asmlib import *
from layout import *

X = set(os.environ.get('K2X', '').split(','))
NS = 4
STAGE = 30720
O_Z, O_K, O_V = 16384, 24576, 26624
LDS_K2 = NS * STAGE

vLane = 1
vAL = 2
vT = 4
vQ, vK0, vK1, vV = 12, 16, 20, 24
vS0, vS1, vP, vO = 40, 56, 72, 80
vC = 96
vDA, vDZ, vDK, vDV = 12, 16, 17, 18
vAB = 20
vG = 28
vGA = 60
vGB = 92
vZ1 = 108
vBias = 124
sWS, sWSP, sBSP = 4, 8, 12
sW, sHead, sQT, sTB, sFB, sIdx = 16, 17, 18, 19, 20, 21
sOA, sOZ, sOK, sOV, sCnt = 22, 23, 24, 25, 26
sMA, sMZ, sMK, sMV = 27, 28, 29, 30
sVM, sLo = 32, 34
sT = 36
sPA, sPB, sPX, sPo = 68, 72, 76, 84

STAMP = False
FUSED = False
import gbar
import k3f
P3F = False
L_TAG1 = 0
PV16 = 'pv16' in X
WT = os.environ.get('WT', '')


def stamp(k, i):
    if STAMP:
        if i == 0:
            k("s_memrealtime s[80:81]")
        if i == 3:
            k("s_memrealtime s[82:83]")
        k(f"s_memtime {sr(60+2*i,2)}\ns_waitcnt lgkmcnt(0)")


def stamp_store(k, n):
    if not STAMP:
        return
    k(f"s_mul_i32 s58, s2, 12\ns_add_u32 s58, s58, s{sW}\ns_lshl_b32 s58, s58, 5\ns_add_u32 s58, s58, {WS_STAMP + 1*262144}")
    for i in range(n):
        k(f"s_sub_u32 s59, s{60+2*i}, s60\nv_mov_b32 v{vT}, s59\nv_mov_b32 v{vT+1}, 0\nbuffer_store_dword v{vT}, v{vT+1}, {sr(sWS,4)}, s58 offen offset:{4*i}")
    for j, r in ((6, 80), (7, 82)):
        k(f"v_mov_b32 v{vT}, s{r}\nv_mov_b32 v{vT+1}, 0\nbuffer_store_dword v{vT}, v{vT+1}, {sr(sWS,4)}, s58 offen offset:{4*j}")


def mfma32(d, a, b, c):
    cs = "0" if c is None else vr(c, 16)
    return f"v_mfma_f32_32x32x16_bf16 {vr(d,16)}, {vr(a,4)}, {vr(b,4)}, {cs}"


def so(slot):
    return slot // 2, (slot % 2) * STAGE


def rd_k(slot, T):
    s, o = so(slot)
    return f"ds_read_b128 {vr(vK0+4*T,4)}, v{vAL+s} offset:{o+O_K+(1-T)*1024}"


def rd_v(slot, T, u):
    s, o = so(slot)
    return f"ds_read_b128 {vr(vV+8*T+4*u,4)}, v{vAL+s} offset:{o+O_V+T*2048+u*1024}"


def phase(k, S, Snext, Knext, Vprev1, Vcur0, extras):
    E = lambda i: f"v_exp_f32 v{S+i}, v{S+i}"
    C = lambda i: f"v_cvt_pk_bf16_f32 v{vP+i}, v{S+2*i}, v{S+2*i+1}"
    PVp = mfma32(vO, Vprev1, vP + 4, vO) if Vprev1 is not None else None
    PVc = mfma32(vO, Vcur0, vP, vO)
    SM = mfma32(Snext, Knext, vQ, None) if Knext is not None else None
    seq = [E(0), E(1), PVp, E(2), E(3), C(0), E(4), E(5), C(1), E(6), SM, E(7), C(2), E(8), C(3), E(9), E(10), E(11), C(4), PVc,
           E(12), E(13), C(5), E(14), E(15), C(6), C(7)]
    for pos, ins in enumerate(seq):
        if ins is not None:
            if 'noattn' in X:
                ins = None
            elif 'nopv' in X and ins in (PVp, PVc):
                ins = None
            elif 'noexp' in X and 'v_exp' in ins:
                ins = None
            elif 'nocvt' in X and 'v_cvt' in ins:
                ins = None
            elif 'mulexp' in X and 'v_exp' in ins:
                r = ins.split()[-1]
                ins = f"v_mul_f32 {r}, {r}, {r}"
            elif 'nosm' in X and ins is SM:
                ins = None
        if ins is not None:
            k(ins)
        for a in extras.get(pos, []):
            if 'noard' in X and a.startswith('ds_read'):
                continue
            if 'hard' in X and a.startswith('ds_read') and S == vS0:
                continue
            if 'nosp' in X and a.startswith('s_setprio'):
                continue
            k(a)


def attn_iter(k, slot, first, last_slot):
    k("s_waitcnt lgkmcnt(0)")
    k("s_barrier")
    ex1 = {0: [rd_k(slot, 1)], 4: [rd_v(slot, 0, 0)], 7: [rd_v(slot, 0, 1)]}
    if first:
        for a in (rd_k(slot, 1), rd_v(slot, 0, 0), rd_v(slot, 0, 1)):
            k(a)
    else:
        if 'nosp' not in X:
            k("s_setprio 3")
        ex1[13] = ["s_setprio 2"]
        ex1[26] = ["s_setprio 1"]
        phase(k, vS1, vS0, vK0, vV + 4, vV + 8, ex1)
    ex2 = {0: [rd_k(slot, 0)], 4: [rd_v(slot, 1, 0)], 7: [rd_v(slot, 1, 1)], 13: ["s_setprio 0"]}
    if last_slot:
        ex2[14] = [f"s_sub_u32 s{sCnt}, s{sCnt}, 1\ns_cmp_lg_u32 s{sCnt}, 0"]
    phase(k, vS0, vS1, vK1, None if first else vV + 12, vV + 0, ex2)


def attn_loop(k):
    L = k.newlabel("aloop")
    k(f"s_mov_b32 s{sCnt}, 7")
    stamp(k, 1)
    k(mfma32(vS0, vK0, vQ, None))
    for slot in range(4):
        attn_iter(k, slot, slot == 0, False)
    k(".p2align 6")
    k.label(L)
    for slot in range(4):
        attn_iter(k, slot, False, slot == 3)
    k(f"s_cbranch_scc1 {L}")
    k("s_waitcnt lgkmcnt(0)\ns_barrier")
    stamp(k, 2)
    phase(k, vS1, None, None, vV + 4, vV + 8, {})
    k(mfma32(vO, vV + 12, vP + 4, vO))


vPB = 32
vOne = 10


def rd_v16(slot, T):
    s, o = so(slot)
    return f"ds_read_b128 {vr(vV+4*T,4)}, v{vAL+s} offset:{o+O_V+T*1024}"


def phase16(k, S, Snext, Knext, P, Pp, Vp, extras, cur=True):
    E = lambda i: f"v_exp_f32 v{S+i}, v{S+i}" if cur else None
    C = lambda i: f"v_cvt_pk_bf16_f32 v{P+i}, v{S+2*i}, v{S+2*i+1}" if cur else None
    W = lambda i: f"v_permlane16_swap_b32 v{P+i}, v{P+4+i}" if cur else None
    hp = Pp is not None
    Wp = f"v_permlane16_swap_b32 v{Pp+3}, v{Pp+7}" if hp else None
    PV = lambda j: f"v_mfma_f32_16x16x32_bf16 {vr(vO+4*j,4)}, {vr(Vp,4)}, {vr(Pp+4*j,4)}, {vr(vO+4*j,4)}" if hp else None
    L = lambda q: f"v_mfma_f32_4x4x4_16b_bf16 {vr(vO+8+4*(q//2),4)}, {vr(vOne,2)}, {vr(Pp+2*q,2)}, {vr(vO+8+4*(q//2),4)}" if hp else None
    SM = mfma32(Snext, Knext, vQ, None) if Knext is not None else None
    seq = [E(0), E(1), Wp, E(8), L(0), E(9), C(0), PV(0), C(4), E(2), E(3), L(2), W(0), E(10), E(11), PV(1), C(1), C(5), E(4), L(1), E(5), W(1),
           SM, E(12), E(13), C(2), L(3), C(6), E(6), E(7), W(2), E(14), E(15), C(3), C(7)]
    for pos, ins in enumerate(seq):
        if ins is not None:
            k(ins)
        for a in extras.get(pos, []):
            k(a)


def attn_iter16(k, slot, first, last_slot):
    k("s_waitcnt lgkmcnt(0)")
    k("s_barrier")
    if first:
        k(rd_k(slot, 1))
        k(rd_v16(slot, 0))
    else:
        k("s_setprio 3")
        ex1 = {0: [rd_k(slot, 1)], 16: [rd_v16(slot, 0)], 17: ["s_setprio 2"], 34: ["s_setprio 1"]}
        phase16(k, vS1, vS0, vK0, vPB, vP, vV, ex1)
    ex2 = {0: [rd_k(slot, 0)], 16: [rd_v16(slot, 1)], 17: ["s_setprio 0"]}
    if last_slot:
        ex2[18] = [f"s_sub_u32 s{sCnt}, s{sCnt}, 1\ns_cmp_lg_u32 s{sCnt}, 0"]
    phase16(k, vS0, vS1, vK1, vP, None if first else vPB, vV + 4, ex2)


def attn_loop16(k):
    L = k.newlabel("aloop")
    k(f"s_mov_b32 s{sCnt}, 7")
    stamp(k, 1)
    k(mfma32(vS0, vK0, vQ, None))
    for slot in range(4):
        attn_iter16(k, slot, slot == 0, False)
    k(".p2align 6")
    k.label(L)
    for slot in range(4):
        attn_iter16(k, slot, False, slot == 3)
    k(f"s_cbranch_scc1 {L}")
    k("s_waitcnt lgkmcnt(0)\ns_barrier")
    stamp(k, 2)
    phase16(k, vS1, None, None, vPB, vP, vV, {})
    phase16(k, None, None, None, None, vPB, vV + 4, {}, cur=False)


def dma_group(slot, gemm):
    base = slot * STAGE
    out = []
    vm = "s_nop 0" if PV16 else f"s_mov_b64 exec, {sr(sVM,2)}"
    if gemm:
        out.append(f"s_add_u32 m0, s{sMK}, {base}\ns_mov_b64 exec, {sr(sLo,2)}\nbuffer_load_dwordx4 v{vDK}, {sr(sWS,4)}, s{sOK} offen lds\n"
                   f"s_add_u32 m0, s{sMV}, {base}\n{vm}\nbuffer_load_dwordx4 v{vDV}, {sr(sWS,4)}, s{sOK} offen lds\n"
                   f"s_mov_b64 exec, -1\ns_add_u32 s{sOK}, s{sOK}, 2048")
    else:
        out.append(f"s_add_u32 m0, s{sMK}, {base}\ns_mov_b64 exec, {sr(sLo,2)}\nbuffer_load_dwordx4 v{vDK}, {sr(sWS,4)}, s{sOK} offen lds\n"
                   f"buffer_load_dwordx4 v{vDK}, {sr(sWS,4)}, s{sOK} offen offset:1024 lds\n"
                   f"s_add_u32 m0, s{sMV}, {base}\n{vm}\nbuffer_load_dwordx4 v{vDV}, {sr(sWS,4)}, s{sOK} offen lds\n"
                   f"s_add_u32 m0, s{sMV}, {base+(0 if PV16 else 1024)}\ns_nop 0\nbuffer_load_dwordx4 v{vDV}, {sr(sWS,4)}, s{sOK} offen offset:1024 lds\n"
                   f"s_mov_b64 exec, -1\ns_add_u32 s{sOK}, s{sOK}, 2048")
    if gemm:
        for p in range(4):
            out.append(f"s_add_u32 m0, s{sMA}, {base+1024*p}\ns_nop 0\nbuffer_load_dwordx4 v{vDA+p}, {sr(sWSP,4)}, s{sOA} offen lds"
                       + (f"\ns_add_u32 s{sOA}, s{sOA}, 128" if p == 3 else ""))
        out.append(f"s_add_u32 m0, s{sMZ}, {base}\ns_nop 0\nbuffer_load_dwordx4 v{vDZ}, {sr(sWS,4)}, s{sOZ} offen lds")
        out.append(f"s_add_u32 m0, s{sMZ}, {base}\ns_nop 0\nbuffer_load_dwordx4 v{vDZ}, {sr(sWS,4)}, s{sOZ} offen offset:1024 lds\ns_add_u32 s{sOZ}, s{sOZ}, 4096")
    return out


def rd_g(slot, ks):
    s, o = so(slot)
    if 'g23' in X:
        return [f"ds_read_b128 {vr(vGB+4*ks,4)}, v{vAB+4*s+ks} offset:{o}",
                f"ds_read_b128 {vr(vGA+8*ks+4*((slot+ks)%2),4)}, v{vAL+s} offset:{o+O_Z+ks*1024}"]
    return [f"ds_read_b128 {vr(vGB+4*ks,4)}, v{vAB+4*s+ks} offset:{o}",
            f"ds_read_b128 {vr(vGA+8*ks,4)}, v{vAL+s} offset:{o+O_Z+ks*1024}",
            f"ds_read_b128 {vr(vGA+8*ks+4,4)}, v{vAL+s} offset:{o+O_Z+4096+ks*1024}"]


def mm_g(ks):
    if 'g16' in X:
        m = lambda d, a, b: f"v_mfma_f32_16x16x32_bf16 {vr(d,4)}, {vr(a,4)}, {vr(b,4)}, {vr(d,4)}"
        o = 8 * (ks % 2)
        return [m(vG + o, vGA + 8 * ks, vGB + 4 * ks) + "\n" + m(vG + o + 4, vGA + 8 * ks + 4, vGB + 4 * (ks ^ 1)),
                m(vG + 16 + o, vGA + 8 * ks + 4, vGB + 4 * ks) + "\n" + m(vG + 16 + o + 4, vGA + 8 * ks, vGB + 4 * (ks ^ 1))]
    return [mfma32(vG, vGA + 8 * ks, vGB + 4 * ks, vG), mfma32(vG + 16, vGA + 8 * ks + 4, vGB + 4 * ks, vG + 16)]


vZU = 128


def unpack_z1(k):
    for i in range(16):
        k(f"v_lshlrev_b32 v{vZU+2*i}, 16, v{vZ1+i}\nv_and_b32 v{vZU+2*i+1}, 0xffff0000, v{vZ1+i}")


def gemm_loop(k, gemm):
    nd = 8 if gemm else 4
    k(f"s_mov_b32 s{sCnt}, {7 if P3F else 8}")
    stamp(k, 1)
    for last in ((False, True) if P3F else (False,)):
        L = k.newlabel("gloop")
        if not last:
            k(".p2align 6")
            k.label(L)
        if 'prof' in X:
            k(f"""
            s_memtime s[84:85]
            s_memrealtime s[86:87]
            s_waitcnt lgkmcnt(0)
            v_mov_b32 v{vT}, s84
            v_mov_b32 v{vT+1}, s86
            s_lshl_b32 s88, s2, 8
            s_lshl_b32 s89, s{sCnt}, 3
            s_add_u32 s88, s88, s89
            s_add_u32 s88, s88, {WS_STAMP + 3*262144}
            v_mov_b32 v{vT+2}, 0
            buffer_store_dwordx2 {vr(vT,2)}, v{vT+2}, {sr(sWS,4)}, s88 offen
            """)
        for jj in range(4):
            slot = (jj + 1) % 4
            n = 4 if 'nogdma' in X else 2 * nd
            dm = dma_group((slot + 3) % 4, gemm)
            if last:
                n = ([16, 24, 23, 14] if gemm else [8, 14, 17, 63])[jj]
                if jj == 0:
                    dm = ["\n".join(k3f.wdma_early())] + dm[1:]
                else:
                    dm = k3f.wdma_slots(*k3f.TAIL[jj])
                    if len(dm) > 7:
                        dm = dm[:6] + ["\n".join(dm[6:])]
            k(f"s_waitcnt vmcnt({n}) lgkmcnt(0)")
            k("s_barrier")
            if gemm:
                r = [rd_g(slot, ks) for ks in range(4)]
                m = [mm_g(ks) for ks in range(4)]
                seq = (r[0] + [m[2][0], dm[0], m[2][1]] + r[1] + [m[3][0], dm[1], m[3][1], dm[2]] + r[2] + [m[0][0], dm[3], m[0][1], dm[4]]
                       + r[3] + [m[1][0], dm[5], m[1][1], dm[6]])
            else:
                seq = list(dm)
            if jj == 0 and not P3F:
                k(f"s_cmp_eq_u32 s{sCnt}, 1\ns_cselect_b32 s{sT}, 0x70000000, 0\ns_add_u32 s{sOK}, s{sOK}, s{sT}")
            for a in seq:
                if 'nogdma' in X and ' lds' in a and 'exec' not in a:
                    continue
                if 'nogmm' in X and 'mfma' in a:
                    continue
                if 'nogrd' in X and 'ds_read' in a:
                    continue
                k(a)
            if jj == 0 and not P3F:
                k(f"s_add_u32 s{sOA}, s{sOA}, s{sT}\ns_add_u32 s{sOZ}, s{sOZ}, s{sT}")
            if last and gemm and jj == 1:
                unpack_z1(k)
            if last and gemm and jj == 2:
                k("s_setprio 3")
        if not last:
            k(f"s_sub_u32 s{sCnt}, s{sCnt}, 1\ns_cmp_lg_u32 s{sCnt}, 0\ns_cbranch_scc1 {L}")
    stamp(k, 2)
    if gemm:
        for a in mm_g(2) + mm_g(3):
            k(a)


def dep_slots(v):
    s = sT + 10
    return f"""
    v_mov_b32 v{v}, {L_TAG1}
    ds_read_b32 v{v+3}, v{v}
    s_bfe_u32 s{s}, s2, 0x10002
    s_mul_i32 s{s}, s{s}, 7
    s_lshr_b32 s{s+1}, s{sIdx}, 2
    s_add_u32 s{s+3}, s{s}, s{s+1}               ; fb
    s_lshr_b32 s{s+2}, s{sHead}, 3
    s_add_u32 s{s}, s{s+2}, 4
    s_add_u32 s{s+1}, s{s+2}, 8
    s_cmp_ge_u32 s{sIdx}, 28
    s_cselect_b32 s{s+3}, s{s}, s{s+3}
    v_mov_b32 v{v+1}, s{s}
    v_mov_b32 v{v+2}, s{s+1}
    v_cmp_lt_u32 vcc, 15, v{vLane}
    v_cndmask_b32 v{v+1}, v{v+1}, v{v+2}, vcc
    v_mov_b32 v{v+2}, s{s+3}
    v_cmp_lt_u32 vcc, 31, v{vLane}
    v_cndmask_b32 v{v+1}, v{v+1}, v{v+2}, vcc
    v_and_b32 v{v}, 15, v{vLane}
    v_lshl_add_u32 v{v}, v{v}, 4, v{v+1}
    s_and_b32 s{s}, s{sIdx}, 7
    s_lshl_b32 s{s}, s{s}, 5
    s_add_u32 s{s}, s{s}, s{s+2}
    v_and_b32 v{v+1}, 1, v{vLane}
    v_lshlrev_b32 v{v+1}, 4, v{v+1}
    v_add_u32 v{v+1}, s{s}, v{v+1}
    v_cmp_lt_u32 vcc, 47, v{vLane}
    v_cndmask_b32 v{v}, v{v}, v{v+1}, vcc
    v_readfirstlane_b32 s{gbar.sTagS}, v{v+3}
    """


def gen_k2(k=None):
    if k is None:
        k = Kernel("k2_kernel")
    t0, t1, t2, t3 = vT, vT + 1, vT + 2, vT + 3
    stamp(k, 0)
    if not FUSED:
        k("s_cmp_ge_u32 s2, 256\ns_cbranch_scc1 k2_end")
    k(f"""
    s_setprio 0
    s_load_dwordx2 {sr(sWS,2)}, s[0:1], {KA_WS}
    s_load_dwordx2 {sr(sWSP,2)}, s[0:1], {KA_WSP}
    s_load_dwordx2 {sr(sBSP,2)}, s[0:1], {KA_BSP}
    v_lshrrev_b32 v{t0}, 6, v0
    v_and_b32 v{vLane}, 63, v0
    v_readfirstlane_b32 s{sW}, v{t0}
    s_and_b32 s{sT}, s2, 7
    s_lshr_b32 s{sIdx}, s2, 3
    s_lshr_b32 s{sT+2}, s{sIdx}, 3
    s_lshl_b32 s{sHead}, s{sT}, 2
    s_add_u32 s{sHead}, s{sHead}, s{sT+2}
    s_lshl_b32 s{sT+3}, s{sHead}, 16             ; head*65536
    s_mov_b32 s{sWS+2}, {WS_SIZE}
    s_mov_b32 s{sWS+3}, 0x00020000
    s_mov_b32 s{sWSP+2}, {2048*2048*2}
    s_mov_b32 s{sWSP+3}, 0x00020000
    s_mov_b32 s{sBSP+2}, 4096
    s_mov_b32 s{sBSP+3}, 0x00020000
    s_mov_b32 s{sVM}, 0x0000ffff
    s_mov_b32 s{sVM+1}, 0x0000ffff
    v_lshlrev_b32 v{vAL}, 4, v{vLane}
    v_add_u32 v{vAL+1}, {2*STAGE}, v{vAL}
    s_and_b32 s{sT+4}, s{sW}, 3
    """)
    if P3F:
        k3f.loader_init(k, sT + 4, vLane, vT)
    k(f"s_cmp_ge_u32 s{sW}, 8\ns_cbranch_scc1 k2_gemm")
    k(f"""
    s_and_b32 s{sQT}, s{sIdx}, 7
    s_lshl_b32 s{sQT}, s{sQT}, 3
    s_add_u32 s{sQT}, s{sQT}, s{sW}
    s_lshl_b32 s{sT+5}, s{sQT}, 10
    s_add_u32 s{sT+5}, s{sT+5}, s{sT+3}
    s_add_u32 s{sT+7}, s{sT+5}, {WS_Q}
    s_add_u32 s{sT+8}, s{sT+3}, {WS_K}
    s_waitcnt lgkmcnt(0)
    """)
    qk = (f"buffer_load_dwordx4 {vr(vQ,4)}, v{vAL}, {sr(sWS,4)}, s{sT+7} offen\n"
          f"buffer_load_dwordx4 {vr(vK0,4)}, v{vAL}, {sr(sWS,4)}, s{sT+8} offen")
    if not FUSED:
        k(qk)
    if not PV16:
        k(f"""
        v_and_b32 v{t0}, 27, v{vLane}
        v_mov_b32 v{t1}, 0x3f803f80
        v_cmp_eq_u32 vcc, 16, v{t0}
        v_cndmask_b32 v{t1}, 0, v{t1}, vcc
        """)
        for i in range(8):
            k(f"v_mov_b32 v{vV+i}, v{t1}")
        k(f"""
        s_lshr_b32 s{sT+5}, s{sW}, 1
        s_mul_i32 s{sT+5}, s{sT+5}, {STAGE}
        s_and_b32 s{sT+6}, s{sW}, 1
        s_lshl_b32 s{sT+6}, s{sT+6}, 11
        s_add_u32 s{sT+5}, s{sT+5}, s{sT+6}
        v_add_u32 v{t0}, s{sT+5}, v{vAL}
        s_not_b64 exec, {sr(sVM,2)}
        ds_write_b128 v{t0}, {vr(vV,4)} offset:{O_V}
        ds_write_b128 v{t0}, {vr(vV,4)} offset:{O_V+1024}
        s_mov_b64 exec, -1
        """)
    else:
        k(f"v_mov_b32 v{vOne}, 0x3f803f80\nv_mov_b32 v{vOne+1}, 0x3f803f80")
    for i in range(16):
        k(f"v_mov_b32 v{vO+i}, 0")
    k(f"""
    s_lshl_b32 s{sT+9}, s{sQT}, 5
    s_add_u32 s{sT+9}, s{sT+9}, s{sHead}
    s_lshl_b32 s{sT+9}, s{sT+9}, 10
    s_add_u32 s{sT+9}, s{sT+9}, {WS_O}
    """)
    if FUSED:
        gbar.wait(k, 0, sWS, sW, sT + 10, vS0, dep_slots(vS0), wave=0)
        k("s_barrier")
        k(qk)
    if PV16:
        attn_loop16(k)
        l0, l1 = vO + 8, vO + 12
        for sw in ("v_permlane16_swap_b32", "v_permlane32_swap_b32"):
            k(f"""
            v_mov_b32 v{t0}, v{l0}
            v_mov_b32 v{t1}, v{l1}
            {sw} v{l0}, v{t0}
            {sw} v{l1}, v{t1}
            v_add_f32 v{l0}, v{l0}, v{t0}
            v_add_f32 v{l1}, v{l1}, v{t1}
            """)
    else:
        attn_loop(k)
    k(f"v_mul_f32 v{t0}, 0, v{vO}")
    for i in range(1, 8):
        k(f"v_fma_f32 v{t0}, v{vO+i}, 0, v{t0}")
    k(f"""
    v_add_f32 v{t3}, v{t0}, v{vO+(12 if PV16 else 8)}
    v_add_f32 v{t0}, v{t0}, v{vO+8}
    v_mov_b32 v{t1}, 0x17800000                  ; 2^-80
    v_mov_b32 v{t2}, 0x67800000                  ; 2^80
    v_cmp_ge_f32 vcc, v{t0}, v{t1}
    v_cmp_le_f32 {sr(sT+10,2)}, v{t0}, v{t2}
    s_and_b64 vcc, vcc, {sr(sT+10,2)}
    v_cmp_ge_f32 {sr(sT+10,2)}, v{t3}, v{t1}
    s_and_b64 vcc, vcc, {sr(sT+10,2)}
    v_cmp_le_f32 {sr(sT+10,2)}, v{t3}, v{t2}
    s_and_b64 vcc, vcc, {sr(sT+10,2)}
    s_cmp_eq_u64 vcc, -1
    """)
    if PV16:
        k(f"""
        s_cbranch_scc0 k2_slow
        v_rcp_f32 v{t0}, v{vO+8}
        v_rcp_f32 v{t1}, v{vO+12}
        v_and_b32 v{t2}, 15, v{vLane}
        v_lshlrev_b32 v{t2}, 4, v{t2}
        v_bfe_u32 v{t3}, v{vLane}, 4, 1
        v_lshl_add_u32 v{t2}, v{t3}, 9, v{t2}
        v_lshrrev_b32 v{t3}, 5, v{vLane}
        v_lshl_add_u32 v{t2}, v{t3}, 3, v{t2}
        """)
        for i in range(8):
            k(f"v_mul_f32 v{vO+i}, v{vO+i}, v{(t0, t1)[i//4]}")
        for i in range(4):
            k(f"v_cvt_pk_bf16_f32 v{vP+i}, v{vO+2*i}, v{vO+2*i+1}")
        k(f"""
        buffer_store_dwordx2 {vr(vP,2)}, v{t2}, {sr(sWS,4)}, s{sT+9} offen {WT}
        buffer_store_dwordx2 {vr(vP+2,2)}, v{t2}, {sr(sWS,4)}, s{sT+9} offen offset:256 {WT}
        s_branch k2_fin
        k2_slow:
        v_and_b32 v{t0}, 27, v{vLane}
        v_mov_b32 v{t1}, 0x3f803f80
        v_cmp_eq_u32 vcc, 16, v{t0}
        v_cndmask_b32 v{t1}, 0, v{t1}, vcc
        """)
        for i in range(8):
            k(f"v_mov_b32 v{vV+i}, v{t1}")
    else:
        k("s_cbranch_scc1 k2_store_o")
    vM = vT
    k(f"""
    s_add_u32 s{sT+10}, s{sT+3}, {WS_K}
    s_add_u32 s{sT+11}, s{sT+3}, {WS_V}
    v_mov_b32 v{vM}, 0xff800000
    s_mov_b32 s{sCnt}, 64
    s_mov_b32 s{sT+12}, s{sT+10}
    k2_slow1:
    buffer_load_dwordx4 {vr(vK0,4)}, v{vAL}, {sr(sWS,4)}, s{sT+12} offen
    {mfma32(vS0, vK0, vQ, None)}
    """)
    for i in range(8):
        k(f"v_max3_f32 v{vM}, v{vS0+2*i}, v{vS0+2*i+1}, v{vM}")
    k(f"""
    s_add_u32 s{sT+12}, s{sT+12}, 1024
    s_sub_u32 s{sCnt}, s{sCnt}, 1
    s_cmp_lg_u32 s{sCnt}, 0
    s_cbranch_scc1 k2_slow1
    v_mov_b32 v{t1}, v{vM}
    v_permlane32_swap_b32 v{vM}, v{t1}
    v_max_f32 v{vM}, v{vM}, v{t1}
    v_sub_f32 v{vM}, 0, v{vM}
    """)
    for i in range(16):
        k(f"v_mov_b32 v{vC+i}, v{vM}")
        k(f"v_mov_b32 v{vO+i}, 0")
    k(f"""
    v_lshrrev_b32 v{t2}, 5, v{vLane}
    v_and_b32 v{t1}, 15, v{vLane}
    v_lshlrev_b32 v{t1}, 4, v{t1}
    v_lshl_add_u32 v{t1}, v{t2}, 8, v{t1}        ; (l/32)*256 + (l%16)*16
    s_mov_b32 s{sCnt}, 64
    k2_slow2:
    buffer_load_dwordx4 {vr(vK0,4)}, v{vAL}, {sr(sWS,4)}, s{sT+10} offen
    s_mov_b64 exec, {sr(sVM,2)}
    buffer_load_dwordx4 {vr(vV,4)}, v{t1}, {sr(sWS,4)}, s{sT+11} offen
    buffer_load_dwordx4 {vr(vV+4,4)}, v{t1}, {sr(sWS,4)}, s{sT+11} offen offset:512
    s_mov_b64 exec, -1
    {mfma32(vS0, vK0, vQ, vC)}
    """)
    for i in range(16):
        k(f"v_exp_f32 v{vS0+i}, v{vS0+i}")
    for i in range(8):
        k(f"v_cvt_pk_bf16_f32 v{vP+i}, v{vS0+2*i}, v{vS0+2*i+1}")
    k(f"""
    {mfma32(vO, vV, vP, vO)}
    {mfma32(vO, vV+4, vP+4, vO)}
    s_add_u32 s{sT+10}, s{sT+10}, 1024
    s_add_u32 s{sT+11}, s{sT+11}, 1024
    s_sub_u32 s{sCnt}, s{sCnt}, 1
    s_cmp_lg_u32 s{sCnt}, 0
    s_cbranch_scc1 k2_slow2
    """)
    k.label("k2_store_o")
    k(f"v_rcp_f32 v{t0}, v{vO+8}")
    for i in range(8):
        k(f"v_mul_f32 v{vO+i}, v{vO+i}, v{t0}")
    for i in range(4):
        k(f"v_cvt_pk_bf16_f32 v{vP+i}, v{vO+2*i}, v{vO+2*i+1}")
    k(f"""
    buffer_store_dwordx4 {vr(vP,4)}, v{vAL}, {sr(sWS,4)}, s{sT+9} offen {WT}
    s_branch k2_fin
    """)
    k.label("k2_gemm")
    sG = sT + 4
    k(f"""
    s_setprio 3
    s_sub_u32 s{sG}, s{sW}, 8                    ; g = 0..3
    s_and_b32 s{sTB}, s{sT}, 3
    s_lshl_b32 s{sTB}, s{sTB}, 2
    s_and_b32 s{sT+2}, s{sIdx}, 3
    s_add_u32 s{sTB}, s{sTB}, s{sT+2}
    s_lshr_b32 s{sFB}, s{sT}, 2
    s_mul_i32 s{sFB}, s{sFB}, 7
    s_lshr_b32 s{sT+2}, s{sIdx}, 2
    s_add_u32 s{sFB}, s{sFB}, s{sT+2}
    s_mov_b32 s{sLo}, -1
    s_mov_b32 s{sLo+1}, 0
    s_mov_b32 s{sOA}, 0
    s_mov_b32 s{sOZ}, 0
    s_mov_b32 s{sOK}, 0
    s_lshl_b32 s{sMA}, s{sG}, 12
    s_lshl_b32 s{sMZ}, s{sG}, 11
    s_add_u32 s{sMZ}, s{sMZ}, {O_Z}
    s_lshl_b32 s{sMK}, s{sG}, 9
    s_add_u32 s{sMK}, s{sMK}, {O_K}
    s_lshl_b32 s{sMV}, s{sG}, {9 if PV16 else 10}
    s_add_u32 s{sMV}, s{sMV}, {O_V}
    s_lshl_b32 s{sT+5}, s{sG}, 9
    s_add_u32 s{sT+5}, s{sT+5}, s{sT+3}
    s_add_u32 s{sT+6}, s{sT+5}, {WS_K+1024}
    v_add_u32 v{vDK}, s{sT+6}, v{vAL}
    """)
    if PV16:
        k(f"""
        ; V DMA (lanes 0..31): WS_V + head*65536 + (g/2)*1024 + (g%2)*256 + (l/16)*512 + (l%16)*16
        v_bfe_u32 v{t0}, v{vLane}, 4, 1
        v_and_b32 v{t1}, 15, v{vLane}
        v_lshlrev_b32 v{t1}, 4, v{t1}
        v_lshl_add_u32 v{t1}, v{t0}, 9, v{t1}
        s_lshr_b32 s{sT+5}, s{sG}, 1
        s_lshl_b32 s{sT+5}, s{sT+5}, 10
        s_and_b32 s{sT+6}, s{sG}, 1
        s_lshl_b32 s{sT+6}, s{sT+6}, 8
        s_add_u32 s{sT+5}, s{sT+5}, s{sT+6}
        s_add_u32 s{sT+5}, s{sT+5}, s{sT+3}
        s_add_u32 s{sT+6}, s{sT+5}, {WS_V}
        v_add_u32 v{vDV}, s{sT+6}, v{t1}
        """)
    else:
        k(f"""
        v_lshrrev_b32 v{t0}, 5, v{vLane}
        v_and_b32 v{t1}, 15, v{vLane}
        v_lshlrev_b32 v{t1}, 4, v{t1}
        v_lshl_add_u32 v{t1}, v{t0}, 8, v{t1}
        s_add_u32 s{sT+6}, s{sT+5}, {WS_V}
        v_add_u32 v{vDV}, s{sT+6}, v{t1}
        """)
    k(f"""
    s_waitcnt lgkmcnt(0)
    """)
    k(f"s_cmp_ge_u32 s{sIdx}, 28\ns_cbranch_scc1 k2_loader")
    if not FUSED:
        k(dma_group(0, True)[0])
    k(f"""
    v_lshrrev_b32 v{t0}, 3, v{vLane}
    s_lshl_b32 s{sT+5}, s{sG}, 5
    v_add_u32 v{t0}, s{sT+5}, v{t0}
    v_and_b32 v{t1}, 7, v{vLane}
    s_lshl_b32 s{sT+6}, s{sTB}, 19
    """)
    for p in range(4):
        k(f"""
        v_add_u32 v{t2}, {8*p}, v{t0}
        v_bfe_u32 v{t3}, v{t2}, 1, 3
        v_xor_b32 v{t3}, v{t3}, v{t1}
        v_lshlrev_b32 v{t3}, 4, v{t3}
        v_lshl_add_u32 v{vDA+p}, v{t2}, 12, v{t3}
        v_add_u32 v{vDA+p}, s{sT+6}, v{vDA+p}
        """)
    k(f"""
    s_lshr_b32 s{sT+5}, s{sG}, 1
    s_lshl_b32 s{sT+6}, s{sFB}, 1
    s_add_u32 s{sT+5}, s{sT+5}, s{sT+6}
    s_lshl_b32 s{sT+5}, s{sT+5}, 17
    s_and_b32 s{sT+7}, s{sG}, 1
    s_lshl_b32 s{sT+7}, s{sT+7}, 11
    s_add_u32 s{sT+5}, s{sT+5}, s{sT+7}
    s_add_u32 s{sT+5}, s{sT+5}, {WS_Z2}
    v_add_u32 v{vDZ}, s{sT+5}, v{vAL}
    """)
    k(f"""
    s_lshl_b32 s{sT+7}, s{sTB}, 2
    s_add_u32 s{sT+7}, s{sT+7}, s{sG}
    s_mul_i32 s{sT+8}, s{sT+7}, 56
    s_lshl_b32 s{sT+9}, s{sFB}, 2
    s_add_u32 s{sT+8}, s{sT+8}, s{sT+9}
    s_lshl_b32 s{sT+8}, s{sT+8}, 10
    s_lshl_b32 s{sT+7}, s{sT+7}, 6
    s_add_u32 s{sT+9}, s{sT+8}, {WS_Z1}
    v_and_b32 v{t0}, 31, v{vLane}
    v_lshlrev_b32 v{t0}, 1, v{t0}
    """)
    k(f"buffer_load_ushort v{vBias}, v{t0}, {sr(sBSP,4)}, s{sT+7} offen")

    if not FUSED:
        for a in dma_group(1, True):
            k(a)
        k("s_waitcnt vmcnt(9)\ns_barrier")
    else:
        for st in range(1, 4):
            for a in dma_group(st, True)[1:5]:
                k(a)
    def z1loads():
        for i in range(4):
            k(f"buffer_load_dwordx4 {vr(vZ1+4*i,4)}, v{vAL}, {sr(sWS,4)}, s{sT+9} offen offset:{1024*i}")
    k(f"v_mov_b32 v{vT+4}, v{t0}\ns_mov_b32 s{sT+13}, s{sT+7}")
    if not FUSED:
        for st in range(2, 4):
            for a in dma_group(st, True):
                k(a)
        z1loads()
    k(f"""
    v_lshrrev_b32 v{t0}, 5, v{vLane}
    v_and_b32 v{t1}, 31, v{vLane}
    s_lshl_b32 s{sT+7}, s{sG}, 5
    v_add_u32 v{t1}, s{sT+7}, v{t1}
    v_bfe_u32 v{t2}, v{t1}, 1, 3
    v_xor_b32 v{t2}, v{t2}, v{t0}
    v_lshlrev_b32 v{t2}, 4, v{t2}
    v_lshl_add_u32 v{vAB}, v{t1}, 7, v{t2}
    v_xor_b32 v{vAB+1}, 32, v{vAB}
    v_xor_b32 v{vAB+2}, 64, v{vAB}
    v_xor_b32 v{vAB+3}, 96, v{vAB}
    """)
    for i in range(4):
        k(f"v_add_u32 v{vAB+4+i}, {2*STAGE}, v{vAB+i}")
    k(f"v_lshlrev_b32 v{vBias}, 16, v{vBias}")
    for i in range(32):
        k(f"v_mov_b32 v{vG+i}, v{vBias}")
    for i in range(16):
        k(f"v_mov_b32 v{vGA+16+i}, 0")
    for i in range(8):
        k(f"v_mov_b32 v{vGB+8+i}, 0")
    if FUSED:
        gbar.RT(3)
        k("s_barrier")
        k(dma_group(0, True)[0])
        for st in range(1, 4):
            g = dma_group(st, True)
            for a in [g[0]] + g[5:]:
                k(a)
            if st == 1:
                k("s_waitcnt vmcnt(4)\ns_barrier")
        z1loads()
        k("s_waitcnt vmcnt(12)")
    k("s_setprio 0")
    gemm_loop(k, True)
    k(f"s_add_u32 s{sT+9}, s{sT+8}, {WS_U}")
    if not P3F:
        unpack_z1(k)
    for i in range(16):
        k(f"v_pk_mul_f32 {vr(vG+2*i,2)}, {vr(vG+2*i,2)}, {vr(vZU+2*i,2)}")
    for i in range(16):
        k(f"v_cvt_pk_bf16_f32 v{vZ1+i}, v{vG+2*i}, v{vG+2*i+1}")
        if i % 4 == 3:
            k(f"buffer_store_dwordx4 {vr(vZ1+i-3,4)}, v{vAL}, {sr(sWS,4)}, s{sT+9} offen offset:{1024*(i//4)} {WT}")
    k("s_branch k2_fin")
    k.label("k2_loader")
    k(f"""
    s_load_dwordx2 {sr(sPA,2)}, s[0:1], {KA_WO}
    s_load_dwordx2 {sr(sPB,2)}, s[0:1], {KA_WOUT}
    s_load_dwordx2 {sr(sPX,2)}, s[0:1], {KA_X}
    s_mov_b32 s{sPA+2}, {512*1024}
    s_mov_b32 s{sPA+3}, 0x00020000
    s_mov_b32 s{sPB+2}, {896*1024}
    s_mov_b32 s{sPB+3}, 0x00020000
    s_mov_b32 s{sPX+2}, {2048*1024}
    s_mov_b32 s{sPX+3}, 0x00020000
    """)
    if FUSED:
        k("s_barrier")
    k(f"s_cmp_ge_u32 s{sG}, 2\ns_cbranch_scc1 k2_pref")
    k(dma_group(0, False)[0])
    k("s_waitcnt vmcnt(0)\ns_barrier")
    for st in range(1, 4):
        for a in dma_group(st, False):
            k(a)
    gemm_loop(k, False)
    k("s_branch k2_fin")
    k.label("k2_pref")
    k(f"""
    s_sub_u32 s{sT+5}, s{sIdx}, 28
    s_lshl_b32 s{sT+5}, s{sT+5}, 1
    s_add_u32 s{sT+5}, s{sT+5}, s{sG}
    s_sub_u32 s{sT+5}, s{sT+5}, 2                ; 0..7
    s_lshl_b32 s{sPo}, s{sT+5}, 16
    s_mul_i32 s{sPo+1}, s{sT+5}, {112*1024}
    s_lshl_b32 s{sPo+2}, s{sT+5}, 15
    s_and_b32 s{sT+6}, s2, 7
    s_lshl_b32 s{sT+6}, s{sT+6}, 18
    s_add_u32 s{sPo+2}, s{sPo+2}, s{sT+6}
    v_lshlrev_b32 v{vT}, 7, v{vLane}
    s_waitcnt lgkmcnt(0)
    """)
    stamp(k, 1)
    lo = []
    for srd, so, cnt in ((sPX, sPo + 2, 4), (sPB, sPo + 1, 14), (sPA, sPo, 8)):
        for j in range(cnt):
            lo.append(f"buffer_load_dword v{vG+len(lo)}, v{vT}, {sr(srd,4)}, s{so} offen\ns_add_u32 s{so}, s{so}, 8192")
    PF0 = int(os.environ.get('PF0', '16'))
    for it in range(33):
        k("s_barrier")
        if it >= PF0 and 'nopf' not in X:
            for a in lo[2 * (it - PF0): 2 * (it - PF0) + 2]:
                k(a)
        if P3F and it == 29:
            for a in k3f.wdma_early():
                k(a)
        if P3F and it >= 30:
            for a in k3f.wdma_slots(*k3f.TAIL[it - 29]):
                k(a)
    stamp(k, 2)
    k.label("k2_fin")
    if STAMP:
        k("s_waitcnt vmcnt(0)")
    stamp(k, 3)
    stamp_store(k, 4)
    if FUSED:
        return k
    k("""
    k2_end:
    s_endpgm
    """)
    k.finish()
    return k


if __name__ == "__main__":
    import sys
    STAMP = "stamp" in sys.argv
    k = gen_k2()
    print(build_file("; test", [("k2_kernel", 256, 768, LDS_K2)], [k]))
```

```python
import os
import struct
from asmlib import *
from layout import *

X = set(os.environ.get('K1X', '').split(','))
STAGE = 32768
NS = 4
O_W = 16384
L_IMG = NS * STAGE
L_TAG = L_IMG + 16384
L_CNT = L_TAG + 64
L_CSW = L_TAG + 256
L_RS = L_CSW + 4096
LDS_K1 = L_RS + 1024

vLane = 1
vL16 = 2
vDX, vDW = 3, 5
vAX = 9
vAW = 13
vTag = 15
vT = 16
ACC = 32
FX = 96
FW = 108
vGR = 156
vGC = 160
vGA = 164
vK = 0

sWS, sXS, sWW, sWI, sDBG = 4, 8, 12, 16, 20
sW, sRH, sRB, sCG, sUn = 24, 25, 26, 27, 28
sKX, sKW, sKQ = 29, 30, 31
sMX, sMW = 32, 33
sKind, sIdx, sT32, sGU = 34, 35, 36, 37
sCSo = 38
sT = 40
sSpin = 61

C0 = -2.0 * 1.4426950408889634 * 0.7978845608028654
C1 = C0 * 0.044715
QS = 0.25 * 1.4426950408889634
STAMP = False
FUSED = False
CLAIM = 'claim' in X
FREE = 'free' in X
sTagS = 99
WT = os.environ.get('WT', '')
BC = "op_sel_hi:[1,0]"


def f32(x):
    return "0x%08x" % struct.unpack("<I", struct.pack("<f", x))[0]


def stamp(k, i):
    if STAMP:
        if i == 0:
            k("s_memrealtime s[80:81]")
        if i == 3:
            k("s_memrealtime s[82:83]")
        k(f"s_memtime {sr(64+2*i,2)}\ns_waitcnt lgkmcnt(0)")


def stamp_store(k, n):
    if not STAMP:
        return
    k(f"s_mul_i32 s62, s2, 12\ns_add_u32 s62, s62, s{sW}\ns_lshl_b32 s62, s62, 5\ns_add_u32 s62, s62, {WS_STAMP}")
    for i in range(n):
        k(f"s_sub_u32 s63, s{64+2*i}, s64\nv_mov_b32 v{vT}, s63\nv_mov_b32 v{vT+1}, 0\nbuffer_store_dword v{vT}, v{vT+1}, {sr(sWS,4)}, s62 offen offset:{4*i}")
    for j, r in ((6, 80), (7, 82)):
        k(f"v_mov_b32 v{vT}, s{r}\nv_mov_b32 v{vT+1}, 0\nbuffer_store_dword v{vT}, v{vT+1}, {sr(sWS,4)}, s62 offen offset:{4*j}")


def mfma32(d, a, b, c):
    cs = "0" if c is None else vr(c, 16)
    return f"v_mfma_f32_32x32x16_bf16 {vr(d,16)}, {vr(a,4)}, {vr(b,4)}, {cs}"


def dma(t):
    base = (t % NS) * STAGE
    out = []
    for j in range(4):
        e = f"s_add_u32 m0, s{sMX}, {base+1024*j}\n"
        if j == 2:
            e += f"s_add_u32 s{sT}, s{sKX}, 16384\n"
        e += f"buffer_load_dwordx4 v{vDX+j%2}, {sr(sXS,4)}, s{sT if j >= 2 else sKX} offen lds"
        out.append(e)
    srd, so, va, pitch = (sWI, sKW, vDW, 3584) if t < 8 else (sWW, sKQ, vDW + 1, 3072)
    for j in range(4):
        e = (f"s_add_u32 m0, s{sMW}, {base+1024*j}\nbuffer_load_dwordx4 v{va}, {sr(srd,4)}, s{so} offen lds\n"
             f"s_add_u32 s{so}, s{so}, {pitch*(8 if j < 3 else 40)}")
        if j == 3:
            e += (f"\ns_add_u32 s{sKX}, s{sKX}, 128\ns_and_b32 s{sKX}, s{sKX}, 1023\n"
                  f"s_cselect_b32 s{sT}, 0, {512*pitch}\ns_sub_u32 s{so}, s{so}, s{sT}")
        out.append(e)
    return out


def loader(k):
    t0, t1, t2, t3 = vT, vT + 1, vT + 2, vT + 3
    k(f"""
    s_setprio 3
    s_lshl_b32 s{sMX}, s{sUn}, 12
    v_lshrrev_b32 v{t0}, 3, v{vLane}
    v_and_b32 v{t1}, 7, v{vLane}
    v_lshrrev_b32 v{t2}, 1, v{t0}
    v_xor_b32 v{t2}, v{t2}, v{t1}
    v_lshlrev_b32 v{t2}, 4, v{t2}
    v_lshl_add_u32 v{t2}, v{t0}, 10, v{t2}
    s_lshl_b32 s{sT+5}, s{sRB}, 17
    s_lshl_b32 s{sT+6}, s{sUn}, 15
    s_add_u32 s{sT+5}, s{sT+5}, s{sT+6}
    v_add_u32 v{vDX}, s{sT+5}, v{t2}
    v_xor_b32 v{t2}, 64, v{t2}
    s_add_u32 s{sT+5}, s{sT+5}, 8192
    v_add_u32 v{vDX+1}, s{sT+5}, v{t2}
    ; W: chunk = (l%8) ^ (4*((row>>1)&1)), row = l/8
    v_lshlrev_b32 v{t2}, 1, v{t0}
    v_and_b32 v{t2}, 4, v{t2}
    v_xor_b32 v{t2}, v{t2}, v{t1}
    v_lshlrev_b32 v{t2}, 4, v{t2}
    v_mul_u32_u24 v{t3}, 3584, v{t0}
    v_add_u32 v{vDW}, v{t3}, v{t2}
    v_mul_u32_u24 v{t3}, 3072, v{t0}
    v_add_u32 v{vDW+1}, v{t3}, v{t2}
    s_lshr_b32 s{sT+1}, s{sUn}, 1
    s_and_b32 s{sT+2}, s{sUn}, 1
    s_lshl_b32 s{sKW}, s{sCG}, 7
    s_cmp_eq_u32 s{sT+1}, 0
    s_cselect_b32 s{sT+3}, 1792, 0
    s_add_u32 s{sKW}, s{sKW}, s{sT+3}
    s_mul_i32 s{sT+3}, s{sT+2}, {32*3584}
    s_add_u32 s{sKW}, s{sKW}, s{sT+3}
    s_lshl_b32 s{sKQ}, s{sCG}, 8
    s_lshl_b32 s{sT+3}, s{sT+1}, 7
    s_add_u32 s{sKQ}, s{sKQ}, s{sT+3}
    s_mul_i32 s{sT+3}, s{sT+2}, {32*3072}
    s_add_u32 s{sKQ}, s{sKQ}, s{sT+3}
    s_add_u32 s{sMW}, s{sMX}, {O_W}
    s_and_b32 s{sT+3}, s2, {7 if 'rot' in X else (6 if 'rot6' in X else 0)}
    s_lshl_b32 s{sKX}, s{sT+3}, 7
    s_mul_i32 s{sT+4}, s{sT+3}, {64*3584}
    s_add_u32 s{sKW}, s{sKW}, s{sT+4}
    s_mul_i32 s{sT+4}, s{sT+3}, {64*3072}
    s_add_u32 s{sKQ}, s{sKQ}, s{sT+4}
    s_waitcnt lgkmcnt(0)
    """)
    for a in dma(0):
        k(a, tag=("st", 0))
    for a in dma(1):
        k(a, tag=("st", 1))
    stamp(k, 1)
    k(f"v_mov_b32 v7, {L_CNT}\nv_mov_b32 v8, 1")
    for t in range(16):
        if t == 5:
            k(f"s_cmp_ge_u32 s{sCG}, 12\ns_cbranch_scc1 k1_ltail")
        if FREE and t > 8:
            k.wait_tag(("st", t))
            lds_signal(k, 4 * t, 7, 8)
            if t + 3 < 16:
                lds_wait(k, 64 + 4 * (t - 1), 7, vT, False)
        else:
            k.wait_tag(("st", t))
            k("s_waitcnt lgkmcnt(0)\ns_barrier")
        if 'prof' in X:
            k(f"s_memtime s[84:85]\ns_memrealtime s[86:87]\ns_waitcnt lgkmcnt(0)\nv_writelane_b32 v40, s84, {t}\nv_writelane_b32 v41, s86, {t}")
        if t == 0:
            for a in dma(2):
                k(a, tag=("st", 2))
        if t + 3 < 16 and 'nodma' not in X:
            for a in dma(t + 3):
                k(a, tag=("st", t + 3))
    if 'prof' in X:
        k(f"""
        v_writelane_b32 v40, s64, 16
        v_writelane_b32 v41, s80, 16
        s_lshl_b32 s88, s2, 9
        s_add_u32 s88, s88, {WS_STAMP + 3*262144}
        v_lshlrev_b32 v42, 3, v{vLane}
        buffer_store_dwordx2 v[40:41], v42, {sr(sWS,4)}, s88 offen
        """)
    k("s_branch k1_ldone")
    k.label("k1_ltail")
    for t in range(5, 8):
        k.wait_tag(("st", t))
        k("s_barrier")
    if FUSED:
        for t in range(1 if FREE else 8):
            k("s_barrier")
    k.label("k1_ldone")
    k(f"v_mov_b32 v{t0}, {L_TAG}\nds_read_b32 v{vTag}, v{t0}\nv_readfirstlane_b32 s{sTagS}, v{vTag}")


def reads(ks, buf):
    out = [f"ds_read_b128 {vr(FX+4*buf,4)}, v{vAX+ks}"]
    for c in range(4):
        d = FW + 16 * buf + 4 * c
        o = (c // 2) * 8192 + ks * 2048
        out.append(f"ds_read_b64_tr_b16 {vr(d,2)}, v{vAW+c%2} offset:{o}")
        out.append(f"ds_read_b64_tr_b16 {vr(d+2,2)}, v{vAW+c%2} offset:{o+512}")
    return out


def mms(buf, first):
    return [mfma32(ACC + 16 * c, FW + 16 * buf + 4 * c, FX + 4 * buf, None if first else ACC + 16 * c) for c in range(4)]


def gather_loads():
    e = ""
    if 'lrs' not in X:
        e = f"buffer_load_dwordx4 {vr(vGR,4)}, v{vGA}, {sr(sWS,4)}, 0 offen sc0 sc1\n"
    for un in range(2):
        e += f"buffer_load_dwordx2 {vr(vGC+2*un,2)}, v{vGA+1}, {sr(sWS,4)}, s{sCSo+un} offen sc0 sc1\n"
    return e


def check_tags(k, regs, Lok, tmp):
    k(f"v_xor_b32 v{tmp}, v{regs[0]}, v{vTag}")
    for r in regs[1:]:
        k(f"v_xor_b32 v{tmp+1}, v{r}, v{vTag}\nv_or_b32 v{tmp}, v{tmp}, v{tmp+1}")
    k(f"v_cmp_ne_u32 vcc, 0, v{tmp}\ns_cmp_eq_u64 vcc, 0\ns_cbranch_scc1 {Lok}")


def poll_tag(k, first_issued):
    Lr, Lok, Lc, Ln = k.newlabel("tagpoll"), k.newlabel("tagok"), k.newlabel("tagchk"), k.newlabel("tagno")
    if first_issued:
        k(f"s_branch {Lc}")
    k(f"""
    {Lr}:
    buffer_load_dword v{vTag}, v{vGA+2}, {sr(sDBG,4)}, 0 offen sc0 sc1
    {Lc}:
    v_readfirstlane_b32 s{sT}, v{vTag}
    s_cmp_eq_u32 s{sT}, 0
    s_cbranch_scc1 {Ln}
    s_sub_u32 s{sT+13}, s{sT+14}, s{sT}
    s_add_u32 s{sT+13}, s{sT+13}, 100000
    s_cmp_lt_u32 s{sT+13}, 102000
    s_cbranch_scc1 {Lok}
    s_cmp_lt_u32 s{sSpin}, 197000
    s_cbranch_scc1 {Lok}
    {Ln}:
    s_sleep 2
    s_sub_u32 s{sSpin}, s{sSpin}, 1
    s_cbranch_scc0 {Lr}
    s_mov_b32 s{sSpin}, 0
    {Lok}:
    """)


def lds_wait(k, off, vaddr, vdst, issued):
    Lr, Lc, Lok = k.newlabel("lw"), k.newlabel("lwc"), k.newlabel("lwok")
    if issued:
        k(f"v_readfirstlane_b32 s{sT+11}, v{vdst}\ns_cmp_eq_u32 s{sT+11}, 4\ns_cbranch_scc1 {Lok}")
    k(f"""
    s_mov_b32 s{sT+12}, 2000000
    {Lr}:
    ds_read_b32 v{vdst}, v{vaddr} offset:{off}
    v_readfirstlane_b32 s{sT+11}, v{vdst}
    s_cmp_eq_u32 s{sT+11}, 4
    s_cbranch_scc1 {Lok}
    {'' if issued else 's_sleep 1'}
    s_sub_u32 s{sT+12}, s{sT+12}, 1
    s_cbranch_scc0 {Lr}
    {Lok}:
    """)


def lds_signal(k, off, vaddr, vone):
    k(f"s_mov_b64 exec, 1\nds_add_u32 v{vaddr}, v{vone} offset:{off}\ns_mov_b64 exec, -1")


def claim_id(k, part="ab"):
    t0, t1 = 6, 7
    issue = f"""
    s_and_b32 s{sT+8}, s{sT+8}, 7
    s_lshl_b32 s{sT+10}, s{sT+8}, 4
    v_mov_b32 v{t0}, s{sT+10}
    v_mov_b32 v{t1}, 1
    s_mov_b64 exec, 1
    buffer_atomic_add v{t1}, v{t0}, {sr(sDBG,4)}, 0 offen sc0 sc1
    s_mov_b64 exec, -1
    """
    if "a" in part:
        k(f"s_getreg_b32 s{sT+8}, hwreg(HW_REG_XCC_ID)\ns_mov_b32 s{sT+9}, 8")
        k(issue)
    if "b" in part:
        Lr, Lok, Ld = k.newlabel("clm"), k.newlabel("clmok"), k.newlabel("clmd")
        k(f"""
        {Lr}:
        v_readfirstlane_b32 s{sT+10}, v{t1}
        s_cmp_lt_u32 s{sT+10}, 32
        s_cbranch_scc1 {Lok}
        s_mov_b32 s{sT+10}, s2
        s_sub_u32 s{sT+9}, s{sT+9}, 1
        s_cmp_eq_u32 s{sT+9}, 0
        s_cbranch_scc1 {Ld}
        s_add_u32 s{sT+8}, s{sT+8}, 1
        """)
        k(issue)
        k(f"""
        s_branch {Lr}
        {Lok}:
        s_lshl_b32 s{sT+10}, s{sT+10}, 3
        s_add_u32 s{sT+10}, s{sT+10}, s{sT+8}
        {Ld}:
        v_mov_b32 v{t0}, {L_TAG+4}
        v_mov_b32 v{t1}, s{sT+10}
        ds_write_b32 v{t0}, v{t1}
        """)


def main_loop(k, half=False, free=False):
    t0 = vT
    LA = 2
    if free:
        k(f"v_mov_b32 v7, {L_CNT}\nv_mov_b32 v8, 1")
    for p in range(8):
        if free and p > 0:
            k("s_waitcnt lgkmcnt(0)")
            if p < 5:
                lds_signal(k, 64 + 4 * (8 + p - 1), 7, 8)
            lds_wait(k, 4 * (8 + p), 7, 6, True)
        else:
            k("s_waitcnt lgkmcnt(0)\ns_barrier")
        if p > 0:
            step = STAGE if p % NS else -(NS - 1) * STAGE
            for r in (vAX, vAX + 1, vAX + 2, vAX + 3, vAW, vAW + 1):
                k(f"v_add_u32 v{r}, {step & 0xffffffff:#x}, v{r}")
        for ks in range(4):
            g = 4 * p + ks
            r = reads(ks, g % 3)
            m = mms((g - LA) % 3, g - LA == 0) if g >= LA else []
            if half:
                r, m = r[:5], m[:2]
            if free and ks == 3 and p < 7:
                r = [f"ds_read_b32 v6, v7 offset:{4*(8+p+1)}"] + r
            seq = interleave(m, r) if ks < 3 else (m[:1] + r[:5] + m[1:2] + r[5:] + m[2:])
            for a in seq:
                k(a)
            if p == 5 and ks == 0:
                k(f"v_mov_b32 v{t0}, {L_TAG}\nds_read_b32 v{vTag}, v{t0}")
            if p == 6 and ks == 2:
                k(gather_loads())
    for g in range(32 - LA, 32):
        for a in mms(g % 3, False)[:2 if half else 4]:
            k(a)


def row_stats(k):
    t0, t1, t2, t3 = vT, vT + 1, vT + 2, vT + 3
    S = ACC
    D = ACC + 8
    U = ACC + 40
    for i in range(4):
        k(f"v_mov_b32 v{S+i}, 0")
    if 'rprio' in X:
        k("s_setprio 2")

    def crunch(b):
        for i in range(16):
            u = U + 2 * (i % 4)
            k(f"""
            v_lshlrev_b32 v{u}, 16, v{D+16*b+i}
            v_and_b32 v{u+1}, 0xffff0000, v{D+16*b+i}
            v_add_f32 v{S}, v{S}, v{u}
            v_add_f32 v{S+1}, v{S+1}, v{u+1}
            v_fmac_f32 v{S+2}, v{u}, v{u}
            v_fmac_f32 v{S+3}, v{u+1}, v{u+1}
            """)
    for p in range(8):
        k("s_waitcnt lgkmcnt(0)\ns_barrier")
        o = (p % 2) * STAGE
        if p in (2, 6):
            for r in range(4):
                k(f"v_add_u32 v{vAX+r}, {2*STAGE}, v{vAX+r}")
        if p == 4:
            for r in range(4):
                k(f"v_subrev_u32 v{vAX+r}, {2*STAGE}, v{vAX+r}")
        for ks in range(4):
            k(f"ds_read_b128 {vr(D+16*(p%2)+4*ks,4)}, v{vAX+ks} offset:{o}")
        if 'nocr' not in X:
            crunch(p % 2)
    for r in range(4):
        k(f"v_subrev_u32 v{vAX+r}, {2*STAGE}, v{vAX+r}")
    k(f"""
    v_add_f32 v{S}, v{S}, v{S+1}
    v_add_f32 v{S+2}, v{S+2}, v{S+3}
    v_mov_b32 v{t0}, v{S}
    v_mov_b32 v{t1}, v{S+2}
    v_permlane32_swap_b32 v{S}, v{t0}
    v_permlane32_swap_b32 v{S+2}, v{t1}
    v_add_f32 v{t0}, v{t0}, v{S}
    v_add_f32 v{t1}, v{t1}, v{S+2}
    v_mul_f32 v{t0}, {f32(1.0/512)}, v{t0}
    v_mul_f32 v{t1}, {f32(1.0/512)}, v{t1}
    v_fma_f32 v{t1}, -v{t0}, v{t0}, v{t1}
    v_max_f32 v{t1}, 0, v{t1}
    v_add_f32 v{t1}, {f32(1e-5)}, v{t1}
    v_rsq_f32 v{t1}, v{t1}
    v_mul_f32 v{t0}, v{t0}, v{t1}
    ds_write_b32 v{vGA}, v{t1}
    ds_write_b32 v{vGA}, v{t0} offset:512
    """)


def epi_addr(k):
    t0, t1, t2, t3 = vT, vT + 1, vT + 2, vT + 3
    k(f"""
    s_lshl_b32 s{sT}, s{sW}, 9
    s_add_u32 s{sT}, s{sT}, {L_CSW}
    v_lshlrev_b32 v{t0}, 2, v{vLane}
    v_add_u32 v{vT+4}, s{sT}, v{t0}
    v_lshrrev_b32 v{t2}, 5, v{vLane}             ; h
    v_lshlrev_b32 v{vT+6}, 5, v{t2}
    v_add_u32 v{vT+6}, s{sT}, v{vT+6}
    v_lshlrev_b32 v{vT+5}, 3, v{vLane}
    v_mov_b32 v3, {f32(C0)}
    v_and_b32 v{t0}, 31, v{vLane}
    v_and_b32 v{t1}, 1, v{t0}
    v_bfe_u32 v{t3}, v{t0}, 1, 1
    v_lshl_or_b32 v{t1}, v{t3}, 2, v{t1}
    v_bfe_u32 v{t3}, v{t0}, 2, 1
    v_lshl_or_b32 v{t1}, v{t3}, 1, v{t1}
    v_xor_b32 v{t1}, v{t1}, v{t2}
    v_lshlrev_b32 v{t1}, 4, v{t1}
    v_lshl_add_u32 v{t1}, v{t0}, 7, v{t1}
    v_add_u32 v{vT+8}, s{sT+1}, v{t1}
    v_xor_b32 v{vT+9}, 32, v{vT+8}
    v_xor_b32 v{vT+10}, 64, v{vT+8}
    v_xor_b32 v{vT+11}, 96, v{vT+8}
    v_bfe_u32 v{t0}, v{vLane}, 2, 2
    v_and_b32 v{t1}, 1, v{t0}
    v_lshrrev_b32 v{t3}, 1, v{t0}
    v_lshl_or_b32 v{t1}, v{t3}, 2, v{t1}
    v_bfe_u32 v{t3}, v{vLane}, 4, 1
    v_lshlrev_b32 v{t3}, 1, v{t3}
    v_and_b32 v{vT+7}, 1, v{vLane}
    v_or_b32 v{t3}, v{t3}, v{vT+7}
    v_xor_b32 v{t1}, v{t1}, v{t3}
    v_lshlrev_b32 v{t1}, 4, v{t1}
    v_lshl_add_u32 v{t0}, v{t2}, 3, v{t0}
    v_lshl_add_u32 v{t1}, v{t0}, 7, v{t1}
    v_bfe_u32 v{t3}, v{vLane}, 1, 1
    v_lshl_add_u32 v{t1}, v{t3}, 3, v{t1}
    v_add_u32 v{vT+12}, s{sT+1}, v{t1}
    v_xor_b32 v{vT+13}, 32, v{vT+12}
    v_xor_b32 v{vT+14}, 64, v{vT+12}
    v_xor_b32 v{vT+15}, 96, v{vT+12}
    v_and_b32 v{t0}, 15, v{vLane}
    v_lshlrev_b32 v{t0}, 4, v{t0}
    v_lshl_add_u32 v{t0}, v{t2}, 8, v{t0}
    v_bfe_u32 v{t3}, v{vLane}, 4, 1
    v_lshl_add_u32 v{vT+7}, v{t3}, 16, v{t0}
    """)


def get_stats(k):
    t0 = vT
    tagregs = [vGC + 1, vGC + 3] + ([vGR + 1, vGR + 3] if 'lrs' not in X else [])
    Lr, Lok = k.newlabel("g1"), k.newlabel("g1ok")
    check_tags(k, tagregs, Lok, t0)
    k(f"{Lr}:\ns_sleep 2")
    k(gather_loads())
    check_tags(k, tagregs, Lok, t0)
    k(f"s_sub_u32 s{sSpin}, s{sSpin}, 1\ns_cbranch_scc0 {Lr}\ns_mov_b32 s{sSpin}, 0\n{Lok}:")
    k(f"ds_write_b32 v{vT+4}, v{vGC}\nds_write_b32 v{vT+4}, v{vGC+2} offset:256")
    if 'lrs' in X:
        k(f"ds_read_b32 v{vGR}, v{vGA}\nds_read_b32 v{vGR+2}, v{vGA} offset:512")
    k("s_waitcnt lgkmcnt(0)")


def cs_reads(un):
    out = []
    for c in range(4):
        out.append(f"ds_read_b128 {vr(FW+8*c,4)}, v{vT+6} offset:{un*256+c*64}")
        out.append(f"ds_read_b128 {vr(FW+8*c+4,4)}, v{vT+6} offset:{un*256+c*64+16}")
    return out


def pack(A):
    return [f"v_cvt_pk_bf16_f32 v{A+8*c+i}, v{A+8*c+2*i}, v{A+8*c+2*i+1}" for c in range(4) for i in range(4)]


def tr_store(k, A, lane_reg, s0, kstride):
    for c in range(4):
        k(f"ds_write_b128 v{vT+8+c}, {vr(A+8*c,4)}")
    k(f"s_add_u32 s{sT+3}, s{s0}, 131072\ns_waitcnt lgkmcnt(0)")
    for ct in range(2):
        for ks in range(2):
            d = A + 8 * ct + 4 * ks
            k(f"ds_read_b64_tr_b16 {vr(d,2)}, v{vT+12+2*ct} offset:{ks*2048}")
            k(f"ds_read_b64_tr_b16 {vr(d+2,2)}, v{vT+13+2*ct} offset:{ks*2048+512}")
    for ct in range(2):
        for ks in range(2):
            k(f"buffer_store_dwordx4 {vr(A+8*ct+4*ks,4)}, v{lane_reg}, {sr(sWS,4)}, s{(s0, sT+3)[ct]} offen offset:{ks*kstride} {WT}")


def z_epilogue(k):
    t0, t1, t2, t3 = vT, vT + 1, vT + 2, vT + 3
    k("s_barrier")
    if 'zprio' in X:
        k("s_setprio 2")
    get_stats(k)
    k(f"s_mov_b32 s{sT+10}, {f32(C1)}")
    if 'zpk' in X:
        k(f"v_mov_b32 v4, v{vGR}\nv_mov_b32 v5, v{vGR+2}\nv_mov_b32 v6, {f32(C0)}\nv_mov_b32 v7, {f32(C1)}")
    S = FX

    def unit_ops(un):
        A = ACC + 32 * un
        ops = list(cs_reads(un))
        if 'zpk' in X:
            P = range(0, 32, 2)
            ops += [f"v_pk_mul_f32 {vr(A+i,2)}, {vr(A+i,2)}, v[4:5] {BC}" for i in P]
            ops += [f"v_pk_fma_f32 {vr(A+i,2)}, {vr(FW+i,2)}, v[4:5], {vr(A+i,2)} op_sel:[0,1,0] op_sel_hi:[1,1,1] neg_lo:[1,0,0] neg_hi:[1,0,0]" for i in P]
            ops += [f"v_pk_mul_f32 {vr(FW+i,2)}, {vr(A+i,2)}, {vr(A+i,2)}" for i in P]
            ops += [f"v_pk_fma_f32 {vr(FW+i,2)}, {vr(FW+i,2)}, v[6:7], v[6:7] op_sel:[0,1,0] op_sel_hi:[1,1,0]" for i in P]
            ops += [f"v_pk_mul_f32 {vr(FW+i,2)}, {vr(FW+i,2)}, {vr(A+i,2)}" for i in P]
            ops += [f"v_exp_f32 v{FW+i}, v{FW+i}" for i in range(32)]
            ops += [f"v_pk_add_f32 {vr(FW+i,2)}, {vr(FW+i,2)}, 1.0 op_sel_hi:[1,0]" for i in P]
            ops += [f"v_rcp_f32 v{FW+i}, v{FW+i}" for i in range(32)]
            ops += [f"v_pk_mul_f32 {vr(A+i,2)}, {vr(A+i,2)}, {vr(FW+i,2)}" for i in P]
            return ops
        for i in range(32):
            ops.append(f"v_mul_f32 v{A+i}, v{A+i}, v{vGR}")
        for i in range(32):
            ops.append(f"v_fma_f32 v{A+i}, -v{vGR+2}, v{FW+i}, v{A+i}")
        for h in range(2):
            R = [A + 16 * h + i for i in range(16)]
            T = [FW + i for i in range(16)]
            ops += [f"v_mul_f32 v{t}, v{r}, v{r}" for r, t in zip(R, T)]
            ops += [f"v_fma_f32 v{t}, v{t}, s{sT+10}, v3" for r, t in zip(R, T)]
            ops += [f"v_mul_f32 v{t}, v{t}, v{r}" for r, t in zip(R, T)]
            ops += [f"v_exp_f32 v{t}, v{t}" for r, t in zip(R, T)]
            ops += [f"v_add_f32 v{t}, 1.0, v{t}" for r, t in zip(R, T)]
            ops += [f"v_rcp_f32 v{t}, v{t}" for r, t in zip(R, T)]
            ops += [f"v_mul_f32 v{r}, v{r}, v{t}" for r, t in zip(R, T)]
        return ops

    ops = unit_ops(0)
    A = ACC
    ops += [f"v_add_f32 v{S}, v{A}, v{A+1}", f"v_mul_f32 v{S+2}, v{A}, v{A}", f"v_add_f32 v{S+1}, v{A+2}, v{A+3}",
            f"v_mul_f32 v{S+3}, v{A+1}, v{A+1}", f"v_fmac_f32 v{S+2}, v{A+2}, v{A+2}", f"v_fmac_f32 v{S+3}, v{A+3}, v{A+3}"]
    for i in range(4, 32):
        ops += [f"v_add_f32 v{S+i%2}, v{S+i%2}, v{A+i}", f"v_fmac_f32 v{S+2+i%2}, v{A+i}, v{A+i}"]
    ops.append(f"""
    v_add_f32 v{S}, v{S}, v{S+1}
    v_add_f32 v{S+2}, v{S+2}, v{S+3}
    v_permlane32_swap_b32 v{S}, v{S+2}
    v_add_f32 v{S}, v{S}, v{S+2}
    v_mov_b32 v{S+1}, v{vTag}
    s_mul_i32 s{sT+4}, s{sT32}, {14*512}
    s_add_u32 s{sT+4}, s{sT+4}, {WS_S2}
    s_lshl_b32 s{sT+1}, s{sCG}, 9
    s_add_u32 s{sT+1}, s{sT+1}, s{sT+4}
    buffer_store_dwordx2 {vr(S,2)}, v{vT+5}, {sr(sWS,4)}, s{sT+1} offen sc0 sc1
    """)
    n0 = len(ops)
    if 'noz1' not in X:
        ops += unit_ops(1)
    ops += pack(ACC + 32)
    G = FW

    def g2loads():
        e = ""
        for i in range(7):
            if i % 4 == 0:
                e += f"s_add_u32 s{sT}, s{sT+4}, {1024*i}\n"
            e += f"buffer_load_dwordx4 {vr(G+4*i,4)}, v{vL16}, {sr(sWS,4)}, s{sT} offen offset:{1024*(i%4)} sc0 sc1\n"
        return e
    ops.insert(len(ops) - 16, g2loads())
    e = f"""
    s_mul_i32 s{sT+1}, s{sT32}, {56*1024}
    s_lshl_b32 s{sT+2}, s{sCG}, 12
    s_add_u32 s{sT+1}, s{sT+1}, s{sT+2}
    s_add_u32 s{sT+1}, s{sT+1}, {WS_Z1}
    """
    for c in range(4):
        e += f"buffer_store_dwordx4 {vr(ACC+32+8*c,4)}, v{vL16}, {sr(sWS,4)}, s{sT+1} offen offset:{1024*c} {WT}\n"
    ops.append(e)
    cost = [2 if o.startswith(("v_exp", "v_rcp", "v_pk")) else (3 if o.startswith("ds_") else (25 if "\n" in o else 1)) for o in ops]
    HEAD = int(os.environ.get('ZHEAD', '70'))
    NB1 = int(os.environ.get('ZNB', '5'))
    tot = sum(cost) + HEAD
    acc, nxt, placed = HEAD, 1, 0
    for i, (o, c) in enumerate(zip(ops, cost)):
        if not ('noz' in X and o.startswith('v_')):
            k(o)
        if i == n0 - 1:
            stamp(k, 4)
        acc += c
        if placed < NB1 and acc >= tot * nxt / NB1 - 1e-9:
            if not FREE:
                k("s_barrier")
            placed += 1
            nxt += 1
    assert placed == NB1
    rest = 0 if FREE else 7 - NB1
    stamp(k, 5)
    Lr, Lok = k.newlabel("g2"), k.newlabel("g2ok")
    check_tags(k, [G + 2 * j + 1 for j in range(14)], Lok, t0)
    k(f"{Lr}:")
    k(g2loads())
    check_tags(k, [G + 2 * j + 1 for j in range(14)], Lok, t0)
    k(f"s_sleep 1\ns_sub_u32 s{sSpin}, s{sSpin}, 1\ns_cbranch_scc0 {Lr}\ns_mov_b32 s{sSpin}, 0\n{Lok}:")
    stamp(k, 1)
    for i in range(1, 7):
        k(f"v_add_f32 v{G}, v{G}, v{G+4*i}\nv_add_f32 v{G+2}, v{G+2}, v{G+4*i+2}")
    k(f"""
    v_mov_b32 v{t0}, v{G}
    v_mov_b32 v{t1}, v{G+2}
    v_permlane32_swap_b32 v{G}, v{t0}
    v_permlane32_swap_b32 v{G+2}, v{t1}
    v_add_f32 v{G}, v{G}, v{t0}
    v_add_f32 v{G+1}, v{G+2}, v{t1}
    s_lshl_b32 s{sT}, s{sW}, 9
    s_add_u32 s{sT}, s{sT}, {L_CSW}
    v_and_b32 v{t2}, 31, v{vLane}
    v_lshlrev_b32 v{t3}, 3, v{t2}
    v_add_u32 v{t3}, s{sT}, v{t3}
    ds_write_b64 v{t3}, {vr(G,2)}
    v_lshlrev_b32 v{t3}, 2, v{t2}
    v_add_u32 v{t3}, s{sT}, v{t3}
    s_waitcnt lgkmcnt(0)
    ds_read_b32 v{t0}, v{t3}
    ds_read_b32 v{t1}, v{t3} offset:128
    s_lshl_b32 s{sT}, s{sCG}, 18
    s_lshl_b32 s{sT+1}, s{sT32}, 11
    s_add_u32 s{sT}, s{sT}, s{sT+1}
    s_add_u32 s{sT}, s{sT}, {WS_Z2}
    v_mul_f32 v{t0}, {f32(1.0/896)}, v{t0}
    v_mul_f32 v{t1}, {f32(1.0/896)}, v{t1}
    v_fma_f32 v{t1}, -v{t0}, v{t0}, v{t1}
    v_max_f32 v{t1}, 0, v{t1}
    v_add_f32 v{t1}, {f32(1e-5)}, v{t1}
    v_rsq_f32 v{t1}, v{t1}
    v_mul_f32 v{t0}, v{t0}, v{t1}
    """)
    if rest >= 1:
        k("s_barrier")
    for i in range(32):
        k(f"v_fma_f32 v{A+i}, v{A+i}, v{t1}, -v{t0}")
    for o in pack(A):
        k(o)
    tr_store(k, A, vL16, sT, 1024)
    for i in range(rest - 1):
        k("s_barrier")


def q_epilogue(k):
    get_stats(k)
    k(f"""
    s_cmp_eq_u32 s{sKind}, 0
    s_cselect_b32 s{sT}, {f32(QS)}, 1.0
    v_mul_f32 v4, s{sT}, v{vGR}
    v_mul_f32 v5, s{sT}, v{vGR+2}
    s_lshl_b32 s{sT}, s{sCG}, 19
    s_lshl_b32 s{sT+1}, s{sT32}, 10
    s_add_u32 s{sT}, s{sT}, s{sT+1}
    s_add_u32 s{sT}, s{sT}, {WS_Q}
    """)
    for un in range(2):
        A = ACC + 32 * un
        for o in cs_reads(un):
            k(o)
        for i in range(0, 32, 2):
            k(f"v_pk_mul_f32 {vr(A+i,2)}, {vr(A+i,2)}, v[4:5] {BC}")
        for i in range(0, 32, 2):
            k(f"v_pk_fma_f32 {vr(A+i,2)}, {vr(FW+i,2)}, v[4:5], {vr(A+i,2)} op_sel:[0,1,0] op_sel_hi:[1,1,1] neg_lo:[1,0,0] neg_hi:[1,0,0]")
        for o in pack(A):
            k(o)
        Lv, Ld = k.newlabel("qv"), k.newlabel("qd")
        k(f"s_cmp_eq_u32 s{sKind}, 2\ns_cbranch_scc1 {Lv}")
        for c in range(4):
            k(f"buffer_store_dwordx4 {vr(A+8*c,4)}, v{vL16}, {sr(sWS,4)}, s{sT} offen {WT}\ns_add_u32 s{sT}, s{sT}, 65536")
        k(f"s_branch {Ld}\n{Lv}:")
        tr_store(k, A, vT + 7, sT, 512)
        k(f"s_add_u32 s{sT}, s{sT}, 262144\n{Ld}:")


def wave_allsum(k, regs, tmps):
    for sh in (8, 4, 2, 1):
        for r in regs:
            k(f"v_add_f32_dpp v{r}, v{r}, v{r} row_ror:{sh} row_mask:0xf bank_mask:0xf")
    for sw in ("v_permlane16_swap_b32", "v_permlane32_swap_b32"):
        for r, t in zip(regs, tmps):
            k(f"v_mov_b32 v{t}, v{r}")
        for r, t in zip(regs, tmps):
            k(f"{sw} v{r}, v{t}")
        for r, t in zip(regs, tmps):
            k(f"v_add_f32 v{r}, v{r}, v{t}")


def helper(k):
    t0, t1, t2, t3 = vT, vT + 1, vT + 2, vT + 3
    A = FX
    if 'lrs' not in X:
        D = ACC
        k(f"""
        s_cmp_lt_u32 s{sW}, 8
        s_cbranch_scc1 k1_hcol
        s_setprio 2
        s_and_b32 s{sT+6}, s2, 7
        s_lshl_b32 s{sT+6}, s{sT+6}, 2
        s_lshr_b32 s{sT+7}, s2, 3
        s_add_u32 s{sT+6}, s{sT+6}, s{sT+7}
        s_lshl_b32 s{sT+6}, s{sT+6}, 2
        s_add_u32 s{sT+6}, s{sT+6}, s{sW}
        s_sub_u32 s{sT+6}, s{sT+6}, 8
        s_lshl_b32 s{sT+7}, s{sT+6}, 14
        v_lshrrev_b32 v{t0}, 3, v{vLane}
        v_and_b32 v{t1}, 7, v{vLane}
        v_lshlrev_b32 v{t1}, 4, v{t1}
        v_lshl_add_u32 v{t1}, v{t0}, 10, v{t1}
        s_add_u32 s{sT+8}, s{sT+7}, 8192
        v_mov_b32 v3, 0x3f803f80
        """)
        for b in range(2):
            for i in range(8):
                k(f"buffer_load_dwordx4 {vr(D+32*b+4*i,4)}, v{t1}, {sr(sXS,4)}, s{sT+7+b} offen offset:{128*i}")
        k(f"buffer_load_dword v{vTag}, v{vGA+2}, {sr(sDBG,4)}, 0 offen sc0 sc1")
        for j in range(4):
            k(f"v_mov_b32 v{A+j}, 0")
        for b in range(2):
            for i in range(32):
                k(f"v_dot2c_f32_bf16 v{A+2*b}, v{D+32*b+i}, v3\nv_dot2c_f32_bf16 v{A+2*b+1}, v{D+32*b+i}, v{D+32*b+i}")
        for m in ("quad_perm:[1,0,3,2]", "quad_perm:[2,3,0,1]", "row_half_mirror"):
            for j in range(4):
                k(f"v_add_f32_dpp v{A+j}, v{A+j}, v{A+j} {m} row_mask:0xf bank_mask:0xf")
        k(f"""
        v_and_b32 v{t2}, 1, v{vLane}
        v_cmp_eq_u32 vcc, 1, v{t2}
        v_cndmask_b32 v{A}, v{A}, v{A+2}, vcc
        v_cndmask_b32 v{A+1}, v{A+1}, v{A+3}, vcc
        v_mul_f32 v{A}, {f32(1.0/512)}, v{A}
        v_mul_f32 v{A+1}, {f32(1.0/512)}, v{A+1}
        v_fma_f32 v{A+1}, -v{A}, v{A}, v{A+1}
        v_max_f32 v{A+1}, 0, v{A+1}
        v_add_f32 v{A+1}, {f32(1e-5)}, v{A+1}
        v_rsq_f32 v{D}, v{A+1}
        v_mul_f32 v{D+2}, v{D}, v{A}
        v_lshl_add_u32 v{t0}, v{t2}, 3, v{t0}
        v_lshlrev_b32 v{t0}, 4, v{t0}
        """)
        poll_tag(k, True)
        k(f"""
        v_mov_b32 v{D+1}, v{vTag}
        v_mov_b32 v{D+3}, v{vTag}
        s_lshl_b32 s{sT+7}, s{sT+6}, 8
        s_add_u32 s{sT+7}, s{sT+7}, {WS_RS}
        s_mov_b32 exec_lo, 0x03030303
        s_mov_b32 exec_hi, 0x03030303
        buffer_store_dwordx4 {vr(D,4)}, v{t0}, {sr(sWS,4)}, s{sT+7} offen sc0 sc1
        s_mov_b64 exec, -1
        s_setprio 0
        k1_hcol:
        """)
    k(f"""
    ; e = (xcd/2)*4 + i, p = xcd%2: z unit index (0..27) = (e<7 ? 14 : -7) + e + 7p ; qkv unit = min(14p + e, 23)
    s_bfe_u32 s{sT+5}, s2, 0x20001
    s_lshl_b32 s{sT+5}, s{sT+5}, 2
    s_lshr_b32 s{sT+4}, s2, 3
    s_add_u32 s{sT+5}, s{sT+5}, s{sT+4}
    s_cmp_ge_u32 s{sT+5}, 14
    s_cbranch_scc1 k1_hpre
    s_and_b32 s{sT+4}, s2, 1
    s_mul_i32 s{sT+3}, s{sT+4}, 7
    s_add_u32 s{sT+1}, s{sT+5}, s{sT+3}
    s_add_u32 s{sT}, s{sT+1}, s{sT+3}
    s_min_u32 s{sT}, s{sT}, 23
    s_cmp_lt_u32 s{sT+5}, 7
    s_cselect_b32 s{sT+2}, 14, -7
    s_add_u32 s{sT+1}, s{sT+1}, s{sT+2}
    s_add_u32 s{sGU}, s{sT+1}, 24
    s_lshl_b32 s{sT+1}, s{sT+1}, 7
    s_lshl_b32 s{sT+2}, s{sT}, 7
    s_lshl_b32 s{sT+4}, s{sW}, 6
    s_sub_u32 s{sT+5}, s{sW}, 8
    s_lshl_b32 s{sT+5}, s{sT+5}, 7
    s_cmp_lt_u32 s{sW}, 8
    s_cselect_b32 s{sGU}, s{sGU}, s{sT}
    s_cselect_b32 s{sT+1}, s{sT+1}, s{sT+2}
    s_cselect_b32 s{sT+4}, s{sT+4}, s{sT+5}
    s_cselect_b32 s{sT+3}, 512, 0
    s_cselect_b32 s{sWW}, s{sWI}, s{sWW}
    s_cselect_b32 s{sWW+1}, s{sWI+1}, s{sWW+1}
    s_cselect_b32 s{sWW+2}, s{sWI+2}, s{sWW+2}
    s_add_u32 s{sT+3}, s{sT+3}, 3072             ; pitch
    v_lshrrev_b32 v{t0}, 3, v{vLane}
    v_add_u32 v{t0}, s{sT+4}, v{t0}
    v_mul_lo_u32 v{t0}, v{t0}, s{sT+3}
    v_and_b32 v{t1}, 7, v{vLane}
    v_lshl_add_u32 v{t0}, v{t1}, 4, v{t0}
    s_lshl_b32 s{sT+3}, s{sT+3}, 3
    """)

    def loads(b):
        for i in range(8):
            k(f"buffer_load_dwordx4 {vr(ACC+32*b+4*i,4)}, v{t0}, {sr(sWW,4)}, s{sT+1} offen")
            k(f"s_add_u32 s{sT+1}, s{sT+1}, s{sT+3}")

    def accum(b):
        for i in range(8):
            for r in range(4):
                src = ACC + 32 * b + 4 * i + r
                if i == 0 and b == 0:
                    k(f"v_lshlrev_b32 v{A+2*r}, 16, v{src}\nv_and_b32 v{A+2*r+1}, 0xffff0000, v{src}")
                else:
                    k(f"v_lshlrev_b32 v{t2}, 16, v{src}\nv_and_b32 v{t3}, 0xffff0000, v{src}\n"
                      f"v_pk_add_f32 {vr(A+2*r,2)}, {vr(A+2*r,2)}, {vr(t2,2)}")

    def reduce_write():
        regs = [A + i for i in range(8)]
        tm = [A + 8 + i for i in range(8)]
        for r in regs:
            k(f"v_add_f32_dpp v{r}, v{r}, v{r} row_ror:8 row_mask:0xf bank_mask:0xf")
        for sw in ("v_permlane16_swap_b32", "v_permlane32_swap_b32"):
            for r, t in zip(regs, tm):
                k(f"v_mov_b32 v{t}, v{r}")
            for r, t in zip(regs, tm):
                k(f"{sw} v{r}, v{t}")
            for r, t in zip(regs, tm):
                k(f"v_add_f32 v{r}, v{r}, v{t}")
        k(f"""
        s_lshl_b32 s{sT}, s{sW}, 8
        v_lshlrev_b32 v{t0}, 5, v{t1}
        v_add_u32 v{t0}, s{sT}, v{t0}
        ds_write_b128 v{t0}, {vr(A,4)}
        ds_write_b128 v{t0}, {vr(A+4,4)} offset:16
        s_waitcnt lgkmcnt(0)
        """)

    def publish(n):
        k(f"s_lshl_b32 s{sT}, s{sW}, 8\nv_lshlrev_b32 v{t0}, 2, v{vLane}\nv_add_u32 v{t0}, s{sT}, v{t0}")
        for i in range(n):
            k(f"ds_read_b32 v{A+i}, v{t0} offset:{256*i}")
        poll_tag(k, True)
        for i in range(1, n):
            k(f"v_add_f32 v{A}, v{A}, v{A+i}")
        k(f"""
        s_lshl_b32 s{sT}, s{sGU}, 9
        s_add_u32 s{sT}, s{sT}, {WS_CS}
        v_lshlrev_b32 v{t0}, 3, v{vLane}
        v_mov_b32 v{A+1}, v{vTag}
        buffer_store_dwordx2 {vr(A,2)}, v{t0}, {sr(sWS,4)}, s{sT} offen sc0 sc1
        """)
    loads(0)
    k(f"s_cmp_ge_u32 s{sW}, 8\ns_cbranch_scc1 k1_hq")
    k(f"s_setprio 2\nbuffer_load_dword v{vT+8}, v{vGA+2}, {sr(sDBG,4)}, 0 offen sc0 sc1")
    accum(0)
    reduce_write()
    k(f"s_barrier\ns_cmp_lg_u32 s{sW}, 0\ns_cbranch_scc1 k1_hz\nv_cmp_eq_u32 vcc, 0, v{vTag}\nv_cndmask_b32 v{vTag}, v{vTag}, v{vT+8}, vcc")
    publish(8)
    k.label("k1_hz")
    if FUSED:
        k("s_barrier")
    k("s_branch k1_hpre")
    k.label("k1_hq")
    loads(1)
    k("s_barrier")
    accum(0)
    accum(1)
    reduce_write()
    k(f"s_barrier\ns_cmp_lg_u32 s{sW}, 8\ns_cbranch_scc1 k1_hpre")
    publish(4)
    k.label("k1_hpre")
    if 'hwsp' in X:
        k(f"""
        s_load_dwordx2 {sr(sWI,2)}, s[0:1], {KA_WSP}
        s_mov_b32 s{sWI+2}, {2048*4096}
        s_lshr_b32 s{sT}, s2, 3
        s_mul_i32 s{sT}, s{sT}, 12
        s_add_u32 s{sT}, s{sT}, s{sW}
        s_min_u32 s{sT}, s{sT}, 42
        s_mul_i32 s{sT}, s{sT}, {6*8192}
        s_and_b32 s{sT+1}, s2, 3
        s_lshl_b32 s{sT+1}, s{sT+1}, 21
        s_add_u32 s{sT}, s{sT}, s{sT+1}
        v_lshlrev_b32 v{t0}, 7, v{vLane}
        s_sleep {os.environ.get('WSPD', '0')}
        s_waitcnt lgkmcnt(0)
        """)
        for i in range(6):
            k(f"buffer_load_dword v{ACC+i}, v{t0}, {sr(sWI,4)}, s{sT} offen\ns_add_u32 s{sT}, s{sT}, 8192")
    if FUSED:
        k(f"s_cmp_lg_u32 s{sW}, 8\ns_cbranch_scc1 k1_fin")
        poll_tag(k, True)
        k(f"s_mov_b32 s{sTagS}, s{sT}\nv_mov_b32 v{t0}, {L_TAG}\nds_write_b32 v{t0}, v{vTag}")
        if CLAIM:
            claim_id(k)


def gen_k1(k=None):
    if k is None:
        k = Kernel("k1_kernel")
    t0, t1, t2, t3 = vT, vT + 1, vT + 2, vT + 3
    stamp(k, 0)
    if STAMP:
        for i in (1, 2, 4, 5):
            k(f"s_mov_b64 {sr(64+2*i,2)}, s[64:65]")
    k(f"""
    s_cmp_ge_u32 s2, 256
    s_cbranch_scc1 {'fz_end' if FUSED else 'k1_end'}
    s_load_dwordx2 {sr(sXS,2)}, s[0:1], {KA_X}
    s_load_dwordx2 {sr(sWW,2)}, s[0:1], {KA_WQKV}
    s_load_dwordx2 {sr(sWI,2)}, s[0:1], {KA_WIN}
    s_load_dwordx2 {sr(sWS,2)}, s[0:1], {KA_WS}
    s_load_dwordx2 {sr(sDBG,2)}, s[0:1], {KA_DBG}
    s_memrealtime {sr(sT+14,2)}
    v_lshrrev_b32 v{t0}, 6, v0
    v_and_b32 v{vLane}, 63, v0
    v_readfirstlane_b32 s{sW}, v{t0}
    v_lshlrev_b32 v{vL16}, 4, v{vLane}
    s_mov_b32 s{sWS+2}, {WS_SIZE}
    s_mov_b32 s{sWS+3}, 0x00020000
    s_mov_b32 s{sXS+2}, {2048*1024}
    s_mov_b32 s{sXS+3}, 0x00020000
    s_mov_b32 s{sWW+2}, {512*3072}
    s_mov_b32 s{sWW+3}, 0x00020000
    s_mov_b32 s{sWI+2}, {512*3584}
    s_mov_b32 s{sWI+3}, 0x00020000
    s_mov_b32 s{sDBG+2}, 256
    s_mov_b32 s{sDBG+3}, 0x00020000
    s_mov_b32 s{sSpin}, 200000
    s_mov_b32 s{sTagS}, 0
    s_mov_b32 s98, 255
    s_and_b32 s{sT}, s2, 31
    s_lshl_b32 s{sT}, s{sT}, 2
    s_add_u32 s{sT}, s{sT}, 128
    v_mov_b32 v{vGA+2}, s{sT}
    s_cmp_lt_u32 s2, 32
    s_cbranch_scc1 k1_helper
    ; xcd = wg&7, j = (wg>>3) - 4 (0..27): rb = 4(xcd/2) + j/7, cg = 7(xcd%2) + j%7
    s_and_b32 s{sT}, s2, 7
    s_lshr_b32 s{sT+1}, s2, 3
    s_sub_u32 s{sT+1}, s{sT+1}, 4
    s_mul_i32 s{sT+5}, s{sT+1}, 37
    s_lshr_b32 s{sT+5}, s{sT+5}, 8
    s_mul_i32 s{sT+6}, s{sT+5}, 7
    s_sub_u32 s{sCG}, s{sT+1}, s{sT+6}
    s_and_b32 s{sT+2}, s2, 1
    s_mul_i32 s{sT+6}, s{sT+2}, 7
    s_add_u32 s{sCG}, s{sCG}, s{sT+6}
    s_lshr_b32 s{sRB}, s{sT}, 1
    s_lshl_b32 s{sRB}, s{sRB}, 2
    s_add_u32 s{sRB}, s{sRB}, s{sT+5}
    s_lshl_b32 s98, s{sRB}, 4
    s_add_u32 s98, s98, s{sCG}
    s_lshr_b32 s{sRH}, s{sW}, 2
    s_and_b32 s{sUn}, s{sW}, 3
    s_cmp_ge_u32 s{sW}, 8
    s_cbranch_scc1 k1_loader
    s_lshr_b32 s{sKind}, s{sCG}, 2
    s_cmp_eq_u32 s{sRH}, 0
    s_cselect_b32 s{sKind}, 4, s{sKind}
    s_add_u32 s{sT}, s{sCG}, 38
    s_add_u32 s{sT+1}, s{sCG}, 24
    s_lshl_b32 s{sT+2}, s{sCG}, 1
    s_add_u32 s{sT+3}, s{sT+2}, 1
    s_cmp_eq_u32 s{sRH}, 0
    s_cselect_b32 s{sT}, s{sT}, s{sT+2}
    s_cselect_b32 s{sT+1}, s{sT+1}, s{sT+3}
    s_lshl_b32 s{sCSo}, s{sT}, 9
    s_add_u32 s{sCSo}, s{sCSo}, {WS_CS}
    s_lshl_b32 s{sCSo+1}, s{sT+1}, 9
    s_add_u32 s{sCSo+1}, s{sCSo+1}, {WS_CS}
    s_lshl_b32 s{sT32}, s{sRB}, 2
    s_add_u32 s{sT32}, s{sT32}, s{sUn}
    v_and_b32 v{t0}, 31, v{vLane}
    v_and_b32 v{t1}, 0x13, v{t0}
    v_and_b32 v{t2}, 4, v{t0}
    v_lshl_or_b32 v{t1}, v{t2}, 1, v{t1}
    v_and_b32 v{t2}, 8, v{t0}
    v_lshrrev_b32 v{t2}, 1, v{t2}
    v_or_b32 v{t1}, v{t1}, v{t2}
    s_cmp_eq_u32 s{sKind}, 1
    s_cselect_b64 vcc, -1, 0
    v_cndmask_b32 v{t0}, v{t0}, v{t1}, vcc       ; tok
    v_lshrrev_b32 v{t1}, 5, v{vLane}             ; h
    v_bfe_u32 v{t2}, v{t0}, 1, 3
    v_xor_b32 v{t2}, v{t2}, v{t1}
    v_lshlrev_b32 v{t2}, 4, v{t2}
    v_lshl_add_u32 v{t2}, v{t0}, 7, v{t2}
    s_lshl_b32 s{sT}, s{sUn}, 12
    v_add_u32 v{vAX}, s{sT}, v{t2}
    v_xor_b32 v{vAX+1}, 32, v{vAX}
    v_xor_b32 v{vAX+2}, 64, v{vAX}
    v_xor_b32 v{vAX+3}, 96, v{vAX}
    s_lshl_b32 s{sT}, s{sUn if 'lrs' in X else sT32}, {7 if 'lrs' in X else 9}
    s_add_u32 s{sT}, s{sT}, {L_RS if 'lrs' in X else WS_RS}
    v_lshlrev_b32 v{t0}, {2 if 'lrs' in X else 4}, v{t0}
    v_add_u32 v{vGA}, s{sT}, v{t0}
    v_lshlrev_b32 v{vGA+1}, 3, v{vLane}
    v_bfe_u32 v{t0}, v{vLane}, 2, 2
    v_lshl_add_u32 v{t1}, v{t1}, 3, v{t0}
    v_bfe_u32 v{t2}, v{vLane}, 4, 1
    v_lshlrev_b32 v{t2}, 1, v{t2}
    v_and_b32 v{t3}, 1, v{vLane}
    v_or_b32 v{t2}, v{t2}, v{t3}
    v_lshlrev_b32 v{t0}, 1, v{t0}
    v_and_b32 v{t0}, 4, v{t0}
    v_xor_b32 v{t2}, v{t2}, v{t0}
    v_lshlrev_b32 v{t2}, 4, v{t2}
    v_lshl_add_u32 v{t2}, v{t1}, 7, v{t2}
    v_bfe_u32 v{t3}, v{vLane}, 1, 1
    v_lshl_add_u32 v{t2}, v{t3}, 3, v{t2}
    v_add_u32 v{vAW}, {O_W}, v{t2}
    v_xor_b32 v{vAW+1}, 64, v{vAW}
    s_lshl_b32 s{sT+1}, s{sUn}, 12
    s_cmp_eq_u32 s{sRH}, 0
    s_cselect_b32 s{sT+2}, {L_IMG}, 0
    s_add_u32 s{sT+1}, s{sT+1}, s{sT+2}
    """)
    epi_addr(k)
    k(f"""
    s_waitcnt lgkmcnt(0)
    s_cmp_eq_u32 s{sRH}, 0
    s_cbranch_scc1 k1_main
    """)
    if 'lrs' in X:
        row_stats(k)
    else:
        k(f"v_lshlrev_b32 v{t0}, 2, v{vLane}\nv_and_b32 v{t0}, 127, v{t0}\nv_mov_b32 v{t1}, 0\nds_write_b32 v{t0}, v{t1} offset:{L_CNT - 131072}" .replace(f"v_and_b32 v{t0}, 127, v{t0}", f"v_and_b32 v{t0}, 127, v{t0}\nv_add_u32 v{t0}, 131072, v{t0}"))
        for i in range(8):
            k("s_waitcnt lgkmcnt(0)\ns_barrier")
            CA = int(os.environ.get('CLA', '1'))
            if i == CA and FUSED and CLAIM:
                k(f"s_cmp_lg_u32 s{sW}, 5\ns_cbranch_scc1 k1_noclaim")
                claim_id(k, "a")
                k.label("k1_noclaim")
            if 'wqp' in X and i == int(os.environ.get('WQP', '3')):
                k(f"""
                s_and_b32 s{sT+8}, s{sRB}, 3
                s_lshl_b32 s{sT+8}, s{sT+8}, 2
                s_add_u32 s{sT+8}, s{sT+8}, s{sUn}
                s_mul_i32 s{sT+8}, s{sT+8}, {32*3072}
                s_lshl_b32 s{sT+9}, s{sCG}, 8
                s_add_u32 s{sT+8}, s{sT+8}, s{sT+9}
                v_lshrrev_b32 v6, 1, v{vLane}
                v_mul_u32_u24 v6, 3072, v6
                v_and_b32 v7, 1, v{vLane}
                v_lshl_add_u32 v6, v7, 7, v6
                buffer_load_dword v7, v6, {sr(sWW,4)}, s{sT+8} offen
                """)
            if i == 2:
                k(f"buffer_load_dword v{vTag}, v{vGA+2}, {sr(sDBG,4)}, 0 offen sc0 sc1")
            W0 = int(os.environ.get('WSP0', '4'))
            if 'qwsp' in X and i == W0:
                k(f"""
                s_load_dwordx2 {sr(sWI,2)}, s[0:1], {KA_WSP}
                s_mov_b32 s{sWI+2}, {2048*4096}
                s_lshr_b32 s{sT+8}, s2, 3
                s_sub_u32 s{sT+8}, s{sT+8}, 4
                s_lshl_b32 s{sT+8}, s{sT+8}, 2
                s_add_u32 s{sT+8}, s{sT+8}, s{sUn}
                s_min_u32 s{sT+8}, s{sT+8}, 85
                s_mul_i32 s{sT+8}, s{sT+8}, {3*8192}
                s_and_b32 s{sT+9}, s2, 3
                s_lshl_b32 s{sT+9}, s{sT+9}, 21
                s_add_u32 s{sT+8}, s{sT+8}, s{sT+9}
                v_lshlrev_b32 v6, 7, v{vLane}
                s_waitcnt lgkmcnt(0)
                """)
            if 'qwsp' in X and W0 <= i < W0 + 3:
                k(f"buffer_load_dword v{vGR+i-W0}, v6, {sr(sWI,4)}, s{sT+8} offen\ns_add_u32 s{sT+8}, s{sT+8}, 8192")
            if i == 3:
                L = k.newlabel("notag")
                k(f"s_cmp_lg_u32 s{sW}, 4\ns_cbranch_scc1 {L}")
                poll_tag(k, True)
                k(f"v_mov_b32 v{t0}, {L_TAG}\nds_write_b32 v{t0}, v{vTag}\n{L}:")
    k(f"s_cmp_ge_u32 s{sCG}, 12\ns_cbranch_scc1 k1_fin0\ns_setprio {0 if 'zprio' in X else 2}")
    if FREE:
        main_loop(k, False, True)
        stamp(k, 2)
        k("s_branch k1_q")
        k.label("k1_main")
        main_loop(k, 'noz1' in X)
        stamp(k, 2)
    else:
        k.label("k1_main")
        main_loop(k)
        stamp(k, 2)
        k(f"s_cmp_eq_u32 s{sRH}, 0\ns_cbranch_scc0 k1_q")
    z_epilogue(k)
    k("s_branch k1_fin")
    k.label("k1_q")
    q_epilogue(k)
    k("s_branch k1_clb")
    k.label("k1_loader")
    loader(k)
    stamp(k, 2)
    k("s_branch k1_fin")
    k.label("k1_helper")
    if FUSED and 'cp' in X:
        k(f"""
        s_getpc_b64 {sr(sT+10,2)}
        k1_pc:
        s_sub_u32 s{sT+10}, s{sT+10}, k1_pc-fz_kernel
        s_subb_u32 s{sT+11}, s{sT+11}, 0
        s_lshr_b32 s{sT+4}, s2, 3
        s_mul_i32 s{sT+4}, s{sT+4}, 12
        s_add_u32 s{sT+4}, s{sT+4}, s{sW}
        s_cmp_ge_u32 s{sT+4}, (fz_end-fz_kernel+1023)/1024
        s_cbranch_scc1 k1_nocp
        s_lshl_b32 s{sT+4}, s{sT+4}, 10
        v_lshlrev_b32 v{t0}, 4, v{vLane}
        v_add_u32 v{t0}, s{sT+4}, v{t0}
        v_min_u32 v{t0}, fz_end-fz_kernel, v{t0}
        global_load_dword v{vGA+1}, v{t0}, {sr(sT+10,2)}
        k1_nocp:
        """)
    k(f"""
    s_waitcnt lgkmcnt(0)
    v_mov_b32 v{vTag}, 0
    s_or_b32 s{sT+4}, s2, s{sW}
    s_cmp_lg_u32 s{sT+4}, 0
    s_cbranch_scc1 k1_nonce_done
    s_or_b32 s{sT+14}, s{sT+14}, 1
    v_mov_b32 v{vTag}, s{sT+14}
    v_lshlrev_b32 v{t3}, 2, v{vLane}
    buffer_store_dword v{vTag}, v{t3}, {sr(sDBG,4)}, 0 offen offset:128 sc0 sc1
    k1_nonce_done:
    """)
    if 'sweep' in X:
        k(f"""
        s_mul_i32 s{sT}, s2, 12
        s_add_u32 s{sT}, s{sT}, s{sW}
        s_lshl_b32 s{sT+1}, s{sT}, 13
        v_lshlrev_b32 v{t0}, 7, v{vLane}
        s_sub_u32 s{sT+2}, {383*8192}, s{sT+1}
        buffer_load_dword v{vT+9}, v{t0}, {sr(sXS,4)}, s{sT+2} offen
        """)
    helper(k)
    k("s_branch k1_fin")
    k.label("k1_fin0")
    k("s_waitcnt lgkmcnt(0)\ns_barrier")
    if FUSED and not FREE:
        for t in range(7):
            k("s_barrier")
    k.label("k1_clb")
    if FUSED and CLAIM:
        k(f"s_cmp_lg_u32 s{sW}, 5\ns_cbranch_scc1 k1_fin")
        claim_id(k, "b")
    k.label("k1_fin")
    if STAMP:
        k("s_waitcnt vmcnt(0)")
    stamp(k, 3)
    stamp_store(k, 6)
    if FUSED:
        return k
    k("""
    k1_end:
    s_endpgm
    """)
    k.finish()
    return k


if __name__ == "__main__":
    import sys
    STAMP = "stamp" in sys.argv
    k = gen_k1()
    print(build_file("; test", [("k1_kernel", 256, 768, LDS_K1)], [k]))
```
